```python
import torch

def _softmax(x, axis=-1):
    return torch.softmax(x, dim=axis)

def _gelu(x):
    return torch.nn.functional.gelu(x, approximate='tanh')

def _silu(x):
    return torch.nn.functional.silu(x)

def _sigmoid(x):
    return torch.sigmoid(x)

def _layernorm(x, axis=-1, eps=1e-05):
    m = x.mean(dim=axis, keepdim=True)
    v = x.var(dim=axis, keepdim=True, unbiased=False)
    return (x - m) / torch.sqrt(v + eps)

def _scatter_add(tgt, idx, src, axis=0):
    return tgt.clone().index_add_(axis, idx, src)

def _segment_sum(src, seg, n):
    out = torch.zeros((n,) + src.shape[1:], dtype=src.dtype)
    return out.index_add_(0, seg, src)

def _pad(x, pw):
    flat = tuple((v for pair in reversed(pw) for v in pair))
    return torch.nn.functional.pad(x, flat)
kernel_name = 'adaLN_cond__ssm_conv_s4__glu_gated_swiglu__prompt'

def setup_inputs():

    _w = lambda a: (lambda t: t.to(torch.bfloat16) if t.is_floating_point() else t)(torch.as_tensor(a))

    def _A_setup():
        B, L, D, N = (1, 2048, 576, 128)
        A_re = -(lambda _x: torch.exp(torch.as_tensor(_x)))((lambda *s: torch.randn(*s, dtype=torch.bfloat16) * 3.2)(D, N))
        A_im = torch.pi * (lambda *s: torch.randn(*s, dtype=torch.bfloat16) * 0.1)(D, N)
        B_re = (lambda *s: torch.randn(*s, dtype=torch.bfloat16) * 0.1)(D, N)
        B_im = (lambda *s: torch.randn(*s, dtype=torch.bfloat16) * 0.1)(D, N)
        C_re = (lambda *s: torch.randn(*s, dtype=torch.bfloat16) * 0.1)(D, N)
        C_im = (lambda *s: torch.randn(*s, dtype=torch.bfloat16) * 0.1)(D, N)
        log_dt = (lambda *s: torch.randn(*s, dtype=torch.bfloat16) * 0.1)(D) * 0.5 - 4.0
        Dskip = (lambda *s: torch.randn(*s, dtype=torch.bfloat16) * 0.1)(D)
        return {'u': _w((lambda *s: torch.randn(*s, dtype=torch.bfloat16) * 0.05)(B, L, D)), 'A_re': _w(A_re), 'A_im': _w(A_im), 'B_re': _w(B_re), 'B_im': _w(B_im), 'C_re': _w(C_re), 'C_im': _w(C_im), 'log_dt': _w(log_dt), 'Dskip': _w(Dskip)}
    _A_in = _A_setup()

    def _B_setup():
        B, S, D, F = (1, 2048, 576, 4608)
        return {'x': _w((lambda *s: torch.randn(*s, dtype=torch.bfloat16) * 0.05)(B, S, D)), 'w1': _w((lambda *s: torch.randn(*s, dtype=torch.bfloat16) * 1.6)(D, F) * (2.0 / D) ** 0.5), 'w3': _w((lambda *s: torch.randn(*s, dtype=torch.bfloat16) * 1.6)(D, F) * (2.0 / D) ** 0.5), 'w2': _w((lambda *s: torch.randn(*s, dtype=torch.bfloat16) * 1.6)(F, D) * (2.0 / F) ** 0.5)}
    _B_in = _B_setup()
    return {'A_u': _A_in['u'], 'A_A_re': _A_in['A_re'], 'A_A_im': _A_in['A_im'], 'A_B_re': _A_in['B_re'], 'A_B_im': _A_in['B_im'], 'A_C_re': _A_in['C_re'], 'A_C_im': _A_in['C_im'], 'A_log_dt': _A_in['log_dt'], 'A_Dskip': _A_in['Dskip'], 'B_x': _B_in['x'], 'B_w1': _B_in['w1'], 'B_w3': _B_in['w3'], 'B_w2': _B_in['w2'], 'c': _w((lambda *s: torch.randn(*s, dtype=torch.bfloat16) * 0.4)(1, 576) * 8.0), 'w_mod': _w((lambda *s: torch.randn(*s, dtype=torch.bfloat16) * 0.4)(576, 6 * 576) * 576 ** (-0.5) * 8.0)}

def reference(A_u, A_A_re, A_A_im, A_B_re, A_B_im, A_C_re, A_C_im, A_log_dt, A_Dskip, B_x, B_w1, B_w3, B_w2, c, w_mod):

    def _A_ref(u, A_re, A_im, B_re, B_im, C_re, C_im, log_dt, Dskip):
        Bsz, L, D = u.shape
        dt = torch.exp(log_dt)[:, None]
        A = A_re + 1j * A_im
        Bc = B_re + 1j * B_im
        Cc = C_re + 1j * C_im
        logdA = dt * A
        dB = dt * Bc
        l = (lambda x, dt: x.to(dt))(torch.arange(L), A_re.dtype)
        P = torch.exp(logdA[:, :, None] * l[None, None, :])
        K = torch.einsum('dn,dnl,dn->dl', Cc, P, dB).real
        L2 = 2 * L
        Kp = _pad(K, ((0, 0), (0, L)))
        up = (lambda x, *d: x.permute(*d))(u, 0, 2, 1)
        up = _pad(up, ((0, 0), (0, 0), (0, L)))
        Kf = (lambda x, axes=(-2, -1): torch.fft.rfft2(x.float(), dim=axes))(Kp[:, None, :], axes=(-2, -1))
        Uf = (lambda x, axes=(-2, -1): torch.fft.rfft2(x.float(), dim=axes))(up[:, :, None, :], axes=(-2, -1))
        Yf = Uf * Kf[None, :, :, :]
        y = (lambda x, s, axes=(-2, -1): torch.fft.irfft2(x, s=s, dim=axes).to(torch.bfloat16))(Yf, (1, L2), axes=(-2, -1))[:, :, 0, :L]
        y = (lambda x, *d: x.permute(*d))(y, 0, 2, 1) + u * Dskip[None, None, :]
        return y

    def _B_ref(x, w1, w3, w2):
        gate = torch.einsum('bsd,df->bsf', x, w1)
        up = torch.einsum('bsd,df->bsf', x, w3)
        h = _silu(gate) * up
        out = torch.einsum('bsf,fd->bsd', h, w2)
        return out
    x = A_u
    mod = (_silu(c) @ w_mod).reshape(c.shape[0], 6, 1, -1)
    sa, ca, ga, sb, cb, gb = (mod[:, 0].clone(), mod[:, 1].clone(), mod[:, 2].clone(), mod[:, 3].clone(), mod[:, 4].clone(), mod[:, 5].clone())
    h = _layernorm(x, axis=-1) * (1 + ca) + sa
    x = x + ga * _A_ref(h, A_A_re, A_A_im, A_B_re, A_B_im, A_C_re, A_C_im, A_log_dt, A_Dskip)
    h = _layernorm(x, axis=-1) * (1 + cb) + sb
    x = x + gb * _B_ref(h, B_w1, B_w3, B_w2)
    return x
```

```python
import re

REG_RE = re.compile(r'^(-|\|)?(abs\()?([vas])(?:(\d+)|\[(\d+):(\d+)\])\)?\|?$')
TRANS = ('v_exp_f32', 'v_log_f32', 'v_rcp_f32', 'v_rsq_f32', 'v_sqrt_f32', 'v_sin_f32', 'v_cos_f32', 'v_rcp_iflag_f32')

def regs_of(tok):
    tok = tok.strip()
    if tok in ('vcc', 'exec', 'm0', 'scc'): return {(tok, 0)}
    if tok in ('vcc_lo', 'vcc_hi'): return {('vcc', 0)}
    if tok in ('exec_lo', 'exec_hi'): return {('exec', 0)}
    m = REG_RE.match(tok)
    if not m: return set()
    k = m.group(3)
    if m.group(4) is not None: return {(k, int(m.group(4)))}
    return {(k, i) for i in range(int(m.group(5)), int(m.group(6)) + 1)}

def mfma_passes(mn):
    if '32x32x16' in mn or '32x32x8' in mn: return 8
    if '16x16x32' in mn or '16x16x16' in mn: return 4
    if '32x32x2_f32' in mn: return 16
    if '16x16x4_f32' in mn: return 8
    raise ValueError(mn)

class Ins:
    __slots__ = ('text', 'mn', 'kind', 'dst', 'src', 'srcC', 'passes', 'dpp', 'store_wide', 'data', 'states')

def classify(text):
    t = text.split(';')[0].strip()
    parts = t.split(None, 1)
    mn = parts[0]
    ops = [o.strip() for o in parts[1].split(',')] if len(parts) > 1 else []
    mods = ''
    if ops:
        lastp = ops[-1].split(None, 1)
        ops[-1] = lastp[0]
        if len(lastp) > 1: mods = lastp[1]
    I = Ins(); I.text = text; I.mn = mn; I.dst = set(); I.src = set(); I.srcC = set(); I.passes = 0
    I.dpp = False; I.store_wide = False; I.data = set(); I.states = 1
    R = lambda i: regs_of(ops[i]) if i < len(ops) else set()
    allsrc = lambda a: set().union(*[regs_of(o) for o in ops[a:]]) if len(ops) > a else set()
    if mn == 's_nop':
        I.kind = 'nop'; I.states = int(ops[0], 0) + 1
    elif mn.startswith('v_mfma'):
        I.kind = 'mfma'; I.dst = R(0); I.src = R(1) | R(2); I.srcC = R(3); I.passes = mfma_passes(mn)
    elif mn.startswith('v_'):
        I.kind = 'valu'
        if mn in TRANS or mn.replace('_e32', '').replace('_e64', '') in TRANS: I.kind = 'trans'
        base = mn.replace('_e32', '').replace('_e64', '')
        if base.startswith('v_cmpx'):
            I.dst = R(0) | {('exec', 0)}; I.src = allsrc(1)
        elif base.startswith('v_cmp'):
            I.dst = R(0); I.src = allsrc(1)
        elif base in ('v_add_co_u32', 'v_sub_co_u32', 'v_subrev_co_u32'):
            I.dst = R(0) | R(1); I.src = allsrc(2)
        elif base in ('v_addc_co_u32', 'v_subb_co_u32'):
            I.dst = R(0) | R(1); I.src = allsrc(2)
        elif base.startswith('v_permlane') and 'swap' in base:
            I.dst = R(0) | R(1); I.src = R(0) | R(1); I.dpp = True
        elif base in ('v_fmac_f32', 'v_pk_fmac_f16', 'v_fmac_f16', 'v_dot2c_f32_bf16', 'v_dot2c_f32_f16'):
            I.dst = R(0); I.src = allsrc(0)
        elif base == 'v_cndmask_b32':
            I.dst = R(0); I.src = allsrc(1)
            if len(ops) == 3: I.src |= {('vcc', 0)}
        elif base == 'v_writelane_b32':
            I.dst = R(0); I.src = allsrc(0)
        else:
            I.dst = R(0); I.src = allsrc(1)
        if 'quad_perm' in mods or 'row_' in mods or 'wave_' in mods or 'dpp' in mn: I.dpp = True
        if 'dst_sel' in mods and 'UNUSED_PRESERVE' in mods: I.src |= R(0)
        I.src |= {('exec', 0)}
    elif mn.startswith('ds_'):
        I.kind = 'ds'
        if mn.startswith('ds_read') or mn.startswith('ds_bpermute') or mn.startswith('ds_permute') or mn.startswith('ds_swizzle'):
            I.dst = R(0); I.src = allsrc(1)
        elif '_rtn' in mn:
            I.dst = R(0); I.src = allsrc(1)
        else:
            I.src = allsrc(0)
    elif mn.startswith('buffer_') or mn.startswith('global_'):
        I.kind = 'vmem'
        islds = ' lds' in (' ' + mods) or mn.startswith('global_load_lds')
        if 'load' in mn and not islds:
            I.dst = R(0); I.src = allsrc(1)
        elif islds:
            I.src = allsrc(0) | {('m0', 0)}
        elif 'store' in mn:
            I.src = allsrc(0)
            I.data = R(0) if mn.startswith('buffer_') else R(1)
            if 'x3' in mn or 'x4' in mn: I.store_wide = True
        elif 'atomic' in mn:
            I.src = allsrc(0)
            if 'sc0' in mods: I.dst = R(0)
        elif mn in ('buffer_wbl2', 'buffer_inv'):
            pass
        else:
            raise ValueError(text)
    elif mn.startswith('s_'):
        I.kind = 'salu'
        if mn.startswith('s_cmp') or mn.startswith('s_cbranch') or mn in ('s_branch', 's_barrier', 's_waitcnt', 's_endpgm', 's_setprio', 's_sleep', 's_bitcmp0_b32', 's_bitcmp1_b32'):
            I.src = allsrc(0)
        else:
            I.dst = R(0); I.src = allsrc(1)
            if 'saveexec' in mn: I.dst |= {('exec', 0)}
    else:
        raise ValueError('unknown instr ' + text)
    return I

class Asm:
    def __init__(self):
        self.lines = []
        self.hist = []
        self.nops = 0
        self.count = 0
    def raw(self, text): self.lines.append(text)
    def comment(self, c): self.lines.append('    ; ' + c)
    def _need(self, I):
        need = 0
        dist = 0
        for P in reversed(self.hist):
            req = 0
            vd = {r for r in P.dst if r[0] in 'va'}
            rd = I.src | I.srcC
            if P.kind in ('valu', 'trans'):
                if I.kind == 'mfma' and (vd & rd): req = max(req, 2)
                if I.kind == 'mfma' and ('exec', 0) in P.dst: req = max(req, 4)
                if P.kind == 'trans' and I.kind in ('valu', 'trans') and (vd & I.src): req = max(req, 1)
                sd = {r for r in P.dst if r[0] in ('s', 'vcc')}
                if sd:
                    if I.kind in ('valu', 'trans') and (sd & I.src):
                        req = max(req, 4 if I.mn.startswith(('v_readlane', 'v_writelane')) else 2)
                    if I.kind == 'vmem' and (sd & I.src): req = max(req, 5)
                if I.mn.startswith(('v_readfirstlane', 'v_readlane')) and (vd & I.src): req = max(req, 1)
                if I.dpp and (vd & I.src): req = max(req, 2)
                if ('exec', 0) in P.dst:
                    if I.dpp: req = max(req, 5)
                    if I.mn.startswith(('v_readlane', 'v_readfirstlane', 'v_writelane')): req = max(req, 4)
            if P.kind == 'mfma':
                p = P.passes
                t1 = {2: 5, 4: 8, 8: 12, 16: 20}[p]
                if I.kind == 'mfma':
                    if P.dst & I.src: req = max(req, t1)
                    if P.dst & I.srcC:
                        if not (P.dst == I.srcC and P.passes == I.passes): req = max(req, {2: 4, 4: 6, 8: 10, 16: 18}[p])
                    if (P.dst & I.dst) and not (P.dst == I.dst and P.dst == I.srcC):
                        req = max(req, t1)
                else:
                    if P.dst & (I.src | I.dst): req = max(req, t1)
                if I.kind in ('valu', 'trans') and (P.srcC & I.dst): req = max(req, {2: 1, 4: 3, 8: 7, 16: 15}[p])
            if P.kind == 'vmem' and P.store_wide and (P.data & I.dst):
                req = max(req, 2 if I.kind in ('valu', 'trans') else 1)
            if P.kind == 'salu' and ('m0', 0) in P.dst and I.kind == 'vmem' and ('m0', 0) in I.src: req = max(req, 1)
            if P.kind == 'salu' and ('exec', 0) in P.dst and I.dpp: req = max(req, 0)
            need = max(need, req - dist)
            dist += P.states
            if dist >= 20: break
        return need
    def _nop(self, n):
        while n > 0:
            k = min(n, 16)
            I = classify(f's_nop {k-1}')
            self.lines.append(f'    s_nop {k-1}')
            self.hist.append(I); self.nops += 1
            n -= k
    def __call__(self, text):
        for t in text.strip().split('\n'):
            t = t.strip()
            if not t or t.startswith(';'):
                if t: self.lines.append('    ' + t)
                continue
            I = classify(t)
            n = self._need(I)
            if n: self._nop(n)
            self.lines.append('    ' + t)
            self.hist.append(I); self.count += 1
            if len(self.hist) > 40: self.hist = self.hist[-24:]
            if I.mn.startswith('s_cbranch') or I.mn == 's_branch':
                pass
    def flush(self):
        need = 0; dist = 0
        for P in reversed(self.hist):
            req = 0
            if P.kind == 'mfma': req = {2: 5, 4: 8, 8: 12, 16: 20}[P.passes]
            elif P.kind in ('valu', 'trans'): req = 5 if any(r[0] in ('s', 'vcc', 'exec') for r in P.dst) else 2
            elif P.kind == 'vmem' and P.store_wide: req = 2
            elif P.kind == 'salu' and ('m0', 0) in P.dst: req = 1
            need = max(need, req - dist); dist += P.states
            if dist >= 20: break
        if need > 0: self._nop(need)
    def label(self, name):
        self.flush()
        self.lines.append(f'{name}:')
        self.hist = []
    def branch(self, text):
        self.flush()
        self(text)
    def text(self): return '\n'.join(self.lines) + '\n'

def kernel_header(name):
    return f""".text
.globl {name}
.p2align 8
.type {name},@function
{name}:
"""
def kernel_desc(name, vgpr, sgpr=102, accum=None, nptr=18):
    if accum is None: accum = min(256, (vgpr + 3) // 4 * 4)
    return f""".section .rodata,"a"
.p2align 6
.amdhsa_kernel {name}
  .amdhsa_next_free_vgpr {vgpr}
  .amdhsa_next_free_sgpr {sgpr}
  .amdhsa_accum_offset {accum}
  .amdhsa_group_segment_fixed_size 0
  .amdhsa_kernarg_size {nptr*8}
  .amdhsa_user_sgpr_count 2
  .amdhsa_user_sgpr_kernarg_segment_ptr 1
  .amdhsa_system_sgpr_workgroup_id_x 1
  .amdhsa_float_denorm_mode_32 3
.end_amdhsa_kernel
"""
```

```python
import sys
sys.path.insert(0, 'work')
from asmgen import *

NAME = 'adaLN_cond__ssm_conv_s4__glu_gated_swiglu__prompt'
KA = dict(u=0, A_re=8, A_im=16, B_re=24, B_im=32, C_re=40, C_im=48, log_dt=56, Dskip=64, x=72, w1=80, w3=88, w2=96, c=104, wmod=112, out=120, dbg=128, ws=136)
WS_MOD = 0x000000; SZ_MOD = 3456 * 4
RK_STRIDE = 8320
WS_RK = 0x4000000; SZ_RK = 576 * RK_STRIDE
XT_STRIDE = 18560
WS_XT = 0x280000; SZ_XT = 256 * XT_STRIDE
X1T_STRIDE = 4224
WS_X1T = 0x720000; SZ_X1T = 576 * X1T_STRIDE
WS_XF = 0x980000; SZ_XF = 64 * 36 * 1024
WS_X1 = 0xBC0000; SZ_X1 = 2048 * 1152
WS_HH = 0xE00000; SZ_HH = 144 * 128 * 1024
WS_PART = 0x2000000; SZ_PART = 4 * 2048 * 576 * 4
LOG2E = 1.4426950408889634
KSCALE_LOG2 = 10

def f32bits(x):
    import struct
    return '0x%08x' % struct.unpack('<I', struct.pack('<f', x))[0]

def load_ptr(a, s, name):
    a(f's_load_dwordx2 s[{s}:{s+1}], s[0:1], {KA[name]}')

def make_srd(a, s, size, add=0):
    if add:
        a(f's_add_u32 s{s}, s{s}, {hex(add)}')
        a(f's_addc_u32 s{s+1}, s{s+1}, 0')
    a(f's_mov_b32 s{s+2}, {hex(size)}')
    a(f's_mov_b32 s{s+3}, 0x20000')

def copy_srd(a, dst, src_ptr, size, add):
    a(f's_add_u32 s{dst}, s{src_ptr}, {hex(add)}')
    a(f's_addc_u32 s{dst+1}, s{src_ptr+1}, 0')
    a(f's_mov_b32 s{dst+2}, {hex(size)}')
    a(f's_mov_b32 s{dst+3}, 0x20000')

def red_l8(a, v, tmp):
    a(f'v_add_f32_dpp v{v}, v{v}, v{v} row_ror:8 row_mask:0xf bank_mask:0xf')
    a(f'v_mov_b32 v{tmp}, v{v}')
    a(f'v_permlane16_swap_b32 v{v}, v{tmp}')
    a(f'v_add_f32 v{v}, v{v}, v{tmp}')
    a(f'v_mov_b32 v{tmp}, v{v}')
    a(f'v_permlane32_swap_b32 v{v}, v{tmp}')
    a(f'v_add_f32 v{v}, v{v}, v{tmp}')

def red_l8_multi(a, vs, tmps):
    for v in vs: a(f'v_add_f32_dpp v{v}, v{v}, v{v} row_ror:8 row_mask:0xf bank_mask:0xf')
    for v, t in zip(vs, tmps): a(f'v_mov_b32 v{t}, v{v}')
    for v, t in zip(vs, tmps): a(f'v_permlane16_swap_b32 v{v}, v{t}')
    for v, t in zip(vs, tmps): a(f'v_add_f32 v{v}, v{v}, v{t}')
    for v, t in zip(vs, tmps): a(f'v_mov_b32 v{t}, v{v}')
    for v, t in zip(vs, tmps): a(f'v_permlane32_swap_b32 v{v}, v{t}')
    for v, t in zip(vs, tmps): a(f'v_add_f32 v{v}, v{v}, v{t}')

def unpack_lo(a, dst, src): a(f'v_lshlrev_b32 v{dst}, 16, v{src}')
def unpack_hi(a, dst, src): a(f'v_and_b32 v{dst}, 0xffff0000, v{src}')

def round_bf16_1(a, dst, src):
    a(f'v_cvt_pk_bf16_f32 v{dst}, v{src}, v{src}')
    a(f'v_lshlrev_b32 v{dst}, 16, v{dst}')

def cmul(a, d, x, y):
    a(f'v_pk_mul_f32 v[{d}:{d+1}], v[{x}:{x+1}], v[{y}:{y+1}] op_sel:[0,0] op_sel_hi:[0,1]')
    a(f'v_pk_fma_f32 v[{d}:{d+1}], v[{x}:{x+1}], v[{y}:{y+1}], v[{d}:{d+1}] op_sel:[1,1,0] op_sel_hi:[1,0,1] neg_lo:[1,0,0]')

import os
STAMPS = os.environ.get('STAMPS', '')
def stamp(a, i, kern):
    if kern not in STAMPS: return
    a('s_waitcnt lgkmcnt(0)')
    a('s_memrealtime s[88:89]' if os.environ.get('RT') else 's_memtime s[88:89]')
    a('s_waitcnt lgkmcnt(0)')
    a(f's_mov_b32 s{90+i}, s88')
def dump_stamps(a, n, kern, wg):
    if kern not in STAMPS: return
    lab = f'STAMP_SKIP_{kern}'
    a(f's_cmp_eq_u32 s2, {wg}'); a.branch(f's_cbranch_scc0 {lab}')
    a(f's_load_dwordx2 s[84:85], s[0:1], {KA["dbg"]}')
    a('s_waitcnt lgkmcnt(0)')
    a('s_mov_b32 s86, 256'); a('s_mov_b32 s87, 0x20000')
    a('v_readfirstlane_b32 s83, v0'); a('s_lshr_b32 s83, s83, 6'); a('s_lshl_b32 s83, s83, 5')
    a('s_mov_b64 exec, 1')
    for i in range(n):
        a(f's_sub_u32 s82, s{90+i}, s90')
        a('v_mov_b32 v60, s82'); a(f'v_mov_b32 v61, s83')
        a(f'buffer_store_dword v60, v61, s[84:87], 0 offen offset:{4*i}')
    a.label(lab)
```

```python
from gen_common import *

def ln_core(a, nch, xp, xf, tmp, nw, v_redw, v_redr, red_off, out_xn):
    n = 8 * nch
    for i in range(4 * nch):
        unpack_lo(a, xf + 2 * i, xp + i); unpack_hi(a, xf + 2 * i + 1, xp + i)
    s = tmp; t1 = tmp + 1
    for k in range(4): a(f'v_add_f32 v{tmp+2+k}, v{xf+k}, v{xf+4+k}')
    for i in range(8, n):
        a(f'v_add_f32 v{tmp+2+(i%4)}, v{tmp+2+(i%4)}, v{xf+i}')
    a(f'v_add_f32 v{tmp+2}, v{tmp+2}, v{tmp+3}')
    a(f'v_add_f32 v{tmp+4}, v{tmp+4}, v{tmp+5}')
    a(f'v_add_f32 v{s}, v{tmp+2}, v{tmp+4}')
    red_l8(a, s, t1)
    a(f'ds_write_b32 v{v_redw}, v{s} offset:{red_off}')
    a('s_waitcnt lgkmcnt(0)')
    a('s_barrier')
    def gather(off):
        for w in range(nw): a(f'ds_read_b32 v{tmp+2+w}, v{v_redr} offset:{off + w*32}')
        a('s_waitcnt lgkmcnt(0)')
        for w in range(1, nw): a(f'v_add_f32 v{tmp+2}, v{tmp+2}, v{tmp+2+w}')
    gather(red_off)
    mean = tmp
    a(f'v_mul_f32 v{mean}, {f32bits(1.0/576)}, v{tmp+2}')
    acc = [tmp + 2 + k for k in range(4)]
    d = tmp + 6
    for i in range(n):
        a(f'v_sub_f32 v{d + (i%4)}, v{xf+i}, v{mean}')
        if i < 4: a(f'v_mul_f32 v{acc[i]}, v{d+i}, v{d+i}')
        else: a(f'v_fmac_f32 v{acc[i%4]}, v{d+(i%4)}, v{d+(i%4)}')
    a(f'v_add_f32 v{acc[0]}, v{acc[0]}, v{acc[1]}')
    a(f'v_add_f32 v{acc[2]}, v{acc[2]}, v{acc[3]}')
    a(f'v_add_f32 v{t1}, v{acc[0]}, v{acc[2]}')
    red_l8(a, t1, tmp + 6)
    off2 = red_off + nw * 32
    a(f'ds_write_b32 v{v_redw}, v{t1} offset:{off2}')
    round_bf16_1(a, mean, mean)
    a('s_waitcnt lgkmcnt(0)')
    a('s_barrier')
    gather(off2)
    r = tmp + 1
    a(f'v_mul_f32 v{r}, {f32bits(1.0/576)}, v{tmp+2}')
    round_bf16_1(a, r, r)
    a(f'v_add_f32 v{r}, {f32bits(1e-5)}, v{r}')
    round_bf16_1(a, r, r)
    a(f'v_sqrt_f32 v{r}, v{r}')
    round_bf16_1(a, r, r)
    a(f'v_rcp_f32 v{r}, v{r}')
    for i in range(n): a(f'v_sub_f32 v{xf+i}, v{xf+i}, v{mean}')
    for i in range(4 * nch): a(f'v_cvt_pk_bf16_f32 v{out_xn+i}, v{xf+2*i}, v{xf+2*i+1}')
    for i in range(4 * nch):
        unpack_lo(a, xf + 2 * i, out_xn + i); unpack_hi(a, xf + 2 * i + 1, out_xn + i)
    for i in range(n): a(f'v_mul_f32 v{xf+i}, v{xf+i}, v{r}')
    for i in range(4 * nch): a(f'v_cvt_pk_bf16_f32 v{out_xn+i}, v{xf+2*i}, v{xf+2*i+1}')

N_MOD = 54; N_LN1 = 256; N_KG = 576
import os
N_PF = int(os.environ.get('NPF', '0'))
K1_GRID = N_MOD + N_LN1 + N_KG + N_PF
K1_LDS = 36864

def gen_k1(a):
    a.raw(kernel_header('k1_kernel'))
    a(f's_cmp_lt_u32 s2, {N_MOD}'); a.branch('s_cbranch_scc1 K1_MOD')
    a(f's_cmp_lt_u32 s2, {N_MOD+N_LN1}'); a.branch('s_cbranch_scc1 K1_LN')
    a(f's_cmp_lt_u32 s2, {N_MOD+N_LN1+N_KG}'); a.branch('s_cbranch_scc1 K1_KG')
    if N_PF:
        a(f's_cmp_ge_u32 s2, {K1_GRID}'); a.branch('s_cbranch_scc1 K1_END')
        a(f's_sub_u32 s3, s2, {N_MOD+N_LN1+N_KG}')
        a('s_mul_i32 s8, s3, 911'); a('s_lshr_b32 s8, s8, 16')
        a('s_mul_i32 s9, s8, 72'); a('s_sub_u32 s9, s3, s9')
        a('s_lshl_b32 s8, s8, 3'); a(f's_add_u32 s8, s8, {KA["w1"]}')
        a('s_load_dwordx2 s[4:5], s[0:1], s8')
        a('s_mul_i32 s9, s9, 73728')
        a('v_lshlrev_b32 v1, 4, v0')
        a('s_waitcnt lgkmcnt(0)')
        make_srd(a, 4, 576 * 9216)
        for i in range(18):
            a(f's_add_u32 s10, s9, {i*4096}')
            a(f'buffer_load_dwordx4 v[{8+4*i}:{11+4*i}], v1, s[4:7], s10 offen')
        a('s_waitcnt vmcnt(0)')
    a('s_endpgm')
    a.label('K1_MOD')
    load_ptr(a, 4, 'wmod'); load_ptr(a, 8, 'c'); load_ptr(a, 12, 'ws')
    a('v_and_b32 v1, 7, v0')
    a('v_lshrrev_b32 v2, 3, v0')
    a('v_mul_u32_u24 v3, 36, v2')
    a(f'v_mul_u32_u24 v4, {18*6912}, v2')
    a('v_lshl_add_u32 v4, v1, 4, v4')
    a('s_lshl_b32 s3, s2, 7')
    a('v_add_u32 v4, s3, v4')
    a('s_waitcnt lgkmcnt(0)')
    make_srd(a, 4, 576 * 6912); make_srd(a, 8, 1152); make_srd(a, 12, SZ_MOD, WS_MOD)
    C = 8; W = 20
    a(f'buffer_load_dwordx4 v[{C}:{C+3}], v3, s[8:11], 0 offen')
    a(f'buffer_load_dwordx4 v[{C+4}:{C+7}], v3, s[8:11], 0 offen offset:16')
    a(f'buffer_load_dword v{C+8}, v3, s[8:11], 0 offen offset:32')
    for i in range(18):
        a(f's_mov_b32 s{16+i}, {i*6912}')
        a(f'buffer_load_dwordx4 v[{W+4*i}:{W+4*i+3}], v4, s[4:7], s{16+i} offen')
    S = 92
    a('s_waitcnt vmcnt(18)')
    for i in range(9):
        unpack_lo(a, S + 2 * i, C + i); unpack_hi(a, S + 2 * i + 1, C + i)
    T = 110
    for i in range(18): a(f'v_mul_f32 v{T+i}, {f32bits(-LOG2E)}, v{S+i}')
    for i in range(18): a(f'v_exp_f32 v{T+i}, v{T+i}')
    for i in range(18): a(f'v_add_f32 v{T+i}, 1.0, v{T+i}')
    for i in range(18): a(f'v_rcp_f32 v{T+i}, v{T+i}')
    for i in range(18): a(f'v_mul_f32 v{S+i}, v{S+i}, v{T+i}')
    for i in range(9): a(f'v_cvt_pk_bf16_f32 v{T+i}, v{S+2*i}, v{S+2*i+1}')
    for i in range(9):
        unpack_lo(a, S + 2 * i, T + i); unpack_hi(a, S + 2 * i + 1, T + i)
    ACC = 110; U = 118
    for i in range(18):
        a(f's_waitcnt vmcnt({17-i})')
        for j in range(4):
            unpack_lo(a, U + 2 * j, W + 4 * i + j); unpack_hi(a, U + 2 * j + 1, W + 4 * i + j)
        for j in range(8):
            if i == 0: a(f'v_mul_f32 v{ACC+j}, v{S+i}, v{U+j}')
            else: a(f'v_fmac_f32 v{ACC+j}, v{S+i}, v{U+j}')
    red_l8_multi(a, [ACC + j for j in range(8)], [U + j for j in range(8)])
    a('v_lshrrev_b32 v5, 6, v0')
    a('v_lshlrev_b32 v5, 8, v5')
    a('v_lshl_add_u32 v5, v1, 5, v5')
    a(f'ds_write_b128 v5, v[{ACC}:{ACC+3}]')
    a(f'ds_write_b128 v5, v[{ACC+4}:{ACC+7}] offset:16')
    a('s_waitcnt lgkmcnt(0)'); a('s_barrier')
    a('v_cmp_gt_u32 vcc, 64, v0')
    a('s_and_saveexec_b64 s[40:41], vcc')
    a.branch('s_cbranch_execz K1_END')
    a('v_lshlrev_b32 v6, 2, v0')
    for w in range(4): a(f'ds_read_b32 v{8+w}, v6 offset:{w*256}')
    a('s_waitcnt lgkmcnt(0)')
    a('v_add_f32 v8, v8, v9'); a('v_add_f32 v10, v10, v11'); a('v_add_f32 v8, v8, v10')
    round_bf16_1(a, 8, 8)
    a('s_lshl_b32 s3, s2, 8')
    a('v_add_u32 v6, s3, v6')
    a('buffer_store_dword v8, v6, s[12:15], 0 offen')
    a('s_endpgm')
    a.label('K1_LN')
    a('v_readfirstlane_b32 s4, v0')
    a('s_cmp_ge_u32 s4, 192'); a.branch('s_cbranch_scc1 K1_END')
    load_ptr(a, 4, 'u'); load_ptr(a, 8, 'ws')
    a(f's_sub_u32 s3, s2, {N_MOD}')
    a('v_and_b32 v1, 7, v0')
    a('v_lshrrev_b32 v2, 3, v0')
    a('v_mul_u32_u24 v3, 1152, v1')
    a('v_lshl_add_u32 v3, v2, 4, v3')
    a('s_mul_i32 s12, s3, 9216')
    a('s_waitcnt lgkmcnt(0)')
    make_srd(a, 4, 2048 * 1152); make_srd(a, 8, SZ_XT, WS_XT)
    XP = 8; XF = 20; TMP = 44; XN = 60
    for i in range(3):
        a(f'buffer_load_dwordx4 v[{XP+4*i}:{XP+4*i+3}], v3, s[4:7], s12 offen offset:{i*24*16}')
    RED = 72 * 288
    a('v_lshrrev_b32 v4, 6, v0')
    a('v_lshlrev_b32 v4, 5, v4')
    a('v_lshl_add_u32 v4, v1, 2, v4')
    a('v_lshlrev_b32 v5, 2, v1')
    a('v_mul_u32_u24 v6, 288, v2')
    a('v_lshl_add_u32 v6, v1, 2, v6')
    a('s_mov_b32 s14, 0x05040100'); a('s_mov_b32 s15, 0x07060302')
    a('s_waitcnt vmcnt(0)')
    ln_core(a, 3, XP, XF, TMP, 3, 4, 5, RED, XN)
    for i in range(3):
        for j in range(4):
            r = 4 * i + j
            a(f'v_perm_b32 v{XF+2*r}, v{XP+r}, v{XN+r}, s14')
            a(f'v_perm_b32 v{XF+2*r+1}, v{XP+r}, v{XN+r}, s15')
        for e in range(8):
            a(f'ds_write_b32 v6, v{XF+8*i+e} offset:{i*24*288 + e*32}')
    a('s_waitcnt lgkmcnt(0)'); a('s_barrier')
    a('v_lshrrev_b32 v1, 4, v0')
    a('v_mul_u32_u24 v1, 288, v1')
    a('v_and_b32 v2, 15, v0')
    a('v_lshl_add_u32 v1, v2, 4, v1')
    a('v_lshlrev_b32 v2, 4, v0')
    a(f's_mul_i32 s12, s3, {XT_STRIDE}')
    for j in range(6): a(f'ds_read_b128 v[{XF+4*j}:{XF+4*j+3}], v1 offset:{j*12*288}')
    for j in range(6):
        a(f's_waitcnt lgkmcnt({5-j})')
        a(f's_add_u32 s13, s12, {j*3072}')
        a(f'buffer_store_dwordx4 v[{XF+4*j}:{XF+4*j+3}], v2, s[8:11], s13 offen')
    a('s_endpgm')
    a.label('K1_KG')
    names = ['A_re', 'A_im', 'B_re', 'B_im', 'C_re', 'C_im']
    for i, nm in enumerate(names): load_ptr(a, 4 + 4 * i, nm)
    load_ptr(a, 28, 'log_dt'); load_ptr(a, 32, 'ws')
    a(f's_sub_u32 s3, s2, {N_MOD+N_LN1}')
    a('s_and_b32 s36, s3, 7'); a('s_mul_i32 s36, s36, 72'); a('s_lshr_b32 s37, s3, 3'); a('s_add_u32 s3, s36, s37')
    a('v_and_b32 v1, 127, v0')
    a('v_lshlrev_b32 v2, 1, v1')
    a('s_lshl_b32 s36, s3, 8')
    a('s_and_b32 s37, s3, -2'); a('s_lshl_b32 s37, s37, 1')
    a('v_readfirstlane_b32 s38, v0')
    a('s_waitcnt lgkmcnt(0)')
    a('s_load_dword s39, s[28:29], s37')
    for i in range(6): make_srd(a, 4 + 4 * i, 576 * 256)
    make_srd(a, 32, SZ_RK, WS_RK)
    for i in range(6): a(f'buffer_load_ushort v{8+i}, v2, s[{4+4*i}:{7+4*i}], s36 offen')
    KC = 33792
    GA = 100
    a('v_lshlrev_b32 v3, 3, v0')
    a('v_sub_u32 v3, 2047, v3')
    for e in range(9):
        a(f'v_subrev_u32 v{GA+e}, {e}, v3')
    for e in range(10): a(f'v_cvt_f32_u32 v{110+e}, v{GA+min(e,8)}')
    for e in range(5): a(f'v_cvt_pk_bf16_f32 v{120+e}, v{110+2*e}, v{110+2*e+1}')
    for e in range(4):
        a(f'v_and_b32 v{110+2*e}, 0xffff, v{120+e}')
        a(f'v_lshrrev_b32 v{110+2*e+1}, 16, v{120+e}')
    a('v_and_b32 v118, 0xffff, v124')
    a('v_cmp_gt_u32 vcc, 240, v0')
    for e in range(9): a(f'v_subrev_u32 v{110+e}, 17024, v{110+e}')
    for e in range(8): a(f'v_cndmask_b32 v{GA+e}, v{GA+e}, v{110+e}, vcc')
    a('v_cmp_gt_u32 vcc, 239, v0')
    a(f'v_cndmask_b32 v{GA+8}, v{GA+8}, v118, vcc')
    a(f'v_max_i32 v{GA+8}, 0, v{GA+8}')
    for e in range(9): a(f'v_lshlrev_b32 v{GA+e}, 1, v{GA+e}')
    a('s_lshr_b32 s40, s38, 6')
    a('s_and_b32 s41, s40, 1')
    a('s_lshr_b32 s42, s40, 1')
    a('v_and_b32 v4, 15, v0')
    a('s_lshl_b32 s43, s41, 4')
    a('v_add_u32 v4, s43, v4')
    a('v_bfe_u32 v5, v0, 4, 2')
    KW = 124
    a('s_cmp_eq_u32 s42, 0'); a.branch('s_cbranch_scc0 K1_KG_RT1')
    a('v_lshlrev_b32 v124, 3, v4')
    a('v_lshl_add_u32 v124, v5, 2, v124')
    a('v_lshlrev_b32 v6, 2, v4'); a('v_add_u32 v6, 256, v6')
    a('v_cmp_eq_u32 vcc, 2, v5'); a('v_cndmask_b32 v124, v124, v6, vcc')
    a('v_lshlrev_b32 v6, 1, v4'); a('v_add_u32 v6, 384, v6')
    a('v_cmp_eq_u32 vcc, 3, v5'); a('v_cndmask_b32 v124, v124, v6, vcc')
    a('v_mov_b32 v125, 1')
    a('v_mov_b32 v6, 64'); a('v_cndmask_b32 v126, 2, v6, vcc')
    a.branch('s_branch K1_KG_A')
    a.label('K1_KG_RT1')
    a('v_add_u32 v124, 700, v4')
    a('v_add_u32 v6, 640, v4'); a('v_cmp_eq_u32 vcc, 1, v5'); a('v_cndmask_b32 v124, v124, v6, vcc')
    a('v_add_u32 v6, 512, v4'); a('v_cmp_eq_u32 vcc, 0, v5'); a('v_cndmask_b32 v124, v124, v6, vcc')
    a('v_mov_b32 v6, 32'); a('v_mov_b32 v7, 64'); a('v_cndmask_b32 v125, v7, v6, vcc')
    a('v_lshlrev_b32 v126, 1, v125')
    a.label('K1_KG_A')
    a('v_add_u32 v127, v126, v125')
    a('v_add_u32 v125, v124, v125'); a('v_add_u32 v126, v124, v126'); a('v_add_u32 v127, v124, v127')
    for i in range(4): a(f'v_lshlrev_b32 v{124+i}, 1, v{124+i}')
    a('s_waitcnt lgkmcnt(0)')
    a('s_and_b32 s43, s3, 1'); a('s_lshl_b32 s43, s43, 4'); a('s_lshr_b32 s39, s39, s43'); a('s_lshl_b32 s39, s39, 16')
    a(f'v_mov_b32 v14, s39')
    a(f'v_mul_f32 v14, {f32bits(LOG2E)}, v14')
    a('v_exp_f32 v14, v14')
    round_bf16_1(a, 14, 14)
    a('s_waitcnt vmcnt(0)')
    for i in range(6): a(f'v_lshlrev_b32 v{8+i}, 16, v{8+i}')
    a('v_mul_f32 v8, v8, v14'); a('v_mul_f32 v9, v9, v14')
    a('v_mul_f32 v10, v10, v14'); a('v_mul_f32 v11, v11, v14')
    a(f'v_mul_f32 v8, {f32bits(LOG2E)}, v8')
    a(f'v_mul_f32 v9, {f32bits(0.15915494309189535)}, v9')
    cmul(a, 16, 12, 10)
    a(f'v_mul_f32 v16, {float(2**KSCALE_LOG2)}, v16'); a(f'v_mul_f32 v17, {float(2**KSCALE_LOG2)}, v17')
    def D(dst, al):
        a(f'v_mul_f32 v4, {float(al)}, v8'); a(f'v_mul_f32 v5, {float(al)}, v9')
        a('v_exp_f32 v4, v4'); a('v_fract_f32 v5, v5')
        a('v_cos_f32 v6, v5'); a('v_sin_f32 v7, v5')
        a(f'v_mul_f32 v{dst}, v4, v6'); a(f'v_mul_f32 v{dst+1}, v4, v7')
    UB = 0; VB = 16896
    a('v_lshlrev_b32 v3, 2, v1')
    def putU(r, src):
        a(f'v_cvt_pk_f16_f32 v2, v{src}, v{src+1}')
        a(f'ds_write_b32 v3, v2 offset:{UB + r*528}')
    def putV(j, src):
        a(f'v_cvt_pk_f16_f32 v2, v{src}, -v{src+1}')
        a(f'ds_write_b32 v3, v2 offset:{VB + j*528}')
    E8, EX, EY, P0, P1 = 18, 20, 22, 24, 26
    a('s_cmp_ge_u32 s38, 128'); a.branch('s_cbranch_scc1 K1_KG_H1')
    D(E8, 8); D(EX, 1); D(EY, 256)
    a(f'v_mov_b32 v{P0}, 1.0'); a(f'v_mov_b32 v{P0+1}, 0')
    putV(0, P0); putV(1, E8)
    cur, nxt = E8, P0
    for j in range(2, 16):
        cmul(a, nxt, cur, E8); putV(j, nxt)
        cur = nxt; nxt = P1 if nxt == P0 else P0
    cur = 16
    for r in range(8):
        if r > 0:
            nxt = P0 if cur != P0 else P1
            cmul(a, nxt, cur, EX); cur = nxt
        putU(r, cur)
        if r % 2 == 0:
            cmul(a, 28, cur, EY); putU(8 + r // 2, 28)
    a.branch('s_branch K1_KG_B')
    a.label('K1_KG_H1')
    D(E8, 8); D(P0, 128); D(EX, 4)
    cmul(a, EY, P0, P0)
    cmul(a, 28, EY, EY)
    cmul(a, 30, 28, 28)
    putV(16, P0)
    cur, nxt = P0, P1
    for j in range(17, 32):
        cmul(a, nxt, cur, E8); putV(j, nxt)
        cur, nxt = nxt, cur
    cmul(a, P0, 16, 28); putU(12, P0)
    cmul(a, P1, P0, EX); putU(13, P1)
    cmul(a, P1, P0, EY); putU(14, P1)
    cmul(a, P0, P1, EX); putU(15, P0)
    cmul(a, P0, 16, 30); putU(16, P0)
    cmul(a, P1, P0, EY); putU(17, P1)
    cmul(a, P0, P1, EY); putU(18, P0)
    cmul(a, P1, P0, EY); putU(19, P1)
    cmul(a, P0, P1, EY); putU(20, P0)
    a.label('K1_KG_B')
    a('v_and_b32 v4, 15, v0'); a('v_bfe_u32 v5, v0, 4, 2')
    a('s_lshl_b32 s43, s42, 4'); a('v_add_u32 v6, s43, v4'); a('v_mul_u32_u24 v6, 528, v6'); a('v_lshl_add_u32 v6, v5, 4, v6')
    a('s_lshl_b32 s43, s41, 4'); a('v_add_u32 v7, s43, v4'); a('v_mul_u32_u24 v7, 528, v7'); a('v_lshl_add_u32 v7, v5, 4, v7')
    a('s_waitcnt lgkmcnt(0)'); a('s_barrier')
    FA = 32; FB = 64
    for s in range(8):
        a(f'ds_read_b128 v[{FA+4*s}:{FA+4*s+3}], v6 offset:{UB + s*64}')
        a(f'ds_read_b128 v[{FB+4*s}:{FB+4*s+3}], v7 offset:{VB + s*64}')
    for s in range(8):
        a(f's_waitcnt lgkmcnt({14-2*s})')
        a(f'v_mfma_f32_16x16x32_f16 v[8:11], v[{FA+4*s}:{FA+4*s+3}], v[{FB+4*s}:{FB+4*s+3}], ' + ('0' if s == 0 else 'v[8:11]'))
    a('v_cvt_pk_f16_f32 v12, v8, v9'); a('v_cvt_pk_f16_f32 v13, v10, v11')
    a(f'ds_write_b16 v124, v12 offset:{KC}'); a(f'ds_write_b16_d16_hi v125, v12 offset:{KC}')
    a(f'ds_write_b16 v126, v13 offset:{KC}'); a(f'ds_write_b16_d16_hi v127, v13 offset:{KC}')
    a('s_waitcnt lgkmcnt(0)'); a('s_barrier')
    for e in range(9):
        a(f'ds_read_u16 v{24+e}, v{GA+e} offset:{KC}')
    a('v_lshlrev_b32 v2, 4, v0')
    a(f's_mul_i32 s36, s3, {RK_STRIDE}')
    a('s_add_u32 s37, s36, 4096')
    a('v_cmp_gt_u32 vcc, 255, v0')
    a('s_waitcnt lgkmcnt(0)')
    a('v_cndmask_b32 v32, 0, v32, vcc')
    for e in range(4): a(f'v_lshl_or_b32 v{16+e}, v{24+2*e+1}, 16, v{24+2*e}')
    for e in range(4): a(f'v_lshl_or_b32 v{20+e}, v{24+2*e+2}, 16, v{24+2*e+1}')
    a('buffer_store_dwordx4 v[16:19], v2, s[32:35], s36 offen')
    a('buffer_store_dwordx4 v[20:23], v2, s[32:35], s37 offen')
    a.label('K1_END')
    a('s_endpgm')
    return kernel_desc('k1_kernel', 128)
```

```python
from gen_common import *
from gen_k1 import ln_core

K2_LDS = 4608 + 32768 + 8320
K2_RC = 4608 + 32768
def gen_k2(a):
    a.raw(kernel_header('k2_kernel'))
    a('s_cmp_ge_u32 s2, 576'); a.branch('s_cbranch_scc1 K2_END')
    stamp(a, 0, 'k2')
    load_ptr(a, 4, 'ws'); load_ptr(a, 24, 'Dskip')
    a('s_and_b32 s36, s2, 7'); a('s_mul_i32 s36, s36, 72'); a('s_lshr_b32 s37, s2, 3'); a('s_add_u32 s3, s36, s37')
    a('v_readfirstlane_b32 s38, v0'); a('s_lshr_b32 s38, s38, 6')
    a('v_and_b32 v1, 15, v0')
    a('v_bfe_u32 v2, v0, 4, 2')
    a('s_and_b32 s37, s3, -2'); a('s_lshl_b32 s37, s37, 1')
    a('s_lshl_b32 s39, s3, 2')
    a('s_waitcnt lgkmcnt(0)')
    stamp(a, 1, 'k2')
    a('s_load_dword s40, s[24:25], s37')
    copy_srd(a, 8, 4, SZ_RK, WS_RK); copy_srd(a, 12, 4, SZ_XT, WS_XT); copy_srd(a, 16, 4, SZ_X1T, WS_X1T)
    a('s_add_u32 s20, s4, s39'); a('s_addc_u32 s21, s5, 0')
    a(f's_load_dword s41, s[20:21], {WS_MOD}')
    a(f's_load_dword s42, s[20:21], {WS_MOD+2304}')
    a(f's_load_dword s43, s[20:21], {WS_MOD+4608}')
    a('v_lshrrev_b32 v3, 1, v2')
    a('v_lshl_add_u32 v3, v1, 1, v3')
    a(f'v_mul_u32_u24 v3, {XT_STRIDE}, v3')
    a('v_and_b32 v4, 1, v2')
    a('v_lshl_add_u32 v3, v4, 4, v3')
    a(f's_mul_i32 s44, s38, {64*XT_STRIDE}')
    a('s_lshl_b32 s45, s3, 5'); a('s_add_u32 s44, s44, s45')
    a(f's_add_u32 s45, s44, {32*XT_STRIDE}')
    XW = 8
    a(f'buffer_load_dwordx4 v[{XW}:{XW+3}], v3, s[12:15], s44 offen')
    a(f'buffer_load_dwordx4 v[{XW+4}:{XW+7}], v3, s[12:15], s45 offen')
    a('v_and_b32 v4, 63, v0'); a('v_lshlrev_b32 v4, 4, v4')
    a(f's_mul_i32 s46, s3, {RK_STRIDE}')
    a('s_lshl_b32 s47, s38, 10'); a('s_add_u32 s46, s46, s47')
    a(f's_add_u32 m0, s47, {K2_RC}')
    a('buffer_load_dwordx4 v4, s[8:11], s46 offen lds')
    a('s_add_u32 s46, s46, 4096')
    a(f's_add_u32 m0, s47, {K2_RC+4160}')
    a('buffer_load_dwordx4 v4, s[8:11], s46 offen lds')
    a('v_lshlrev_b32 v152, 3, v2'); a('v_sub_u32 v152, v152, v1'); a('v_add_u32 v152, 15, v152')
    a('v_and_b32 v153, 1, v152'); a('v_and_b32 v152, -2, v152'); a('v_lshlrev_b32 v152, 1, v152')
    a('v_mul_u32_u24 v153, 4160, v153'); a('v_add_u32 v152, v152, v153')
    a(f'v_add_u32 v152, {K2_RC}, v152')
    a('s_sub_u32 s47, 7, s38'); a('s_lshl_b32 s47, s47, 9'); a('v_add_u32 v153, s47, v152')
    a('s_lshl_b32 s48, s38, 9'); a('v_add_u32 v152, s48, v152')
    T1 = 32; T2 = 64
    for i in range(4): a(f'v_mov_b32 v{16+i}, 0')
    a('v_lshlrev_b32 v5, 4, v0')
    a('v_cmp_gt_u32 vcc, 30, v0')
    a('s_and_saveexec_b64 s[50:51], vcc')
    a.branch('s_cbranch_execz K2_Z')
    a('ds_write_b128 v5, v[16:19]')
    a('v_cmp_gt_u32 vcc, 4, v0')
    a('s_and_b64 exec, exec, vcc')
    a(f'ds_write_b128 v5, v[16:19] offset:{K2_RC+4096}')
    a(f'ds_write_b128 v5, v[16:19] offset:{K2_RC+4160+4096}')
    a.label('K2_Z')
    a('s_mov_b64 exec, s[50:51]')
    D = 96
    for i in range(32): a(f'v_mov_b32 v{D+i}, 0')
    a('v_lshlrev_b32 v5, 5, v1'); a('v_lshl_add_u32 v5, v2, 3, v5')
    a('s_lshl_b32 s49, s38, 10'); a('v_add_u32 v5, s49, v5')
    a('v_lshlrev_b32 v6, 5, v1'); a('v_lshl_add_u32 v6, v2, 4, v6')
    a('s_waitcnt lgkmcnt(0)')
    a('s_and_b32 s45, s3, 1'); a('s_lshl_b32 s45, s45, 4'); a('s_lshr_b32 s40, s40, s45'); a('s_lshl_b32 s40, s40, 16')
    a('v_mov_b32 v7, s42'); a('v_add_f32 v7, 1.0, v7'); round_bf16_1(a, 7, 7)
    stamp(a, 2, 'k2')
    a('s_waitcnt vmcnt(2)')
    stamp(a, 3, 'k2')
    HF = 16; HD = 24; TP = 28
    for i in range(8): unpack_lo(a, HF + i, XW + i)
    for i in range(8): a(f'v_mul_f32 v{HF+i}, v{HF+i}, v7')
    for i in range(4): a(f'v_cvt_pk_bf16_f32 v{TP+i}, v{HF+2*i}, v{HF+2*i+1}')
    for i in range(4): unpack_lo(a, HF + 2 * i, TP + i); unpack_hi(a, HF + 2 * i + 1, TP + i)
    for i in range(8): a(f'v_add_f32 v{HF+i}, s41, v{HF+i}')
    for i in range(4): a(f'v_cvt_pk_bf16_f32 v{TP+i}, v{HF+2*i}, v{HF+2*i+1}')
    for i in range(4): unpack_lo(a, HF + 2 * i, TP + i); unpack_hi(a, HF + 2 * i + 1, TP + i)
    for i in range(4): a(f'v_cvt_pk_f16_f32 v{TP+i}, v{HF+2*i}, v{HF+2*i+1}')
    a(f'ds_write_b64 v5, v[{TP}:{TP+1}] offset:480')
    a(f'ds_write_b64 v5, v[{TP+2}:{TP+3}] offset:{480+512}')
    for i in range(8): a(f'v_mul_f32 v{HF+i}, s40, v{HF+i}')
    for i in range(4): a(f'v_cvt_pk_bf16_f32 v{HD+i}, v{HF+2*i}, v{HF+2*i+1}')
    a('s_waitcnt vmcnt(0) lgkmcnt(0)'); a('s_barrier')
    for r in range(8):
        a(f'ds_read2_b32 v[{T1+4*r}:{T1+4*r+1}], v153 offset0:{16*r} offset1:{16*r+1}')
        a(f'ds_read2_b32 v[{T1+4*r+2}:{T1+4*r+3}], v153 offset0:{16*r+2} offset1:{16*r+3}')
    for r in range(8):
        a(f'ds_read2_b32 v[{T2+4*r}:{T2+4*r+1}], v152 offset0:{16*r} offset1:{16*r+1}')
        a(f'ds_read2_b32 v[{T2+4*r+2}:{T2+4*r+3}], v152 offset0:{16*r+2} offset1:{16*r+3}')
    a('s_waitcnt lgkmcnt(0)')
    stamp(a, 4, 'k2')
    HB = 128; NH = 6
    for w in range(1, 4):
        a(f's_cmp_eq_u32 s38, {w}'); a.branch(f's_cbranch_scc1 K2_W{w}')
    for w in range(4):
        if w: a.label(f'K2_W{w}')
        gs = [(G, r) for G in range(7, 15 - w) for r in range(8)]
        def rd(k):
            G, r = gs[k]; g = 8 * G + r; b = HB + 4 * (k % NH)
            a(f'ds_read_b128 v[{b}:{b+3}], v6 offset:{64*(g-56)}')
        for k in range(min(NH - 1, len(gs))): rd(k)
        for k, (G, r) in enumerate(gs):
            if k + NH - 1 < len(gs): rd(k + NH - 1)
            outstanding = min(NH - 1, len(gs) - 1 - k)
            a(f's_waitcnt lgkmcnt({outstanding})')
            b = HB + 4 * (k % NH)
            c1 = G - 7 + w
            a(f'v_mfma_f32_16x16x32_f16 v[{D+4*c1}:{D+4*c1+3}], v[{T1+4*r}:{T1+4*r+3}], v[{b}:{b+3}], v[{D+4*c1}:{D+4*c1+3}]')
            if G <= 7 + w:
                c2 = G - w
                a(f'v_mfma_f32_16x16x32_f16 v[{D+4*c2}:{D+4*c2+3}], v[{T2+4*r}:{T2+4*r+3}], v[{b}:{b+3}], v[{D+4*c2}:{D+4*c2+3}]')
        if w < 3: a.branch('s_branch K2_RED')
    a.label('K2_RED')
    stamp(a, 5, 'k2')
    a('v_and_b32 v4, 63, v0'); a('v_lshlrev_b32 v4, 4, v4')
    a('s_lshl_b32 s49, s38, 13'); a('v_add_u32 v5, s49, v4')
    for c in range(8): a(f'ds_write_b128 v5, v[{D+4*c}:{D+4*c+3}] offset:{4608 + c*1024}')
    a('s_lshl_b32 s49, s38, 11'); a('v_add_u32 v4, s49, v4')
    a('s_waitcnt lgkmcnt(0)'); a('s_barrier')
    stamp(a, 6, 'k2')
    PB = 32
    for cc in range(2):
        for w in range(4):
            b = PB + 16 * cc + 4 * w
            a(f'ds_read_b128 v[{b}:{b+3}], v4 offset:{4608 + w*8192 + cc*1024}')
    a('v_lshlrev_b32 v5, 5, v1'); a('v_lshl_add_u32 v5, v2, 3, v5')
    a(f's_mul_i32 s46, s3, {X1T_STRIDE}'); a('s_lshl_b32 s49, s38, 10'); a('s_add_u32 s46, s46, s49')
    for cc in range(2):
        a(f's_waitcnt lgkmcnt({4*(1-cc)})')
        b = PB + 16 * cc
        for i in range(4):
            a(f'v_add_f32 v{b+i}, v{b+i}, v{b+4+i}'); a(f'v_add_f32 v{b+8+i}, v{b+8+i}, v{b+12+i}')
        for i in range(4): a(f'v_add_f32 v{b+i}, v{b+i}, v{b+8+i}')
        for i in range(4): a(f'v_mul_f32 v{b+i}, {f32bits(2.0**-KSCALE_LOG2)}, v{b+i}')
        t = b + 4
        for i in range(2): a(f'v_cvt_pk_bf16_f32 v{t+i}, v{b+2*i}, v{b+2*i+1}')
        for i in range(2): unpack_lo(a, b + 2 * i, t + i); unpack_hi(a, b + 2 * i + 1, t + i)
        for i in range(2): unpack_lo(a, t + 2 + 2 * i, HD + 2 * cc + i); unpack_hi(a, t + 3 + 2 * i, HD + 2 * cc + i)
        for i in range(4): a(f'v_add_f32 v{b+i}, v{b+i}, v{t+2+i}')
        for i in range(2): a(f'v_cvt_pk_bf16_f32 v{t+i}, v{b+2*i}, v{b+2*i+1}')
        for i in range(2): unpack_lo(a, b + 2 * i, t + i); unpack_hi(a, b + 2 * i + 1, t + i)
        for i in range(4): a(f'v_mul_f32 v{b+i}, s43, v{b+i}')
        for i in range(2): a(f'v_cvt_pk_bf16_f32 v{t+i}, v{b+2*i}, v{b+2*i+1}')
        for i in range(2): unpack_lo(a, b + 2 * i, t + i); unpack_hi(a, b + 2 * i + 1, t + i)
        for i in range(4): unpack_hi(a, t + 2 + i, XW + 4 * cc + i)
        for i in range(4): a(f'v_add_f32 v{b+i}, v{b+i}, v{t+2+i}')
        for i in range(2): a(f'v_cvt_pk_bf16_f32 v{t+i}, v{b+2*i}, v{b+2*i+1}')
        a(f'buffer_store_dwordx2 v[{t}:{t+1}], v5, s[16:19], s46 offen offset:{cc*512}')
    stamp(a, 7, 'k2')
    dump_stamps(a, 8, 'k2', 300)
    a.label('K2_END')
    a('s_endpgm')
    return kernel_desc('k2_kernel', 160)

K3_LDS = 9216 + 1024
def gen_k3(a):
    a.raw(kernel_header('k3_kernel'))
    a('s_cmp_ge_u32 s2, 256'); a.branch('s_cbranch_scc1 K3_END')
    load_ptr(a, 4, 'ws')
    a('s_and_b32 s36, s2, 7'); a('s_lshl_b32 s36, s36, 5'); a('s_lshr_b32 s37, s2, 3'); a('s_add_u32 s3, s36, s37')
    a(f'v_mul_u32_u24 v1, {X1T_STRIDE}, v0')
    a('s_lshl_b32 s20, s3, 4')
    a('v_and_b32 v2, 7, v0')
    a('v_lshrrev_b32 v3, 3, v0')
    a('v_lshlrev_b32 v4, 5, v3')
    a('s_waitcnt lgkmcnt(0)')
    copy_srd(a, 8, 4, SZ_X1T, WS_X1T); copy_srd(a, 12, 4, SZ_MOD, WS_MOD); copy_srd(a, 16, 4, SZ_XF, WS_XF); copy_srd(a, 24, 4, SZ_X1, WS_X1)
    a('buffer_load_dwordx4 v[8:11], v1, s[8:11], s20 offen')
    CB = 40; SB = 48
    a(f's_mov_b32 s21, {4*2304}'); a(f's_mov_b32 s22, {3*2304}')
    a(f'buffer_load_dwordx4 v[{CB}:{CB+3}], v4, s[12:15], s21 offen')
    a(f'buffer_load_dwordx4 v[{CB+4}:{CB+7}], v4, s[12:15], s21 offen offset:16')
    a(f'buffer_load_dwordx4 v[{SB}:{SB+3}], v4, s[12:15], s22 offen')
    a(f'buffer_load_dwordx4 v[{SB+4}:{SB+7}], v4, s[12:15], s22 offen offset:16')
    a('v_lshlrev_b32 v5, 4, v0')
    a('v_lshrrev_b32 v6, 4, v0'); a('v_lshlrev_b32 v6, 1, v6')
    a('v_bfe_u32 v7, v0, 1, 1'); a('v_add_u32 v6, v6, v7'); a('v_lshlrev_b32 v6, 3, v6')
    a('v_bfe_u32 v7, v0, 2, 2'); a('v_add_u32 v6, v6, v7'); a('v_lshlrev_b32 v6, 4, v6')
    a('v_and_b32 v7, 1, v0'); a('v_lshl_add_u32 v6, v7, 3, v6')
    RED = 9216
    a('v_lshrrev_b32 v12, 6, v0'); a('v_lshlrev_b32 v12, 5, v12'); a('v_lshl_add_u32 v12, v2, 2, v12')
    a('v_lshlrev_b32 v13, 2, v2')
    a('s_waitcnt vmcnt(4)')
    a('ds_write_b128 v5, v[8:11]')
    a('s_waitcnt lgkmcnt(0)'); a('s_barrier')
    XP = 8; XF = 16; TMP = 24; XN = 56
    a(f'ds_read_b64_tr_b16 v[{XP}:{XP+1}], v6')
    a(f'ds_read_b64_tr_b16 v[{XP+2}:{XP+3}], v6 offset:64')
    a('v_mul_u32_u24 v1, 1152, v2'); a('v_lshl_add_u32 v1, v3, 4, v1')
    a('s_mul_i32 s20, s3, 9216')
    a('v_lshrrev_b32 v4, 1, v3'); a('v_lshlrev_b32 v4, 10, v4')
    a('v_and_b32 v5, 1, v3'); a('v_lshl_add_u32 v4, v5, 9, v4'); a('v_lshl_add_u32 v4, v2, 4, v4')
    a('s_lshr_b32 s21, s3, 2'); a(f's_mul_i32 s21, s21, {36*1024}')
    a('s_and_b32 s22, s3, 3'); a('s_lshl_b32 s22, s22, 7'); a('s_add_u32 s21, s21, s22')
    a('s_waitcnt lgkmcnt(0)')
    a(f'buffer_store_dwordx4 v[{XP}:{XP+3}], v1, s[24:27], s20 offen')
    ln_core(a, 1, XP, XF, TMP, 9, 12, 13, RED, XN)
    a('s_waitcnt vmcnt(1)')
    for i in range(4): unpack_lo(a, XF + 2 * i, XN + i); unpack_hi(a, XF + 2 * i + 1, XN + i)
    for i in range(8): a(f'v_add_f32 v{CB+i}, 1.0, v{CB+i}')
    for i in range(4): a(f'v_cvt_pk_bf16_f32 v{TMP+i}, v{CB+2*i}, v{CB+2*i+1}')
    for i in range(4): unpack_lo(a, CB + 2 * i, TMP + i); unpack_hi(a, CB + 2 * i + 1, TMP + i)
    for i in range(8): a(f'v_mul_f32 v{XF+i}, v{XF+i}, v{CB+i}')
    for i in range(4): a(f'v_cvt_pk_bf16_f32 v{TMP+i}, v{XF+2*i}, v{XF+2*i+1}')
    for i in range(4): unpack_lo(a, XF + 2 * i, TMP + i); unpack_hi(a, XF + 2 * i + 1, TMP + i)
    for i in range(8): a(f'v_add_f32 v{XF+i}, v{XF+i}, v{SB+i}')
    for i in range(4): a(f'v_cvt_pk_bf16_f32 v{TMP+i}, v{XF+2*i}, v{XF+2*i+1}')
    a(f'buffer_store_dwordx4 v[{TMP}:{TMP+3}], v4, s[16:19], s21 offen')
    a.label('K3_END')
    a('s_endpgm')
    return kernel_desc('k3_kernel', 64)
```

```python
from gen_common import *
import os

class VM:
    def __init__(self, a): self.a = a; self.ops = []
    def issue(self, tag, text): self.a(text); self.ops.append(tag)
    def count_after(self, tag):
        idx = max(i for i, t in enumerate(self.ops) if t == tag)
        return len(self.ops) - 1 - idx
    def wait(self, tag, extra=''):
        n = self.count_after(tag)
        assert n <= 63
        self.a(f's_waitcnt vmcnt({n}){extra}')

def interleave(a, mf, fill, per=None):
    n = len(mf); k = 0
    for i, grp in enumerate(mf):
        for ins in grp:
            ins() if callable(ins) else a(ins)
        want = (len(fill) * (i + 1) + n - 1) // n if per is None else min(len(fill), per * (i + 1))
        while k < want:
            f = fill[k]; f() if callable(f) else a(f); k += 1
    while k < len(fill):
        f = fill[k]; f() if callable(f) else a(f); k += 1

K4_LDS = 4 * 36864
SLOT = 36864
def gen_k4(a):
    a.raw(kernel_header('k4_kernel'))
    vm = VM(a)
    a('s_and_b32 s36, s2, 7'); a('s_lshl_b32 s36, s36, 5'); a('s_lshr_b32 s37, s2, 3'); a('s_add_u32 s3, s36, s37')
    a('s_cmp_ge_u32 s2, 256'); a.branch('s_cbranch_scc1 K4_END')
    a('s_cmp_ge_u32 s3, 252'); a.branch('s_cbranch_scc1 K4_END')
    stamp(a, 0, 'k4')
    load_ptr(a, 4, 'w1'); load_ptr(a, 8, 'w3'); load_ptr(a, 12, 'ws')
    a('v_mov_b32 v15, v0')
    a('s_mul_i32 s36, s3, 9363'); a('s_lshr_b32 s36, s36, 16')
    a('s_mul_i32 s37, s36, 7'); a('s_sub_u32 s37, s3, s37')
    a('s_mul_i32 s38, s37, 9'); a('s_cmp_gt_u32 s37, 0'); a('s_addc_u32 s38, s38, 0')
    a('v_readfirstlane_b32 s39, v0'); a('s_lshr_b32 s39, s39, 6')
    a('v_and_b32 v0, 63, v0')
    a('v_lshrrev_b32 v11, 4, v0'); a('v_mul_u32_u24 v1, 9216, v11')
    a('v_bfe_u32 v12, v0, 2, 2'); a('v_xor_b32 v12, v12, v11'); a('v_lshl_add_u32 v1, v12, 6, v1')
    a('v_and_b32 v12, 3, v0'); a('v_lshl_add_u32 v1, v12, 4, v1')
    a('v_bfe_u32 v12, v0, 2, 2')
    a('v_lshrrev_b32 v13, 5, v0')
    a('v_lshl_add_u32 v13, v13, 3, v12'); a('v_lshlrev_b32 v2, 8, v13')
    a('v_xor_b32 v12, s39, v12'); a('v_lshl_add_u32 v2, v12, 6, v2')
    a('v_bfe_u32 v12, v0, 4, 1'); a('v_lshl_add_u32 v2, v12, 5, v2')
    a('v_and_b32 v12, 3, v0'); a('v_lshl_add_u32 v2, v12, 3, v2')
    a(f'v_add_u32 v4, {3*SLOT}, v2'); a(f'v_add_u32 v3, {2*SLOT}, v2'); a(f'v_add_u32 v2, {SLOT}, v2')
    a('v_lshlrev_b32 v5, 4, v0')
    for s in range(1, 4): a(f'v_add_u32 v{5+s}, {s*SLOT}, v5')
    a('v_bfe_u32 v12, v0, 4, 1'); a('v_lshlrev_b32 v10, 10, v12')
    a('v_lshrrev_b32 v12, 5, v0'); a('v_lshl_add_u32 v10, v12, 8, v10')
    a('v_and_b32 v12, 15, v0'); a('v_lshl_add_u32 v10, v12, 4, v10')
    a('s_lshl_b32 s40, s36, 8')
    a(f's_mul_i32 s41, s39, {16*9216}'); a('s_add_u32 s40, s40, s41')
    a('s_lshl_b32 s42, s39, 12')
    a(f's_mul_i32 s43, s38, {SLOT}'); a('s_mul_i32 s44, s39, 9216'); a('s_add_u32 s43, s43, s44')
    a('s_lshl_b32 s45, s36, 2'); a('s_add_u32 s45, s45, s39'); a('s_lshl_b32 s45, s45, 7'); a('s_lshl_b32 s46, s38, 1'); a('s_add_u32 s45, s45, s46'); a('s_lshl_b32 s45, s45, 10')
    a('s_mov_b32 s47, 0xffff0000'); a(f's_mov_b32 s48, {f32bits(-LOG2E)}')
    a('s_waitcnt lgkmcnt(0)')
    make_srd(a, 4, 576 * 9216); make_srd(a, 8, 576 * 9216)
    copy_srd(a, 16, 12, SZ_XF, WS_XF); copy_srd(a, 20, 12, SZ_HH, WS_HH)
    def w_dma(st):
        slot = 1 + st % 3
        for mat in range(2):
            for q in range(4):
                a(f's_add_u32 m0, s42, {slot*SLOT + mat*16384 + q*1024}')
                a(f's_add_u32 s49, s40, {(64*st + 4*q)*9216}')
                vm.issue(f'W{st}', f'buffer_load_dwordx4 v1, s[{4+4*mat}:{7+4*mat}], s49 offen lds')
    def x_dma_list(i):
        slot = i % 4; L = []
        for q in range(3):
            L.append(f's_add_u32 m0, s44, {slot*SLOT + q*4096}')
            L.append(f's_add_u32 s49, s43, {i*SLOT + q*4096}')
            for r in range(4 if q < 2 else 1):
                L.append(lambda r=r: vm.issue(f'X{i}', f'buffer_load_dwordx4 v5, s[16:19], s49 offen offset:{r*1024} lds'))
        return L
    def run(L):
        for f in L: f() if callable(f) else a(f)
    XB = 16; WV = 40; ACC = 72; TMP = 136
    def wreg(k, mat):
        if k < 32: b = 8 * k + 4 * mat; return 'a', b
        b = WV + 8 * (k - 32) + 4 * mat; return 'v', b
    def xread(i, k):
        n = 36 * i + k; b = XB + 4 * (n % 6)
        return f'ds_read_b128 v[{b}:{b+3}], v{5 + i % 4} offset:{k*1024}'
    def mfma(i, k, mat):
        n = 36 * i + k; b = XB + 4 * (n % 6)
        t, wb = wreg(k, mat); acc = ACC + 32 * (i % 2) + 16 * mat
        c = '0' if k == 0 else f'v[{acc}:{acc+15}]'
        return f'v_mfma_f32_32x32x16_bf16 v[{acc}:{acc+15}], {t}[{wb}:{wb+3}], v[{b}:{b+3}], {c}'
    def epilogue_list(i):
        g = ACC + 32 * (i % 2); u = g + 16; L = []
        G = TMP; E = TMP + 8; U = TMP + 16; PK = TMP + 24;
        for p in range(2):
            P = TMP + 28 + 4 * p
            o = 8 * p
            for j in range(4): L.append(f'v_cvt_pk_bf16_f32 v{PK+j}, v{g+o+2*j}, v{g+o+2*j+1}')
            for j in range(4):
                L.append(f'v_lshlrev_b32 v{G+2*j}, 16, v{PK+j}'); L.append(f'v_and_b32 v{G+2*j+1}, s47, v{PK+j}')
            for j in range(8): L.append(f'v_mul_f32 v{E+j}, s48, v{G+j}')
            for j in range(8): L.append(f'v_exp_f32 v{E+j}, v{E+j}')
            for j in range(4): L.append(f'v_cvt_pk_bf16_f32 v{PK+j}, v{u+o+2*j}, v{u+o+2*j+1}')
            for j in range(8): L.append(f'v_add_f32 v{E+j}, 1.0, v{E+j}')
            for j in range(8): L.append(f'v_rcp_f32 v{E+j}, v{E+j}')
            for j in range(4):
                L.append(f'v_lshlrev_b32 v{U+2*j}, 16, v{PK+j}'); L.append(f'v_and_b32 v{U+2*j+1}, s47, v{PK+j}')
            for j in range(8): L.append(f'v_mul_f32 v{G+j}, v{G+j}, v{E+j}')
            for j in range(4): L.append(f'v_cvt_pk_bf16_f32 v{PK+j}, v{G+2*j}, v{G+2*j+1}')
            for j in range(4):
                L.append(f'v_lshlrev_b32 v{G+2*j}, 16, v{PK+j}'); L.append(f'v_and_b32 v{G+2*j+1}, s47, v{PK+j}')
            for j in range(8): L.append(f'v_mul_f32 v{G+j}, v{G+j}, v{U+j}')
            for j in range(4): L.append(f'v_cvt_pk_bf16_f32 v{P+j}, v{G+2*j}, v{G+2*j+1}')
            if p == 0: L.append(f's_add_u32 s50, s45, {i*2048}')
            L.append(lambda P=P, p=p: vm.issue(f'S{i}', f'buffer_store_dwordx4 v[{P}:{P+3}], v10, s[20:23], s50 offen offset:{p*512}' + os.environ.get('STMOD', '')))
        return L
    w_dma(0); run(x_dma_list(0)); w_dma(1); w_dma(2)
    for st in range(9):
        slot = 1 + st % 3
        if st == 0: vm.wait('X0')
        else: vm.wait(f'W{st}')
        a('s_barrier')
        if st in (0, 3, 8): stamp(a, {0:1,3:2,8:3}[st], 'k4')
        for kk in range(4):
            k = 4 * st + kk
            for mat in range(2):
                t, wb = wreg(k, mat)
                off = mat * 16384 + kk * 4096
                a(f'ds_read_b64_tr_b16 {t}[{wb}:{wb+1}], v{1+slot} offset:{off}')
                a(f'ds_read_b64_tr_b16 {t}[{wb+2}:{wb+3}], v{1+slot} offset:{off+1024}')
        for kk in range(4): a(xread(0, 4 * st + kk))
        a('s_waitcnt lgkmcnt(0)')
        a('s_barrier')
        if st < 6: w_dma(st + 3)
        else: run(x_dma_list(st - 5))
        for kk in range(4):
            a(mfma(0, 4 * st + kk, 0)); a(mfma(0, 4 * st + kk, 1))
    vm.wait('X1'); a('s_barrier')
    for k in range(4): a(xread(1, k))
    def tile(i):
        mf = [];
        fill = epilogue_list(i - 1)
        dma = x_dma_list(i + 3)
        X = os.environ.get('K4X', '')
        if 'noepi' in X: fill = [f for f in fill if callable(f) or f.startswith('s_')]
        if 'nost' in X: fill = [f for f in fill if not callable(f)]
        if 'notrans' in X: fill = [f for f in fill if callable(f) or not ('exp' in f or 'rcp' in f)]
        for k in range(36):
            pre = []
            if k == 32:
                pre.append(lambda: vm.wait(f'X{i+1}'))
                if 'nobar' not in X: pre.append('s_barrier')
            pre.append(xread(i, k + 4) if k + 4 < 36 else xread(i + 1, k + 4 - 36))
            pre.append('s_waitcnt lgkmcnt(4)')
            pre.append(mfma(i, k, 0))
            mf.append(pre); mf.append([mfma(i, k, 1)])
        interleave(a, mf[:64], fill)
        interleave(a, mf[64:], dma)
    stamp(a, 4, 'k4')
    for i in range(1, 9):
        tile(i)
        if i in (1, 4):
            stamp(a, {1:5,4:6}[i], 'k4')
            if 'k4' in STAMPS: a('s_waitcnt lgkmcnt(0)')
    a('s_cmp_eq_u32 s37, 0'); a.branch('s_cbranch_scc1 K4_T9')
    saved = list(vm.ops)
    run(epilogue_list(8))
    stamp(a, 7, 'k4')
    a('v_mov_b32 v0, v15')
    dump_stamps(a, 8, 'k4', 101)
    a('s_endpgm')
    vm.ops = saved
    a.label('K4_T9')
    tile(9)
    run(epilogue_list(9))
    a.label('K4_END')
    a('s_endpgm')
    return kernel_desc('k4_kernel', 176 + 256, accum=176)
```

```python
from gen_common import *
from gen_k4 import VM, interleave
import os

ST5 = 17408; NS5 = 9
K5_LDS = ST5 * NS5
def gen_k5(a):
    a.raw(kernel_header('k5_kernel'))
    vm = VM(a)
    a('s_cmp_ge_u32 s2, 256'); a.branch('s_cbranch_scc1 K5_END')
    stamp(a, 0, 'k5')
    load_ptr(a, 4, 'w2'); load_ptr(a, 12, 'ws')
    a('v_mov_b32 v15, v0')
    a('s_and_b32 s36, s2, 7'); a('s_lshr_b32 s37, s2, 3')
    a('s_and_b32 s38, s36, 3')
    a('s_lshr_b32 s36, s36, 2'); a('s_lshl_b32 s36, s36, 3'); a('s_lshr_b32 s39, s37, 2'); a('s_add_u32 s36, s36, s39')
    a('s_and_b32 s37, s37, 3')
    a('v_readfirstlane_b32 s39, v0'); a('s_lshr_b32 s39, s39, 6')
    a('v_and_b32 v0, 63, v0')
    a('v_lshlrev_b32 v1, 4, v0')
    a('s_mul_i32 s40, s39, 144')
    for q in range(3):
        a(f's_add_u32 s41, s40, {48*q}')
        a('v_add_u32 v10, s41, v0')
        a('v_mul_u32_u24 v11, 3641, v10'); a('v_lshrrev_b32 v11, 16, v11')
        a('v_mul_u32_u24 v12, 18, v11'); a('v_sub_u32 v12, v10, v12')
        a(f'v_mul_u32_u24 v{2+q}, 1152, v11'); a(f'v_lshl_add_u32 v{2+q}, v12, 4, v{2+q}')
    a('v_lshrrev_b32 v10, 5, v0'); a('v_lshlrev_b32 v10, 4, v10')
    a('v_bfe_u32 v11, v0, 4, 1'); a('v_lshl_add_u32 v10, v11, 2, v10')
    a('v_bfe_u32 v11, v0, 2, 2'); a('v_add_u32 v10, v10, v11'); a('v_mul_u32_u24 v5, 288, v10')
    a('v_and_b32 v11, 3, v0'); a('v_lshl_add_u32 v5, v11, 3, v5'); a('v_add_u32 v5, 8192, v5')
    a('s_lshl_b32 s40, s39, 11'); a('v_add_u32 v6, s40, v1')
    a(f's_mul_i32 s41, s38, {36*131072}'); a('s_lshl_b32 s42, s36, 13'); a('s_add_u32 s41, s41, s42'); a('s_add_u32 s41, s41, s40')
    a(f's_mul_i32 s42, s38, {36*36864}'); a('s_mul_i32 s43, s37, 288'); a('s_add_u32 s42, s42, s43')
    a('s_mul_i32 s43, s39, 2304')
    a('s_mov_b32 s44, -1'); a('s_mov_b32 s45, 0xffff')
    a('s_waitcnt lgkmcnt(0)')
    make_srd(a, 4, 4608 * 1152)
    copy_srd(a, 16, 12, SZ_HH, WS_HH); copy_srd(a, 20, 12, SZ_PART, WS_PART)
    def dma_list(k):
        so = (k % NS5) * ST5; L = []
        L.append(f's_add_u32 m0, s40, {so}')
        L.append(f's_add_u32 s46, s41, {k*131072}')
        L.append(lambda: vm.issue(f'D{k}', 'buffer_load_dwordx4 v1, s[16:19], s46 offen lds'))
        L.append(lambda: vm.issue(f'D{k}', 'buffer_load_dwordx4 v1, s[16:19], s46 offen offset:1024 lds'))
        L.append(f's_add_u32 s46, s42, {k*36864}')
        def masked():
            a('s_mov_b64 exec, s[44:45]')
            for q in range(3):
                a(f's_add_u32 m0, s43, {so + 8192 + q*768}')
                vm.issue(f'D{k}', f'buffer_load_dwordx4 v{2+q}, s[4:7], s46 offen lds')
            a('s_mov_b64 exec, -1')
        L.append(masked)
        return L
    def run(L):
        for f in L: f() if callable(f) else a(f)
    ACC = 16; WF = 88; HF = 160
    def read_list(k):
        so = (k % NS5) * ST5; b = k % 2; L = []
        va = 7 + 2 * b; vb = 8 + 2 * b
        L.append(f'v_add_u32 v{va}, {so}, v5'); L.append(f'v_add_u32 v{vb}, {so}, v6')
        h = HF + 8 * b
        L.append(f'ds_read_b128 v[{h}:{h+3}], v{vb}'); L.append(f'ds_read_b128 v[{h+4}:{h+7}], v{vb} offset:1024')
        for dt in range(9):
            wv = WF + 36 * b + 4 * dt
            L.append(f'ds_read_b64_tr_b16 v[{wv}:{wv+1}], v{va} offset:{dt*32}')
            L.append(f'ds_read_b64_tr_b16 v[{wv+2}:{wv+3}], v{va} offset:{dt*32+2304}')
        return L
    for k in range(8): run(dma_list(k))
    vm.wait('D0'); a('s_barrier')
    stamp(a, 1, 'k5')
    run(read_list(0))
    for k in range(36):
        b = k % 2
        if k + 1 < 36:
            vm.wait(f'D{k+1}', ' lgkmcnt(0)'); a('s_barrier')
        else: a('s_waitcnt lgkmcnt(0)')
        fill = []
        if k + 1 < 36: fill += read_list(k + 1)
        dl = dma_list(k + 8) if k + 8 < 36 else []
        mf = []
        for dt in range(9):
            for tt in range(2):
                acc = ACC + 4 * (9 * tt + dt); wv = WF + 36 * b + 4 * dt; h = HF + 8 * b + 4 * tt
                c = '0' if k == 0 else f'v[{acc}:{acc+3}]'
                mf.append([f'v_mfma_f32_16x16x32_bf16 v[{acc}:{acc+3}], v[{wv}:{wv+3}], v[{h}:{h+3}], {c}'])
        interleave(a, mf[:14], fill)
        interleave(a, mf[14:], dl)
        if k in (11, 23): stamp(a, 2 if k == 11 else 3, 'k5')
    stamp(a, 4, 'k5')
    a('v_and_b32 v10, 15, v0'); a('v_mul_u32_u24 v10, 2304, v10')
    a('v_lshrrev_b32 v11, 4, v0'); a('v_lshl_add_u32 v10, v11, 4, v10')
    a(f's_mul_i32 s41, s38, {2048*2304}'); a(f's_mul_i32 s42, s36, {128*2304}'); a('s_add_u32 s41, s41, s42')
    a(f's_mul_i32 s42, s39, {32*2304}'); a('s_add_u32 s41, s41, s42'); a('s_mul_i32 s42, s37, 576'); a('s_add_u32 s41, s41, s42')
    a(f's_add_u32 s42, s41, {16*2304}')
    for tt in range(2):
        for dt in range(9):
            acc = ACC + 4 * (9 * tt + dt)
            a(f'buffer_store_dwordx4 v[{acc}:{acc+3}], v10, s[20:23], s{41+tt} offen offset:{dt*64}' + os.environ.get('STMOD5', ''))
    stamp(a, 5, 'k5')
    if 'k5' in STAMPS:
        a('v_mov_b32 v0, v15'); dump_stamps(a, 6, 'k5', 101)
    a.label('K5_END')
    a('s_endpgm')
    return kernel_desc('k5_kernel', 176)

def gen_k6(a):
    a.raw(kernel_header('k6_kernel'))
    a('s_cmp_ge_u32 s2, 576'); a.branch('s_cbranch_scc1 K6_END')
    load_ptr(a, 4, 'ws'); load_ptr(a, 8, 'out')
    a('s_lshl_b32 s3, s2, 8'); a('v_add_u32 v1, s3, v0')
    a('v_lshlrev_b32 v2, 4, v1')
    a('v_lshlrev_b32 v3, 5, v1')
    a('s_mov_b32 s20, 59652324')
    a('v_mul_hi_u32 v4, v1, s20'); a('v_mul_u32_u24 v4, 72, v4'); a('v_sub_u32 v4, v1, v4'); a('v_lshlrev_b32 v4, 5, v4')
    a('s_waitcnt lgkmcnt(0)')
    copy_srd(a, 12, 4, SZ_PART, WS_PART); copy_srd(a, 16, 4, SZ_X1, WS_X1); copy_srd(a, 24, 4, SZ_MOD, WS_MOD)
    make_srd(a, 8, 2048 * 1152)
    P = 8
    for s in range(4):
        a(f's_mov_b32 s{28+s}, {s*2048*2304}')
        a(f'buffer_load_dwordx4 v[{P+8*s}:{P+8*s+3}], v3, s[12:15], s{28+s} offen')
        a(f'buffer_load_dwordx4 v[{P+8*s+4}:{P+8*s+7}], v3, s[12:15], s{28+s} offen offset:16')
    a('buffer_load_dwordx4 v[40:43], v2, s[16:19], 0 offen')
    a(f's_mov_b32 s21, {5*2304}')
    a('buffer_load_dwordx4 v[44:47], v4, s[24:27], s21 offen')
    a('buffer_load_dwordx4 v[48:51], v4, s[24:27], s21 offen offset:16')
    a('s_waitcnt vmcnt(3)')
    for i in range(8):
        a(f'v_add_f32 v{P+i}, v{P+i}, v{P+8+i}'); a(f'v_add_f32 v{P+16+i}, v{P+16+i}, v{P+24+i}')
    for i in range(8): a(f'v_add_f32 v{P+i}, v{P+i}, v{P+16+i}')
    for i in range(4): a(f'v_cvt_pk_bf16_f32 v{52+i}, v{P+2*i}, v{P+2*i+1}')
    for i in range(4): unpack_lo(a, P + 2 * i, 52 + i); unpack_hi(a, P + 2 * i + 1, 52 + i)
    a('s_waitcnt vmcnt(0)')
    for i in range(8): a(f'v_mul_f32 v{P+i}, v{P+i}, v{44+i}')
    for i in range(4): a(f'v_cvt_pk_bf16_f32 v{52+i}, v{P+2*i}, v{P+2*i+1}')
    for i in range(4): unpack_lo(a, P + 2 * i, 52 + i); unpack_hi(a, P + 2 * i + 1, 52 + i)
    for i in range(4): unpack_lo(a, P + 8 + 2 * i, 40 + i); unpack_hi(a, P + 8 + 2 * i + 1, 40 + i)
    for i in range(8): a(f'v_add_f32 v{P+i}, v{P+i}, v{P+8+i}')
    for i in range(4): a(f'v_cvt_pk_bf16_f32 v{52+i}, v{P+2*i}, v{P+2*i+1}')
    a('buffer_store_dwordx4 v[52:55], v2, s[8:11], 0 offen')
    a.label('K6_END')
    a('s_endpgm')
    return kernel_desc('k6_kernel', 64)
```

```python
import sys
from gen_common import *
from gen_k1 import *
from gen_k23 import *
def build(path, upto=3):
    a = Asm()
    hdr = open('cdna_kernels/' + NAME + '.s.ref').read().split('; Override launch')[0]
    launches = [('k1_kernel', K1_GRID, 256, K1_LDS), ('k2_kernel', 576, 256, K2_LDS), ('k3_kernel', 256, 576, K3_LDS)]
    gens = [gen_k1, gen_k2, gen_k3]
    try:
        import gen_k456
        launches += gen_k456.launches; gens += gen_k456.gens
    except ImportError: pass
    launches = launches[:upto]; gens = gens[:upto]
    for k, g, b, l in launches:
        hdr += f'; @launch kernel={k} grid=({g},1,1) block=({b},1,1) lds={l}\n'
    a.raw(hdr + '.amdgcn_target "amdgcn-amd-amdhsa--gfx950"')
    descs = ''
    for g in gens: descs += g(a)
    open(path, 'w').write(a.text() + descs)
    print('instrs', a.count, 'nops', a.nops, 'bytes', len(a.text()))
if __name__ == '__main__':
    build(sys.argv[1] if len(sys.argv) > 1 else 'cur.s', int(sys.argv[2]) if len(sys.argv) > 2 else 99)
```

```python
import sys
sys.path.insert(0, 'work')
from asmgen import *

NAME = 'adaLN_cond__ssm_conv_s4__glu_gated_swiglu__prompt'
KA = dict(u=0, A_re=8, A_im=16, B_re=24, B_im=32, C_re=40, C_im=48, log_dt=56, Dskip=64, x=72, w1=80, w3=88, w2=96, c=104, wmod=112, out=120, dbg=128, ws=136)
WS_MOD = 0x000000; SZ_MOD = 3456 * 4
RK_STRIDE = 8320
WS_RK = 0x4000000; SZ_RK = 576 * RK_STRIDE
XT_STRIDE = 18560
WS_XT = 0x280000; SZ_XT = 256 * XT_STRIDE
X1T_STRIDE = 4224
WS_X1T = 0x720000; SZ_X1T = 576 * X1T_STRIDE
WS_XF = 0x980000; SZ_XF = 64 * 36 * 1024
WS_X1 = 0xBC0000; SZ_X1 = 2048 * 1152
WS_HH = 0xE00000; SZ_HH = 144 * 128 * 1024
WS_PART = 0x2000000; SZ_PART = 4 * 2048 * 576 * 4
LOG2E = 1.4426950408889634
KSCALE_LOG2 = 10

def f32bits(x):
    import struct
    return '0x%08x' % struct.unpack('<I', struct.pack('<f', x))[0]

def load_ptr(a, s, name):
    a(f's_load_dwordx2 s[{s}:{s+1}], s[0:1], {KA[name]}')

def make_srd(a, s, size, add=0):
    if add:
        a(f's_add_u32 s{s}, s{s}, {hex(add)}')
        a(f's_addc_u32 s{s+1}, s{s+1}, 0')
    a(f's_mov_b32 s{s+2}, {hex(size)}')
    a(f's_mov_b32 s{s+3}, 0x20000')

def copy_srd(a, dst, src_ptr, size, add):
    a(f's_add_u32 s{dst}, s{src_ptr}, {hex(add)}')
    a(f's_addc_u32 s{dst+1}, s{src_ptr+1}, 0')
    a(f's_mov_b32 s{dst+2}, {hex(size)}')
    a(f's_mov_b32 s{dst+3}, 0x20000')

def red_l8(a, v, tmp):
    a(f'v_add_f32_dpp v{v}, v{v}, v{v} row_ror:8 row_mask:0xf bank_mask:0xf')
    a(f'v_mov_b32 v{tmp}, v{v}')
    a(f'v_permlane16_swap_b32 v{v}, v{tmp}')
    a(f'v_add_f32 v{v}, v{v}, v{tmp}')
    a(f'v_mov_b32 v{tmp}, v{v}')
    a(f'v_permlane32_swap_b32 v{v}, v{tmp}')
    a(f'v_add_f32 v{v}, v{v}, v{tmp}')

def red_l8_multi(a, vs, tmps):
    for v in vs: a(f'v_add_f32_dpp v{v}, v{v}, v{v} row_ror:8 row_mask:0xf bank_mask:0xf')
    for v, t in zip(vs, tmps): a(f'v_mov_b32 v{t}, v{v}')
    for v, t in zip(vs, tmps): a(f'v_permlane16_swap_b32 v{v}, v{t}')
    for v, t in zip(vs, tmps): a(f'v_add_f32 v{v}, v{v}, v{t}')
    for v, t in zip(vs, tmps): a(f'v_mov_b32 v{t}, v{v}')
    for v, t in zip(vs, tmps): a(f'v_permlane32_swap_b32 v{v}, v{t}')
    for v, t in zip(vs, tmps): a(f'v_add_f32 v{v}, v{v}, v{t}')

def unpack_lo(a, dst, src): a(f'v_lshlrev_b32 v{dst}, 16, v{src}')
def unpack_hi(a, dst, src): a(f'v_and_b32 v{dst}, 0xffff0000, v{src}')

def round_bf16_1(a, dst, src):
    a(f'v_cvt_pk_bf16_f32 v{dst}, v{src}, v{src}')
    a(f'v_lshlrev_b32 v{dst}, 16, v{dst}')

def cmul(a, d, x, y):
    a(f'v_pk_mul_f32 v[{d}:{d+1}], v[{x}:{x+1}], v[{y}:{y+1}] op_sel:[0,0] op_sel_hi:[0,1]')
    a(f'v_pk_fma_f32 v[{d}:{d+1}], v[{x}:{x+1}], v[{y}:{y+1}], v[{d}:{d+1}] op_sel:[1,1,0] op_sel_hi:[1,0,1] neg_lo:[1,0,0]')

import os
STAMPS = os.environ.get('STAMPS', '')
def stamp(a, i, kern):
    if kern not in STAMPS: return
    a('s_waitcnt lgkmcnt(0)')
    a('s_memrealtime s[88:89]' if os.environ.get('RT') else 's_memtime s[88:89]')
    a('s_waitcnt lgkmcnt(0)')
    a(f's_mov_b32 s{90+i}, s88')
def dump_stamps(a, n, kern, wg):
    if kern not in STAMPS: return
    lab = f'STAMP_SKIP_{kern}'
    a(f's_cmp_eq_u32 s2, {wg}'); a.branch(f's_cbranch_scc0 {lab}')
    a(f's_load_dwordx2 s[84:85], s[0:1], {KA["dbg"]}')
    a('s_waitcnt lgkmcnt(0)')
    a('s_mov_b32 s86, 256'); a('s_mov_b32 s87, 0x20000')
    a('v_readfirstlane_b32 s83, v0'); a('s_lshr_b32 s83, s83, 6'); a('s_lshl_b32 s83, s83, 5')
    a('s_mov_b64 exec, 1')
    for i in range(n):
        a(f's_sub_u32 s82, s{90+i}, s90')
        a('v_mov_b32 v60, s82'); a(f'v_mov_b32 v61, s83')
        a(f'buffer_store_dword v60, v61, s[84:87], 0 offen offset:{4*i}')
    a.label(lab)


TK = os.environ.get('TK', '1') != '0'
WS_CNT = 0x10000; SZ_CNT = 28672
CNT_OFF = dict(k2=0, k3=12288, k4=16384, k5=20480, k6=24576)
def ticket_begin(a, sp=84):
    a(f's_load_dwordx2 s[{sp}:{sp+1}], s[0:1], {KA["ws"]}')
def ticket(a, kern, nb, out, lds_off, vt=(60, 61), sp=84, wave_s=None):
    v0, v1 = vt
    a('s_getreg_b32 s80, hwreg(HW_REG_XCC_ID, 0, 4)')
    a('s_and_b32 s80, s80, 7')
    a(f's_mul_i32 s80, s80, {nb}'); a('s_lshr_b32 s81, s2, 6'); a('s_add_u32 s80, s80, s81')
    a(f'v_mov_b32 v{v1}, {lds_off}')
    if wave_s is None:
        a('v_readfirstlane_b32 s81, v0'); a('s_cmp_ge_u32 s81, 64')
    else: a(f's_cmp_ge_u32 s{wave_s}, 1')
    a.branch(f's_cbranch_scc1 TK_W_{kern}')
    a('s_mov_b32 s82, 0')
    a('s_mov_b64 exec, 1')
    a('s_waitcnt lgkmcnt(0)')
    a(f's_add_u32 s{sp}, s{sp}, {hex(WS_CNT + CNT_OFF[kern])}'); a(f's_addc_u32 s{sp+1}, s{sp+1}, 0')
    a(f's_mov_b32 s{sp+2}, {nb*8*128}'); a(f's_mov_b32 s{sp+3}, 0x20000')
    a.label(f'TK_L_{kern}')
    a('s_lshl_b32 s83, s80, 7')
    a(f'v_mov_b32 v{v0}, 1')
    a(f'buffer_atomic_add v{v0}, off, s[{sp}:{sp+3}], s83 sc0 sc1')
    a('s_waitcnt vmcnt(0)')
    a(f'v_readfirstlane_b32 s81, v{v0}')
    a('s_cmp_lt_u32 s81, 8'); a.branch(f's_cbranch_scc1 TK_OK_{kern}')
    a('s_add_u32 s80, s80, 1'); a(f's_cmp_lt_u32 s80, {8*nb}'); a('s_cselect_b32 s80, s80, 0')
    a('s_add_u32 s82, s82, 1')
    a(f's_cmp_lt_u32 s82, {8*nb}'); a.branch(f's_cbranch_scc1 TK_L_{kern}')
    a('s_mov_b32 s81, 0'); a('s_mov_b32 s80, 0x1000000')
    a.label(f'TK_OK_{kern}')
    a('s_lshl_b32 s80, s80, 3'); a('s_add_u32 s81, s81, s80')
    a(f'v_mov_b32 v{v0}, s81')
    a(f'ds_write_b32 v{v1}, v{v0}')
    a('s_mov_b64 exec, -1')
    a('s_waitcnt lgkmcnt(0)')
    a.label(f'TK_W_{kern}')
    a('s_barrier')
    a(f'ds_read_b32 v{v0}, v{v1}')
    a('s_waitcnt lgkmcnt(0)')
    a(f'v_readfirstlane_b32 s{out}, v{v0}')
    a(f's_cmp_ge_u32 s{out}, {64*nb}'); a.branch(f's_cbranch_scc1 {kern.upper()}_END')
```

```python
from gen_common import *

def ln_core(a, nch, xp, xf, tmp, nw, v_redw, v_redr, red_off, out_xn):
    n = 8 * nch
    for i in range(4 * nch):
        unpack_lo(a, xf + 2 * i, xp + i); unpack_hi(a, xf + 2 * i + 1, xp + i)
    s = tmp; t1 = tmp + 1
    for k in range(4): a(f'v_add_f32 v{tmp+2+k}, v{xf+k}, v{xf+4+k}')
    for i in range(8, n):
        a(f'v_add_f32 v{tmp+2+(i%4)}, v{tmp+2+(i%4)}, v{xf+i}')
    a(f'v_add_f32 v{tmp+2}, v{tmp+2}, v{tmp+3}')
    a(f'v_add_f32 v{tmp+4}, v{tmp+4}, v{tmp+5}')
    a(f'v_add_f32 v{s}, v{tmp+2}, v{tmp+4}')
    red_l8(a, s, t1)
    a(f'ds_write_b32 v{v_redw}, v{s} offset:{red_off}')
    a('s_waitcnt lgkmcnt(0)')
    a('s_barrier')
    def gather(off):
        for w in range(nw): a(f'ds_read_b32 v{tmp+2+w}, v{v_redr} offset:{off + w*32}')
        a('s_waitcnt lgkmcnt(0)')
        for w in range(1, nw): a(f'v_add_f32 v{tmp+2}, v{tmp+2}, v{tmp+2+w}')
    gather(red_off)
    mean = tmp
    a(f'v_mul_f32 v{mean}, {f32bits(1.0/576)}, v{tmp+2}')
    acc = [tmp + 2 + k for k in range(4)]
    d = tmp + 6
    for i in range(n):
        a(f'v_sub_f32 v{d + (i%4)}, v{xf+i}, v{mean}')
        if i < 4: a(f'v_mul_f32 v{acc[i]}, v{d+i}, v{d+i}')
        else: a(f'v_fmac_f32 v{acc[i%4]}, v{d+(i%4)}, v{d+(i%4)}')
    a(f'v_add_f32 v{acc[0]}, v{acc[0]}, v{acc[1]}')
    a(f'v_add_f32 v{acc[2]}, v{acc[2]}, v{acc[3]}')
    a(f'v_add_f32 v{t1}, v{acc[0]}, v{acc[2]}')
    red_l8(a, t1, tmp + 6)
    off2 = red_off + nw * 32
    a(f'ds_write_b32 v{v_redw}, v{t1} offset:{off2}')
    round_bf16_1(a, mean, mean)
    a('s_waitcnt lgkmcnt(0)')
    a('s_barrier')
    gather(off2)
    r = tmp + 1
    a(f'v_mul_f32 v{r}, {f32bits(1.0/576)}, v{tmp+2}')
    round_bf16_1(a, r, r)
    a(f'v_add_f32 v{r}, {f32bits(1e-5)}, v{r}')
    round_bf16_1(a, r, r)
    a(f'v_sqrt_f32 v{r}, v{r}')
    round_bf16_1(a, r, r)
    a(f'v_rcp_f32 v{r}, v{r}')
    for i in range(n): a(f'v_sub_f32 v{xf+i}, v{xf+i}, v{mean}')
    for i in range(4 * nch): a(f'v_cvt_pk_bf16_f32 v{out_xn+i}, v{xf+2*i}, v{xf+2*i+1}')
    for i in range(4 * nch):
        unpack_lo(a, xf + 2 * i, out_xn + i); unpack_hi(a, xf + 2 * i + 1, out_xn + i)
    for i in range(n): a(f'v_mul_f32 v{xf+i}, v{xf+i}, v{r}')
    for i in range(4 * nch): a(f'v_cvt_pk_bf16_f32 v{out_xn+i}, v{xf+2*i}, v{xf+2*i+1}')

N_MOD = 54; N_LN1 = 256; N_KG = 576
import os
N_PF = int(os.environ.get('NPF', '0'))
K1_GRID = N_MOD + N_LN1 + N_KG + N_PF
K1_LDS = 36864

def gen_k1(a):
    a.raw(kernel_header('k1_kernel'))
    dbgt(a, 0, 0, 'DBGT_1')
    a(f's_cmp_lt_u32 s2, {N_MOD}'); a.branch('s_cbranch_scc1 K1_MOD')
    a(f's_cmp_lt_u32 s2, {N_MOD+N_LN1}'); a.branch('s_cbranch_scc1 K1_LN')
    a(f's_cmp_lt_u32 s2, {N_MOD+N_LN1+N_KG}'); a.branch('s_cbranch_scc1 K1_KG')
    if N_PF:
        a(f's_cmp_ge_u32 s2, {K1_GRID}'); a.branch('s_cbranch_scc1 K1_END')
        a(f's_sub_u32 s3, s2, {N_MOD+N_LN1+N_KG}')
        a('s_mul_i32 s8, s3, 911'); a('s_lshr_b32 s8, s8, 16')
        a('s_mul_i32 s9, s8, 72'); a('s_sub_u32 s9, s3, s9')
        a('s_lshl_b32 s8, s8, 3'); a(f's_add_u32 s8, s8, {KA["w1"]}')
        a('s_load_dwordx2 s[4:5], s[0:1], s8')
        a('s_mul_i32 s9, s9, 73728')
        a('v_lshlrev_b32 v1, 4, v0')
        a('s_waitcnt lgkmcnt(0)')
        make_srd(a, 4, 576 * 9216)
        for i in range(18):
            a(f's_add_u32 s10, s9, {i*4096}')
            a(f'buffer_load_dwordx4 v[{8+4*i}:{11+4*i}], v1, s[4:7], s10 offen')
        a('s_waitcnt vmcnt(0)')
    a('s_endpgm')
    a.label('K1_MOD')
    load_ptr(a, 4, 'wmod'); load_ptr(a, 8, 'c'); load_ptr(a, 12, 'ws')
    a('v_and_b32 v1, 7, v0')
    a('v_lshrrev_b32 v2, 3, v0')
    a('v_mul_u32_u24 v3, 36, v2')
    a(f'v_mul_u32_u24 v4, {18*6912}, v2')
    a('v_lshl_add_u32 v4, v1, 4, v4')
    a('s_lshl_b32 s3, s2, 7')
    a('v_add_u32 v4, s3, v4')
    a('s_waitcnt lgkmcnt(0)')
    copy_srd(a, 40, 12, SZ_CNT, WS_CNT)
    make_srd(a, 4, 576 * 6912); make_srd(a, 8, 1152); make_srd(a, 12, SZ_MOD, WS_MOD)
    for i in range(4): a(f'v_mov_b32 v{112+i}, 0')
    a('v_lshlrev_b32 v116, 4, v0'); a('s_lshl_b32 s44, s2, 12'); a('v_add_u32 v116, s44, v116')
    a('buffer_store_dwordx4 v[112:115], v116, s[40:43], 0 offen')
    C = 8; W = 20
    a(f'buffer_load_dwordx4 v[{C}:{C+3}], v3, s[8:11], 0 offen')
    a(f'buffer_load_dwordx4 v[{C+4}:{C+7}], v3, s[8:11], 0 offen offset:16')
    a(f'buffer_load_dword v{C+8}, v3, s[8:11], 0 offen offset:32')
    for i in range(18):
        a(f's_mov_b32 s{16+i}, {i*6912}')
        a(f'buffer_load_dwordx4 v[{W+4*i}:{W+4*i+3}], v4, s[4:7], s{16+i} offen')
    S = 92
    a('s_waitcnt vmcnt(18)')
    for i in range(9):
        unpack_lo(a, S + 2 * i, C + i); unpack_hi(a, S + 2 * i + 1, C + i)
    T = 110
    for i in range(18): a(f'v_mul_f32 v{T+i}, {f32bits(-LOG2E)}, v{S+i}')
    for i in range(18): a(f'v_exp_f32 v{T+i}, v{T+i}')
    for i in range(18): a(f'v_add_f32 v{T+i}, 1.0, v{T+i}')
    for i in range(18): a(f'v_rcp_f32 v{T+i}, v{T+i}')
    for i in range(18): a(f'v_mul_f32 v{S+i}, v{S+i}, v{T+i}')
    for i in range(9): a(f'v_cvt_pk_bf16_f32 v{T+i}, v{S+2*i}, v{S+2*i+1}')
    for i in range(9):
        unpack_lo(a, S + 2 * i, T + i); unpack_hi(a, S + 2 * i + 1, T + i)
    ACC = 110; U = 118
    for i in range(18):
        a(f's_waitcnt vmcnt({17-i})')
        for j in range(4):
            unpack_lo(a, U + 2 * j, W + 4 * i + j); unpack_hi(a, U + 2 * j + 1, W + 4 * i + j)
        for j in range(8):
            if i == 0: a(f'v_mul_f32 v{ACC+j}, v{S+i}, v{U+j}')
            else: a(f'v_fmac_f32 v{ACC+j}, v{S+i}, v{U+j}')
    red_l8_multi(a, [ACC + j for j in range(8)], [U + j for j in range(8)])
    a('v_lshrrev_b32 v5, 6, v0')
    a('v_lshlrev_b32 v5, 8, v5')
    a('v_lshl_add_u32 v5, v1, 5, v5')
    a(f'ds_write_b128 v5, v[{ACC}:{ACC+3}]')
    a(f'ds_write_b128 v5, v[{ACC+4}:{ACC+7}] offset:16')
    a('s_waitcnt lgkmcnt(0)'); a('s_barrier')
    a('v_cmp_gt_u32 vcc, 64, v0')
    a('s_and_saveexec_b64 s[40:41], vcc')
    a.branch('s_cbranch_execz K1_END')
    a('v_lshlrev_b32 v6, 2, v0')
    for w in range(4): a(f'ds_read_b32 v{8+w}, v6 offset:{w*256}')
    a('s_waitcnt lgkmcnt(0)')
    a('v_add_f32 v8, v8, v9'); a('v_add_f32 v10, v10, v11'); a('v_add_f32 v8, v8, v10')
    round_bf16_1(a, 8, 8)
    a('s_lshl_b32 s3, s2, 8')
    a('v_add_u32 v6, s3, v6')
    a('buffer_store_dword v8, v6, s[12:15], 0 offen')
    a('s_endpgm')
    a.label('K1_LN')
    a('v_readfirstlane_b32 s4, v0')
    a('s_cmp_ge_u32 s4, 192'); a.branch('s_cbranch_scc1 K1_END')
    load_ptr(a, 4, 'u'); load_ptr(a, 8, 'ws')
    a(f's_sub_u32 s3, s2, {N_MOD}')
    a('v_and_b32 v1, 7, v0')
    a('v_lshrrev_b32 v2, 3, v0')
    a('v_mul_u32_u24 v3, 1152, v1')
    a('v_lshl_add_u32 v3, v2, 4, v3')
    a('s_mul_i32 s12, s3, 9216')
    a('s_waitcnt lgkmcnt(0)')
    make_srd(a, 4, 2048 * 1152); make_srd(a, 8, SZ_XT, WS_XT)
    XP = 8; XF = 20; TMP = 44; XN = 60
    for i in range(3):
        a(f'buffer_load_dwordx4 v[{XP+4*i}:{XP+4*i+3}], v3, s[4:7], s12 offen offset:{i*24*16}')
    RED = 72 * 288
    a('v_lshrrev_b32 v4, 6, v0')
    a('v_lshlrev_b32 v4, 5, v4')
    a('v_lshl_add_u32 v4, v1, 2, v4')
    a('v_lshlrev_b32 v5, 2, v1')
    a('v_mul_u32_u24 v6, 288, v2')
    a('v_lshl_add_u32 v6, v1, 2, v6')
    a('s_mov_b32 s14, 0x05040100'); a('s_mov_b32 s15, 0x07060302')
    a('s_waitcnt vmcnt(0)')
    ln_core(a, 3, XP, XF, TMP, 3, 4, 5, RED, XN)
    for i in range(3):
        for j in range(4):
            r = 4 * i + j
            a(f'v_perm_b32 v{XF+2*r}, v{XP+r}, v{XN+r}, s14')
            a(f'v_perm_b32 v{XF+2*r+1}, v{XP+r}, v{XN+r}, s15')
        for e in range(8):
            a(f'ds_write_b32 v6, v{XF+8*i+e} offset:{i*24*288 + e*32}')
    a('s_waitcnt lgkmcnt(0)'); a('s_barrier')
    a('v_lshrrev_b32 v1, 4, v0')
    a('v_mul_u32_u24 v1, 288, v1')
    a('v_and_b32 v2, 15, v0')
    a('v_lshl_add_u32 v1, v2, 4, v1')
    a('v_lshlrev_b32 v2, 4, v0')
    a(f's_mul_i32 s12, s3, {XT_STRIDE}')
    for j in range(6): a(f'ds_read_b128 v[{XF+4*j}:{XF+4*j+3}], v1 offset:{j*12*288}')
    for j in range(6):
        a(f's_waitcnt lgkmcnt({5-j})')
        a(f's_add_u32 s13, s12, {j*3072}')
        a(f'buffer_store_dwordx4 v[{XF+4*j}:{XF+4*j+3}], v2, s[8:11], s13 offen')
    a('s_endpgm')
    a.label('K1_KG')
    names = ['A_re', 'A_im', 'B_re', 'B_im', 'C_re', 'C_im']
    for i, nm in enumerate(names): load_ptr(a, 4 + 4 * i, nm)
    load_ptr(a, 28, 'log_dt'); load_ptr(a, 32, 'ws')
    a(f's_sub_u32 s3, s2, {N_MOD+N_LN1}')
    a('s_and_b32 s36, s3, 7'); a('s_mul_i32 s36, s36, 72'); a('s_lshr_b32 s37, s3, 3'); a('s_add_u32 s3, s36, s37')
    a('v_and_b32 v1, 127, v0')
    a('v_lshlrev_b32 v2, 1, v1')
    a('s_lshl_b32 s36, s3, 8')
    a('s_and_b32 s37, s3, -2'); a('s_lshl_b32 s37, s37, 1')
    a('v_readfirstlane_b32 s38, v0')
    a('s_waitcnt lgkmcnt(0)')
    a('s_load_dword s39, s[28:29], s37')
    for i in range(6): make_srd(a, 4 + 4 * i, 576 * 256)
    make_srd(a, 32, SZ_RK, WS_RK)
    for i in range(6): a(f'buffer_load_ushort v{8+i}, v2, s[{4+4*i}:{7+4*i}], s36 offen')
    KC = 33792
    GA = 100
    a('v_lshlrev_b32 v3, 3, v0')
    a('v_sub_u32 v3, 2047, v3')
    for e in range(9):
        a(f'v_subrev_u32 v{GA+e}, {e}, v3')
    for e in range(10): a(f'v_cvt_f32_u32 v{110+e}, v{GA+min(e,8)}')
    for e in range(5): a(f'v_cvt_pk_bf16_f32 v{120+e}, v{110+2*e}, v{110+2*e+1}')
    for e in range(4):
        a(f'v_and_b32 v{110+2*e}, 0xffff, v{120+e}')
        a(f'v_lshrrev_b32 v{110+2*e+1}, 16, v{120+e}')
    a('v_and_b32 v118, 0xffff, v124')
    a('v_cmp_gt_u32 vcc, 240, v0')
    for e in range(9): a(f'v_subrev_u32 v{110+e}, 17024, v{110+e}')
    for e in range(8): a(f'v_cndmask_b32 v{GA+e}, v{GA+e}, v{110+e}, vcc')
    a('v_cmp_gt_u32 vcc, 239, v0')
    a(f'v_cndmask_b32 v{GA+8}, v{GA+8}, v118, vcc')
    a(f'v_max_i32 v{GA+8}, 0, v{GA+8}')
    for e in range(9): a(f'v_lshlrev_b32 v{GA+e}, 1, v{GA+e}')
    a('s_lshr_b32 s40, s38, 6')
    a('s_and_b32 s41, s40, 1')
    a('s_lshr_b32 s42, s40, 1')
    a('v_and_b32 v4, 15, v0')
    a('s_lshl_b32 s43, s41, 4')
    a('v_add_u32 v4, s43, v4')
    a('v_bfe_u32 v5, v0, 4, 2')
    KW = 124
    a('s_cmp_eq_u32 s42, 0'); a.branch('s_cbranch_scc0 K1_KG_RT1')
    a('v_lshlrev_b32 v124, 3, v4')
    a('v_lshl_add_u32 v124, v5, 2, v124')
    a('v_lshlrev_b32 v6, 2, v4'); a('v_add_u32 v6, 256, v6')
    a('v_cmp_eq_u32 vcc, 2, v5'); a('v_cndmask_b32 v124, v124, v6, vcc')
    a('v_lshlrev_b32 v6, 1, v4'); a('v_add_u32 v6, 384, v6')
    a('v_cmp_eq_u32 vcc, 3, v5'); a('v_cndmask_b32 v124, v124, v6, vcc')
    a('v_mov_b32 v125, 1')
    a('v_mov_b32 v6, 64'); a('v_cndmask_b32 v126, 2, v6, vcc')
    a.branch('s_branch K1_KG_A')
    a.label('K1_KG_RT1')
    a('v_add_u32 v124, 700, v4')
    a('v_add_u32 v6, 640, v4'); a('v_cmp_eq_u32 vcc, 1, v5'); a('v_cndmask_b32 v124, v124, v6, vcc')
    a('v_add_u32 v6, 512, v4'); a('v_cmp_eq_u32 vcc, 0, v5'); a('v_cndmask_b32 v124, v124, v6, vcc')
    a('v_mov_b32 v6, 32'); a('v_mov_b32 v7, 64'); a('v_cndmask_b32 v125, v7, v6, vcc')
    a('v_lshlrev_b32 v126, 1, v125')
    a.label('K1_KG_A')
    a('v_add_u32 v127, v126, v125')
    a('v_add_u32 v125, v124, v125'); a('v_add_u32 v126, v124, v126'); a('v_add_u32 v127, v124, v127')
    for i in range(4): a(f'v_lshlrev_b32 v{124+i}, 1, v{124+i}')
    a('s_waitcnt lgkmcnt(0)')
    a('s_and_b32 s43, s3, 1'); a('s_lshl_b32 s43, s43, 4'); a('s_lshr_b32 s39, s39, s43'); a('s_lshl_b32 s39, s39, 16')
    a(f'v_mov_b32 v14, s39')
    a(f'v_mul_f32 v14, {f32bits(LOG2E)}, v14')
    a('v_exp_f32 v14, v14')
    round_bf16_1(a, 14, 14)
    a('s_waitcnt vmcnt(0)')
    for i in range(6): a(f'v_lshlrev_b32 v{8+i}, 16, v{8+i}')
    a('v_mul_f32 v8, v8, v14'); a('v_mul_f32 v9, v9, v14')
    a('v_mul_f32 v10, v10, v14'); a('v_mul_f32 v11, v11, v14')
    a(f'v_mul_f32 v8, {f32bits(LOG2E)}, v8')
    a(f'v_mul_f32 v9, {f32bits(0.15915494309189535)}, v9')
    cmul(a, 16, 12, 10)
    a(f'v_mul_f32 v16, {float(2**KSCALE_LOG2)}, v16'); a(f'v_mul_f32 v17, {float(2**KSCALE_LOG2)}, v17')
    def D(dst, al):
        a(f'v_mul_f32 v4, {float(al)}, v8'); a(f'v_mul_f32 v5, {float(al)}, v9')
        a('v_exp_f32 v4, v4'); a('v_fract_f32 v5, v5')
        a('v_cos_f32 v6, v5'); a('v_sin_f32 v7, v5')
        a(f'v_mul_f32 v{dst}, v4, v6'); a(f'v_mul_f32 v{dst+1}, v4, v7')
    UB = 0; VB = 16896
    a('v_lshlrev_b32 v3, 2, v1')
    def putU(r, src):
        a(f'v_cvt_pk_f16_f32 v2, v{src}, v{src+1}')
        a(f'ds_write_b32 v3, v2 offset:{UB + r*528}')
    def putV(j, src):
        a(f'v_cvt_pk_f16_f32 v2, v{src}, -v{src+1}')
        a(f'ds_write_b32 v3, v2 offset:{VB + j*528}')
    E8, EX, EY, P0, P1 = 18, 20, 22, 24, 26
    a('s_cmp_ge_u32 s38, 128'); a.branch('s_cbranch_scc1 K1_KG_H1')
    D(E8, 8); D(EX, 1); D(EY, 256)
    a(f'v_mov_b32 v{P0}, 1.0'); a(f'v_mov_b32 v{P0+1}, 0')
    putV(0, P0); putV(1, E8)
    cur, nxt = E8, P0
    for j in range(2, 16):
        cmul(a, nxt, cur, E8); putV(j, nxt)
        cur = nxt; nxt = P1 if nxt == P0 else P0
    cur = 16
    for r in range(8):
        if r > 0:
            nxt = P0 if cur != P0 else P1
            cmul(a, nxt, cur, EX); cur = nxt
        putU(r, cur)
        if r % 2 == 0:
            cmul(a, 28, cur, EY); putU(8 + r // 2, 28)
    a.branch('s_branch K1_KG_B')
    a.label('K1_KG_H1')
    D(E8, 8); D(P0, 128); D(EX, 4)
    cmul(a, EY, P0, P0)
    cmul(a, 28, EY, EY)
    cmul(a, 30, 28, 28)
    putV(16, P0)
    cur, nxt = P0, P1
    for j in range(17, 32):
        cmul(a, nxt, cur, E8); putV(j, nxt)
        cur, nxt = nxt, cur
    cmul(a, P0, 16, 28); putU(12, P0)
    cmul(a, P1, P0, EX); putU(13, P1)
    cmul(a, P1, P0, EY); putU(14, P1)
    cmul(a, P0, P1, EX); putU(15, P0)
    cmul(a, P0, 16, 30); putU(16, P0)
    cmul(a, P1, P0, EY); putU(17, P1)
    cmul(a, P0, P1, EY); putU(18, P0)
    cmul(a, P1, P0, EY); putU(19, P1)
    cmul(a, P0, P1, EY); putU(20, P0)
    a.label('K1_KG_B')
    a('v_and_b32 v4, 15, v0'); a('v_bfe_u32 v5, v0, 4, 2')
    a('s_lshl_b32 s43, s42, 4'); a('v_add_u32 v6, s43, v4'); a('v_mul_u32_u24 v6, 528, v6'); a('v_lshl_add_u32 v6, v5, 4, v6')
    a('s_lshl_b32 s43, s41, 4'); a('v_add_u32 v7, s43, v4'); a('v_mul_u32_u24 v7, 528, v7'); a('v_lshl_add_u32 v7, v5, 4, v7')
    a('s_waitcnt lgkmcnt(0)'); a('s_barrier')
    FA = 32; FB = 64
    for s in range(8):
        a(f'ds_read_b128 v[{FA+4*s}:{FA+4*s+3}], v6 offset:{UB + s*64}')
        a(f'ds_read_b128 v[{FB+4*s}:{FB+4*s+3}], v7 offset:{VB + s*64}')
    for s in range(8):
        a(f's_waitcnt lgkmcnt({14-2*s})')
        a(f'v_mfma_f32_16x16x32_f16 v[8:11], v[{FA+4*s}:{FA+4*s+3}], v[{FB+4*s}:{FB+4*s+3}], ' + ('0' if s == 0 else 'v[8:11]'))
    a('v_cvt_pk_f16_f32 v12, v8, v9'); a('v_cvt_pk_f16_f32 v13, v10, v11')
    a(f'ds_write_b16 v124, v12 offset:{KC}'); a(f'ds_write_b16_d16_hi v125, v12 offset:{KC}')
    a(f'ds_write_b16 v126, v13 offset:{KC}'); a(f'ds_write_b16_d16_hi v127, v13 offset:{KC}')
    a('s_waitcnt lgkmcnt(0)'); a('s_barrier')
    for e in range(9):
        a(f'ds_read_u16 v{24+e}, v{GA+e} offset:{KC}')
    a('v_lshlrev_b32 v2, 4, v0')
    a(f's_mul_i32 s36, s3, {RK_STRIDE}')
    a('s_add_u32 s37, s36, 4096')
    a('v_cmp_gt_u32 vcc, 255, v0')
    a('s_waitcnt lgkmcnt(0)')
    a('v_cndmask_b32 v32, 0, v32, vcc')
    for e in range(4): a(f'v_lshl_or_b32 v{16+e}, v{24+2*e+1}, 16, v{24+2*e}')
    for e in range(4): a(f'v_lshl_or_b32 v{20+e}, v{24+2*e+2}, 16, v{24+2*e+1}')
    a('buffer_store_dwordx4 v[16:19], v2, s[32:35], s36 offen')
    a('buffer_store_dwordx4 v[20:23], v2, s[32:35], s37 offen')
    a.label('K1_END')
    a('s_endpgm')
    return kernel_desc('k1_kernel', 128)
```

```python
from gen_common import *
from gen_k1 import ln_core

K2_LDS = 4608 + 32768 + 8320 + 16
K2_RC = 4608 + 32768
def gen_k2(a):
    a.raw(kernel_header('k2_kernel'))
    a('s_cmp_ge_u32 s2, 576'); a.branch('s_cbranch_scc1 K2_END')
    stamp(a, 0, 'k2')
    if TK: ticket_begin(a)
    load_ptr(a, 4, 'ws'); load_ptr(a, 24, 'Dskip')
    a('v_readfirstlane_b32 s38, v0'); a('s_lshr_b32 s38, s38, 6')
    a('v_and_b32 v1, 15, v0')
    a('v_bfe_u32 v2, v0, 4, 2')
    if TK: ticket(a, 'k2', 9, 3, K2_LDS - 16, wave_s=38)
    else:
        a('s_and_b32 s36, s2, 7'); a('s_mul_i32 s36, s36, 72'); a('s_lshr_b32 s37, s2, 3'); a('s_add_u32 s3, s36, s37')
    a('s_and_b32 s37, s3, -2'); a('s_lshl_b32 s37, s37, 1')
    a('s_lshl_b32 s39, s3, 2')
    a('s_waitcnt lgkmcnt(0)')
    stamp(a, 1, 'k2')
    a('s_load_dword s40, s[24:25], s37')
    copy_srd(a, 8, 4, SZ_RK, WS_RK); copy_srd(a, 12, 4, SZ_XT, WS_XT); copy_srd(a, 16, 4, SZ_X1T, WS_X1T)
    a('s_add_u32 s20, s4, s39'); a('s_addc_u32 s21, s5, 0')
    a(f's_load_dword s41, s[20:21], {WS_MOD}')
    a(f's_load_dword s42, s[20:21], {WS_MOD+2304}')
    a(f's_load_dword s43, s[20:21], {WS_MOD+4608}')
    a('v_lshrrev_b32 v3, 1, v2')
    a('v_lshl_add_u32 v3, v1, 1, v3')
    a(f'v_mul_u32_u24 v3, {XT_STRIDE}, v3')
    a('v_and_b32 v4, 1, v2')
    a('v_lshl_add_u32 v3, v4, 4, v3')
    a(f's_mul_i32 s44, s38, {64*XT_STRIDE}')
    a('s_lshl_b32 s45, s3, 5'); a('s_add_u32 s44, s44, s45')
    a(f's_add_u32 s45, s44, {32*XT_STRIDE}')
    XW = 8
    a(f'buffer_load_dwordx4 v[{XW}:{XW+3}], v3, s[12:15], s44 offen')
    a(f'buffer_load_dwordx4 v[{XW+4}:{XW+7}], v3, s[12:15], s45 offen')
    a('v_and_b32 v4, 63, v0'); a('v_lshlrev_b32 v4, 4, v4')
    a(f's_mul_i32 s46, s3, {RK_STRIDE}')
    a('s_lshl_b32 s47, s38, 10'); a('s_add_u32 s46, s46, s47')
    a(f's_add_u32 m0, s47, {K2_RC}')
    a('buffer_load_dwordx4 v4, s[8:11], s46 offen lds')
    a('s_add_u32 s46, s46, 4096')
    a(f's_add_u32 m0, s47, {K2_RC+4160}')
    a('buffer_load_dwordx4 v4, s[8:11], s46 offen lds')
    a('v_lshlrev_b32 v152, 3, v2'); a('v_sub_u32 v152, v152, v1'); a('v_add_u32 v152, 15, v152')
    a('v_and_b32 v153, 1, v152'); a('v_and_b32 v152, -2, v152'); a('v_lshlrev_b32 v152, 1, v152')
    a('v_mul_u32_u24 v153, 4160, v153'); a('v_add_u32 v152, v152, v153')
    a(f'v_add_u32 v152, {K2_RC}, v152')
    a('s_sub_u32 s47, 7, s38'); a('s_lshl_b32 s47, s47, 9'); a('v_add_u32 v153, s47, v152')
    a('s_lshl_b32 s48, s38, 9'); a('v_add_u32 v152, s48, v152')
    T1 = 32; T2 = 64
    for i in range(4): a(f'v_mov_b32 v{16+i}, 0')
    a('v_lshlrev_b32 v5, 4, v0')
    a('v_cmp_gt_u32 vcc, 30, v0')
    a('s_and_saveexec_b64 s[50:51], vcc')
    a.branch('s_cbranch_execz K2_Z')
    a('ds_write_b128 v5, v[16:19]')
    a('v_cmp_gt_u32 vcc, 4, v0')
    a('s_and_b64 exec, exec, vcc')
    a(f'ds_write_b128 v5, v[16:19] offset:{K2_RC+4096}')
    a(f'ds_write_b128 v5, v[16:19] offset:{K2_RC+4160+4096}')
    a.label('K2_Z')
    a('s_mov_b64 exec, s[50:51]')
    D = 96
    for i in range(32): a(f'v_mov_b32 v{D+i}, 0')
    a('v_lshlrev_b32 v5, 5, v1'); a('v_lshl_add_u32 v5, v2, 3, v5')
    a('s_lshl_b32 s49, s38, 10'); a('v_add_u32 v5, s49, v5')
    a('v_lshlrev_b32 v6, 5, v1'); a('v_lshl_add_u32 v6, v2, 4, v6')
    a('s_waitcnt lgkmcnt(0)')
    a('s_and_b32 s45, s3, 1'); a('s_lshl_b32 s45, s45, 4'); a('s_lshr_b32 s40, s40, s45'); a('s_lshl_b32 s40, s40, 16')
    a('v_mov_b32 v7, s42'); a('v_add_f32 v7, 1.0, v7'); round_bf16_1(a, 7, 7)
    stamp(a, 2, 'k2')
    a('s_waitcnt vmcnt(2)')
    stamp(a, 3, 'k2')
    HF = 16; HD = 24; TP = 28
    for i in range(8): unpack_lo(a, HF + i, XW + i)
    for i in range(8): a(f'v_mul_f32 v{HF+i}, v{HF+i}, v7')
    for i in range(4): a(f'v_cvt_pk_bf16_f32 v{TP+i}, v{HF+2*i}, v{HF+2*i+1}')
    for i in range(4): unpack_lo(a, HF + 2 * i, TP + i); unpack_hi(a, HF + 2 * i + 1, TP + i)
    for i in range(8): a(f'v_add_f32 v{HF+i}, s41, v{HF+i}')
    for i in range(4): a(f'v_cvt_pk_bf16_f32 v{TP+i}, v{HF+2*i}, v{HF+2*i+1}')
    for i in range(4): unpack_lo(a, HF + 2 * i, TP + i); unpack_hi(a, HF + 2 * i + 1, TP + i)
    for i in range(4): a(f'v_cvt_pk_f16_f32 v{TP+i}, v{HF+2*i}, v{HF+2*i+1}')
    a(f'ds_write_b64 v5, v[{TP}:{TP+1}] offset:480')
    a(f'ds_write_b64 v5, v[{TP+2}:{TP+3}] offset:{480+512}')
    for i in range(8): a(f'v_mul_f32 v{HF+i}, s40, v{HF+i}')
    for i in range(4): a(f'v_cvt_pk_bf16_f32 v{HD+i}, v{HF+2*i}, v{HF+2*i+1}')
    a('s_waitcnt vmcnt(0) lgkmcnt(0)'); a('s_barrier')
    for r in range(8):
        a(f'ds_read2_b32 v[{T1+4*r}:{T1+4*r+1}], v153 offset0:{16*r} offset1:{16*r+1}')
        a(f'ds_read2_b32 v[{T1+4*r+2}:{T1+4*r+3}], v153 offset0:{16*r+2} offset1:{16*r+3}')
    for r in range(8):
        a(f'ds_read2_b32 v[{T2+4*r}:{T2+4*r+1}], v152 offset0:{16*r} offset1:{16*r+1}')
        a(f'ds_read2_b32 v[{T2+4*r+2}:{T2+4*r+3}], v152 offset0:{16*r+2} offset1:{16*r+3}')
    a('s_waitcnt lgkmcnt(0)')
    stamp(a, 4, 'k2')
    HB = 128; NH = 6
    for w in range(1, 4):
        a(f's_cmp_eq_u32 s38, {w}'); a.branch(f's_cbranch_scc1 K2_W{w}')
    for w in range(4):
        if w: a.label(f'K2_W{w}')
        gs = [(G, r) for G in range(7, 15 - w) for r in range(8)]
        def rd(k):
            G, r = gs[k]; g = 8 * G + r; b = HB + 4 * (k % NH)
            a(f'ds_read_b128 v[{b}:{b+3}], v6 offset:{64*(g-56)}')
        for k in range(min(NH - 1, len(gs))): rd(k)
        for k, (G, r) in enumerate(gs):
            if k + NH - 1 < len(gs): rd(k + NH - 1)
            outstanding = min(NH - 1, len(gs) - 1 - k)
            a(f's_waitcnt lgkmcnt({outstanding})')
            b = HB + 4 * (k % NH)
            c1 = G - 7 + w
            a(f'v_mfma_f32_16x16x32_f16 v[{D+4*c1}:{D+4*c1+3}], v[{T1+4*r}:{T1+4*r+3}], v[{b}:{b+3}], v[{D+4*c1}:{D+4*c1+3}]')
            if G <= 7 + w:
                c2 = G - w
                a(f'v_mfma_f32_16x16x32_f16 v[{D+4*c2}:{D+4*c2+3}], v[{T2+4*r}:{T2+4*r+3}], v[{b}:{b+3}], v[{D+4*c2}:{D+4*c2+3}]')
        if w < 3: a.branch('s_branch K2_RED')
    a.label('K2_RED')
    stamp(a, 5, 'k2')
    a('v_and_b32 v4, 63, v0'); a('v_lshlrev_b32 v4, 4, v4')
    a('s_lshl_b32 s49, s38, 13'); a('v_add_u32 v5, s49, v4')
    for c in range(8): a(f'ds_write_b128 v5, v[{D+4*c}:{D+4*c+3}] offset:{4608 + c*1024}')
    a('s_lshl_b32 s49, s38, 11'); a('v_add_u32 v4, s49, v4')
    a('s_waitcnt lgkmcnt(0)'); a('s_barrier')
    stamp(a, 6, 'k2')
    PB = 32
    for cc in range(2):
        for w in range(4):
            b = PB + 16 * cc + 4 * w
            a(f'ds_read_b128 v[{b}:{b+3}], v4 offset:{4608 + w*8192 + cc*1024}')
    a('v_lshlrev_b32 v5, 5, v1'); a('v_lshl_add_u32 v5, v2, 3, v5')
    a(f's_mul_i32 s46, s3, {X1T_STRIDE}'); a('s_lshl_b32 s49, s38, 10'); a('s_add_u32 s46, s46, s49')
    for cc in range(2):
        a(f's_waitcnt lgkmcnt({4*(1-cc)})')
        b = PB + 16 * cc
        for i in range(4):
            a(f'v_add_f32 v{b+i}, v{b+i}, v{b+4+i}'); a(f'v_add_f32 v{b+8+i}, v{b+8+i}, v{b+12+i}')
        for i in range(4): a(f'v_add_f32 v{b+i}, v{b+i}, v{b+8+i}')
        for i in range(4): a(f'v_mul_f32 v{b+i}, {f32bits(2.0**-KSCALE_LOG2)}, v{b+i}')
        t = b + 4
        for i in range(2): a(f'v_cvt_pk_bf16_f32 v{t+i}, v{b+2*i}, v{b+2*i+1}')
        for i in range(2): unpack_lo(a, b + 2 * i, t + i); unpack_hi(a, b + 2 * i + 1, t + i)
        for i in range(2): unpack_lo(a, t + 2 + 2 * i, HD + 2 * cc + i); unpack_hi(a, t + 3 + 2 * i, HD + 2 * cc + i)
        for i in range(4): a(f'v_add_f32 v{b+i}, v{b+i}, v{t+2+i}')
        for i in range(2): a(f'v_cvt_pk_bf16_f32 v{t+i}, v{b+2*i}, v{b+2*i+1}')
        for i in range(2): unpack_lo(a, b + 2 * i, t + i); unpack_hi(a, b + 2 * i + 1, t + i)
        for i in range(4): a(f'v_mul_f32 v{b+i}, s43, v{b+i}')
        for i in range(2): a(f'v_cvt_pk_bf16_f32 v{t+i}, v{b+2*i}, v{b+2*i+1}')
        for i in range(2): unpack_lo(a, b + 2 * i, t + i); unpack_hi(a, b + 2 * i + 1, t + i)
        for i in range(4): unpack_hi(a, t + 2 + i, XW + 4 * cc + i)
        for i in range(4): a(f'v_add_f32 v{b+i}, v{b+i}, v{t+2+i}')
        for i in range(2): a(f'v_cvt_pk_bf16_f32 v{t+i}, v{b+2*i}, v{b+2*i+1}')
        a(f'buffer_store_dwordx2 v[{t}:{t+1}], v5, s[16:19], s46 offen offset:{cc*512}')
    stamp(a, 7, 'k2')
    dump_stamps(a, 8, 'k2', 300)
    a.label('K2_END')
    a('s_endpgm')
    return kernel_desc('k2_kernel', 160)

K3_LDS = 9216 + 1024 + 16
def gen_k3(a):
    a.raw(kernel_header('k3_kernel'))
    a('s_cmp_ge_u32 s2, 256'); a.branch('s_cbranch_scc1 K3_END')
    if TK: ticket_begin(a)
    load_ptr(a, 4, 'ws')
    a(f'v_mul_u32_u24 v1, {X1T_STRIDE}, v0')
    a('v_and_b32 v2, 7, v0')
    a('v_lshrrev_b32 v3, 3, v0')
    a('v_lshlrev_b32 v4, 5, v3')
    if TK: ticket(a, 'k3', 4, 3, K3_LDS - 16, vt=(62, 63))
    else:
        a('s_and_b32 s36, s2, 7'); a('s_lshl_b32 s36, s36, 5'); a('s_lshr_b32 s37, s2, 3'); a('s_add_u32 s3, s36, s37')
    a('s_lshl_b32 s20, s3, 4')
    a('s_waitcnt lgkmcnt(0)')
    copy_srd(a, 8, 4, SZ_X1T, WS_X1T); copy_srd(a, 12, 4, SZ_MOD, WS_MOD); copy_srd(a, 16, 4, SZ_XF, WS_XF); copy_srd(a, 24, 4, SZ_X1, WS_X1)
    a('buffer_load_dwordx4 v[8:11], v1, s[8:11], s20 offen')
    CB = 40; SB = 48
    a(f's_mov_b32 s21, {4*2304}'); a(f's_mov_b32 s22, {3*2304}')
    a(f'buffer_load_dwordx4 v[{CB}:{CB+3}], v4, s[12:15], s21 offen')
    a(f'buffer_load_dwordx4 v[{CB+4}:{CB+7}], v4, s[12:15], s21 offen offset:16')
    a(f'buffer_load_dwordx4 v[{SB}:{SB+3}], v4, s[12:15], s22 offen')
    a(f'buffer_load_dwordx4 v[{SB+4}:{SB+7}], v4, s[12:15], s22 offen offset:16')
    a('v_lshlrev_b32 v5, 4, v0')
    a('v_lshrrev_b32 v6, 4, v0'); a('v_lshlrev_b32 v6, 1, v6')
    a('v_bfe_u32 v7, v0, 1, 1'); a('v_add_u32 v6, v6, v7'); a('v_lshlrev_b32 v6, 3, v6')
    a('v_bfe_u32 v7, v0, 2, 2'); a('v_add_u32 v6, v6, v7'); a('v_lshlrev_b32 v6, 4, v6')
    a('v_and_b32 v7, 1, v0'); a('v_lshl_add_u32 v6, v7, 3, v6')
    RED = 9216
    a('v_lshrrev_b32 v12, 6, v0'); a('v_lshlrev_b32 v12, 5, v12'); a('v_lshl_add_u32 v12, v2, 2, v12')
    a('v_lshlrev_b32 v13, 2, v2')
    a('s_waitcnt vmcnt(4)')
    a('ds_write_b128 v5, v[8:11]')
    a('s_waitcnt lgkmcnt(0)'); a('s_barrier')
    XP = 8; XF = 16; TMP = 24; XN = 56
    a(f'ds_read_b64_tr_b16 v[{XP}:{XP+1}], v6')
    a(f'ds_read_b64_tr_b16 v[{XP+2}:{XP+3}], v6 offset:64')
    a('v_mul_u32_u24 v1, 1152, v2'); a('v_lshl_add_u32 v1, v3, 4, v1')
    a('s_mul_i32 s20, s3, 9216')
    a('v_lshrrev_b32 v4, 1, v3'); a('v_lshlrev_b32 v4, 10, v4')
    a('v_and_b32 v5, 1, v3'); a('v_lshl_add_u32 v4, v5, 9, v4'); a('v_lshl_add_u32 v4, v2, 4, v4')
    a('s_lshr_b32 s21, s3, 2'); a(f's_mul_i32 s21, s21, {36*1024}')
    a('s_and_b32 s22, s3, 3'); a('s_lshl_b32 s22, s22, 7'); a('s_add_u32 s21, s21, s22')
    a('s_waitcnt lgkmcnt(0)')
    a(f'buffer_store_dwordx4 v[{XP}:{XP+3}], v1, s[24:27], s20 offen')
    ln_core(a, 1, XP, XF, TMP, 9, 12, 13, RED, XN)
    a('s_waitcnt vmcnt(1)')
    for i in range(4): unpack_lo(a, XF + 2 * i, XN + i); unpack_hi(a, XF + 2 * i + 1, XN + i)
    for i in range(8): a(f'v_add_f32 v{CB+i}, 1.0, v{CB+i}')
    for i in range(4): a(f'v_cvt_pk_bf16_f32 v{TMP+i}, v{CB+2*i}, v{CB+2*i+1}')
    for i in range(4): unpack_lo(a, CB + 2 * i, TMP + i); unpack_hi(a, CB + 2 * i + 1, TMP + i)
    for i in range(8): a(f'v_mul_f32 v{XF+i}, v{XF+i}, v{CB+i}')
    for i in range(4): a(f'v_cvt_pk_bf16_f32 v{TMP+i}, v{XF+2*i}, v{XF+2*i+1}')
    for i in range(4): unpack_lo(a, XF + 2 * i, TMP + i); unpack_hi(a, XF + 2 * i + 1, TMP + i)
    for i in range(8): a(f'v_add_f32 v{XF+i}, v{XF+i}, v{SB+i}')
    for i in range(4): a(f'v_cvt_pk_bf16_f32 v{TMP+i}, v{XF+2*i}, v{XF+2*i+1}')
    a(f'buffer_store_dwordx4 v[{TMP}:{TMP+3}], v4, s[16:19], s21 offen')
    a.label('K3_END')
    a('s_endpgm')
    return kernel_desc('k3_kernel', 64)
```

```python
from gen_common import *
import os

class VM:
    def __init__(self, a): self.a = a; self.ops = []
    def issue(self, tag, text): self.a(text); self.ops.append(tag)
    def count_after(self, tag):
        idx = max(i for i, t in enumerate(self.ops) if t == tag)
        return len(self.ops) - 1 - idx
    def wait(self, tag, extra=''):
        n = self.count_after(tag)
        assert n <= 63
        self.a(f's_waitcnt vmcnt({n}){extra}')

def interleave(a, mf, fill, per=None):
    n = len(mf); k = 0
    for i, grp in enumerate(mf):
        for ins in grp:
            ins() if callable(ins) else a(ins)
        want = (len(fill) * (i + 1) + n - 1) // n if per is None else min(len(fill), per * (i + 1))
        while k < want:
            f = fill[k]; f() if callable(f) else a(f); k += 1
    while k < len(fill):
        f = fill[k]; f() if callable(f) else a(f); k += 1

K4_LDS = 4 * 36864 + 16
SLOT = 36864
def gen_k4(a):
    a.raw(kernel_header('k4_kernel'))
    vm = VM(a)
    a('s_cmp_ge_u32 s2, 256'); a.branch('s_cbranch_scc1 K4_END')
    if not TK:
        a('s_and_b32 s36, s2, 7'); a('s_lshl_b32 s36, s36, 5'); a('s_lshr_b32 s37, s2, 3'); a('s_add_u32 s3, s36, s37')
    stamp(a, 0, 'k4')
    if TK: ticket_begin(a)
    load_ptr(a, 4, 'w1'); load_ptr(a, 8, 'w3'); load_ptr(a, 12, 'ws')
    a('v_mov_b32 v15, v0')
    a('v_readfirstlane_b32 s39, v0'); a('s_lshr_b32 s39, s39, 6')
    a('v_and_b32 v0, 63, v0')
    a('v_lshrrev_b32 v11, 4, v0'); a('v_mul_u32_u24 v1, 9216, v11')
    a('v_bfe_u32 v12, v0, 2, 2'); a('v_xor_b32 v12, v12, v11'); a('v_lshl_add_u32 v1, v12, 6, v1')
    a('v_and_b32 v12, 3, v0'); a('v_lshl_add_u32 v1, v12, 4, v1')
    a('v_bfe_u32 v12, v0, 2, 2')
    a('v_lshrrev_b32 v13, 5, v0')
    a('v_lshl_add_u32 v13, v13, 3, v12'); a('v_lshlrev_b32 v2, 8, v13')
    a('v_xor_b32 v12, s39, v12'); a('v_lshl_add_u32 v2, v12, 6, v2')
    a('v_bfe_u32 v12, v0, 4, 1'); a('v_lshl_add_u32 v2, v12, 5, v2')
    a('v_and_b32 v12, 3, v0'); a('v_lshl_add_u32 v2, v12, 3, v2')
    a(f'v_add_u32 v4, {3*SLOT}, v2'); a(f'v_add_u32 v3, {2*SLOT}, v2'); a(f'v_add_u32 v2, {SLOT}, v2')
    a('v_lshlrev_b32 v5, 4, v0')
    for s in range(1, 4): a(f'v_add_u32 v{5+s}, {s*SLOT}, v5')
    a('v_bfe_u32 v12, v0, 4, 1'); a('v_lshlrev_b32 v10, 10, v12')
    a('v_lshrrev_b32 v12, 5, v0'); a('v_lshl_add_u32 v10, v12, 8, v10')
    a('v_and_b32 v12, 15, v0'); a('v_lshl_add_u32 v10, v12, 4, v10')
    if TK: ticket(a, 'k4', 4, 3, K4_LDS - 16, wave_s=39)
    a('s_cmp_ge_u32 s3, 252'); a.branch('s_cbranch_scc1 K4_END')
    a('s_mul_i32 s36, s3, 9363'); a('s_lshr_b32 s36, s36, 16')
    a('s_mul_i32 s37, s36, 7'); a('s_sub_u32 s37, s3, s37')
    a('s_mul_i32 s38, s37, 9'); a('s_cmp_gt_u32 s37, 0'); a('s_addc_u32 s38, s38, 0')
    a('s_lshl_b32 s40, s36, 8')
    a(f's_mul_i32 s41, s39, {16*9216}'); a('s_add_u32 s40, s40, s41')
    a('s_lshl_b32 s42, s39, 12')
    a(f's_mul_i32 s43, s38, {SLOT}'); a('s_mul_i32 s44, s39, 9216'); a('s_add_u32 s43, s43, s44')
    a('s_lshl_b32 s45, s36, 2'); a('s_add_u32 s45, s45, s39'); a('s_lshl_b32 s45, s45, 7'); a('s_lshl_b32 s46, s38, 1'); a('s_add_u32 s45, s45, s46'); a('s_lshl_b32 s45, s45, 10')
    a('s_mov_b32 s47, 0xffff0000'); a(f's_mov_b32 s48, {f32bits(-LOG2E)}')
    a('s_waitcnt lgkmcnt(0)')
    make_srd(a, 4, 576 * 9216); make_srd(a, 8, 576 * 9216)
    copy_srd(a, 16, 12, SZ_XF, WS_XF); copy_srd(a, 20, 12, SZ_HH, WS_HH)
    def w_dma(st):
        slot = 1 + st % 3
        for mat in range(2):
            for q in range(4):
                a(f's_add_u32 m0, s42, {slot*SLOT + mat*16384 + q*1024}')
                a(f's_add_u32 s49, s40, {(64*st + 4*q)*9216}')
                vm.issue(f'W{st}', f'buffer_load_dwordx4 v1, s[{4+4*mat}:{7+4*mat}], s49 offen lds')
    def x_dma_list(i):
        slot = i % 4; L = []
        for q in range(3):
            L.append(f's_add_u32 m0, s44, {slot*SLOT + q*4096}')
            L.append(f's_add_u32 s49, s43, {i*SLOT + q*4096}')
            for r in range(4 if q < 2 else 1):
                L.append(lambda r=r: vm.issue(f'X{i}', f'buffer_load_dwordx4 v5, s[16:19], s49 offen offset:{r*1024} lds'))
        return L
    def run(L):
        for f in L: f() if callable(f) else a(f)
    XB = 16; WV = 40; ACC = 72; TMP = 136
    def wreg(k, mat):
        if k < 32: b = 8 * k + 4 * mat; return 'a', b
        b = WV + 8 * (k - 32) + 4 * mat; return 'v', b
    def xread(i, k):
        n = 36 * i + k; b = XB + 4 * (n % 6)
        return f'ds_read_b128 v[{b}:{b+3}], v{5 + i % 4} offset:{k*1024}'
    def mfma(i, k, mat):
        n = 36 * i + k; b = XB + 4 * (n % 6)
        t, wb = wreg(k, mat); acc = ACC + 32 * (i % 2) + 16 * mat
        c = '0' if k == 0 else f'v[{acc}:{acc+15}]'
        return f'v_mfma_f32_32x32x16_bf16 v[{acc}:{acc+15}], {t}[{wb}:{wb+3}], v[{b}:{b+3}], {c}'
    def epilogue_list(i):
        g = ACC + 32 * (i % 2); u = g + 16; L = []
        G = TMP; E = TMP + 8; U = TMP + 16; PK = TMP + 24;
        for p in range(2):
            P = TMP + 28 + 4 * p
            o = 8 * p
            for j in range(4): L.append(f'v_cvt_pk_bf16_f32 v{PK+j}, v{g+o+2*j}, v{g+o+2*j+1}')
            for j in range(4):
                L.append(f'v_lshlrev_b32 v{G+2*j}, 16, v{PK+j}'); L.append(f'v_and_b32 v{G+2*j+1}, s47, v{PK+j}')
            for j in range(8): L.append(f'v_mul_f32 v{E+j}, s48, v{G+j}')
            for j in range(8): L.append(f'v_exp_f32 v{E+j}, v{E+j}')
            for j in range(4): L.append(f'v_cvt_pk_bf16_f32 v{PK+j}, v{u+o+2*j}, v{u+o+2*j+1}')
            for j in range(8): L.append(f'v_add_f32 v{E+j}, 1.0, v{E+j}')
            for j in range(8): L.append(f'v_rcp_f32 v{E+j}, v{E+j}')
            for j in range(4):
                L.append(f'v_lshlrev_b32 v{U+2*j}, 16, v{PK+j}'); L.append(f'v_and_b32 v{U+2*j+1}, s47, v{PK+j}')
            for j in range(8): L.append(f'v_mul_f32 v{G+j}, v{G+j}, v{E+j}')
            for j in range(4): L.append(f'v_cvt_pk_bf16_f32 v{PK+j}, v{G+2*j}, v{G+2*j+1}')
            for j in range(4):
                L.append(f'v_lshlrev_b32 v{G+2*j}, 16, v{PK+j}'); L.append(f'v_and_b32 v{G+2*j+1}, s47, v{PK+j}')
            for j in range(8): L.append(f'v_mul_f32 v{G+j}, v{G+j}, v{U+j}')
            for j in range(4): L.append(f'v_cvt_pk_bf16_f32 v{P+j}, v{G+2*j}, v{G+2*j+1}')
            if p == 0: L.append(f's_add_u32 s50, s45, {i*2048}')
            L.append(lambda P=P, p=p: vm.issue(f'S{i}', f'buffer_store_dwordx4 v[{P}:{P+3}], v10, s[20:23], s50 offen offset:{p*512}' + os.environ.get('STMOD', ' sc1')))
        return L
    PF = os.environ.get('K4PF', '0')
    if PF != '0':
        a('s_lshl_b32 s51, s37, 8'); a('s_lshl_b32 s52, s39, 6'); a('s_add_u32 s51, s51, s52')
        a('v_add_u32 v11, s51, v0')
        a('v_lshrrev_b32 v12, 1, v11'); a('v_mul_u32_u24 v12, 9216, v12')
        a('v_and_b32 v11, 1, v11'); a('v_lshl_add_u32 v12, v11, 7, v12')
        a('s_lshl_b32 s51, s36, 8')
        vm.issue('PF', 'buffer_load_dword v13, v12, s[4:7], s51 offen')
        vm.issue('PF', 'buffer_load_dword v14, v12, s[8:11], s51 offen')
        if PF == '2':
            vm.issue('PF', 'buffer_load_dword v13, v12, s[4:7], s51 offen offset:64')
            vm.issue('PF', 'buffer_load_dword v14, v12, s[8:11], s51 offen offset:64')
    w_dma(0); run(x_dma_list(0)); w_dma(1); w_dma(2)
    for st in range(9):
        slot = 1 + st % 3
        if st == 0: vm.wait('X0')
        else: vm.wait(f'W{st}')
        a('s_barrier')
        if st in (0, 3, 8): stamp(a, {0:1,3:2,8:3}[st], 'k4')
        for kk in range(4):
            k = 4 * st + kk
            for mat in range(2):
                t, wb = wreg(k, mat)
                off = mat * 16384 + kk * 4096
                a(f'ds_read_b64_tr_b16 {t}[{wb}:{wb+1}], v{1+slot} offset:{off}')
                a(f'ds_read_b64_tr_b16 {t}[{wb+2}:{wb+3}], v{1+slot} offset:{off+1024}')
        for kk in range(4): a(xread(0, 4 * st + kk))
        a('s_waitcnt lgkmcnt(0)')
        a('s_barrier')
        if st < 6: w_dma(st + 3)
        else: run(x_dma_list(st - 5))
        for kk in range(4):
            a(mfma(0, 4 * st + kk, 0)); a(mfma(0, 4 * st + kk, 1))
    vm.wait('X1'); a('s_barrier')
    for k in range(4): a(xread(1, k))
    def tile(i):
        mf = [];
        fill = epilogue_list(i - 1)
        dma = x_dma_list(i + 3)
        X = os.environ.get('K4X', '')
        if 'noepi' in X: fill = [f for f in fill if callable(f) or f.startswith('s_')]
        if 'nost' in X: fill = [f for f in fill if not callable(f)]
        if 'notrans' in X: fill = [f for f in fill if callable(f) or not ('exp' in f or 'rcp' in f)]
        for k in range(36):
            pre = []
            if k == 32:
                pre.append(lambda: vm.wait(f'X{i+1}'))
                if 'nobar' not in X: pre.append('s_barrier')
            pre.append(xread(i, k + 4) if k + 4 < 36 else xread(i + 1, k + 4 - 36))
            pre.append('s_waitcnt lgkmcnt(4)')
            pre.append(mfma(i, k, 0))
            mf.append(pre); mf.append([mfma(i, k, 1)])
        interleave(a, mf[:64], fill)
        interleave(a, mf[64:], dma)
    stamp(a, 4, 'k4')
    for i in range(1, 9):
        tile(i)
        if i in (1, 4):
            stamp(a, {1:5,4:6}[i], 'k4')
            if 'k4' in STAMPS: a('s_waitcnt lgkmcnt(0)')
    a('s_cmp_eq_u32 s37, 0'); a.branch('s_cbranch_scc1 K4_T9')
    saved = list(vm.ops)
    run(epilogue_list(8))
    stamp(a, 7, 'k4')
    a('v_mov_b32 v0, v15')
    dump_stamps(a, 8, 'k4', 101)
    a('s_endpgm')
    vm.ops = saved
    a.label('K4_T9')
    tile(9)
    run(epilogue_list(9))
    a.label('K4_END')
    a('s_endpgm')
    return kernel_desc('k4_kernel', 176 + 256, accum=176)
```

```python
from gen_common import *
from gen_k4 import VM, interleave
import os

ST5 = 17408; NS5 = 9
K5_LDS = ST5 * NS5 + 16
def gen_k5(a):
    a.raw(kernel_header('k5_kernel'))
    vm = VM(a)
    a('s_cmp_ge_u32 s2, 256'); a.branch('s_cbranch_scc1 K5_END')
    stamp(a, 0, 'k5')
    if TK: ticket_begin(a)
    load_ptr(a, 4, 'w2'); load_ptr(a, 12, 'ws')
    a('v_mov_b32 v15, v0')
    a('v_readfirstlane_b32 s39, v0'); a('s_lshr_b32 s39, s39, 6')
    a('v_and_b32 v0, 63, v0')
    a('v_lshlrev_b32 v1, 4, v0')
    a('s_mul_i32 s40, s39, 144')
    for q in range(3):
        a(f's_add_u32 s41, s40, {48*q}')
        a('v_add_u32 v10, s41, v0')
        a('v_mul_u32_u24 v11, 3641, v10'); a('v_lshrrev_b32 v11, 16, v11')
        a('v_mul_u32_u24 v12, 18, v11'); a('v_sub_u32 v12, v10, v12')
        a(f'v_mul_u32_u24 v{2+q}, 1152, v11'); a(f'v_lshl_add_u32 v{2+q}, v12, 4, v{2+q}')
    a('v_lshrrev_b32 v10, 5, v0'); a('v_lshlrev_b32 v10, 4, v10')
    a('v_bfe_u32 v11, v0, 4, 1'); a('v_lshl_add_u32 v10, v11, 2, v10')
    a('v_bfe_u32 v11, v0, 2, 2'); a('v_add_u32 v10, v10, v11'); a('v_mul_u32_u24 v5, 288, v10')
    a('v_and_b32 v11, 3, v0'); a('v_lshl_add_u32 v5, v11, 3, v5'); a('v_add_u32 v5, 8192, v5')
    a('s_lshl_b32 s40, s39, 11'); a('v_add_u32 v6, s40, v1')
    if TK:
        ticket(a, 'k5', 4, 3, K5_LDS - 16, wave_s=39)
        a('s_lshr_b32 s36, s3, 5'); a('s_and_b32 s37, s3, 31')
    else:
        a('s_and_b32 s36, s2, 7'); a('s_lshr_b32 s37, s2, 3')
    a('s_and_b32 s38, s36, 3')
    a('s_lshr_b32 s36, s36, 2'); a('s_lshl_b32 s36, s36, 3'); a('s_lshr_b32 s43, s37, 2'); a('s_add_u32 s36, s36, s43')
    a('s_and_b32 s37, s37, 3')
    a(f's_mul_i32 s41, s38, {36*131072}'); a('s_lshl_b32 s42, s36, 13'); a('s_add_u32 s41, s41, s42'); a('s_add_u32 s41, s41, s40')
    a(f's_mul_i32 s42, s38, {36*36864}'); a('s_mul_i32 s43, s37, 288'); a('s_add_u32 s42, s42, s43')
    a('s_mul_i32 s43, s39, 2304')
    a('s_mov_b32 s44, -1'); a('s_mov_b32 s45, 0xffff')
    a('s_waitcnt lgkmcnt(0)')
    make_srd(a, 4, 4608 * 1152)
    copy_srd(a, 16, 12, SZ_HH, WS_HH); copy_srd(a, 20, 12, SZ_PART, WS_PART)
    def dma_list(k):
        so = (k % NS5) * ST5; L = []
        L.append(f's_add_u32 m0, s40, {so}')
        L.append(f's_add_u32 s46, s41, {k*131072}')
        L.append(lambda: vm.issue(f'D{k}', 'buffer_load_dwordx4 v1, s[16:19], s46 offen lds'))
        L.append(lambda: vm.issue(f'D{k}', 'buffer_load_dwordx4 v1, s[16:19], s46 offen offset:1024 lds'))
        L.append(f's_add_u32 s46, s42, {k*36864}')
        def masked():
            a('s_mov_b64 exec, s[44:45]')
            for q in range(3):
                a(f's_add_u32 m0, s43, {so + 8192 + q*768}')
                vm.issue(f'D{k}', f'buffer_load_dwordx4 v{2+q}, s[4:7], s46 offen lds')
            a('s_mov_b64 exec, -1')
        L.append(masked)
        return L
    def run(L):
        for f in L: f() if callable(f) else a(f)
    ACC = 16; WF = 88; HF = 160
    def read_list(k):
        so = (k % NS5) * ST5; b = k % 2; L = []
        va = 7 + 2 * b; vb = 8 + 2 * b
        L.append(f'v_add_u32 v{va}, {so}, v5'); L.append(f'v_add_u32 v{vb}, {so}, v6')
        h = HF + 8 * b
        L.append(f'ds_read_b128 v[{h}:{h+3}], v{vb}'); L.append(f'ds_read_b128 v[{h+4}:{h+7}], v{vb} offset:1024')
        for dt in range(9):
            wv = WF + 36 * b + 4 * dt
            L.append(f'ds_read_b64_tr_b16 v[{wv}:{wv+1}], v{va} offset:{dt*32}')
            L.append(f'ds_read_b64_tr_b16 v[{wv+2}:{wv+3}], v{va} offset:{dt*32+2304}')
        return L
    for k in range(8): run(dma_list(k))
    PF = os.environ.get('K5PF', '0')
    if PF != '0':
        a('s_lshr_b32 s47, s2, 3'); a('s_lshl_b32 s47, s47, 2'); a('s_add_u32 s47, s47, s39')
        a('v_lshrrev_b32 v10, 2, v0'); a('v_lshlrev_b32 v10, 17, v10')
        a('v_and_b32 v11, 3, v0'); a('v_lshl_add_u32 v10, v11, 7, v10')
        a('s_lshl_b32 s48, s47, 9')
        a(f's_mul_i32 s49, s38, {36*131072}'); a('s_add_u32 s48, s48, s49')
        a('s_and_b32 s49, s2, 4'); a('s_lshl_b32 s49, s49, 14'); a('s_add_u32 s48, s48, s49')
        a('v_lshlrev_b32 v11, 7, v0')
        a('s_lshl_b32 s50, s47, 12'); a(f's_mul_i32 s49, s38, {36*36864}'); a('s_add_u32 s50, s50, s49')
        for half in range(2):
            a('s_mov_b32 exec_lo, -1'); a('s_mov_b32 exec_hi, 0xffffff')
            a(f's_add_u32 s49, s48, {(8+14*half)*131072}')
            vm.issue('PF', 'buffer_load_dword v12, v10, s[16:19], s49 offen')
            if PF == '2': vm.issue('PF', 'buffer_load_dword v12, v10, s[16:19], s49 offen offset:64')
            a('s_mov_b32 exec_hi, 0')
            a(f's_add_u32 s49, s50, {(8+14*half)*36864}')
            vm.issue('PF', 'buffer_load_dword v13, v11, s[4:7], s49 offen')
            if PF == '2': vm.issue('PF', 'buffer_load_dword v13, v11, s[4:7], s49 offen offset:64')
        a('s_mov_b64 exec, -1')
    vm.wait('D0'); a('s_barrier')
    stamp(a, 1, 'k5')
    run(read_list(0))
    for k in range(36):
        b = k % 2
        if k + 1 < 36:
            vm.wait(f'D{k+1}', ' lgkmcnt(0)'); a('s_barrier')
        else: a('s_waitcnt lgkmcnt(0)')
        fill = []
        if k + 1 < 36: fill += read_list(k + 1)
        dl = dma_list(k + 8) if k + 8 < 36 else []
        mf = []
        for dt in range(9):
            for tt in range(2):
                acc = ACC + 4 * (9 * tt + dt); wv = WF + 36 * b + 4 * dt; h = HF + 8 * b + 4 * tt
                c = '0' if k == 0 else f'v[{acc}:{acc+3}]'
                mf.append([f'v_mfma_f32_16x16x32_bf16 v[{acc}:{acc+3}], v[{wv}:{wv+3}], v[{h}:{h+3}], {c}'])
        interleave(a, mf[:14], fill)
        interleave(a, mf[14:], dl)
        if k in (11, 23): stamp(a, 2 if k == 11 else 3, 'k5')
    stamp(a, 4, 'k5')
    a('v_and_b32 v10, 15, v0'); a('v_mul_u32_u24 v10, 2304, v10')
    a('v_lshrrev_b32 v11, 4, v0'); a('v_lshl_add_u32 v10, v11, 4, v10')
    a(f's_mul_i32 s41, s38, {2048*2304}'); a(f's_mul_i32 s42, s36, {128*2304}'); a('s_add_u32 s41, s41, s42')
    a(f's_mul_i32 s42, s39, {32*2304}'); a('s_add_u32 s41, s41, s42'); a('s_mul_i32 s42, s37, 576'); a('s_add_u32 s41, s41, s42')
    a(f's_add_u32 s42, s41, {16*2304}')
    for tt in range(2):
        for dt in range(9):
            acc = ACC + 4 * (9 * tt + dt)
            a(f'buffer_store_dwordx4 v[{acc}:{acc+3}], v10, s[20:23], s{41+tt} offen offset:{dt*64}' + os.environ.get('STMOD5', ' sc1'))
    stamp(a, 5, 'k5')
    if 'k5' in STAMPS:
        a('v_mov_b32 v0, v15'); dump_stamps(a, 6, 'k5', 101)
    a.label('K5_END')
    a('s_endpgm')
    return kernel_desc('k5_kernel', 176)

def gen_k6(a):
    a.raw(kernel_header('k6_kernel'))
    a('s_cmp_ge_u32 s2, 576'); a.branch('s_cbranch_scc1 K6_END')
    load_ptr(a, 4, 'ws'); load_ptr(a, 8, 'out')
    a('s_lshl_b32 s3, s2, 8'); a('v_add_u32 v1, s3, v0')
    a('v_lshlrev_b32 v2, 4, v1')
    a('v_lshlrev_b32 v3, 5, v1')
    a('s_mov_b32 s20, 59652324')
    a('v_mul_hi_u32 v4, v1, s20'); a('v_mul_u32_u24 v4, 72, v4'); a('v_sub_u32 v4, v1, v4'); a('v_lshlrev_b32 v4, 5, v4')
    a('s_waitcnt lgkmcnt(0)')
    copy_srd(a, 12, 4, SZ_PART, WS_PART); copy_srd(a, 16, 4, SZ_X1, WS_X1); copy_srd(a, 24, 4, SZ_MOD, WS_MOD)
    make_srd(a, 8, 2048 * 1152)
    P = 8
    for s in range(4):
        a(f's_mov_b32 s{28+s}, {s*2048*2304}')
        a(f'buffer_load_dwordx4 v[{P+8*s}:{P+8*s+3}], v3, s[12:15], s{28+s} offen')
        a(f'buffer_load_dwordx4 v[{P+8*s+4}:{P+8*s+7}], v3, s[12:15], s{28+s} offen offset:16')
    a('buffer_load_dwordx4 v[40:43], v2, s[16:19], 0 offen')
    a(f's_mov_b32 s21, {5*2304}')
    a('buffer_load_dwordx4 v[44:47], v4, s[24:27], s21 offen')
    a('buffer_load_dwordx4 v[48:51], v4, s[24:27], s21 offen offset:16')
    a('s_waitcnt vmcnt(3)')
    for i in range(8):
        a(f'v_add_f32 v{P+i}, v{P+i}, v{P+8+i}'); a(f'v_add_f32 v{P+16+i}, v{P+16+i}, v{P+24+i}')
    for i in range(8): a(f'v_add_f32 v{P+i}, v{P+i}, v{P+16+i}')
    for i in range(4): a(f'v_cvt_pk_bf16_f32 v{52+i}, v{P+2*i}, v{P+2*i+1}')
    for i in range(4): unpack_lo(a, P + 2 * i, 52 + i); unpack_hi(a, P + 2 * i + 1, 52 + i)
    a('s_waitcnt vmcnt(0)')
    for i in range(8): a(f'v_mul_f32 v{P+i}, v{P+i}, v{44+i}')
    for i in range(4): a(f'v_cvt_pk_bf16_f32 v{52+i}, v{P+2*i}, v{P+2*i+1}')
    for i in range(4): unpack_lo(a, P + 2 * i, 52 + i); unpack_hi(a, P + 2 * i + 1, 52 + i)
    for i in range(4): unpack_lo(a, P + 8 + 2 * i, 40 + i); unpack_hi(a, P + 8 + 2 * i + 1, 40 + i)
    for i in range(8): a(f'v_add_f32 v{P+i}, v{P+i}, v{P+8+i}')
    for i in range(4): a(f'v_cvt_pk_bf16_f32 v{52+i}, v{P+2*i}, v{P+2*i+1}')
    a('buffer_store_dwordx4 v[52:55], v2, s[8:11], 0 offen')
    a.label('K6_END')
    a('s_endpgm')
    return kernel_desc('k6_kernel', 64)
```

```python
from gen_common import *
from gen_k1 import ln_core
import os

K2_LDS = 4608 + 32768 + 8320 + 16
K2_RC = 4608 + 32768
K2PF = int(os.environ.get('K2PF', '0')); K3PF = int(os.environ.get('K3PF', '0')); K2IN = int(os.environ.get('K2IN', '1'))
K2_GRID = 576 + K2PF; K3_GRID = 256 + K3PF
def gen_k2(a):
    a.raw(kernel_header('k2_kernel'))
    dbgt(a, 1, 1, 'DBGT_2')
    a('s_cmp_ge_u32 s2, 576'); a.branch('s_cbranch_scc1 K2_PF' if K2PF else 's_cbranch_scc1 K2_END')
    stamp(a, 0, 'k2')
    if TK: ticket_begin(a)
    load_ptr(a, 4, 'ws'); load_ptr(a, 24, 'Dskip')
    a('v_readfirstlane_b32 s38, v0'); a('s_lshr_b32 s38, s38, 6')
    a('v_and_b32 v1, 15, v0')
    a('v_bfe_u32 v2, v0, 4, 2')
    if TK: ticket(a, 'k2', 9, 3, K2_LDS - 16, wave_s=38)
    else:
        a('s_and_b32 s36, s2, 7'); a('s_mul_i32 s36, s36, 72'); a('s_lshr_b32 s37, s2, 3'); a('s_add_u32 s3, s36, s37')
    a('s_and_b32 s37, s3, -2'); a('s_lshl_b32 s37, s37, 1')
    a('s_lshl_b32 s39, s3, 2')
    a('s_waitcnt lgkmcnt(0)')
    stamp(a, 1, 'k2')
    a('s_load_dword s40, s[24:25], s37')
    if K2IN:
        a('s_cmp_ge_u32 s3, 288'); a('s_cselect_b32 s52, 8, 0'); a('s_cselect_b32 s53, 288, 0'); a('s_sub_u32 s53, s3, s53')
        a(f's_add_u32 s52, s52, {KA["w1"]}')
        a('s_load_dwordx2 s[56:57], s[0:1], s52')
        a('s_mul_i32 s53, s53, 18432')
        a('v_lshlrev_b32 v154, 4, v0'); a('v_add_u32 v154, s53, v154')
    copy_srd(a, 8, 4, SZ_RK, WS_RK); copy_srd(a, 12, 4, SZ_XT, WS_XT); copy_srd(a, 16, 4, SZ_X1T, WS_X1T)
    a('s_add_u32 s20, s4, s39'); a('s_addc_u32 s21, s5, 0')
    a(f's_load_dword s41, s[20:21], {WS_MOD}')
    a(f's_load_dword s42, s[20:21], {WS_MOD+2304}')
    a(f's_load_dword s43, s[20:21], {WS_MOD+4608}')
    a('v_lshrrev_b32 v3, 1, v2')
    a('v_lshl_add_u32 v3, v1, 1, v3')
    a(f'v_mul_u32_u24 v3, {XT_STRIDE}, v3')
    a('v_and_b32 v4, 1, v2')
    a('v_lshl_add_u32 v3, v4, 4, v3')
    a(f's_mul_i32 s44, s38, {64*XT_STRIDE}')
    a('s_lshl_b32 s45, s3, 5'); a('s_add_u32 s44, s44, s45')
    a(f's_add_u32 s45, s44, {32*XT_STRIDE}')
    XW = 8
    a(f'buffer_load_dwordx4 v[{XW}:{XW+3}], v3, s[12:15], s44 offen')
    a(f'buffer_load_dwordx4 v[{XW+4}:{XW+7}], v3, s[12:15], s45 offen')
    a('v_and_b32 v4, 63, v0'); a('v_lshlrev_b32 v4, 4, v4')
    a(f's_mul_i32 s46, s3, {RK_STRIDE}')
    a('s_lshl_b32 s47, s38, 10'); a('s_add_u32 s46, s46, s47')
    a(f's_add_u32 m0, s47, {K2_RC}')
    a('buffer_load_dwordx4 v4, s[8:11], s46 offen lds')
    a('s_add_u32 s46, s46, 4096')
    a(f's_add_u32 m0, s47, {K2_RC+4160}')
    a('buffer_load_dwordx4 v4, s[8:11], s46 offen lds')
    a('v_lshlrev_b32 v152, 3, v2'); a('v_sub_u32 v152, v152, v1'); a('v_add_u32 v152, 15, v152')
    a('v_and_b32 v153, 1, v152'); a('v_and_b32 v152, -2, v152'); a('v_lshlrev_b32 v152, 1, v152')
    a('v_mul_u32_u24 v153, 4160, v153'); a('v_add_u32 v152, v152, v153')
    a(f'v_add_u32 v152, {K2_RC}, v152')
    a('s_sub_u32 s47, 7, s38'); a('s_lshl_b32 s47, s47, 9'); a('v_add_u32 v153, s47, v152')
    a('s_lshl_b32 s48, s38, 9'); a('v_add_u32 v152, s48, v152')
    T1 = 32; T2 = 64
    for i in range(4): a(f'v_mov_b32 v{16+i}, 0')
    a('v_lshlrev_b32 v5, 4, v0')
    a('v_cmp_gt_u32 vcc, 30, v0')
    a('s_and_saveexec_b64 s[50:51], vcc')
    a.branch('s_cbranch_execz K2_Z')
    a('ds_write_b128 v5, v[16:19]')
    a('v_cmp_gt_u32 vcc, 4, v0')
    a('s_and_b64 exec, exec, vcc')
    a(f'ds_write_b128 v5, v[16:19] offset:{K2_RC+4096}')
    a(f'ds_write_b128 v5, v[16:19] offset:{K2_RC+4160+4096}')
    a.label('K2_Z')
    a('s_mov_b64 exec, s[50:51]')
    D = 96
    for i in range(32): a(f'v_mov_b32 v{D+i}, 0')
    a('v_lshlrev_b32 v5, 5, v1'); a('v_lshl_add_u32 v5, v2, 3, v5')
    a('s_lshl_b32 s49, s38, 10'); a('v_add_u32 v5, s49, v5')
    a('v_lshlrev_b32 v6, 5, v1'); a('v_lshl_add_u32 v6, v2, 4, v6')
    a('s_waitcnt lgkmcnt(0)')
    a('s_and_b32 s45, s3, 1'); a('s_lshl_b32 s45, s45, 4'); a('s_lshr_b32 s40, s40, s45'); a('s_lshl_b32 s40, s40, 16')
    a('v_mov_b32 v7, s42'); a('v_add_f32 v7, 1.0, v7'); round_bf16_1(a, 7, 7)
    stamp(a, 2, 'k2')
    a('s_waitcnt vmcnt(2)')
    stamp(a, 3, 'k2')
    HF = 16; HD = 24; TP = 28
    for i in range(8): unpack_lo(a, HF + i, XW + i)
    for i in range(8): a(f'v_mul_f32 v{HF+i}, v{HF+i}, v7')
    for i in range(4): a(f'v_cvt_pk_bf16_f32 v{TP+i}, v{HF+2*i}, v{HF+2*i+1}')
    for i in range(4): unpack_lo(a, HF + 2 * i, TP + i); unpack_hi(a, HF + 2 * i + 1, TP + i)
    for i in range(8): a(f'v_add_f32 v{HF+i}, s41, v{HF+i}')
    for i in range(4): a(f'v_cvt_pk_bf16_f32 v{TP+i}, v{HF+2*i}, v{HF+2*i+1}')
    for i in range(4): unpack_lo(a, HF + 2 * i, TP + i); unpack_hi(a, HF + 2 * i + 1, TP + i)
    for i in range(4): a(f'v_cvt_pk_f16_f32 v{TP+i}, v{HF+2*i}, v{HF+2*i+1}')
    a(f'ds_write_b64 v5, v[{TP}:{TP+1}] offset:480')
    a(f'ds_write_b64 v5, v[{TP+2}:{TP+3}] offset:{480+512}')
    for i in range(8): a(f'v_mul_f32 v{HF+i}, s40, v{HF+i}')
    for i in range(4): a(f'v_cvt_pk_bf16_f32 v{HD+i}, v{HF+2*i}, v{HF+2*i+1}')
    a('s_waitcnt vmcnt(0) lgkmcnt(0)'); a('s_barrier')
    if K2IN:
        a(f's_mov_b32 s58, {576*9216}'); a('s_mov_b32 s59, 0x20000')
        for i in range(5):
            a(f's_mov_b32 s60, {i*4096}')
            if i == 4: a('s_cmp_ge_u32 s38, 2'); a.branch('s_cbranch_scc1 K2_PFS')
            a(f'buffer_load_dwordx4 v[156:159], v154, s[56:59], s60 offen')
        a.label('K2_PFS')
    for r in range(8):
        a(f'ds_read2_b32 v[{T1+4*r}:{T1+4*r+1}], v153 offset0:{16*r} offset1:{16*r+1}')
        a(f'ds_read2_b32 v[{T1+4*r+2}:{T1+4*r+3}], v153 offset0:{16*r+2} offset1:{16*r+3}')
    for r in range(8):
        a(f'ds_read2_b32 v[{T2+4*r}:{T2+4*r+1}], v152 offset0:{16*r} offset1:{16*r+1}')
        a(f'ds_read2_b32 v[{T2+4*r+2}:{T2+4*r+3}], v152 offset0:{16*r+2} offset1:{16*r+3}')
    a('s_waitcnt lgkmcnt(0)')
    stamp(a, 4, 'k2')
    HB = 128; NH = 6
    for w in range(1, 4):
        a(f's_cmp_eq_u32 s38, {w}'); a.branch(f's_cbranch_scc1 K2_W{w}')
    for w in range(4):
        if w: a.label(f'K2_W{w}')
        gs = [(G, r) for G in range(7, 15 - w) for r in range(8)]
        def rd(k):
            G, r = gs[k]; g = 8 * G + r; b = HB + 4 * (k % NH)
            a(f'ds_read_b128 v[{b}:{b+3}], v6 offset:{64*(g-56)}')
        for k in range(min(NH - 1, len(gs))): rd(k)
        for k, (G, r) in enumerate(gs):
            if k + NH - 1 < len(gs): rd(k + NH - 1)
            outstanding = min(NH - 1, len(gs) - 1 - k)
            a(f's_waitcnt lgkmcnt({outstanding})')
            b = HB + 4 * (k % NH)
            c1 = G - 7 + w
            a(f'v_mfma_f32_16x16x32_f16 v[{D+4*c1}:{D+4*c1+3}], v[{T1+4*r}:{T1+4*r+3}], v[{b}:{b+3}], v[{D+4*c1}:{D+4*c1+3}]')
            if G <= 7 + w:
                c2 = G - w
                a(f'v_mfma_f32_16x16x32_f16 v[{D+4*c2}:{D+4*c2+3}], v[{T2+4*r}:{T2+4*r+3}], v[{b}:{b+3}], v[{D+4*c2}:{D+4*c2+3}]')
        if w < 3: a.branch('s_branch K2_RED')
    a.label('K2_RED')
    stamp(a, 5, 'k2')
    a('v_and_b32 v4, 63, v0'); a('v_lshlrev_b32 v4, 4, v4')
    a('s_lshl_b32 s49, s38, 13'); a('v_add_u32 v5, s49, v4')
    for c in range(8): a(f'ds_write_b128 v5, v[{D+4*c}:{D+4*c+3}] offset:{4608 + c*1024}')
    a('s_lshl_b32 s49, s38, 11'); a('v_add_u32 v4, s49, v4')
    a('s_waitcnt lgkmcnt(0)'); a('s_barrier')
    stamp(a, 6, 'k2')
    PB = 32
    for cc in range(2):
        for w in range(4):
            b = PB + 16 * cc + 4 * w
            a(f'ds_read_b128 v[{b}:{b+3}], v4 offset:{4608 + w*8192 + cc*1024}')
    a('v_lshlrev_b32 v5, 5, v1'); a('v_lshl_add_u32 v5, v2, 3, v5')
    a(f's_mul_i32 s46, s3, {X1T_STRIDE}'); a('s_lshl_b32 s49, s38, 10'); a('s_add_u32 s46, s46, s49')
    for cc in range(2):
        a(f's_waitcnt lgkmcnt({4*(1-cc)})')
        b = PB + 16 * cc
        for i in range(4):
            a(f'v_add_f32 v{b+i}, v{b+i}, v{b+4+i}'); a(f'v_add_f32 v{b+8+i}, v{b+8+i}, v{b+12+i}')
        for i in range(4): a(f'v_add_f32 v{b+i}, v{b+i}, v{b+8+i}')
        for i in range(4): a(f'v_mul_f32 v{b+i}, {f32bits(2.0**-KSCALE_LOG2)}, v{b+i}')
        t = b + 4
        for i in range(2): a(f'v_cvt_pk_bf16_f32 v{t+i}, v{b+2*i}, v{b+2*i+1}')
        for i in range(2): unpack_lo(a, b + 2 * i, t + i); unpack_hi(a, b + 2 * i + 1, t + i)
        for i in range(2): unpack_lo(a, t + 2 + 2 * i, HD + 2 * cc + i); unpack_hi(a, t + 3 + 2 * i, HD + 2 * cc + i)
        for i in range(4): a(f'v_add_f32 v{b+i}, v{b+i}, v{t+2+i}')
        for i in range(2): a(f'v_cvt_pk_bf16_f32 v{t+i}, v{b+2*i}, v{b+2*i+1}')
        for i in range(2): unpack_lo(a, b + 2 * i, t + i); unpack_hi(a, b + 2 * i + 1, t + i)
        for i in range(4): a(f'v_mul_f32 v{b+i}, s43, v{b+i}')
        for i in range(2): a(f'v_cvt_pk_bf16_f32 v{t+i}, v{b+2*i}, v{b+2*i+1}')
        for i in range(2): unpack_lo(a, b + 2 * i, t + i); unpack_hi(a, b + 2 * i + 1, t + i)
        for i in range(4): unpack_hi(a, t + 2 + i, XW + 4 * cc + i)
        for i in range(4): a(f'v_add_f32 v{b+i}, v{b+i}, v{t+2+i}')
        for i in range(2): a(f'v_cvt_pk_bf16_f32 v{t+i}, v{b+2*i}, v{b+2*i+1}')
        a(f'buffer_store_dwordx2 v[{t}:{t+1}], v5, s[16:19], s46 offen offset:{cc*512}')
    stamp(a, 7, 'k2')
    dump_stamps(a, 8, 'k2', 300)
    a.label('K2_END')
    a('s_endpgm')
    if K2PF:
        a.label('K2_PF')
        a(f's_cmp_ge_u32 s2, {576+K2PF}'); a.branch('s_cbranch_scc1 K2_END2')
        a('s_sub_u32 s3, s2, 576')
        a('s_cmp_ge_u32 s3, 72'); a('s_cselect_b32 s8, 8, 0'); a('s_cselect_b32 s9, 72, 0'); a('s_sub_u32 s9, s3, s9')
        a(f's_add_u32 s8, s8, {KA["w1"]}')
        a('s_load_dwordx2 s[4:5], s[0:1], s8')
        a('s_mul_i32 s9, s9, 73728')
        a('v_lshlrev_b32 v1, 4, v0')
        a('s_waitcnt lgkmcnt(0)')
        make_srd(a, 4, 576 * 9216)
        for i in range(18):
            a(f's_add_u32 s10, s9, {i*4096}')
            a(f'buffer_load_dwordx4 v[{8+4*i}:{11+4*i}], v1, s[4:7], s10 offen')
        a('s_waitcnt vmcnt(0)')
        a.label('K2_END2')
        a('s_endpgm')
    return kernel_desc('k2_kernel', 160)

K3_LDS = 9216 + 1024 + 16
def gen_k3(a):
    a.raw(kernel_header('k3_kernel'))
    dbgt(a, 2, 2, 'DBGT_3')
    a('s_cmp_ge_u32 s2, 256'); a.branch('s_cbranch_scc1 K3_PF' if K3PF else 's_cbranch_scc1 K3_END')
    if TK: ticket_begin(a)
    load_ptr(a, 4, 'ws')
    a(f'v_mul_u32_u24 v1, {X1T_STRIDE}, v0')
    a('v_and_b32 v2, 7, v0')
    a('v_lshrrev_b32 v3, 3, v0')
    a('v_lshlrev_b32 v4, 5, v3')
    if TK: ticket(a, 'k3', 4, 3, K3_LDS - 16, vt=(62, 63))
    else:
        a('s_and_b32 s36, s2, 7'); a('s_lshl_b32 s36, s36, 5'); a('s_lshr_b32 s37, s2, 3'); a('s_add_u32 s3, s36, s37')
    a('s_lshl_b32 s20, s3, 4')
    a('s_waitcnt lgkmcnt(0)')
    copy_srd(a, 8, 4, SZ_X1T, WS_X1T); copy_srd(a, 12, 4, SZ_MOD, WS_MOD); copy_srd(a, 16, 4, SZ_XF, WS_XF); copy_srd(a, 24, 4, SZ_X1, WS_X1)
    a('buffer_load_dwordx4 v[8:11], v1, s[8:11], s20 offen')
    CB = 40; SB = 48
    a(f's_mov_b32 s21, {4*2304}'); a(f's_mov_b32 s22, {3*2304}')
    a(f'buffer_load_dwordx4 v[{CB}:{CB+3}], v4, s[12:15], s21 offen')
    a(f'buffer_load_dwordx4 v[{CB+4}:{CB+7}], v4, s[12:15], s21 offen offset:16')
    a(f'buffer_load_dwordx4 v[{SB}:{SB+3}], v4, s[12:15], s22 offen')
    a(f'buffer_load_dwordx4 v[{SB+4}:{SB+7}], v4, s[12:15], s22 offen offset:16')
    a('v_lshlrev_b32 v5, 4, v0')
    a('v_lshrrev_b32 v6, 4, v0'); a('v_lshlrev_b32 v6, 1, v6')
    a('v_bfe_u32 v7, v0, 1, 1'); a('v_add_u32 v6, v6, v7'); a('v_lshlrev_b32 v6, 3, v6')
    a('v_bfe_u32 v7, v0, 2, 2'); a('v_add_u32 v6, v6, v7'); a('v_lshlrev_b32 v6, 4, v6')
    a('v_and_b32 v7, 1, v0'); a('v_lshl_add_u32 v6, v7, 3, v6')
    RED = 9216
    a('v_lshrrev_b32 v12, 6, v0'); a('v_lshlrev_b32 v12, 5, v12'); a('v_lshl_add_u32 v12, v2, 2, v12')
    a('v_lshlrev_b32 v13, 2, v2')
    a('s_waitcnt vmcnt(4)')
    a('ds_write_b128 v5, v[8:11]')
    a('s_waitcnt lgkmcnt(0)'); a('s_barrier')
    XP = 8; XF = 16; TMP = 24; XN = 56
    a(f'ds_read_b64_tr_b16 v[{XP}:{XP+1}], v6')
    a(f'ds_read_b64_tr_b16 v[{XP+2}:{XP+3}], v6 offset:64')
    a('v_mul_u32_u24 v1, 1152, v2'); a('v_lshl_add_u32 v1, v3, 4, v1')
    a('s_mul_i32 s20, s3, 9216')
    a('v_lshrrev_b32 v4, 1, v3'); a('v_lshlrev_b32 v4, 10, v4')
    a('v_and_b32 v5, 1, v3'); a('v_lshl_add_u32 v4, v5, 9, v4'); a('v_lshl_add_u32 v4, v2, 4, v4')
    a('s_lshr_b32 s21, s3, 2'); a(f's_mul_i32 s21, s21, {36*1024}')
    a('s_and_b32 s22, s3, 3'); a('s_lshl_b32 s22, s22, 7'); a('s_add_u32 s21, s21, s22')
    a('s_waitcnt lgkmcnt(0)')
    a(f'buffer_store_dwordx4 v[{XP}:{XP+3}], v1, s[24:27], s20 offen')
    ln_core(a, 1, XP, XF, TMP, 9, 12, 13, RED, XN)
    a('s_waitcnt vmcnt(1)')
    for i in range(4): unpack_lo(a, XF + 2 * i, XN + i); unpack_hi(a, XF + 2 * i + 1, XN + i)
    for i in range(8): a(f'v_add_f32 v{CB+i}, 1.0, v{CB+i}')
    for i in range(4): a(f'v_cvt_pk_bf16_f32 v{TMP+i}, v{CB+2*i}, v{CB+2*i+1}')
    for i in range(4): unpack_lo(a, CB + 2 * i, TMP + i); unpack_hi(a, CB + 2 * i + 1, TMP + i)
    for i in range(8): a(f'v_mul_f32 v{XF+i}, v{XF+i}, v{CB+i}')
    for i in range(4): a(f'v_cvt_pk_bf16_f32 v{TMP+i}, v{XF+2*i}, v{XF+2*i+1}')
    for i in range(4): unpack_lo(a, XF + 2 * i, TMP + i); unpack_hi(a, XF + 2 * i + 1, TMP + i)
    for i in range(8): a(f'v_add_f32 v{XF+i}, v{XF+i}, v{SB+i}')
    for i in range(4): a(f'v_cvt_pk_bf16_f32 v{TMP+i}, v{XF+2*i}, v{XF+2*i+1}')
    a(f'buffer_store_dwordx4 v[{TMP}:{TMP+3}], v4, s[16:19], s21 offen')
    a.label('K3_END')
    a('s_endpgm')
    if K3PF:
        a.label('K3_PF')
        a(f's_cmp_ge_u32 s2, {256+K3PF}'); a.branch('s_cbranch_scc1 K3_END2')
        load_ptr(a, 4, 'w2')
        a('s_sub_u32 s3, s2, 256')
        a('s_mul_i32 s9, s3, 73728')
        a('v_lshlrev_b32 v1, 4, v0')
        a('s_waitcnt lgkmcnt(0)')
        make_srd(a, 4, 4608 * 1152)
        for i in range(8):
            a(f's_add_u32 s10, s9, {i*9216}')
            a(f'buffer_load_dwordx4 v[{8+4*i}:{11+4*i}], v1, s[4:7], s10 offen')
        a('s_waitcnt vmcnt(0)')
        a.label('K3_END2')
        a('s_endpgm')
    return kernel_desc('k3_kernel', 64)
```

```python
from gen_common import *
import os

class VM:
    def __init__(self, a): self.a = a; self.ops = []
    def issue(self, tag, text): self.a(text); self.ops.append(tag)
    def count_after(self, tag):
        idx = max(i for i, t in enumerate(self.ops) if t == tag)
        return len(self.ops) - 1 - idx
    def wait(self, tag, extra=''):
        n = self.count_after(tag)
        assert n <= 63
        self.a(f's_waitcnt vmcnt({n}){extra}')

def interleave(a, mf, fill, per=None):
    n = len(mf); k = 0
    for i, grp in enumerate(mf):
        for ins in grp:
            ins() if callable(ins) else a(ins)
        want = (len(fill) * (i + 1) + n - 1) // n if per is None else min(len(fill), per * (i + 1))
        while k < want:
            f = fill[k]; f() if callable(f) else a(f); k += 1
    while k < len(fill):
        f = fill[k]; f() if callable(f) else a(f); k += 1

K4_LDS = 4 * 36864 + 16
SLOT = 36864
def gen_k4(a):
    a.raw(kernel_header('k4_kernel'))
    dbgt(a, 3, 3, 'DBGT_4')
    vm = VM(a)
    a('s_cmp_ge_u32 s2, 256'); a.branch('s_cbranch_scc1 K4_END')
    if not TK:
        a('s_and_b32 s36, s2, 7'); a('s_lshl_b32 s36, s36, 5'); a('s_lshr_b32 s37, s2, 3'); a('s_add_u32 s3, s36, s37')
    stamp(a, 0, 'k4')
    if TK: ticket_begin(a)
    load_ptr(a, 4, 'w1'); load_ptr(a, 8, 'w3'); load_ptr(a, 12, 'ws')
    K4W2 = int(os.environ.get('K4W2', '1'))
    if K4W2: load_ptr(a, 24, 'w2')
    a('v_mov_b32 v15, v0')
    a('v_readfirstlane_b32 s39, v0'); a('s_lshr_b32 s39, s39, 6')
    a('v_and_b32 v0, 63, v0')
    a('v_lshrrev_b32 v11, 4, v0'); a('v_mul_u32_u24 v1, 9216, v11')
    a('v_bfe_u32 v12, v0, 2, 2'); a('v_xor_b32 v12, v12, v11'); a('v_lshl_add_u32 v1, v12, 6, v1')
    a('v_and_b32 v12, 3, v0'); a('v_lshl_add_u32 v1, v12, 4, v1')
    a('v_bfe_u32 v12, v0, 2, 2')
    a('v_lshrrev_b32 v13, 5, v0')
    a('v_lshl_add_u32 v13, v13, 3, v12'); a('v_lshlrev_b32 v2, 8, v13')
    a('v_xor_b32 v12, s39, v12'); a('v_lshl_add_u32 v2, v12, 6, v2')
    a('v_bfe_u32 v12, v0, 4, 1'); a('v_lshl_add_u32 v2, v12, 5, v2')
    a('v_and_b32 v12, 3, v0'); a('v_lshl_add_u32 v2, v12, 3, v2')
    a(f'v_add_u32 v4, {3*SLOT}, v2'); a(f'v_add_u32 v3, {2*SLOT}, v2'); a(f'v_add_u32 v2, {SLOT}, v2')
    a('v_lshlrev_b32 v5, 4, v0')
    for s in range(1, 4): a(f'v_add_u32 v{5+s}, {s*SLOT}, v5')
    a('v_bfe_u32 v12, v0, 4, 1'); a('v_lshlrev_b32 v10, 10, v12')
    a('v_lshrrev_b32 v12, 5, v0'); a('v_lshl_add_u32 v10, v12, 8, v10')
    a('v_and_b32 v12, 15, v0'); a('v_lshl_add_u32 v10, v12, 4, v10')
    if TK: ticket(a, 'k4', 4, 3, K4_LDS - 16, wave_s=39)
    a('s_cmp_ge_u32 s3, 252'); a.branch('s_cbranch_scc1 K4_END')
    a('s_mul_i32 s36, s3, 9363'); a('s_lshr_b32 s36, s36, 16')
    a('s_mul_i32 s37, s36, 7'); a('s_sub_u32 s37, s3, s37')
    a('s_mul_i32 s38, s37, 9'); a('s_cmp_gt_u32 s37, 0'); a('s_addc_u32 s38, s38, 0')
    a('s_lshl_b32 s40, s36, 8')
    a(f's_mul_i32 s41, s39, {16*9216}'); a('s_add_u32 s40, s40, s41')
    a('s_lshl_b32 s42, s39, 12')
    a(f's_mul_i32 s43, s38, {SLOT}'); a('s_mul_i32 s44, s39, 9216'); a('s_add_u32 s43, s43, s44')
    a('s_lshl_b32 s45, s36, 2'); a('s_add_u32 s45, s45, s39'); a('s_lshl_b32 s45, s45, 7'); a('s_lshl_b32 s46, s38, 1'); a('s_add_u32 s45, s45, s46'); a('s_lshl_b32 s45, s45, 10')
    a('s_mov_b32 s47, 0xffff0000'); a(f's_mov_b32 s48, {f32bits(-LOG2E)}')
    a('s_waitcnt lgkmcnt(0)')
    make_srd(a, 4, 576 * 9216); make_srd(a, 8, 576 * 9216)
    copy_srd(a, 16, 12, SZ_XF, WS_XF); copy_srd(a, 20, 12, SZ_HH, WS_HH)
    if K4W2:
        make_srd(a, 24, 4608 * 1152)
        a('s_mul_i32 s53, s3, 21504'); a('s_lshl_b32 s54, s39, 10'); a('s_add_u32 s53, s53, s54')
        a('v_lshlrev_b32 v14, 4, v0'); a('v_add_u32 v14, s53, v14')
    def w_dma(st):
        slot = 1 + st % 3
        for mat in range(2):
            for q in range(4):
                a(f's_add_u32 m0, s42, {slot*SLOT + mat*16384 + q*1024}')
                a(f's_add_u32 s49, s40, {(64*st + 4*q)*9216}')
                vm.issue(f'W{st}', f'buffer_load_dwordx4 v1, s[{4+4*mat}:{7+4*mat}], s49 offen lds')
    def x_dma_list(i):
        slot = i % 4; L = []
        for q in range(3):
            L.append(f's_add_u32 m0, s44, {slot*SLOT + q*4096}')
            L.append(f's_add_u32 s49, s43, {i*SLOT + q*4096}')
            for r in range(4 if q < 2 else 1):
                L.append(lambda r=r: vm.issue(f'X{i}', f'buffer_load_dwordx4 v5, s[16:19], s49 offen offset:{r*1024} lds'))
        return L
    def run(L):
        for f in L: f() if callable(f) else a(f)
    XB = 16; WV = 40; ACC = 72; TMP = 136
    def wreg(k, mat):
        if k < 32: b = 8 * k + 4 * mat; return 'a', b
        b = WV + 8 * (k - 32) + 4 * mat; return 'v', b
    def xread(i, k):
        n = 36 * i + k; b = XB + 4 * (n % 6)
        return f'ds_read_b128 v[{b}:{b+3}], v{5 + i % 4} offset:{k*1024}'
    def mfma(i, k, mat):
        n = 36 * i + k; b = XB + 4 * (n % 6)
        t, wb = wreg(k, mat); acc = ACC + 32 * (i % 2) + 16 * mat
        c = '0' if k == 0 else f'v[{acc}:{acc+15}]'
        return f'v_mfma_f32_32x32x16_bf16 v[{acc}:{acc+15}], {t}[{wb}:{wb+3}], v[{b}:{b+3}], {c}'
    def epilogue_list(i):
        g = ACC + 32 * (i % 2); u = g + 16; L = []
        G = TMP; E = TMP + 8; U = TMP + 16; PK = TMP + 24;
        for p in range(2):
            P = TMP + 28 + 4 * p
            o = 8 * p
            for j in range(4): L.append(f'v_cvt_pk_bf16_f32 v{PK+j}, v{g+o+2*j}, v{g+o+2*j+1}')
            for j in range(4):
                L.append(f'v_lshlrev_b32 v{G+2*j}, 16, v{PK+j}'); L.append(f'v_and_b32 v{G+2*j+1}, s47, v{PK+j}')
            for j in range(8): L.append(f'v_mul_f32 v{E+j}, s48, v{G+j}')
            for j in range(8): L.append(f'v_exp_f32 v{E+j}, v{E+j}')
            for j in range(4): L.append(f'v_cvt_pk_bf16_f32 v{PK+j}, v{u+o+2*j}, v{u+o+2*j+1}')
            for j in range(8): L.append(f'v_add_f32 v{E+j}, 1.0, v{E+j}')
            for j in range(8): L.append(f'v_rcp_f32 v{E+j}, v{E+j}')
            for j in range(4):
                L.append(f'v_lshlrev_b32 v{U+2*j}, 16, v{PK+j}'); L.append(f'v_and_b32 v{U+2*j+1}, s47, v{PK+j}')
            for j in range(8): L.append(f'v_mul_f32 v{G+j}, v{G+j}, v{E+j}')
            for j in range(4): L.append(f'v_cvt_pk_bf16_f32 v{PK+j}, v{G+2*j}, v{G+2*j+1}')
            for j in range(4):
                L.append(f'v_lshlrev_b32 v{G+2*j}, 16, v{PK+j}'); L.append(f'v_and_b32 v{G+2*j+1}, s47, v{PK+j}')
            for j in range(8): L.append(f'v_mul_f32 v{G+j}, v{G+j}, v{U+j}')
            for j in range(4): L.append(f'v_cvt_pk_bf16_f32 v{P+j}, v{G+2*j}, v{G+2*j+1}')
            if p == 0: L.append(f's_add_u32 s50, s45, {i*2048}')
            L.append(lambda P=P, p=p: vm.issue(f'S{i}', f'buffer_store_dwordx4 v[{P}:{P+3}], v10, s[20:23], s50 offen offset:{p*512}' + os.environ.get('STMOD', ' sc1')))
        return L
    PF = os.environ.get('K4PF', '0')
    if PF != '0':
        a('s_lshl_b32 s51, s37, 8'); a('s_lshl_b32 s52, s39, 6'); a('s_add_u32 s51, s51, s52')
        a('v_add_u32 v11, s51, v0')
        a('v_lshrrev_b32 v12, 1, v11'); a('v_mul_u32_u24 v12, 9216, v12')
        a('v_and_b32 v11, 1, v11'); a('v_lshl_add_u32 v12, v11, 7, v12')
        a('s_lshl_b32 s51, s36, 8')
        vm.issue('PF', 'buffer_load_dword v13, v12, s[4:7], s51 offen')
        vm.issue('PF', 'buffer_load_dword v14, v12, s[8:11], s51 offen')
        if PF == '2':
            vm.issue('PF', 'buffer_load_dword v13, v12, s[4:7], s51 offen offset:64')
            vm.issue('PF', 'buffer_load_dword v14, v12, s[8:11], s51 offen offset:64')
    w_dma(0); run(x_dma_list(0)); w_dma(1); w_dma(2)
    for st in range(9):
        slot = 1 + st % 3
        if st == 0: vm.wait('X0')
        else: vm.wait(f'W{st}')
        a('s_barrier')
        if st in (0, 3, 8): stamp(a, {0:1,3:2,8:3}[st], 'k4')
        for kk in range(4):
            k = 4 * st + kk
            for mat in range(2):
                t, wb = wreg(k, mat)
                off = mat * 16384 + kk * 4096
                a(f'ds_read_b64_tr_b16 {t}[{wb}:{wb+1}], v{1+slot} offset:{off}')
                a(f'ds_read_b64_tr_b16 {t}[{wb+2}:{wb+3}], v{1+slot} offset:{off+1024}')
        for kk in range(4): a(xread(0, 4 * st + kk))
        a('s_waitcnt lgkmcnt(0)')
        a('s_barrier')
        if st < 6: w_dma(st + 3)
        else: run(x_dma_list(st - 5))
        for kk in range(4):
            a(mfma(0, 4 * st + kk, 0)); a(mfma(0, 4 * st + kk, 1))
    vm.wait('X1'); a('s_barrier')
    for k in range(4): a(xread(1, k))
    def tile(i):
        mf = [];
        fill = epilogue_list(i - 1)
        dma = x_dma_list(i + 3)
        if K4W2 and i <= 6:
            dma = dma + [f'v_add_u32 v13, {(i-1)*4096}, v14', lambda: vm.issue('PW', 'buffer_load_dwordx4 v[172:175], v13, s[24:27], 0 offen')]
        X = os.environ.get('K4X', '')
        if 'noepi' in X: fill = [f for f in fill if callable(f) or f.startswith('s_')]
        if 'nost' in X: fill = [f for f in fill if not callable(f)]
        if 'notrans' in X: fill = [f for f in fill if callable(f) or not ('exp' in f or 'rcp' in f)]
        for k in range(36):
            pre = []
            if k == 32:
                pre.append(lambda: vm.wait(f'X{i+1}'))
                if 'nobar' not in X: pre.append('s_barrier')
            pre.append(xread(i, k + 4) if k + 4 < 36 else xread(i + 1, k + 4 - 36))
            pre.append('s_waitcnt lgkmcnt(4)')
            pre.append(mfma(i, k, 0))
            mf.append(pre); mf.append([mfma(i, k, 1)])
        interleave(a, mf[:64], fill)
        interleave(a, mf[64:], dma)
    stamp(a, 4, 'k4')
    for i in range(1, 9):
        tile(i)
        if i in (1, 4):
            stamp(a, {1:5,4:6}[i], 'k4')
            if 'k4' in STAMPS: a('s_waitcnt lgkmcnt(0)')
    a('s_cmp_eq_u32 s37, 0'); a.branch('s_cbranch_scc1 K4_T9')
    saved = list(vm.ops)
    run(epilogue_list(8))
    stamp(a, 7, 'k4')
    a('v_mov_b32 v0, v15')
    dump_stamps(a, 8, 'k4', 101)
    a('s_endpgm')
    vm.ops = saved
    a.label('K4_T9')
    tile(9)
    run(epilogue_list(9))
    a.label('K4_END')
    a('s_endpgm')
    return kernel_desc('k4_kernel', 176 + 256, accum=176)
```

```python
from gen_common import *
from gen_k4 import VM, interleave
import os

ST5 = 17408; NS5 = 9
K5L = int(os.environ.get('K5L', '0'))
K5_LDS = ST5 * NS5 + 16
def gen_k5(a):
    a.raw(kernel_header('k5_kernel'))
    vm = VM(a)
    a('s_cmp_ge_u32 s2, 256'); a.branch('s_cbranch_scc1 K5_END')
    stamp(a, 0, 'k5')
    if TK: ticket_begin(a)
    load_ptr(a, 4, 'w2'); load_ptr(a, 12, 'ws')
    a('v_mov_b32 v15, v0')
    a('v_readfirstlane_b32 s35, v0'); a('s_lshr_b32 s35, s35, 6')
    a('s_and_b32 s39, s35, 3')
    a('v_and_b32 v0, 63, v0')
    a('v_lshlrev_b32 v1, 4, v0')
    a('s_mul_i32 s40, s39, 144')
    for q in range(3):
        a(f's_add_u32 s41, s40, {48*q}')
        a('v_add_u32 v10, s41, v0')
        a('v_mul_u32_u24 v11, 3641, v10'); a('v_lshrrev_b32 v11, 16, v11')
        a('v_mul_u32_u24 v12, 18, v11'); a('v_sub_u32 v12, v10, v12')
        a(f'v_mul_u32_u24 v{2+q}, 1152, v11'); a(f'v_lshl_add_u32 v{2+q}, v12, 4, v{2+q}')
    a('v_lshrrev_b32 v10, 5, v0'); a('v_lshlrev_b32 v10, 4, v10')
    a('v_bfe_u32 v11, v0, 4, 1'); a('v_lshl_add_u32 v10, v11, 2, v10')
    a('v_bfe_u32 v11, v0, 2, 2'); a('v_add_u32 v10, v10, v11'); a('v_mul_u32_u24 v5, 288, v10')
    a('v_and_b32 v11, 3, v0'); a('v_lshl_add_u32 v5, v11, 3, v5'); a('v_add_u32 v5, 8192, v5')
    a('s_lshl_b32 s40, s39, 11'); a('v_add_u32 v6, s40, v1')
    if TK:
        ticket(a, 'k5', 4, 3, K5_LDS - 16, wave_s=35)
        a('s_lshr_b32 s36, s3, 5'); a('s_and_b32 s37, s3, 31')
    else:
        a('s_and_b32 s36, s2, 7'); a('s_lshr_b32 s37, s2, 3')
    a('s_and_b32 s38, s36, 3')
    a('s_lshr_b32 s36, s36, 2'); a('s_lshl_b32 s36, s36, 3'); a('s_lshr_b32 s43, s37, 2'); a('s_add_u32 s36, s36, s43')
    a('s_and_b32 s37, s37, 3')
    a(f's_mul_i32 s41, s38, {36*131072}'); a('s_lshl_b32 s42, s36, 13'); a('s_add_u32 s41, s41, s42'); a('s_add_u32 s41, s41, s40')
    a(f's_mul_i32 s42, s38, {36*36864}'); a('s_mul_i32 s43, s37, 288'); a('s_add_u32 s42, s42, s43')
    a('s_mul_i32 s43, s39, 2304')
    a('s_mov_b32 s44, -1'); a('s_mov_b32 s45, 0xffff')
    a('s_waitcnt lgkmcnt(0)')
    make_srd(a, 4, 4608 * 1152)
    copy_srd(a, 16, 12, SZ_HH, WS_HH); copy_srd(a, 20, 12, SZ_PART, WS_PART)
    def dma_list(k):
        so = (k % NS5) * ST5; L = []
        L.append(f's_add_u32 m0, s40, {so}')
        L.append(f's_add_u32 s46, s41, {k*131072}')
        L.append(lambda: vm.issue(f'D{k}', 'buffer_load_dwordx4 v1, s[16:19], s46 offen lds'))
        L.append(lambda: vm.issue(f'D{k}', 'buffer_load_dwordx4 v1, s[16:19], s46 offen offset:1024 lds'))
        L.append(f's_add_u32 s46, s42, {k*36864}')
        def masked():
            a('s_mov_b64 exec, s[44:45]')
            for q in range(3):
                a(f's_add_u32 m0, s43, {so + 8192 + q*768}')
                vm.issue(f'D{k}', f'buffer_load_dwordx4 v{2+q}, s[4:7], s46 offen lds')
            a('s_mov_b64 exec, -1')
        L.append(masked)
        return L
    def dma(k):
        for f in dma_list(k): f() if callable(f) else a(f)
    def run(L):
        for f in L: f() if callable(f) else a(f)
    if K5L: a('s_cmp_ge_u32 s35, 4'); a.branch('s_cbranch_scc1 K5_LOAD')
    else:
        for k in range(8): dma(k)
        vm.wait('D0')
    ACC = 16; WF = 88; HF = 160
    def read_list(k):
        so = (k % NS5) * ST5; b = k % 2; L = []
        va = 7 + 2 * b; vb = 8 + 2 * b
        L.append(f'v_add_u32 v{va}, {so}, v5'); L.append(f'v_add_u32 v{vb}, {so}, v6')
        h = HF + 8 * b
        L.append(f'ds_read_b128 v[{h}:{h+3}], v{vb}'); L.append(f'ds_read_b128 v[{h+4}:{h+7}], v{vb} offset:1024')
        for dt in range(9):
            wv = WF + 36 * b + 4 * dt
            L.append(f'ds_read_b64_tr_b16 v[{wv}:{wv+1}], v{va} offset:{dt*32}')
            L.append(f'ds_read_b64_tr_b16 v[{wv+2}:{wv+3}], v{va} offset:{dt*32+2304}')
        return L
    a('s_barrier')
    stamp(a, 1, 'k5')
    run(read_list(0))
    for k in range(36):
        b = k % 2
        if K5L or k + 1 >= 36: a('s_waitcnt lgkmcnt(0)')
        else: vm.wait(f'D{k+1}', ' lgkmcnt(0)')
        if k + 1 < 36: a('s_barrier')
        fill = read_list(k + 1) if k + 1 < 36 else []
        mf = []
        for dt in range(9):
            for tt in range(2):
                acc = ACC + 4 * (9 * tt + dt); wv = WF + 36 * b + 4 * dt; h = HF + 8 * b + 4 * tt
                c = '0' if k == 0 else f'v[{acc}:{acc+3}]'
                mf.append([f'v_mfma_f32_16x16x32_bf16 v[{acc}:{acc+3}], v[{wv}:{wv+3}], v[{h}:{h+3}], {c}'])
        interleave(a, mf[:14], fill)
        interleave(a, mf[14:], dma_list(k + 8) if (not K5L and k + 8 < 36) else [])
        if k in (11, 23): stamp(a, 2 if k == 11 else 3, 'k5')
    stamp(a, 4, 'k5')
    a('s_lshl_b32 s41, s38, 6'); a('s_lshl_b32 s42, s36, 2'); a('s_add_u32 s41, s41, s42'); a('s_add_u32 s41, s41, s37')
    a('s_lshl_b32 s41, s41, 2'); a('s_add_u32 s41, s41, s39'); a(f's_mul_i32 s41, s41, {10*1024}')
    MX = 88
    for tt in range(2):
        A0 = ACC + 36 * tt; m = MX + 24 * tt
        for c in range(4):
            a(f'v_max3_f32 v{m+c}, |v{A0+9*c}|, |v{A0+9*c+1}|, |v{A0+9*c+2}|')
        for j in range(3, 9, 2):
            for c in range(4): a(f'v_max3_f32 v{m+c}, |v{A0+9*c+j}|, |v{A0+9*c+j+1}|, v{m+c}')
        a(f'v_max3_f32 v{m}, v{m}, v{m+1}, v{m+2}'); a(f'v_max_f32 v{m}, v{m}, v{m+3}')
        a(f'v_frexp_exp_i32_f32 v{m+1}, v{m}')
        a(f'v_sub_u32 v{m+2}, 15, v{m+1}')
        a(f'v_max_i32 v{m+2}, -100, v{m+2}'); a(f'v_min_i32 v{m+2}, 100, v{m+2}')
        a(f'v_ldexp_f32 v{m+3}, 1.0, v{m+2}')
        a(f'v_sub_u32 v{m+2}, 0, v{m+2}'); a(f'v_ldexp_f32 v{m+22}, 1.0, v{m+2}')
        for i in range(36): a(f'v_mul_f32 v{A0+i}, v{A0+i}, v{m+3}')
        for i in range(18): a(f'v_cvt_pk_f16_f32 v{m+4+i}, v{A0+2*i}, v{A0+2*i+1}')
        a(f'v_mov_b32 v{m+23}, 0')
        for p in range(5):
            i = 5 * tt + p
            if i % 4 == 0 and i: a(f's_add_u32 s41, s41, 4096')
            a(f'buffer_store_dwordx4 v[{m+4+4*p}:{m+7+4*p}], v1, s[20:23], s41 offen offset:{(i%4)*1024}' + os.environ.get('STMOD5', ' sc1'))
    stamp(a, 5, 'k5')
    if 'k5' in STAMPS:
        a('v_mov_b32 v0, v15'); dump_stamps(a, 6, 'k5', 101)
    a('s_endpgm')
    if K5L:
        a.label('K5_LOAD')
        for k in range(NS5): dma(k)
        vm.wait('D0'); a('s_barrier')
        for k in range(35):
            vm.wait(f'D{k+1}'); a('s_barrier')
            if k + NS5 < 36: dma(k + NS5)
    a.label('K5_END')
    a('s_endpgm')
    return kernel_desc('k5_kernel', 176)

def gen_k6(a):
    a.raw(kernel_header('k6_kernel'))
    a('s_cmp_ge_u32 s2, 256'); a.branch('s_cbranch_scc1 K6_END')
    load_ptr(a, 4, 'ws'); load_ptr(a, 8, 'out')
    a('v_readfirstlane_b32 s3, v0'); a('s_lshr_b32 s3, s3, 6')
    a('v_and_b32 v0, 63, v0')
    a('v_lshlrev_b32 v1, 4, v0')
    a('s_lshr_b32 s21, s3, 1'); a('s_and_b32 s22, s3, 1')
    a('s_lshl_b32 s20, s2, 1'); a('s_add_u32 s20, s20, s21'); a('s_mul_i32 s20, s20, 5120')
    a('s_and_b32 s23, s2, 3')
    a('s_lshr_b32 s24, s2, 2'); a('s_and_b32 s25, s24, 3'); a('s_lshr_b32 s24, s24, 2')
    a('s_lshl_b32 s26, s24, 7'); a('s_lshl_b32 s27, s23, 5'); a('s_add_u32 s26, s26, s27'); a('s_lshl_b32 s27, s21, 4'); a('s_add_u32 s26, s26, s27')
    a('s_mul_i32 s27, s25, 144'); a('s_lshl_b32 s28, s22, 6'); a('s_add_u32 s27, s27, s28')
    a('s_mul_i32 s29, s26, 1152'); a('s_lshl_b32 s28, s27, 1'); a('s_add_u32 s29, s29, s28')
    a('s_lshl_b32 s30, s27, 2'); a(f's_add_u32 s30, s30, {5*2304}')
    a('v_and_b32 v2, 15, v0'); a('v_mul_u32_u24 v2, 1152, v2'); a('v_lshrrev_b32 v3, 4, v0'); a('v_lshl_add_u32 v2, v3, 3, v2')
    a('v_lshlrev_b32 v3, 4, v3')
    a('s_lshl_b32 s31, s22, 11'); a('s_add_u32 s31, s31, s20')
    a('s_waitcnt lgkmcnt(0)')
    copy_srd(a, 12, 4, SZ_PART, WS_PART); copy_srd(a, 16, 4, SZ_X1, WS_X1); copy_srd(a, 32, 4, SZ_MOD, WS_MOD)
    make_srd(a, 8, 2048 * 1152)
    SS = 64 * 4 * 10240
    a('s_cmp_eq_u32 s22, 1'); a.branch('s_cbranch_scc1 K6_B')
    for half in range(2):
        nf = 4 + half
        if half: a.label('K6_B')
        P = 8
        for s_ in range(4):
            if s_: a(f's_add_u32 s31, s31, {SS}'); a(f's_add_u32 s20, s20, {SS}')
            b = P + 12 * s_
            a(f'buffer_load_dwordx4 v[{b}:{b+3}], v1, s[12:15], s31 offen')
            a(f'buffer_load_dwordx4 v[{b+4}:{b+7}], v1, s[12:15], s31 offen offset:1024')
            if half: a(f'buffer_load_dwordx4 v[{b+8}:{b+11}], v1, s[12:15], s31 offen offset:2048')
            else:
                a(f's_add_u32 s36, s20, 4096')
                a(f'buffer_load_dword v{b+10}, v1, s[12:15], s36 offen offset:8')
        X = 56; G = 68; R = 88; T = 108
        for j in range(nf): a(f'buffer_load_dwordx2 v[{X+2*j}:{X+2*j+1}], v2, s[16:19], s29 offen offset:{j*32}')
        for j in range(nf): a(f'buffer_load_dwordx4 v[{G+4*j}:{G+4*j+3}], v3, s[32:35], s30 offen offset:{j*64}')
        n = 4 * nf
        for s_ in range(4):
            a(f's_waitcnt vmcnt({2*nf + 3*(3-s_)})')
            b = P + 12 * s_
            for i in range(n):
                src = b + i // 2
                sel = f'op_sel:[{i%2},0,0] op_sel_hi:[1,0,0]'
                if s_ == 0: a(f'v_fma_mix_f32 v{R+i}, v{src}, v{b+10}, 0 {sel}')
                else: a(f'v_fma_mix_f32 v{R+i}, v{src}, v{b+10}, v{R+i} {sel}')
        for i in range(n // 2): a(f'v_cvt_pk_bf16_f32 v{T+i}, v{R+2*i}, v{R+2*i+1}')
        for i in range(n // 2): unpack_lo(a, R + 2 * i, T + i); unpack_hi(a, R + 2 * i + 1, T + i)
        a('s_waitcnt vmcnt(0)')
        for i in range(n): a(f'v_mul_f32 v{R+i}, v{R+i}, v{G+i}')
        for i in range(n // 2): a(f'v_cvt_pk_bf16_f32 v{T+i}, v{R+2*i}, v{R+2*i+1}')
        for i in range(n // 2): unpack_lo(a, R + 2 * i, T + i); unpack_hi(a, R + 2 * i + 1, T + i)
        for i in range(n // 2): unpack_lo(a, P + 2 * i, X + i); unpack_hi(a, P + 2 * i + 1, X + i)
        for i in range(n): a(f'v_add_f32 v{R+i}, v{R+i}, v{P+i}')
        for i in range(n // 2): a(f'v_cvt_pk_bf16_f32 v{T+i}, v{R+2*i}, v{R+2*i+1}')
        for j in range(nf): a(f'buffer_store_dwordx2 v[{T+2*j}:{T+2*j+1}], v2, s[8:11], s29 offen offset:{j*32}')
        if half == 0: a('s_endpgm')
    a.label('K6_END')
    a('s_endpgm')
    return kernel_desc('k6_kernel', 120)
```

```python
import sys
from gen_common import *
from gen_k1 import *
from gen_k23 import *
def build(path, upto=3):
    a = Asm()
    hdr = open('cdna_kernels/' + NAME + '.s.ref').read().split('; Override launch')[0]
    launches = [('k1_kernel', K1_GRID, 256, K1_LDS), ('k2_kernel', K2_GRID, 256, K2_LDS), ('k3_kernel', K3_GRID, 576, K3_LDS)]
    gens = [gen_k1, gen_k2, gen_k3]
    try:
        import gen_k456
        launches += gen_k456.launches; gens += gen_k456.gens
    except ImportError: pass
    launches = launches[:upto]; gens = gens[:upto]
    import os
    ef = int(os.environ.get('EF', '0')); eb = int(os.environ.get('EB', '0'))
    if ef or eb:
        def gen_k0(a):
            a.raw(kernel_header('k0_kernel')); a('s_endpgm'); return kernel_desc('k0_kernel', 8)
        launches = [('k0_kernel', 64, 64, 0)] * ef + launches + [('k0_kernel', 64, 64, 0)] * eb
        gens = gens + [gen_k0]
    for k, g, b, l in launches:
        hdr += f'; @launch kernel={k} grid=({g},1,1) block=({b},1,1) lds={l}\n'
    a.raw(hdr + '.amdgcn_target "amdgcn-amd-amdhsa--gfx950"')
    descs = ''
    for g in gens: descs += g(a)
    open(path, 'w').write(a.text() + descs)
    print('instrs', a.count, 'nops', a.nops, 'bytes', len(a.text()))
if __name__ == '__main__':
    build(sys.argv[1] if len(sys.argv) > 1 else 'cur.s', int(sys.argv[2]) if len(sys.argv) > 2 else 99)
```

```python
import sys
sys.path.insert(0, 'work')
from asmgen import *

NAME = 'adaLN_cond__ssm_conv_s4__glu_gated_swiglu__prompt'
KA = dict(u=0, A_re=8, A_im=16, B_re=24, B_im=32, C_re=40, C_im=48, log_dt=56, Dskip=64, x=72, w1=80, w3=88, w2=96, c=104, wmod=112, out=120, dbg=128, ws=136)
WS_MOD = 0x000000; SZ_MOD = 3456 * 4
RK_STRIDE = 8320
WS_RK = 0x4000000; SZ_RK = 576 * RK_STRIDE
XT_STRIDE = 18560
WS_XT = 0x280000; SZ_XT = 256 * XT_STRIDE
X1T_STRIDE = 4224
WS_X1T = 0x720000; SZ_X1T = 576 * X1T_STRIDE
WS_XF = 0x980000; SZ_XF = 64 * 36 * 1024
WS_X1 = 0xBC0000; SZ_X1 = 2048 * 1152
WS_HH = 0xE00000; SZ_HH = 144 * 128 * 1024
WS_PART = 0x2000000; SZ_PART = 4 * 2048 * 576 * 4
WS_W2P = 0x3000000; SZ_W2P = 144 * 36864
import os as _os
W2P = int(_os.environ.get('W2P', '0'))
LOG2E = 1.4426950408889634
KSCALE_LOG2 = 10

def f32bits(x):
    import struct
    return '0x%08x' % struct.unpack('<I', struct.pack('<f', x))[0]

def load_ptr(a, s, name):
    a(f's_load_dwordx2 s[{s}:{s+1}], s[0:1], {KA[name]}')

def make_srd(a, s, size, add=0):
    if add:
        a(f's_add_u32 s{s}, s{s}, {hex(add)}')
        a(f's_addc_u32 s{s+1}, s{s+1}, 0')
    a(f's_mov_b32 s{s+2}, {hex(size)}')
    a(f's_mov_b32 s{s+3}, 0x20000')

def copy_srd(a, dst, src_ptr, size, add):
    a(f's_add_u32 s{dst}, s{src_ptr}, {hex(add)}')
    a(f's_addc_u32 s{dst+1}, s{src_ptr+1}, 0')
    a(f's_mov_b32 s{dst+2}, {hex(size)}')
    a(f's_mov_b32 s{dst+3}, 0x20000')

def red_l8(a, v, tmp):
    a(f'v_add_f32_dpp v{v}, v{v}, v{v} row_ror:8 row_mask:0xf bank_mask:0xf')
    a(f'v_mov_b32 v{tmp}, v{v}')
    a(f'v_permlane16_swap_b32 v{v}, v{tmp}')
    a(f'v_add_f32 v{v}, v{v}, v{tmp}')
    a(f'v_mov_b32 v{tmp}, v{v}')
    a(f'v_permlane32_swap_b32 v{v}, v{tmp}')
    a(f'v_add_f32 v{v}, v{v}, v{tmp}')

def red_l8_multi(a, vs, tmps):
    for v in vs: a(f'v_add_f32_dpp v{v}, v{v}, v{v} row_ror:8 row_mask:0xf bank_mask:0xf')
    for v, t in zip(vs, tmps): a(f'v_mov_b32 v{t}, v{v}')
    for v, t in zip(vs, tmps): a(f'v_permlane16_swap_b32 v{v}, v{t}')
    for v, t in zip(vs, tmps): a(f'v_add_f32 v{v}, v{v}, v{t}')
    for v, t in zip(vs, tmps): a(f'v_mov_b32 v{t}, v{v}')
    for v, t in zip(vs, tmps): a(f'v_permlane32_swap_b32 v{v}, v{t}')
    for v, t in zip(vs, tmps): a(f'v_add_f32 v{v}, v{v}, v{t}')

def unpack_lo(a, dst, src): a(f'v_lshlrev_b32 v{dst}, 16, v{src}')
def unpack_hi(a, dst, src): a(f'v_and_b32 v{dst}, 0xffff0000, v{src}')

def round_bf16_1(a, dst, src):
    a(f'v_cvt_pk_bf16_f32 v{dst}, v{src}, v{src}')
    a(f'v_lshlrev_b32 v{dst}, 16, v{dst}')

def cmul(a, d, x, y):
    a(f'v_pk_mul_f32 v[{d}:{d+1}], v[{x}:{x+1}], v[{y}:{y+1}] op_sel:[0,0] op_sel_hi:[0,1]')
    a(f'v_pk_fma_f32 v[{d}:{d+1}], v[{x}:{x+1}], v[{y}:{y+1}], v[{d}:{d+1}] op_sel:[1,1,0] op_sel_hi:[1,0,1] neg_lo:[1,0,0]')

import os
STAMPS = os.environ.get('STAMPS', '')
def stamp(a, i, kern):
    if kern not in STAMPS: return
    a('s_waitcnt lgkmcnt(0)')
    a('s_memrealtime s[88:89]' if os.environ.get('RT') else 's_memtime s[88:89]')
    a('s_waitcnt lgkmcnt(0)')
    a(f's_mov_b32 s{90+i}, s88')
def dump_stamps(a, n, kern, wg, sfx=''):
    if kern not in STAMPS: return
    lab = f'STAMP_SKIP_{kern}{sfx}'
    a(f's_cmp_eq_u32 s2, {wg}'); a.branch(f's_cbranch_scc0 {lab}')
    a(f's_load_dwordx2 s[84:85], s[0:1], {KA["dbg"]}')
    a('s_waitcnt lgkmcnt(0)')
    a('s_mov_b32 s86, 256'); a('s_mov_b32 s87, 0x20000')
    a('v_readfirstlane_b32 s83, v0'); a('s_lshr_b32 s83, s83, 6'); a('s_lshl_b32 s83, s83, 5')
    a('s_mov_b64 exec, 1')
    for i in range(n):
        a(f's_sub_u32 s82, s{90+i}, s90')
        a('v_mov_b32 v60, s82'); a(f'v_mov_b32 v61, s83')
        a(f'buffer_store_dword v60, v61, s[84:87], 0 offen offset:{4*i}')
    a.label(lab)


TK = os.environ.get('TK', '0') != '0'
WS_CNT = 0x10000; SZ_CNT = 28672
CNT_OFF = dict(k2=0, k3=12288, k4=16384, k5=20480, k6=24576)
def ticket_begin(a, sp=84):
    a(f's_load_dwordx2 s[{sp}:{sp+1}], s[0:1], {KA["ws"]}')
def ticket(a, kern, nb, out, lds_off, vt=(60, 61), sp=84, wave_s=None):
    v0, v1 = vt
    a('s_getreg_b32 s80, hwreg(HW_REG_XCC_ID, 0, 4)')
    a('s_and_b32 s80, s80, 7')
    a(f's_mul_i32 s80, s80, {nb}'); a('s_lshr_b32 s81, s2, 6'); a('s_add_u32 s80, s80, s81')
    a(f'v_mov_b32 v{v1}, {lds_off}')
    if wave_s is None:
        a('v_readfirstlane_b32 s81, v0'); a('s_cmp_ge_u32 s81, 64')
    else: a(f's_cmp_ge_u32 s{wave_s}, 1')
    a.branch(f's_cbranch_scc1 TK_W_{kern}')
    a('s_mov_b32 s82, 0')
    a('s_mov_b64 exec, 1')
    a('s_waitcnt lgkmcnt(0)')
    a(f's_add_u32 s{sp}, s{sp}, {hex(WS_CNT + CNT_OFF[kern])}'); a(f's_addc_u32 s{sp+1}, s{sp+1}, 0')
    a(f's_mov_b32 s{sp+2}, {nb*8*128}'); a(f's_mov_b32 s{sp+3}, 0x20000')
    a.label(f'TK_L_{kern}')
    a('s_lshl_b32 s83, s80, 7')
    a(f'v_mov_b32 v{v0}, 1')
    a(f'buffer_atomic_add v{v0}, off, s[{sp}:{sp+3}], s83 sc0 sc1')
    a('s_waitcnt vmcnt(0)')
    a(f'v_readfirstlane_b32 s81, v{v0}')
    a('s_cmp_lt_u32 s81, 8'); a.branch(f's_cbranch_scc1 TK_OK_{kern}')
    a('s_add_u32 s80, s80, 1'); a(f's_cmp_lt_u32 s80, {8*nb}'); a('s_cselect_b32 s80, s80, 0')
    a('s_add_u32 s82, s82, 1')
    a(f's_cmp_lt_u32 s82, {8*nb}'); a.branch(f's_cbranch_scc1 TK_L_{kern}')
    a('s_mov_b32 s81, 0'); a('s_mov_b32 s80, 0x1000000')
    a.label(f'TK_OK_{kern}')
    a('s_lshl_b32 s80, s80, 3'); a('s_add_u32 s81, s81, s80')
    a(f'v_mov_b32 v{v0}, s81')
    a(f'ds_write_b32 v{v1}, v{v0}')
    a('s_mov_b64 exec, -1')
    a('s_waitcnt lgkmcnt(0)')
    a.label(f'TK_W_{kern}')
    a('s_barrier')
    a(f'ds_read_b32 v{v0}, v{v1}')
    a('s_waitcnt lgkmcnt(0)')
    a(f'v_readfirstlane_b32 s{out}, v{v0}')
    a(f's_cmp_ge_u32 s{out}, {64*nb}'); a.branch(f's_cbranch_scc1 {kern.upper()}_END')

DBGT = int(os.environ.get('DBGT', '0'))
def dbgt(a, idx, slot, lab):
    if not DBGT: return
    a('s_cmp_eq_u32 s2, 0'); a.branch(f's_cbranch_scc0 {lab}')
    a('s_memrealtime s[70:71]')
    a(f's_load_dwordx2 s[72:73], s[0:1], {KA["dbg"]}')
    a('s_waitcnt lgkmcnt(0)')
    a(f's_add_u32 s72, s72, {512*(5-idx)}'); a('s_addc_u32 s73, s73, 0')
    a('s_mov_b32 s74, 64'); a('s_mov_b32 s75, 0x20000')
    a('s_mov_b64 s[76:77], exec'); a('s_mov_b64 exec, 1')
    a('v_mov_b32 v1, s70'); a(f'v_mov_b32 v2, {4*slot}')
    a('buffer_store_dword v1, v2, s[72:75], 0 offen')
    a('s_mov_b64 exec, s[76:77]')
    a.label(lab)
```

```python
from gen_common import *
from gen_k4 import VM, interleave
import os

ST5 = 17408; NS5 = 9
K5L = int(os.environ.get('K5L', '0'))
K5_LDS = ST5 * NS5 + 16
def gen_k5(a):
    a.raw(kernel_header('k5_kernel'))
    dbgt(a, 4, 4, 'DBGT_5')
    vm = VM(a)
    a('s_cmp_ge_u32 s2, 256'); a.branch('s_cbranch_scc1 K5_END')
    stamp(a, 0, 'k5')
    if TK: ticket_begin(a)
    load_ptr(a, 4, 'w2'); load_ptr(a, 12, 'ws')
    a('v_mov_b32 v15, v0')
    a('v_readfirstlane_b32 s35, v0'); a('s_lshr_b32 s35, s35, 6')
    a('s_and_b32 s39, s35, 3')
    a('v_and_b32 v0, 63, v0')
    a('v_lshlrev_b32 v1, 4, v0')
    a('s_mul_i32 s40, s39, 144')
    for q in range(3):
        a(f's_add_u32 s41, s40, {48*q}')
        a('v_add_u32 v10, s41, v0')
        a('v_mul_u32_u24 v11, 3641, v10'); a('v_lshrrev_b32 v11, 16, v11')
        a('v_mul_u32_u24 v12, 18, v11'); a('v_sub_u32 v12, v10, v12')
        a(f'v_mul_u32_u24 v{2+q}, 1152, v11'); a(f'v_lshl_add_u32 v{2+q}, v12, 4, v{2+q}')
    a('v_lshrrev_b32 v10, 5, v0'); a('v_lshlrev_b32 v10, 4, v10')
    a('v_bfe_u32 v11, v0, 4, 1'); a('v_lshl_add_u32 v10, v11, 2, v10')
    a('v_bfe_u32 v11, v0, 2, 2'); a('v_add_u32 v10, v10, v11'); a('v_mul_u32_u24 v5, 288, v10')
    a('v_and_b32 v11, 3, v0'); a('v_lshl_add_u32 v5, v11, 3, v5'); a('v_add_u32 v5, 8192, v5')
    a('s_lshl_b32 s40, s39, 11'); a('v_add_u32 v6, s40, v1')
    if TK:
        ticket(a, 'k5', 4, 3, K5_LDS - 16, wave_s=35)
        a('s_lshr_b32 s36, s3, 5'); a('s_and_b32 s37, s3, 31')
    else:
        a('s_and_b32 s36, s2, 7'); a('s_lshr_b32 s37, s2, 3')
    a('s_and_b32 s38, s36, 3')
    a('s_lshr_b32 s36, s36, 2'); a('s_lshl_b32 s36, s36, 3'); a('s_lshr_b32 s43, s37, 2'); a('s_add_u32 s36, s36, s43')
    a('s_and_b32 s37, s37, 3')
    a(f's_mul_i32 s41, s38, {36*131072}'); a('s_lshl_b32 s42, s36, 13'); a('s_add_u32 s41, s41, s42'); a('s_add_u32 s41, s41, s40')
    a(f's_mul_i32 s42, s38, {36*36864}'); a('s_mul_i32 s43, s37, 288'); a('s_add_u32 s42, s42, s43')
    a('s_mul_i32 s43, s39, 2304')
    a('s_mov_b32 s44, -1'); a('s_mov_b32 s45, 0xffff')
    a('s_waitcnt lgkmcnt(0)')
    make_srd(a, 4, 4608 * 1152)
    copy_srd(a, 16, 12, SZ_HH, WS_HH); copy_srd(a, 20, 12, SZ_PART, WS_PART)
    def dma_list(k):
        so = (k % NS5) * ST5; L = []
        L.append(f's_add_u32 m0, s40, {so}')
        L.append(f's_add_u32 s46, s41, {k*131072}')
        L.append(lambda: vm.issue(f'D{k}', 'buffer_load_dwordx4 v1, s[16:19], s46 offen lds'))
        L.append(lambda: vm.issue(f'D{k}', 'buffer_load_dwordx4 v1, s[16:19], s46 offen offset:1024 lds'))
        L.append(f's_add_u32 s46, s42, {k*36864}')
        def masked():
            a('s_mov_b64 exec, s[44:45]')
            for q in range(3):
                a(f's_add_u32 m0, s43, {so + 8192 + q*768}')
                vm.issue(f'D{k}', f'buffer_load_dwordx4 v{2+q}, s[4:7], s46 offen lds')
            a('s_mov_b64 exec, -1')
        L.append(masked)
        return L
    def dma(k):
        for f in dma_list(k): f() if callable(f) else a(f)
    def run(L):
        for f in L: f() if callable(f) else a(f)
    if K5L: a('s_cmp_ge_u32 s35, 4'); a.branch('s_cbranch_scc1 K5_LOAD')
    else:
        for k in range(8): dma(k)
        vm.wait('D0')
    ACC = 16; WF = 88; HF = 160
    def read_list(k):
        so = (k % NS5) * ST5; b = k % 2; L = []
        va = 7 + 2 * b; vb = 8 + 2 * b
        L.append(f'v_add_u32 v{va}, {so}, v5'); L.append(f'v_add_u32 v{vb}, {so}, v6')
        h = HF + 8 * b
        L.append(f'ds_read_b128 v[{h}:{h+3}], v{vb}'); L.append(f'ds_read_b128 v[{h+4}:{h+7}], v{vb} offset:1024')
        for dt in range(9):
            wv = WF + 36 * b + 4 * dt
            L.append(f'ds_read_b64_tr_b16 v[{wv}:{wv+1}], v{va} offset:{dt*32}')
            L.append(f'ds_read_b64_tr_b16 v[{wv+2}:{wv+3}], v{va} offset:{dt*32+2304}')
        return L
    a('s_barrier')
    stamp(a, 1, 'k5')
    run(read_list(0))
    for k in range(36):
        b = k % 2
        if K5L or k + 1 >= 36: a('s_waitcnt lgkmcnt(0)')
        else: vm.wait(f'D{k+1}', ' lgkmcnt(0)')
        if k + 1 < 36: a('s_barrier')
        fill = read_list(k + 1) if k + 1 < 36 else []
        mf = []
        for dt in range(9):
            for tt in range(2):
                acc = ACC + 4 * (9 * tt + dt); wv = WF + 36 * b + 4 * dt; h = HF + 8 * b + 4 * tt
                c = '0' if k == 0 else f'v[{acc}:{acc+3}]'
                mf.append([f'v_mfma_f32_16x16x32_bf16 v[{acc}:{acc+3}], v[{wv}:{wv+3}], v[{h}:{h+3}], {c}'])
        interleave(a, mf[:14], fill)
        interleave(a, mf[14:], dma_list(k + 8) if (not K5L and k + 8 < 36) else [])
        if k in (11, 23): stamp(a, 2 if k == 11 else 3, 'k5')
    stamp(a, 4, 'k5')
    a('s_lshl_b32 s41, s38, 6'); a('s_lshl_b32 s42, s36, 2'); a('s_add_u32 s41, s41, s42'); a('s_add_u32 s41, s41, s37')
    a('s_lshl_b32 s41, s41, 2'); a('s_add_u32 s41, s41, s39'); a(f's_mul_i32 s41, s41, {10*1024}')
    MX = 88
    for tt in range(2):
        A0 = ACC + 36 * tt; m = MX + 24 * tt
        for c in range(4):
            a(f'v_max3_f32 v{m+c}, |v{A0+9*c}|, |v{A0+9*c+1}|, |v{A0+9*c+2}|')
        for j in range(3, 9, 2):
            for c in range(4): a(f'v_max3_f32 v{m+c}, |v{A0+9*c+j}|, |v{A0+9*c+j+1}|, v{m+c}')
        a(f'v_max3_f32 v{m}, v{m}, v{m+1}, v{m+2}'); a(f'v_max_f32 v{m}, v{m}, v{m+3}')
        a(f'v_frexp_exp_i32_f32 v{m+1}, v{m}')
        a(f'v_sub_u32 v{m+2}, 15, v{m+1}')
        a(f'v_max_i32 v{m+2}, -100, v{m+2}'); a(f'v_min_i32 v{m+2}, 100, v{m+2}')
        a(f'v_ldexp_f32 v{m+3}, 1.0, v{m+2}')
        a(f'v_sub_u32 v{m+2}, 0, v{m+2}'); a(f'v_ldexp_f32 v{m+22}, 1.0, v{m+2}')
        for i in range(36): a(f'v_mul_f32 v{A0+i}, v{A0+i}, v{m+3}')
        for i in range(18): a(f'v_cvt_pk_f16_f32 v{m+4+i}, v{A0+2*i}, v{A0+2*i+1}')
        a(f'v_mov_b32 v{m+23}, 0')
        for p in range(5):
            i = 5 * tt + p
            if i % 4 == 0 and i: a(f's_add_u32 s41, s41, 4096')
            a(f'buffer_store_dwordx4 v[{m+4+4*p}:{m+7+4*p}], v1, s[20:23], s41 offen offset:{(i%4)*1024}' + os.environ.get('STMOD5', ' sc1'))
    stamp(a, 5, 'k5')
    if 'k5' in STAMPS:
        a('v_mov_b32 v0, v15'); dump_stamps(a, 6, 'k5', 101)
    a('s_endpgm')
    if K5L:
        a.label('K5_LOAD')
        for k in range(NS5): dma(k)
        vm.wait('D0'); a('s_barrier')
        for k in range(35):
            vm.wait(f'D{k+1}'); a('s_barrier')
            if k + NS5 < 36: dma(k + NS5)
    a.label('K5_END')
    a('s_endpgm')
    return kernel_desc('k5_kernel', 176)

def gen_k6(a):
    a.raw(kernel_header('k6_kernel'))
    dbgt(a, 5, 5, 'DBGT_6')
    a('s_cmp_ge_u32 s2, 256'); a.branch('s_cbranch_scc1 K6_END')
    load_ptr(a, 4, 'ws'); load_ptr(a, 8, 'out')
    a('v_readfirstlane_b32 s3, v0'); a('s_lshr_b32 s3, s3, 6')
    a('v_and_b32 v0, 63, v0')
    a('v_lshlrev_b32 v1, 4, v0')
    a('s_lshr_b32 s21, s3, 1'); a('s_and_b32 s22, s3, 1')
    a('s_lshl_b32 s20, s2, 1'); a('s_add_u32 s20, s20, s21'); a('s_mul_i32 s20, s20, 5120')
    a('s_and_b32 s23, s2, 3')
    a('s_lshr_b32 s24, s2, 2'); a('s_and_b32 s25, s24, 3'); a('s_lshr_b32 s24, s24, 2')
    a('s_lshl_b32 s26, s24, 7'); a('s_lshl_b32 s27, s23, 5'); a('s_add_u32 s26, s26, s27'); a('s_lshl_b32 s27, s21, 4'); a('s_add_u32 s26, s26, s27')
    a('s_mul_i32 s27, s25, 144'); a('s_lshl_b32 s28, s22, 6'); a('s_add_u32 s27, s27, s28')
    a('s_mul_i32 s29, s26, 1152'); a('s_lshl_b32 s28, s27, 1'); a('s_add_u32 s29, s29, s28')
    a('s_lshl_b32 s30, s27, 2'); a(f's_add_u32 s30, s30, {5*2304}')
    a('v_and_b32 v2, 15, v0'); a('v_mul_u32_u24 v2, 1152, v2'); a('v_lshrrev_b32 v3, 4, v0'); a('v_lshl_add_u32 v2, v3, 3, v2')
    a('v_lshlrev_b32 v3, 4, v3')
    a('s_lshl_b32 s31, s22, 11'); a('s_add_u32 s31, s31, s20')
    a('s_waitcnt lgkmcnt(0)')
    copy_srd(a, 12, 4, SZ_PART, WS_PART); copy_srd(a, 16, 4, SZ_X1, WS_X1); copy_srd(a, 32, 4, SZ_MOD, WS_MOD)
    make_srd(a, 8, 2048 * 1152)
    SS = 64 * 4 * 10240
    a('s_cmp_eq_u32 s22, 1'); a.branch('s_cbranch_scc1 K6_B')
    for half in range(2):
        nf = 4 + half
        if half: a.label('K6_B')
        P = 8
        for s_ in range(4):
            if s_: a(f's_add_u32 s31, s31, {SS}'); a(f's_add_u32 s20, s20, {SS}')
            b = P + 12 * s_
            a(f'buffer_load_dwordx4 v[{b}:{b+3}], v1, s[12:15], s31 offen')
            a(f'buffer_load_dwordx4 v[{b+4}:{b+7}], v1, s[12:15], s31 offen offset:1024')
            if half: a(f'buffer_load_dwordx4 v[{b+8}:{b+11}], v1, s[12:15], s31 offen offset:2048')
            else:
                a(f's_add_u32 s36, s20, 4096')
                a(f'buffer_load_dword v{b+10}, v1, s[12:15], s36 offen offset:8')
        X = 56; G = 68; R = 88; T = 108
        for j in range(nf): a(f'buffer_load_dwordx2 v[{X+2*j}:{X+2*j+1}], v2, s[16:19], s29 offen offset:{j*32}')
        for j in range(nf): a(f'buffer_load_dwordx4 v[{G+4*j}:{G+4*j+3}], v3, s[32:35], s30 offen offset:{j*64}')
        n = 4 * nf
        for s_ in range(4):
            a(f's_waitcnt vmcnt({2*nf + 3*(3-s_)})')
            b = P + 12 * s_
            for i in range(n):
                src = b + i // 2
                sel = f'op_sel:[{i%2},0,0] op_sel_hi:[1,0,0]'
                if s_ == 0: a(f'v_fma_mix_f32 v{R+i}, v{src}, v{b+10}, 0 {sel}')
                else: a(f'v_fma_mix_f32 v{R+i}, v{src}, v{b+10}, v{R+i} {sel}')
        for i in range(n // 2): a(f'v_cvt_pk_bf16_f32 v{T+i}, v{R+2*i}, v{R+2*i+1}')
        for i in range(n // 2): unpack_lo(a, R + 2 * i, T + i); unpack_hi(a, R + 2 * i + 1, T + i)
        a('s_waitcnt vmcnt(0)')
        for i in range(n): a(f'v_mul_f32 v{R+i}, v{R+i}, v{G+i}')
        for i in range(n // 2): a(f'v_cvt_pk_bf16_f32 v{T+i}, v{R+2*i}, v{R+2*i+1}')
        for i in range(n // 2): unpack_lo(a, R + 2 * i, T + i); unpack_hi(a, R + 2 * i + 1, T + i)
        for i in range(n // 2): unpack_lo(a, P + 2 * i, X + i); unpack_hi(a, P + 2 * i + 1, X + i)
        for i in range(n): a(f'v_add_f32 v{R+i}, v{R+i}, v{P+i}')
        for i in range(n // 2): a(f'v_cvt_pk_bf16_f32 v{T+i}, v{R+2*i}, v{R+2*i+1}')
        for j in range(nf): a(f'buffer_store_dwordx2 v[{T+2*j}:{T+2*j+1}], v2, s[8:11], s29 offen offset:{j*32}')
        if half == 0:
            a('s_waitcnt vmcnt(0)'); dbgt(a, 5, 6, 'DBGT_6E'); a('s_endpgm')
    a.label('K6_END')
    a('s_endpgm')
    return kernel_desc('k6_kernel', 120)
```

```python
from gen_common import *

def ln_core(a, nch, xp, xf, tmp, nw, v_redw, v_redr, red_off, out_xn, hooks=None):
    n = 8 * nch
    for i in range(4 * nch):
        unpack_lo(a, xf + 2 * i, xp + i); unpack_hi(a, xf + 2 * i + 1, xp + i)
    s = tmp; t1 = tmp + 1
    for k in range(4): a(f'v_add_f32 v{tmp+2+k}, v{xf+k}, v{xf+4+k}')
    for i in range(8, n):
        a(f'v_add_f32 v{tmp+2+(i%4)}, v{tmp+2+(i%4)}, v{xf+i}')
    a(f'v_add_f32 v{tmp+2}, v{tmp+2}, v{tmp+3}')
    a(f'v_add_f32 v{tmp+4}, v{tmp+4}, v{tmp+5}')
    a(f'v_add_f32 v{s}, v{tmp+2}, v{tmp+4}')
    red_l8(a, s, t1)
    a(f'ds_write_b32 v{v_redw}, v{s} offset:{red_off}')
    a('s_waitcnt lgkmcnt(0)')
    if hooks: hooks[0]()
    a('s_barrier')
    if hooks: hooks[1]()
    def gather(off):
        for w in range(nw): a(f'ds_read_b32 v{tmp+2+w}, v{v_redr} offset:{off + w*32}')
        a('s_waitcnt lgkmcnt(0)')
        for w in range(1, nw): a(f'v_add_f32 v{tmp+2}, v{tmp+2}, v{tmp+2+w}')
    gather(red_off)
    mean = tmp
    a(f'v_mul_f32 v{mean}, {f32bits(1.0/576)}, v{tmp+2}')
    acc = [tmp + 2 + k for k in range(4)]
    d = tmp + 6
    for i in range(n):
        a(f'v_sub_f32 v{d + (i%4)}, v{xf+i}, v{mean}')
        if i < 4: a(f'v_mul_f32 v{acc[i]}, v{d+i}, v{d+i}')
        else: a(f'v_fmac_f32 v{acc[i%4]}, v{d+(i%4)}, v{d+(i%4)}')
    a(f'v_add_f32 v{acc[0]}, v{acc[0]}, v{acc[1]}')
    a(f'v_add_f32 v{acc[2]}, v{acc[2]}, v{acc[3]}')
    a(f'v_add_f32 v{t1}, v{acc[0]}, v{acc[2]}')
    red_l8(a, t1, tmp + 6)
    off2 = red_off + nw * 32
    a(f'ds_write_b32 v{v_redw}, v{t1} offset:{off2}')
    round_bf16_1(a, mean, mean)
    a('s_waitcnt lgkmcnt(0)')
    if hooks: hooks[2]()
    a('s_barrier')
    if hooks: hooks[3]()
    gather(off2)
    r = tmp + 1
    a(f'v_mul_f32 v{r}, {f32bits(1.0/576)}, v{tmp+2}')
    round_bf16_1(a, r, r)
    a(f'v_add_f32 v{r}, {f32bits(1e-5)}, v{r}')
    round_bf16_1(a, r, r)
    a(f'v_sqrt_f32 v{r}, v{r}')
    round_bf16_1(a, r, r)
    a(f'v_rcp_f32 v{r}, v{r}')
    for i in range(n): a(f'v_sub_f32 v{xf+i}, v{xf+i}, v{mean}')
    for i in range(4 * nch): a(f'v_cvt_pk_bf16_f32 v{out_xn+i}, v{xf+2*i}, v{xf+2*i+1}')
    for i in range(4 * nch):
        unpack_lo(a, xf + 2 * i, out_xn + i); unpack_hi(a, xf + 2 * i + 1, out_xn + i)
    for i in range(n): a(f'v_mul_f32 v{xf+i}, v{xf+i}, v{r}')
    for i in range(4 * nch): a(f'v_cvt_pk_bf16_f32 v{out_xn+i}, v{xf+2*i}, v{xf+2*i+1}')

N_MOD = 54; N_LN1 = 256; N_KG = 576
import os
N_PF = int(os.environ.get('NPF', '0'))
K1_GRID = N_MOD + N_LN1 + N_KG + N_PF
K1_LDS = 36864

def gen_k1(a):
    a.raw(kernel_header('k1_kernel'))
    dbgt(a, 0, 0, 'DBGT_1')
    a(f's_cmp_lt_u32 s2, {N_MOD}'); a.branch('s_cbranch_scc1 K1_MOD')
    a(f's_cmp_lt_u32 s2, {N_MOD+N_LN1}'); a.branch('s_cbranch_scc1 K1_LN')
    a(f's_cmp_lt_u32 s2, {N_MOD+N_LN1+N_KG}'); a.branch('s_cbranch_scc1 K1_KG')
    if N_PF:
        a(f's_cmp_ge_u32 s2, {K1_GRID}'); a.branch('s_cbranch_scc1 K1_END')
        a(f's_sub_u32 s3, s2, {N_MOD+N_LN1+N_KG}')
        a('s_mul_i32 s8, s3, 911'); a('s_lshr_b32 s8, s8, 16')
        a('s_mul_i32 s9, s8, 72'); a('s_sub_u32 s9, s3, s9')
        a('s_lshl_b32 s8, s8, 3'); a(f's_add_u32 s8, s8, {KA["w1"]}')
        a('s_load_dwordx2 s[4:5], s[0:1], s8')
        a('s_mul_i32 s9, s9, 73728')
        a('v_lshlrev_b32 v1, 4, v0')
        a('s_waitcnt lgkmcnt(0)')
        make_srd(a, 4, 576 * 9216)
        for i in range(18):
            a(f's_add_u32 s10, s9, {i*4096}')
            a(f'buffer_load_dwordx4 v[{8+4*i}:{11+4*i}], v1, s[4:7], s10 offen')
        a('s_waitcnt vmcnt(0)')
    a('s_endpgm')
    a.label('K1_MOD')
    load_ptr(a, 4, 'wmod'); load_ptr(a, 8, 'c'); load_ptr(a, 12, 'ws')
    a('v_and_b32 v1, 7, v0')
    a('v_lshrrev_b32 v2, 3, v0')
    a('v_mul_u32_u24 v3, 36, v2')
    a(f'v_mul_u32_u24 v4, {18*6912}, v2')
    a('v_lshl_add_u32 v4, v1, 4, v4')
    a('s_lshl_b32 s3, s2, 7')
    a('v_add_u32 v4, s3, v4')
    a('s_waitcnt lgkmcnt(0)')
    copy_srd(a, 40, 12, SZ_CNT, WS_CNT)
    make_srd(a, 4, 576 * 6912); make_srd(a, 8, 1152); make_srd(a, 12, SZ_MOD, WS_MOD)
    for i in range(4): a(f'v_mov_b32 v{112+i}, 0')
    a('v_lshlrev_b32 v116, 4, v0'); a('s_lshl_b32 s44, s2, 12'); a('v_add_u32 v116, s44, v116')
    a('buffer_store_dwordx4 v[112:115], v116, s[40:43], 0 offen')
    C = 8; W = 20
    a(f'buffer_load_dwordx4 v[{C}:{C+3}], v3, s[8:11], 0 offen')
    a(f'buffer_load_dwordx4 v[{C+4}:{C+7}], v3, s[8:11], 0 offen offset:16')
    a(f'buffer_load_dword v{C+8}, v3, s[8:11], 0 offen offset:32')
    for i in range(18):
        a(f's_mov_b32 s{16+i}, {i*6912}')
        a(f'buffer_load_dwordx4 v[{W+4*i}:{W+4*i+3}], v4, s[4:7], s{16+i} offen')
    S = 92
    a('s_waitcnt vmcnt(18)')
    for i in range(9):
        unpack_lo(a, S + 2 * i, C + i); unpack_hi(a, S + 2 * i + 1, C + i)
    T = 110
    for i in range(18): a(f'v_mul_f32 v{T+i}, {f32bits(-LOG2E)}, v{S+i}')
    for i in range(18): a(f'v_exp_f32 v{T+i}, v{T+i}')
    for i in range(18): a(f'v_add_f32 v{T+i}, 1.0, v{T+i}')
    for i in range(18): a(f'v_rcp_f32 v{T+i}, v{T+i}')
    for i in range(18): a(f'v_mul_f32 v{S+i}, v{S+i}, v{T+i}')
    for i in range(9): a(f'v_cvt_pk_bf16_f32 v{T+i}, v{S+2*i}, v{S+2*i+1}')
    for i in range(9):
        unpack_lo(a, S + 2 * i, T + i); unpack_hi(a, S + 2 * i + 1, T + i)
    ACC = 110; U = 118
    for i in range(18):
        a(f's_waitcnt vmcnt({17-i})')
        for j in range(4):
            unpack_lo(a, U + 2 * j, W + 4 * i + j); unpack_hi(a, U + 2 * j + 1, W + 4 * i + j)
        for j in range(8):
            if i == 0: a(f'v_mul_f32 v{ACC+j}, v{S+i}, v{U+j}')
            else: a(f'v_fmac_f32 v{ACC+j}, v{S+i}, v{U+j}')
    red_l8_multi(a, [ACC + j for j in range(8)], [U + j for j in range(8)])
    a('v_lshrrev_b32 v5, 6, v0')
    a('v_lshlrev_b32 v5, 8, v5')
    a('v_lshl_add_u32 v5, v1, 5, v5')
    a(f'ds_write_b128 v5, v[{ACC}:{ACC+3}]')
    a(f'ds_write_b128 v5, v[{ACC+4}:{ACC+7}] offset:16')
    a('s_waitcnt lgkmcnt(0)'); a('s_barrier')
    a('v_cmp_gt_u32 vcc, 64, v0')
    a('s_and_saveexec_b64 s[40:41], vcc')
    a.branch('s_cbranch_execz K1_END')
    a('v_lshlrev_b32 v6, 2, v0')
    for w in range(4): a(f'ds_read_b32 v{8+w}, v6 offset:{w*256}')
    a('s_waitcnt lgkmcnt(0)')
    a('v_add_f32 v8, v8, v9'); a('v_add_f32 v10, v10, v11'); a('v_add_f32 v8, v8, v10')
    round_bf16_1(a, 8, 8)
    a('s_lshl_b32 s3, s2, 8')
    a('v_add_u32 v6, s3, v6')
    a('buffer_store_dword v8, v6, s[12:15], 0 offen')
    a('s_endpgm')
    a.label('K1_LN')
    a('v_readfirstlane_b32 s4, v0')
    a('s_cmp_ge_u32 s4, 192'); a.branch('s_cbranch_scc1 K1_END')
    load_ptr(a, 4, 'u'); load_ptr(a, 8, 'ws')
    a(f's_sub_u32 s3, s2, {N_MOD}')
    a('v_and_b32 v1, 7, v0')
    a('v_lshrrev_b32 v2, 3, v0')
    a('v_mul_u32_u24 v3, 1152, v1')
    a('v_lshl_add_u32 v3, v2, 4, v3')
    a('s_mul_i32 s12, s3, 9216')
    a('s_waitcnt lgkmcnt(0)')
    make_srd(a, 4, 2048 * 1152); make_srd(a, 8, SZ_XT, WS_XT)
    XP = 8; XF = 20; TMP = 44; XN = 60
    for i in range(3):
        a(f'buffer_load_dwordx4 v[{XP+4*i}:{XP+4*i+3}], v3, s[4:7], s12 offen offset:{i*24*16}')
    RED = 72 * 288
    a('v_lshrrev_b32 v4, 6, v0')
    a('v_lshlrev_b32 v4, 5, v4')
    a('v_lshl_add_u32 v4, v1, 2, v4')
    a('v_lshlrev_b32 v5, 2, v1')
    a('v_mul_u32_u24 v6, 288, v2')
    a('v_lshl_add_u32 v6, v1, 2, v6')
    a('s_mov_b32 s14, 0x05040100'); a('s_mov_b32 s15, 0x07060302')
    a('s_waitcnt vmcnt(0)')
    ln_core(a, 3, XP, XF, TMP, 3, 4, 5, RED, XN)
    for i in range(3):
        for j in range(4):
            r = 4 * i + j
            a(f'v_perm_b32 v{XF+2*r}, v{XP+r}, v{XN+r}, s14')
            a(f'v_perm_b32 v{XF+2*r+1}, v{XP+r}, v{XN+r}, s15')
        for e in range(8):
            a(f'ds_write_b32 v6, v{XF+8*i+e} offset:{i*24*288 + e*32}')
    a('s_waitcnt lgkmcnt(0)'); a('s_barrier')
    a('v_lshrrev_b32 v1, 4, v0')
    a('v_mul_u32_u24 v1, 288, v1')
    a('v_and_b32 v2, 15, v0')
    a('v_lshl_add_u32 v1, v2, 4, v1')
    a('v_lshlrev_b32 v2, 4, v0')
    a(f's_mul_i32 s12, s3, {XT_STRIDE}')
    for j in range(6): a(f'ds_read_b128 v[{XF+4*j}:{XF+4*j+3}], v1 offset:{j*12*288}')
    for j in range(6):
        a(f's_waitcnt lgkmcnt({5-j})')
        a(f's_add_u32 s13, s12, {j*3072}')
        a(f'buffer_store_dwordx4 v[{XF+4*j}:{XF+4*j+3}], v2, s[8:11], s13 offen')
    a('s_endpgm')
    a.label('K1_KG')
    names = ['A_re', 'A_im', 'B_re', 'B_im', 'C_re', 'C_im']
    for i, nm in enumerate(names): load_ptr(a, 4 + 4 * i, nm)
    load_ptr(a, 28, 'log_dt'); load_ptr(a, 32, 'ws')
    a(f's_sub_u32 s3, s2, {N_MOD+N_LN1}')
    a('s_and_b32 s36, s3, 7'); a('s_mul_i32 s36, s36, 72'); a('s_lshr_b32 s37, s3, 3'); a('s_add_u32 s3, s36, s37')
    a('v_and_b32 v1, 127, v0')
    a('v_lshlrev_b32 v2, 1, v1')
    a('s_lshl_b32 s36, s3, 8')
    a('s_and_b32 s37, s3, -2'); a('s_lshl_b32 s37, s37, 1')
    a('v_readfirstlane_b32 s38, v0')
    a('s_waitcnt lgkmcnt(0)')
    a('s_load_dword s39, s[28:29], s37')
    for i in range(6): make_srd(a, 4 + 4 * i, 576 * 256)
    make_srd(a, 32, SZ_RK, WS_RK)
    for i in range(6): a(f'buffer_load_ushort v{8+i}, v2, s[{4+4*i}:{7+4*i}], s36 offen')
    KC = 33792
    GA = 100
    a('v_lshlrev_b32 v3, 3, v0')
    a('v_sub_u32 v3, 2047, v3')
    for e in range(9):
        a(f'v_subrev_u32 v{GA+e}, {e}, v3')
    for e in range(10): a(f'v_cvt_f32_u32 v{110+e}, v{GA+min(e,8)}')
    for e in range(5): a(f'v_cvt_pk_bf16_f32 v{120+e}, v{110+2*e}, v{110+2*e+1}')
    for e in range(4):
        a(f'v_and_b32 v{110+2*e}, 0xffff, v{120+e}')
        a(f'v_lshrrev_b32 v{110+2*e+1}, 16, v{120+e}')
    a('v_and_b32 v118, 0xffff, v124')
    a('v_cmp_gt_u32 vcc, 240, v0')
    for e in range(9): a(f'v_subrev_u32 v{110+e}, 17024, v{110+e}')
    for e in range(8): a(f'v_cndmask_b32 v{GA+e}, v{GA+e}, v{110+e}, vcc')
    a('v_cmp_gt_u32 vcc, 239, v0')
    a(f'v_cndmask_b32 v{GA+8}, v{GA+8}, v118, vcc')
    a(f'v_max_i32 v{GA+8}, 0, v{GA+8}')
    for e in range(9): a(f'v_lshlrev_b32 v{GA+e}, 1, v{GA+e}')
    a('s_lshr_b32 s40, s38, 6')
    a('s_and_b32 s41, s40, 1')
    a('s_lshr_b32 s42, s40, 1')
    a('v_and_b32 v4, 15, v0')
    a('s_lshl_b32 s43, s41, 4')
    a('v_add_u32 v4, s43, v4')
    a('v_bfe_u32 v5, v0, 4, 2')
    KW = 124
    a('s_cmp_eq_u32 s42, 0'); a.branch('s_cbranch_scc0 K1_KG_RT1')
    a('v_lshlrev_b32 v124, 3, v4')
    a('v_lshl_add_u32 v124, v5, 2, v124')
    a('v_lshlrev_b32 v6, 2, v4'); a('v_add_u32 v6, 256, v6')
    a('v_cmp_eq_u32 vcc, 2, v5'); a('v_cndmask_b32 v124, v124, v6, vcc')
    a('v_lshlrev_b32 v6, 1, v4'); a('v_add_u32 v6, 384, v6')
    a('v_cmp_eq_u32 vcc, 3, v5'); a('v_cndmask_b32 v124, v124, v6, vcc')
    a('v_mov_b32 v125, 1')
    a('v_mov_b32 v6, 64'); a('v_cndmask_b32 v126, 2, v6, vcc')
    a.branch('s_branch K1_KG_A')
    a.label('K1_KG_RT1')
    a('v_add_u32 v124, 700, v4')
    a('v_add_u32 v6, 640, v4'); a('v_cmp_eq_u32 vcc, 1, v5'); a('v_cndmask_b32 v124, v124, v6, vcc')
    a('v_add_u32 v6, 512, v4'); a('v_cmp_eq_u32 vcc, 0, v5'); a('v_cndmask_b32 v124, v124, v6, vcc')
    a('v_mov_b32 v6, 32'); a('v_mov_b32 v7, 64'); a('v_cndmask_b32 v125, v7, v6, vcc')
    a('v_lshlrev_b32 v126, 1, v125')
    a.label('K1_KG_A')
    a('v_add_u32 v127, v126, v125')
    a('v_add_u32 v125, v124, v125'); a('v_add_u32 v126, v124, v126'); a('v_add_u32 v127, v124, v127')
    for i in range(4): a(f'v_lshlrev_b32 v{124+i}, 1, v{124+i}')
    a('s_waitcnt lgkmcnt(0)')
    a('s_and_b32 s43, s3, 1'); a('s_lshl_b32 s43, s43, 4'); a('s_lshr_b32 s39, s39, s43'); a('s_lshl_b32 s39, s39, 16')
    a(f'v_mov_b32 v14, s39')
    a(f'v_mul_f32 v14, {f32bits(LOG2E)}, v14')
    a('v_exp_f32 v14, v14')
    round_bf16_1(a, 14, 14)
    a('s_waitcnt vmcnt(0)')
    for i in range(6): a(f'v_lshlrev_b32 v{8+i}, 16, v{8+i}')
    a('v_mul_f32 v8, v8, v14'); a('v_mul_f32 v9, v9, v14')
    a('v_mul_f32 v10, v10, v14'); a('v_mul_f32 v11, v11, v14')
    a(f'v_mul_f32 v8, {f32bits(LOG2E)}, v8')
    a(f'v_mul_f32 v9, {f32bits(0.15915494309189535)}, v9')
    cmul(a, 16, 12, 10)
    a(f'v_mul_f32 v16, {float(2**KSCALE_LOG2)}, v16'); a(f'v_mul_f32 v17, {float(2**KSCALE_LOG2)}, v17')
    def D(dst, al):
        a(f'v_mul_f32 v4, {float(al)}, v8'); a(f'v_mul_f32 v5, {float(al)}, v9')
        a('v_exp_f32 v4, v4'); a('v_fract_f32 v5, v5')
        a('v_cos_f32 v6, v5'); a('v_sin_f32 v7, v5')
        a(f'v_mul_f32 v{dst}, v4, v6'); a(f'v_mul_f32 v{dst+1}, v4, v7')
    UB = 0; VB = 16896
    a('v_lshlrev_b32 v3, 2, v1')
    def putU(r, src):
        a(f'v_cvt_pk_f16_f32 v2, v{src}, v{src+1}')
        a(f'ds_write_b32 v3, v2 offset:{UB + r*528}')
    def putV(j, src):
        a(f'v_cvt_pk_f16_f32 v2, v{src}, -v{src+1}')
        a(f'ds_write_b32 v3, v2 offset:{VB + j*528}')
    E8, EX, EY, P0, P1 = 18, 20, 22, 24, 26
    a('s_cmp_ge_u32 s38, 128'); a.branch('s_cbranch_scc1 K1_KG_H1')
    D(E8, 8); D(EX, 1); D(EY, 256)
    a(f'v_mov_b32 v{P0}, 1.0'); a(f'v_mov_b32 v{P0+1}, 0')
    putV(0, P0); putV(1, E8)
    cur, nxt = E8, P0
    for j in range(2, 16):
        cmul(a, nxt, cur, E8); putV(j, nxt)
        cur = nxt; nxt = P1 if nxt == P0 else P0
    cur = 16
    for r in range(8):
        if r > 0:
            nxt = P0 if cur != P0 else P1
            cmul(a, nxt, cur, EX); cur = nxt
        putU(r, cur)
        if r % 2 == 0:
            cmul(a, 28, cur, EY); putU(8 + r // 2, 28)
    a.branch('s_branch K1_KG_B')
    a.label('K1_KG_H1')
    D(E8, 8); D(P0, 128); D(EX, 4)
    cmul(a, EY, P0, P0)
    cmul(a, 28, EY, EY)
    cmul(a, 30, 28, 28)
    putV(16, P0)
    cur, nxt = P0, P1
    for j in range(17, 32):
        cmul(a, nxt, cur, E8); putV(j, nxt)
        cur, nxt = nxt, cur
    cmul(a, P0, 16, 28); putU(12, P0)
    cmul(a, P1, P0, EX); putU(13, P1)
    cmul(a, P1, P0, EY); putU(14, P1)
    cmul(a, P0, P1, EX); putU(15, P0)
    cmul(a, P0, 16, 30); putU(16, P0)
    cmul(a, P1, P0, EY); putU(17, P1)
    cmul(a, P0, P1, EY); putU(18, P0)
    cmul(a, P1, P0, EY); putU(19, P1)
    cmul(a, P0, P1, EY); putU(20, P0)
    a.label('K1_KG_B')
    a('v_and_b32 v4, 15, v0'); a('v_bfe_u32 v5, v0, 4, 2')
    a('s_lshl_b32 s43, s42, 4'); a('v_add_u32 v6, s43, v4'); a('v_mul_u32_u24 v6, 528, v6'); a('v_lshl_add_u32 v6, v5, 4, v6')
    a('s_lshl_b32 s43, s41, 4'); a('v_add_u32 v7, s43, v4'); a('v_mul_u32_u24 v7, 528, v7'); a('v_lshl_add_u32 v7, v5, 4, v7')
    a('s_waitcnt lgkmcnt(0)'); a('s_barrier')
    FA = 32; FB = 64
    for s in range(8):
        a(f'ds_read_b128 v[{FA+4*s}:{FA+4*s+3}], v6 offset:{UB + s*64}')
        a(f'ds_read_b128 v[{FB+4*s}:{FB+4*s+3}], v7 offset:{VB + s*64}')
    for s in range(8):
        a(f's_waitcnt lgkmcnt({14-2*s})')
        a(f'v_mfma_f32_16x16x32_f16 v[8:11], v[{FA+4*s}:{FA+4*s+3}], v[{FB+4*s}:{FB+4*s+3}], ' + ('0' if s == 0 else 'v[8:11]'))
    a('v_cvt_pk_f16_f32 v12, v8, v9'); a('v_cvt_pk_f16_f32 v13, v10, v11')
    a(f'ds_write_b16 v124, v12 offset:{KC}'); a(f'ds_write_b16_d16_hi v125, v12 offset:{KC}')
    a(f'ds_write_b16 v126, v13 offset:{KC}'); a(f'ds_write_b16_d16_hi v127, v13 offset:{KC}')
    a('s_waitcnt lgkmcnt(0)'); a('s_barrier')
    for e in range(9):
        a(f'ds_read_u16 v{24+e}, v{GA+e} offset:{KC}')
    a('v_lshlrev_b32 v2, 4, v0')
    a(f's_mul_i32 s36, s3, {RK_STRIDE}')
    a('s_add_u32 s37, s36, 4096')
    a('v_cmp_gt_u32 vcc, 255, v0')
    a('s_waitcnt lgkmcnt(0)')
    a('v_cndmask_b32 v32, 0, v32, vcc')
    for e in range(4): a(f'v_lshl_or_b32 v{16+e}, v{24+2*e+1}, 16, v{24+2*e}')
    for e in range(4): a(f'v_lshl_or_b32 v{20+e}, v{24+2*e+2}, 16, v{24+2*e+1}')
    a('buffer_store_dwordx4 v[16:19], v2, s[32:35], s36 offen')
    a('buffer_store_dwordx4 v[20:23], v2, s[32:35], s37 offen')
    a.label('K1_END')
    a('s_endpgm')
    return kernel_desc('k1_kernel', 128)
```

```python
from gen_common import *
import os
from gen_k4 import VM, interleave, SLOT, K4_LDS
from gen_k1 import ln_core

def gen_k34(a):
    a.raw(kernel_header('k34_kernel'))

    vm = VM(a)
    a('s_cmp_ge_u32 s2, 256'); a.branch('s_cbranch_scc1 K4_END')
    if not TK:
        a('s_and_b32 s36, s2, 7'); a('s_lshl_b32 s36, s36, 5'); a('s_lshr_b32 s37, s2, 3'); a('s_add_u32 s3, s36, s37')
    stamp(a, 0, 'k4')
    if TK: ticket_begin(a)
    load_ptr(a, 4, 'w1'); load_ptr(a, 8, 'w3'); load_ptr(a, 12, 'ws')
    K4W2 = int(os.environ.get('K4W2', '1'))
    if K4W2: load_ptr(a, 24, 'w2')
    a('v_mov_b32 v15, v0')
    a('v_readfirstlane_b32 s39, v0'); a('s_lshr_b32 s39, s39, 6')
    a('v_and_b32 v0, 63, v0')
    a('v_lshrrev_b32 v11, 4, v0'); a('v_mul_u32_u24 v1, 9216, v11')
    a('v_bfe_u32 v12, v0, 2, 2'); a('v_xor_b32 v12, v12, v11'); a('v_lshl_add_u32 v1, v12, 6, v1')
    a('v_and_b32 v12, 3, v0'); a('v_lshl_add_u32 v1, v12, 4, v1')
    a('v_bfe_u32 v12, v0, 2, 2')
    a('v_lshrrev_b32 v13, 5, v0')
    a('v_lshl_add_u32 v13, v13, 3, v12'); a('v_lshlrev_b32 v2, 8, v13')
    a('v_xor_b32 v12, s39, v12'); a('v_lshl_add_u32 v2, v12, 6, v2')
    a('v_bfe_u32 v12, v0, 4, 1'); a('v_lshl_add_u32 v2, v12, 5, v2')
    a('v_and_b32 v12, 3, v0'); a('v_lshl_add_u32 v2, v12, 3, v2')
    a(f'v_add_u32 v4, {3*SLOT}, v2'); a(f'v_add_u32 v3, {2*SLOT}, v2'); a(f'v_add_u32 v2, {SLOT}, v2')
    a('v_lshlrev_b32 v5, 4, v0')
    for s in range(1, 4): a(f'v_add_u32 v{5+s}, {s*SLOT}, v5')
    a('v_bfe_u32 v12, v0, 4, 1'); a('v_lshlrev_b32 v10, 10, v12')
    a('v_lshrrev_b32 v12, 5, v0'); a('v_lshl_add_u32 v10, v12, 8, v10')
    a('v_and_b32 v12, 15, v0'); a('v_lshl_add_u32 v10, v12, 4, v10')
    a('s_mul_i32 s36, s3, 9363'); a('s_lshr_b32 s36, s36, 16')
    a('s_mul_i32 s37, s36, 7'); a('s_sub_u32 s37, s3, s37')
    a('s_mul_i32 s38, s37, 9'); a('s_cmp_gt_u32 s37, 0'); a('s_addc_u32 s38, s38, 0')
    a('s_lshl_b32 s55, s38, 2'); a('s_add_u32 s55, s55, s36')
    a('s_sub_u32 s56, s3, 216')
    a('s_cmp_ge_u32 s3, 252')
    a('s_cselect_b32 s55, s56, s55'); a('s_cselect_b32 s36, 0, s36'); a('s_cselect_b32 s37, 0, s37'); a('s_cselect_b32 s38, 0, s38')
    a('s_lshl_b32 s40, s36, 8')
    a(f's_mul_i32 s41, s39, {16*9216}'); a('s_add_u32 s40, s40, s41')
    a('s_lshl_b32 s42, s39, 12')
    a(f's_mul_i32 s43, s38, {SLOT}'); a('s_mul_i32 s44, s39, 9216'); a('s_add_u32 s43, s43, s44')
    a('s_lshl_b32 s45, s36, 2'); a('s_add_u32 s45, s45, s39'); a('s_lshl_b32 s45, s45, 7'); a('s_lshl_b32 s46, s38, 1'); a('s_add_u32 s45, s45, s46'); a('s_lshl_b32 s45, s45, 10')
    a('s_mov_b32 s47, 0xffff0000'); a(f's_mov_b32 s48, {f32bits(-LOG2E)}')
    a('s_waitcnt lgkmcnt(0)')
    make_srd(a, 4, 576 * 9216); make_srd(a, 8, 576 * 9216)
    copy_srd(a, 16, 12, SZ_XF, WS_XF); copy_srd(a, 20, 12, SZ_HH, WS_HH)
    if K4W2:
        make_srd(a, 24, 4608 * 1152)
        a('s_mul_i32 s53, s3, 21504'); a('s_lshl_b32 s54, s39, 10'); a('s_add_u32 s53, s53, s54')
        a('v_lshlrev_b32 v14, 4, v0'); a('v_add_u32 v14, s53, v14')
    def w_dma(st):
        slot = 1 + st % 3
        for mat in range(2):
            for q in range(4):
                a(f's_add_u32 m0, s42, {slot*SLOT + mat*16384 + q*1024}')
                a(f's_add_u32 s49, s40, {(64*st + 4*q)*9216}')
                vm.issue(f'W{st}', f'buffer_load_dwordx4 v1, s[{4+4*mat}:{7+4*mat}], s49 offen lds')
    def x_dma_list(i):
        slot = i % 4; L = []
        for q in range(3):
            L.append(f's_add_u32 m0, s44, {slot*SLOT + q*4096}')
            L.append(f's_add_u32 s49, s43, {i*SLOT + q*4096}')
            for r in range(4 if q < 2 else 1):
                L.append(lambda r=r: vm.issue(f'X{i}', f'buffer_load_dwordx4 v5, s[16:19], s49 offen offset:{r*1024} sc1 lds'))
        return L
    def run(L):
        for f in L: f() if callable(f) else a(f)
    XB = 16; WV = 40; ACC = 72; TMP = 136
    def wreg(k, mat):
        if k < 32: b = 8 * k + 4 * mat; return 'a', b
        b = WV + 8 * (k - 32) + 4 * mat; return 'v', b
    def xread(i, k):
        n = 36 * i + k; b = XB + 4 * (n % 6)
        return f'ds_read_b128 v[{b}:{b+3}], v{5 + i % 4} offset:{k*1024}'
    def mfma(i, k, mat):
        n = 36 * i + k; b = XB + 4 * (n % 6)
        t, wb = wreg(k, mat); acc = ACC + 32 * (i % 2) + 16 * mat
        c = '0' if k == 0 else f'v[{acc}:{acc+15}]'
        return f'v_mfma_f32_32x32x16_bf16 v[{acc}:{acc+15}], {t}[{wb}:{wb+3}], v[{b}:{b+3}], {c}'
    def epilogue_list(i):
        g = ACC + 32 * (i % 2); u = g + 16; L = []
        G = TMP; E = TMP + 8; U = TMP + 16; PK = TMP + 24;
        for p in range(2):
            P = TMP + 28 + 4 * p
            o = 8 * p
            for j in range(4): L.append(f'v_cvt_pk_bf16_f32 v{PK+j}, v{g+o+2*j}, v{g+o+2*j+1}')
            for j in range(4):
                L.append(f'v_lshlrev_b32 v{G+2*j}, 16, v{PK+j}'); L.append(f'v_and_b32 v{G+2*j+1}, s47, v{PK+j}')
            for j in range(8): L.append(f'v_mul_f32 v{E+j}, s48, v{G+j}')
            for j in range(8): L.append(f'v_exp_f32 v{E+j}, v{E+j}')
            for j in range(4): L.append(f'v_cvt_pk_bf16_f32 v{PK+j}, v{u+o+2*j}, v{u+o+2*j+1}')
            for j in range(8): L.append(f'v_add_f32 v{E+j}, 1.0, v{E+j}')
            for j in range(8): L.append(f'v_rcp_f32 v{E+j}, v{E+j}')
            for j in range(4):
                L.append(f'v_lshlrev_b32 v{U+2*j}, 16, v{PK+j}'); L.append(f'v_and_b32 v{U+2*j+1}, s47, v{PK+j}')
            for j in range(8): L.append(f'v_mul_f32 v{G+j}, v{G+j}, v{E+j}')
            for j in range(4): L.append(f'v_cvt_pk_bf16_f32 v{PK+j}, v{G+2*j}, v{G+2*j+1}')
            for j in range(4):
                L.append(f'v_lshlrev_b32 v{G+2*j}, 16, v{PK+j}'); L.append(f'v_and_b32 v{G+2*j+1}, s47, v{PK+j}')
            for j in range(8): L.append(f'v_mul_f32 v{G+j}, v{G+j}, v{U+j}')
            for j in range(4): L.append(f'v_cvt_pk_bf16_f32 v{P+j}, v{G+2*j}, v{G+2*j+1}')
            if p == 0: L.append(f's_add_u32 s50, s45, {i*2048}')
            L.append(lambda P=P, p=p: vm.issue(f'S{i}', f'buffer_store_dwordx4 v[{P}:{P+3}], v10, s[20:23], s50 offen offset:{p*512}' + os.environ.get('STMOD', ' sc1')))
        return L
    PF = os.environ.get('K4PF', '0')
    if PF != '0':
        a('s_lshl_b32 s51, s37, 8'); a('s_lshl_b32 s52, s39, 6'); a('s_add_u32 s51, s51, s52')
        a('v_add_u32 v11, s51, v0')
        a('v_lshrrev_b32 v12, 1, v11'); a('v_mul_u32_u24 v12, 9216, v12')
        a('v_and_b32 v11, 1, v11'); a('v_lshl_add_u32 v12, v11, 7, v12')
        a('s_lshl_b32 s51, s36, 8')
        vm.issue('PF', 'buffer_load_dword v13, v12, s[4:7], s51 offen')
        vm.issue('PF', 'buffer_load_dword v14, v12, s[8:11], s51 offen')
        if PF == '2':
            vm.issue('PF', 'buffer_load_dword v13, v12, s[4:7], s51 offen offset:64')
            vm.issue('PF', 'buffer_load_dword v14, v12, s[8:11], s51 offen offset:64')
    def w_reads(st):
        slot = 1 + st % 3
        for kk in range(4):
            k = 4 * st + kk
            for mat in range(2):
                t, wb = wreg(k, mat)
                off = mat * 16384 + kk * 4096
                a(f'ds_read_b64_tr_b16 {t}[{wb}:{wb+1}], v{1+slot} offset:{off}')
                a(f'ds_read_b64_tr_b16 {t}[{wb+2}:{wb+3}], v{1+slot} offset:{off+1024}')
    XL = 16; XP = 28; XFv = 72; LT = 96; XN = 112; CB = 124; SB = 148
    RED = 9216
    copy_srd(a, 28, 12, SZ_X1T, WS_X1T); copy_srd(a, 32, 12, SZ_MOD, WS_MOD); copy_srd(a, 64, 12, SZ_X1, WS_X1)
    copy_srd(a, 68, 12, 4096, WS_CNT + CNT_OFF['k4'])
    a('s_lshl_b32 s57, s55, 4')
    for i in range(3):
        a(f'v_add_u32 v{11+i}, {256*i}, v15'); a(f'v_mul_u32_u24 v{11+i}, {X1T_STRIDE}, v{11+i}')
    for i in range(3): vm.issue('XL', f'buffer_load_dwordx4 v[{XL+4*i}:{XL+4*i+3}], v{11+i}, s[28:31], s57 offen')
    w_dma(0); w_dma(1); w_dma(2)
    a('v_lshrrev_b32 v172, 4, v15'); a('v_lshlrev_b32 v172, 1, v172')
    a('v_bfe_u32 v11, v15, 1, 1'); a('v_add_u32 v172, v172, v11'); a('v_lshlrev_b32 v172, 3, v172')
    a('v_bfe_u32 v11, v15, 2, 2'); a('v_add_u32 v172, v172, v11'); a('v_lshlrev_b32 v172, 4, v172')
    a('v_and_b32 v11, 1, v15'); a('v_lshl_add_u32 v172, v11, 3, v172')
    a('v_and_b32 v11, 7, v15'); a('v_lshrrev_b32 v12, 3, v15')
    a('v_mul_u32_u24 v173, 1152, v11'); a('v_lshl_add_u32 v173, v12, 4, v173')
    a('v_lshrrev_b32 v174, 1, v12'); a('v_lshlrev_b32 v174, 10, v174')
    a('v_and_b32 v13, 1, v12'); a('v_lshl_add_u32 v174, v13, 9, v174'); a('v_lshl_add_u32 v174, v11, 4, v174')
    a('v_lshlrev_b32 v175, 5, v12')
    a('v_lshlrev_b32 v13, 2, v11')
    a('s_lshl_b32 s58, s39, 5'); a('v_add_u32 v12, s58, v13')
    a('v_lshlrev_b32 v11, 4, v15')
    a('s_mul_i32 s58, s55, 9216')
    a('s_lshr_b32 s59, s55, 2'); a(f's_mul_i32 s59, s59, {36*1024}'); a('s_and_b32 s60, s55, 3'); a('s_lshl_b32 s60, s60, 7'); a('s_add_u32 s59, s59, s60')
    a(f's_mov_b32 s61, {4*2304}'); a(f's_mov_b32 s62, {3*2304}')
    vm.wait('XL')
    a(f'ds_write_b128 v11, v[{XL}:{XL+3}]'); a(f'ds_write_b128 v11, v[{XL+4}:{XL+7}] offset:4096')
    a('s_cmp_lg_u32 s39, 0'); a.branch('s_cbranch_scc1 K34_NW3')
    a(f'ds_write_b128 v11, v[{XL+8}:{XL+11}] offset:8192')
    a.label('K34_NW3')
    vm.wait('W0', ' lgkmcnt(0)'); a('s_barrier')
    stamp(a, 1, 'k4')
    base_ops = list(vm.ops)
    a('s_cmp_eq_u32 s39, 3'); a.branch('s_cbranch_scc1 K34_AUX')
    for i in range(3):
        vm.issue('M', f'buffer_load_dwordx4 v[{CB+8*i}:{CB+8*i+3}], v175, s[32:35], s61 offen offset:{768*i}')
        vm.issue('M', f'buffer_load_dwordx4 v[{CB+8*i+4}:{CB+8*i+7}], v175, s[32:35], s61 offen offset:{768*i+16}')
        vm.issue('M', f'buffer_load_dwordx4 v[{SB+8*i}:{SB+8*i+3}], v175, s[32:35], s62 offen offset:{768*i}')
        vm.issue('M', f'buffer_load_dwordx4 v[{SB+8*i+4}:{SB+8*i+7}], v175, s[32:35], s62 offen offset:{768*i+16}')
    for i in range(3):
        a(f'ds_read_b64_tr_b16 v[{XP+4*i}:{XP+4*i+1}], v172 offset:{3072*i}')
        a(f'ds_read_b64_tr_b16 v[{XP+4*i+2}:{XP+4*i+3}], v172 offset:{3072*i+64}')
    w_reads(0)
    a('s_waitcnt lgkmcnt(15)')
    for i in range(3): vm.issue('X1S', f'buffer_store_dwordx4 v[{XP+4*i}:{XP+4*i+3}], v173, s[64:67], s58 offen offset:{384*i}')
    def pre2(): vm.wait('W1')
    def post2(): w_dma(3); w_reads(1)
    def pre3(): vm.wait('W2')
    def post3(): w_dma(4); w_reads(2)
    ln_core(a, 3, XP, XFv, LT, 3, 12, 13, RED, XN, hooks=(pre2, post2, pre3, post3))
    vm.wait('M')
    n = 24
    for i in range(12): unpack_lo(a, XFv + 2 * i, XN + i); unpack_hi(a, XFv + 2 * i + 1, XN + i)
    for i in range(n): a(f'v_add_f32 v{CB+i}, 1.0, v{CB+i}')
    for i in range(12): a(f'v_cvt_pk_bf16_f32 v{LT+i}, v{CB+2*i}, v{CB+2*i+1}')
    for i in range(12): unpack_lo(a, CB + 2 * i, LT + i); unpack_hi(a, CB + 2 * i + 1, LT + i)
    for i in range(n): a(f'v_mul_f32 v{XFv+i}, v{XFv+i}, v{CB+i}')
    for i in range(12): a(f'v_cvt_pk_bf16_f32 v{LT+i}, v{XFv+2*i}, v{XFv+2*i+1}')
    for i in range(12): unpack_lo(a, XFv + 2 * i, LT + i); unpack_hi(a, XFv + 2 * i + 1, LT + i)
    for i in range(n): a(f'v_add_f32 v{XFv+i}, v{XFv+i}, v{SB+i}')
    for i in range(12): a(f'v_cvt_pk_bf16_f32 v{LT+i}, v{XFv+2*i}, v{XFv+2*i+1}')
    for i in range(3):
        a(f's_add_u32 s60, s59, {12288*i}')
        vm.issue('XFS', f'buffer_store_dwordx4 v[{LT+4*i}:{LT+4*i+3}], v174, s[16:19], s60 offen sc1')
    a('s_waitcnt lgkmcnt(0)'); a('s_barrier')
    w_dma(5)
    vm.wait('XFS')
    a.branch('s_branch K34_JOIN')
    a.label('K34_AUX')
    vm.ops = list(base_ops)
    w_reads(0); a('s_waitcnt lgkmcnt(0)'); vm.wait('W1'); a('s_barrier')
    w_dma(3); w_reads(1); a('s_waitcnt lgkmcnt(0)'); vm.wait('W2'); a('s_barrier')
    w_dma(4); w_reads(2); a('s_waitcnt lgkmcnt(0)'); a('s_barrier')
    w_dma(5)
    a.label('K34_JOIN')
    vm.ops = ['W3'] * 8 + ['W4'] * 8 + ['W5'] * 8
    a('s_barrier')
    stamp(a, 2, 'k4')
    a('s_cmp_lg_u32 s39, 0'); a.branch('s_cbranch_scc1 K34_NS')
    a('s_lshl_b32 s63, s37, 7')
    a('s_mov_b64 exec, 1'); a('v_mov_b32 v11, 1')
    a('buffer_atomic_add v11, off, s[68:71], s63 sc1')
    a('s_mov_b64 exec, -1')
    a.label('K34_NS')
    a('s_cmp_ge_u32 s3, 252'); a.branch('s_cbranch_scc1 K34_HEND')
    for st in range(3, 9):
        vm.wait(f'W{st}')
        a('s_barrier')
        w_reads(st)
        a('s_waitcnt lgkmcnt(0)')
        if st == 5:
            a('s_cmp_lg_u32 s39, 0'); a.branch('s_cbranch_scc1 K34_PD')
            a('s_cmp_eq_u32 s37, 0'); a('s_cselect_b32 s56, 40, 36')
            a('s_mov_b32 s57, 0')
            a.label('K34_PL')
            a('buffer_load_dword v11, off, s[68:71], s63 sc1')
            a('s_waitcnt vmcnt(0)')
            a('v_readfirstlane_b32 s58, v11')
            a('s_cmp_ge_u32 s58, s56'); a.branch('s_cbranch_scc1 K34_PD')
            a('s_sleep 2')
            a('s_add_u32 s57, s57, 1'); a('s_cmp_lt_u32 s57, 0x10000'); a.branch('s_cbranch_scc1 K34_PL')
            a.label('K34_PD')
        a('s_barrier')
        if st < 6: w_dma(st + 3)
        if st == 5: stamp(a, 3, 'k4'); run(x_dma_list(0))
        if st >= 6: run(x_dma_list(st - 5))
    vm.wait('X0'); a('s_barrier')
    for k in range(4): a(xread(0, k))
    def tile(i):
        mf = [];
        fill = epilogue_list(i - 1) if i else []
        dma = x_dma_list(i + 3) if 0 < i <= 6 else []
        if K4W2 and 1 <= i <= 6:
            dma = dma + [f'v_add_u32 v13, {(i-1)*4096}, v14', lambda: vm.issue('PW', 'buffer_load_dwordx4 v[172:175], v13, s[24:27], 0 offen')]
        X = os.environ.get('K4X', '')
        if 'noepi' in X: fill = [f for f in fill if callable(f) or f.startswith('s_')]
        if 'nost' in X: fill = [f for f in fill if not callable(f)]
        if 'notrans' in X: fill = [f for f in fill if callable(f) or not ('exp' in f or 'rcp' in f)]
        for k in range(36):
            pre = []
            if k == 32 and i + 1 <= 9:
                pre.append(lambda: vm.wait(f'X{i+1}'))
                if 'nobar' not in X: pre.append('s_barrier')
            pre.append(xread(i, k + 4) if k + 4 < 36 else xread(i + 1, k + 4 - 36))
            pre.append('s_waitcnt lgkmcnt(4)')
            pre.append(mfma(i, k, 0))
            mf.append(pre); mf.append([mfma(i, k, 1)])
        interleave(a, mf[:64], fill)
        interleave(a, mf[64:], dma)
    stamp(a, 4, 'k4')
    for i in range(0, 9):
        tile(i)
        if i in (1, 4):
            stamp(a, {1:5,4:6}[i], 'k4')
            if 'k4' in STAMPS: a('s_waitcnt lgkmcnt(0)')
    a('s_cmp_eq_u32 s37, 0'); a.branch('s_cbranch_scc1 K4_T9')
    saved = list(vm.ops)
    run(epilogue_list(8))
    stamp(a, 7, 'k4')
    a('v_mov_b32 v0, v15')
    dump_stamps(a, 8, 'k4', 101)
    a('s_endpgm')
    vm.ops = saved
    a.label('K4_T9')
    tile(9)
    run(epilogue_list(9))
    a.label('K4_END')
    a('s_endpgm')
    a.label('K34_HEND')
    a('s_waitcnt vmcnt(0)')
    a('s_endpgm')
    return kernel_desc('k34_kernel', 176 + 256, accum=176)
```

```python
import sys
from gen_common import *
from gen_k1 import *
from gen_k23 import *
def build(path, upto=3):
    a = Asm()
    hdr = open('cdna_kernels/' + NAME + '.s.ref').read().split('; Override launch')[0]
    launches = [('k1_kernel', K1_GRID, 256, K1_LDS), ('k2_kernel', K2_GRID, 256, K2_LDS), ('k3_kernel', K3_GRID, 576, K3_LDS)]
    gens = [gen_k1, gen_k2, gen_k3]
    try:
        import gen_k456
        launches += gen_k456.launches; gens += gen_k456.gens
    except ImportError: pass
    import os
    if os.environ.get('F34', '1') != '0':
        import gen_k34
        launches = launches[:2] + [('k34_kernel', 256, 256, gen_k34.K4_LDS)] + launches[4:]
        gens = gens[:2] + [gen_k34.gen_k34] + gens[4:]
    launches = launches[:upto]; gens = gens[:upto]
    import os
    ef = int(os.environ.get('EF', '0')); eb = int(os.environ.get('EB', '0'))
    if ef or eb:
        def gen_k0(a):
            a.raw(kernel_header('k0_kernel')); a('s_endpgm'); return kernel_desc('k0_kernel', 8)
        launches = [('k0_kernel', 64, 64, 0)] * ef + launches + [('k0_kernel', 64, 64, 0)] * eb
        gens = gens + [gen_k0]
    for k, g, b, l in launches:
        hdr += f'; @launch kernel={k} grid=({g},1,1) block=({b},1,1) lds={l}\n'
    a.raw(hdr + '.amdgcn_target "amdgcn-amd-amdhsa--gfx950"')
    descs = ''
    for g in gens: descs += g(a)
    open(path, 'w').write(a.text() + descs)
    print('instrs', a.count, 'nops', a.nops, 'bytes', len(a.text()))
if __name__ == '__main__':
    build(sys.argv[1] if len(sys.argv) > 1 else 'cur.s', int(sys.argv[2]) if len(sys.argv) > 2 else 99)
```

```python
import re

REG_RE = re.compile(r'^(-|\|)?(abs\()?([vas])(?:(\d+)|\[(\d+):(\d+)\])\)?\|?$')
TRANS = ('v_exp_f32', 'v_log_f32', 'v_rcp_f32', 'v_rsq_f32', 'v_sqrt_f32', 'v_sin_f32', 'v_cos_f32', 'v_rcp_iflag_f32')

def regs_of(tok):
    tok = tok.strip()
    if tok in ('vcc', 'exec', 'm0', 'scc'): return {(tok, 0)}
    if tok in ('vcc_lo', 'vcc_hi'): return {('vcc', 0)}
    if tok in ('exec_lo', 'exec_hi'): return {('exec', 0)}
    m = REG_RE.match(tok)
    if not m: return set()
    k = m.group(3)
    if m.group(4) is not None: return {(k, int(m.group(4)))}
    return {(k, i) for i in range(int(m.group(5)), int(m.group(6)) + 1)}

def mfma_passes(mn):
    if '32x32x16' in mn or '32x32x8' in mn: return 8
    if '16x16x32' in mn or '16x16x16' in mn: return 4
    if '32x32x2_f32' in mn: return 16
    if '16x16x4_f32' in mn: return 8
    raise ValueError(mn)

class Ins:
    __slots__ = ('text', 'mn', 'kind', 'dst', 'src', 'srcC', 'passes', 'dpp', 'store_wide', 'data', 'states')

def classify(text):
    t = text.split(';')[0].strip()
    parts = t.split(None, 1)
    mn = parts[0]
    ops = [o.strip() for o in parts[1].split(',')] if len(parts) > 1 else []
    mods = ''
    if ops:
        lastp = ops[-1].split(None, 1)
        ops[-1] = lastp[0]
        if len(lastp) > 1: mods = lastp[1]
    I = Ins(); I.text = text; I.mn = mn; I.dst = set(); I.src = set(); I.srcC = set(); I.passes = 0
    I.dpp = False; I.store_wide = False; I.data = set(); I.states = 1
    R = lambda i: regs_of(ops[i]) if i < len(ops) else set()
    allsrc = lambda a: set().union(*[regs_of(o) for o in ops[a:]]) if len(ops) > a else set()
    if mn == 's_nop':
        I.kind = 'nop'; I.states = int(ops[0], 0) + 1
    elif mn.startswith('v_mfma'):
        I.kind = 'mfma'; I.dst = R(0); I.src = R(1) | R(2); I.srcC = R(3); I.passes = mfma_passes(mn)
    elif mn.startswith('v_'):
        I.kind = 'valu'
        if mn in TRANS or mn.replace('_e32', '').replace('_e64', '') in TRANS: I.kind = 'trans'
        base = mn.replace('_e32', '').replace('_e64', '')
        if base.startswith('v_cmpx'):
            I.dst = R(0) | {('exec', 0)}; I.src = allsrc(1)
        elif base.startswith('v_cmp'):
            I.dst = R(0); I.src = allsrc(1)
        elif base in ('v_add_co_u32', 'v_sub_co_u32', 'v_subrev_co_u32'):
            I.dst = R(0) | R(1); I.src = allsrc(2)
        elif base in ('v_addc_co_u32', 'v_subb_co_u32'):
            I.dst = R(0) | R(1); I.src = allsrc(2)
        elif base.startswith('v_permlane') and 'swap' in base:
            I.dst = R(0) | R(1); I.src = R(0) | R(1); I.dpp = True
        elif base in ('v_fmac_f32', 'v_pk_fmac_f16', 'v_fmac_f16', 'v_dot2c_f32_bf16', 'v_dot2c_f32_f16'):
            I.dst = R(0); I.src = allsrc(0)
        elif base == 'v_cndmask_b32':
            I.dst = R(0); I.src = allsrc(1)
            if len(ops) == 3: I.src |= {('vcc', 0)}
        elif base == 'v_writelane_b32':
            I.dst = R(0); I.src = allsrc(0)
        else:
            I.dst = R(0); I.src = allsrc(1)
        if 'quad_perm' in mods or 'row_' in mods or 'wave_' in mods or 'dpp' in mn: I.dpp = True
        if 'dst_sel' in mods and 'UNUSED_PRESERVE' in mods: I.src |= R(0)
        I.src |= {('exec', 0)}
    elif mn.startswith('ds_'):
        I.kind = 'ds'
        if mn.startswith('ds_read') or mn.startswith('ds_bpermute') or mn.startswith('ds_permute') or mn.startswith('ds_swizzle'):
            I.dst = R(0); I.src = allsrc(1)
        elif '_rtn' in mn:
            I.dst = R(0); I.src = allsrc(1)
        else:
            I.src = allsrc(0)
    elif mn.startswith('buffer_') or mn.startswith('global_'):
        I.kind = 'vmem'
        islds = ' lds' in (' ' + mods) or mn.startswith('global_load_lds')
        if 'load' in mn and not islds:
            I.dst = R(0); I.src = allsrc(1)
        elif islds:
            I.src = allsrc(0) | {('m0', 0)}
        elif 'store' in mn:
            I.src = allsrc(0)
            I.data = R(0) if mn.startswith('buffer_') else R(1)
            if 'x3' in mn or 'x4' in mn: I.store_wide = True
        elif 'atomic' in mn:
            I.src = allsrc(0)
            if 'sc0' in mods: I.dst = R(0)
        elif mn in ('buffer_wbl2', 'buffer_inv'):
            pass
        else:
            raise ValueError(text)
    elif mn.startswith('s_'):
        I.kind = 'salu'
        if mn.startswith('s_cmp') or mn.startswith('s_cbranch') or mn in ('s_branch', 's_barrier', 's_waitcnt', 's_endpgm', 's_setprio', 's_sleep', 's_bitcmp0_b32', 's_bitcmp1_b32'):
            I.src = allsrc(0)
        else:
            I.dst = R(0); I.src = allsrc(1)
            if 'saveexec' in mn: I.dst |= {('exec', 0)}
    else:
        raise ValueError('unknown instr ' + text)
    return I

class Asm:
    def __init__(self):
        self.lines = []
        self.hist = []
        self.nops = 0
        self.count = 0
    def raw(self, text): self.lines.append(text)
    def comment(self, c): self.lines.append('    ; ' + c)
    def _need(self, I):
        need = 0
        dist = 0
        for P in reversed(self.hist):
            req = 0
            vd = {r for r in P.dst if r[0] in 'va'}
            rd = I.src | I.srcC
            if P.kind in ('valu', 'trans'):
                if I.kind == 'mfma' and (vd & rd): req = max(req, 2)
                if I.kind == 'mfma' and ('exec', 0) in P.dst: req = max(req, 4)
                if P.kind == 'trans' and I.kind in ('valu', 'trans') and (vd & I.src): req = max(req, 1)
                sd = {r for r in P.dst if r[0] in ('s', 'vcc')}
                if sd:
                    if I.kind in ('valu', 'trans') and (sd & I.src):
                        req = max(req, 4 if I.mn.startswith(('v_readlane', 'v_writelane')) else 2)
                    if I.kind == 'vmem' and (sd & I.src): req = max(req, 5)
                if I.mn.startswith(('v_readfirstlane', 'v_readlane')) and (vd & I.src): req = max(req, 1)
                if I.dpp and (vd & I.src): req = max(req, 2)
                if ('exec', 0) in P.dst:
                    if I.dpp: req = max(req, 5)
                    if I.mn.startswith(('v_readlane', 'v_readfirstlane', 'v_writelane')): req = max(req, 4)
            if P.kind == 'mfma':
                p = P.passes
                t1 = {2: 5, 4: 8, 8: 12, 16: 20}[p]
                if I.kind == 'mfma':
                    if P.dst & I.src: req = max(req, t1)
                    if P.dst & I.srcC:
                        if not (P.dst == I.srcC and P.passes == I.passes): req = max(req, {2: 4, 4: 6, 8: 10, 16: 18}[p])
                    if (P.dst & I.dst) and not (P.dst == I.dst and P.dst == I.srcC):
                        req = max(req, t1)
                else:
                    if P.dst & (I.src | I.dst): req = max(req, t1)
                if I.kind in ('valu', 'trans') and (P.srcC & I.dst): req = max(req, {2: 1, 4: 3, 8: 7, 16: 15}[p])
            if P.kind == 'vmem' and P.store_wide and (P.data & I.dst):
                req = max(req, 2 if I.kind in ('valu', 'trans') else 1)
            if P.kind == 'salu' and ('m0', 0) in P.dst and I.kind == 'vmem' and ('m0', 0) in I.src: req = max(req, 1)
            if P.kind == 'salu' and ('exec', 0) in P.dst and I.dpp: req = max(req, 0)
            need = max(need, req - dist)
            dist += P.states
            if dist >= 20: break
        return need
    def _nop(self, n):
        while n > 0:
            k = min(n, 16)
            I = classify(f's_nop {k-1}')
            self.lines.append(f'    s_nop {k-1}')
            self.hist.append(I); self.nops += 1
            n -= k
    def __call__(self, text):
        for t in text.strip().split('\n'):
            t = t.strip()
            if not t or t.startswith(';'):
                if t: self.lines.append('    ' + t)
                continue
            I = classify(t)
            n = self._need(I)
            if n: self._nop(n)
            self.lines.append('    ' + t)
            self.hist.append(I); self.count += 1
            if len(self.hist) > 40: self.hist = self.hist[-24:]
            if I.mn.startswith('s_cbranch') or I.mn == 's_branch':
                pass
    def flush(self):
        need = 0; dist = 0
        for P in reversed(self.hist):
            req = 0
            if P.kind == 'mfma': req = {2: 5, 4: 8, 8: 12, 16: 20}[P.passes]
            elif P.kind in ('valu', 'trans'): req = 5 if any(r[0] in ('s', 'vcc', 'exec') for r in P.dst) else 2
            elif P.kind == 'vmem' and P.store_wide: req = 2
            elif P.kind == 'salu' and ('m0', 0) in P.dst: req = 1
            need = max(need, req - dist); dist += P.states
            if dist >= 20: break
        if need > 0: self._nop(need)
    def label(self, name):
        self.flush()
        self.lines.append(f'{name}:')
        self.hist = []
    def label_h(self, name, hist):
        self.flush()
        self.lines.append(f'{name}:')
        self.hist = list(hist)
    def label_nf(self, name):
        self.lines.append(f'{name}:')
    def branch(self, text):
        self.flush()
        self(text)
    def text(self): return '\n'.join(self.lines) + '\n'

def kernel_header(name):
    return f""".text
.globl {name}
.p2align 8
.type {name},@function
{name}:
"""
def kernel_desc(name, vgpr, sgpr=102, accum=None, nptr=18):
    if accum is None: accum = min(256, (vgpr + 3) // 4 * 4)
    return f""".section .rodata,"a"
.p2align 6
.amdhsa_kernel {name}
  .amdhsa_next_free_vgpr {vgpr}
  .amdhsa_next_free_sgpr {sgpr}
  .amdhsa_accum_offset {accum}
  .amdhsa_group_segment_fixed_size 0
  .amdhsa_kernarg_size {nptr*8}
  .amdhsa_user_sgpr_count 2
  .amdhsa_user_sgpr_kernarg_segment_ptr 1
  .amdhsa_system_sgpr_workgroup_id_x 1
  .amdhsa_float_denorm_mode_32 3
.end_amdhsa_kernel
"""
```

```python
from gen_common import *
import os
from gen_k4 import VM, interleave, SLOT, K4_LDS
from gen_k1 import ln_core

LOOP = int(os.environ.get('K34L', '1'))
def gen_k34(a):
    a.raw(kernel_header('k34_kernel'))

    vm = VM(a)
    a('s_cmp_ge_u32 s2, 256'); a.branch('s_cbranch_scc1 K4_END')
    if not TK:
        a('s_and_b32 s36, s2, 7'); a('s_lshl_b32 s36, s36, 5'); a('s_lshr_b32 s37, s2, 3'); a('s_add_u32 s3, s36, s37')
    stamp(a, 0, 'k4')
    if TK: ticket_begin(a)
    load_ptr(a, 4, 'w1'); load_ptr(a, 8, 'w3'); load_ptr(a, 12, 'ws')
    K4W2 = int(os.environ.get('K4W2', '1'))
    if K4W2: load_ptr(a, 24, 'w2')
    a('v_mov_b32 v15, v0')
    a('v_readfirstlane_b32 s39, v0'); a('s_lshr_b32 s39, s39, 6')
    a('v_and_b32 v0, 63, v0')
    a('v_lshrrev_b32 v11, 4, v0'); a('v_mul_u32_u24 v1, 9216, v11')
    a('v_bfe_u32 v12, v0, 2, 2'); a('v_xor_b32 v12, v12, v11'); a('v_lshl_add_u32 v1, v12, 6, v1')
    a('v_and_b32 v12, 3, v0'); a('v_lshl_add_u32 v1, v12, 4, v1')
    a('v_bfe_u32 v12, v0, 2, 2')
    a('v_lshrrev_b32 v13, 5, v0')
    a('v_lshl_add_u32 v13, v13, 3, v12'); a('v_lshlrev_b32 v2, 8, v13')
    a('v_xor_b32 v12, s39, v12'); a('v_lshl_add_u32 v2, v12, 6, v2')
    a('v_bfe_u32 v12, v0, 4, 1'); a('v_lshl_add_u32 v2, v12, 5, v2')
    a('v_and_b32 v12, 3, v0'); a('v_lshl_add_u32 v2, v12, 3, v2')
    a(f'v_add_u32 v4, {3*SLOT}, v2'); a(f'v_add_u32 v3, {2*SLOT}, v2'); a(f'v_add_u32 v2, {SLOT}, v2')
    a('v_lshlrev_b32 v5, 4, v0')
    for s in range(1, 4): a(f'v_add_u32 v{5+s}, {s*SLOT}, v5')
    a('v_bfe_u32 v12, v0, 4, 1'); a('v_lshlrev_b32 v10, 10, v12')
    a('v_lshrrev_b32 v12, 5, v0'); a('v_lshl_add_u32 v10, v12, 8, v10')
    a('v_and_b32 v12, 15, v0'); a('v_lshl_add_u32 v10, v12, 4, v10')
    a('s_mul_i32 s36, s3, 9363'); a('s_lshr_b32 s36, s36, 16')
    a('s_mul_i32 s37, s36, 7'); a('s_sub_u32 s37, s3, s37')
    a('s_mul_i32 s38, s37, 9'); a('s_cmp_gt_u32 s37, 0'); a('s_addc_u32 s38, s38, 0')
    a('s_lshl_b32 s55, s38, 2'); a('s_add_u32 s55, s55, s36')
    a('s_sub_u32 s56, s3, 216')
    a('s_cmp_ge_u32 s3, 252')
    a('s_cselect_b32 s55, s56, s55'); a('s_cselect_b32 s36, 0, s36'); a('s_cselect_b32 s37, 0, s37'); a('s_cselect_b32 s38, 0, s38')
    a('s_lshl_b32 s40, s36, 8')
    a(f's_mul_i32 s41, s39, {16*9216}'); a('s_add_u32 s40, s40, s41')
    a('s_lshl_b32 s42, s39, 12')
    a(f's_mul_i32 s43, s38, {SLOT}'); a('s_mul_i32 s44, s39, 9216'); a('s_add_u32 s43, s43, s44')
    a('s_lshl_b32 s45, s36, 2'); a('s_add_u32 s45, s45, s39'); a('s_lshl_b32 s45, s45, 7'); a('s_lshl_b32 s46, s38, 1'); a('s_add_u32 s45, s45, s46'); a('s_lshl_b32 s45, s45, 10')
    a('s_mov_b32 s47, 0xffff0000'); a(f's_mov_b32 s48, {f32bits(-LOG2E)}')
    a('s_waitcnt lgkmcnt(0)')
    make_srd(a, 4, 576 * 9216); make_srd(a, 8, 576 * 9216)
    copy_srd(a, 16, 12, SZ_XF, WS_XF); copy_srd(a, 20, 12, SZ_HH, WS_HH)
    if K4W2:
        make_srd(a, 24, 4608 * 1152)
        a('s_mul_i32 s53, s3, 21504'); a('s_lshl_b32 s54, s39, 10'); a('s_add_u32 s53, s53, s54')
        a('v_lshlrev_b32 v14, 4, v0'); a('v_add_u32 v14, s53, v14')
    def w_dma(st):
        slot = 1 + st % 3
        for mat in range(2):
            for q in range(4):
                a(f's_add_u32 m0, s42, {slot*SLOT + mat*16384 + q*1024}')
                a(f's_add_u32 s49, s40, {(64*st + 4*q)*9216}')
                vm.issue(f'W{st}', f'buffer_load_dwordx4 v1, s[{4+4*mat}:{7+4*mat}], s49 offen lds')
    def x_dma_list(i):
        slot = i % 4; L = []
        for q in range(3):
            L.append(f's_add_u32 m0, s44, {slot*SLOT + q*4096}')
            L.append(f's_add_u32 s49, s43, {i*SLOT + q*4096}')
            for r in range(4 if q < 2 else 1):
                L.append(lambda r=r: vm.issue(f'X{i}', f'buffer_load_dwordx4 v5, s[16:19], s49 offen offset:{r*1024} sc1 lds'))
        return L
    def run(L):
        for f in L: f() if callable(f) else a(f)
    XB = 16; WV = 40; ACC = 72; TMP = 136
    def wreg(k, mat):
        if k < 32: b = 8 * k + 4 * mat; return 'a', b
        b = WV + 8 * (k - 32) + 4 * mat; return 'v', b
    def xread(i, k):
        n = 36 * i + k; b = XB + 4 * (n % 6)
        return f'ds_read_b128 v[{b}:{b+3}], v{5 + i % 4} offset:{k*1024}'
    def mfma(i, k, mat):
        n = 36 * i + k; b = XB + 4 * (n % 6)
        t, wb = wreg(k, mat); acc = ACC + 32 * (i % 2) + 16 * mat
        c = '0' if k == 0 else f'v[{acc}:{acc+15}]'
        return f'v_mfma_f32_32x32x16_bf16 v[{acc}:{acc+15}], {t}[{wb}:{wb+3}], v[{b}:{b+3}], {c}'
    def epilogue_list(i):
        g = ACC + 32 * (i % 2); u = g + 16; L = []
        G = TMP; E = TMP + 8; U = TMP + 16; PK = TMP + 24;
        for p in range(2):
            P = TMP + 28 + 4 * p
            o = 8 * p
            for j in range(4): L.append(f'v_cvt_pk_bf16_f32 v{PK+j}, v{g+o+2*j}, v{g+o+2*j+1}')
            for j in range(4):
                L.append(f'v_lshlrev_b32 v{G+2*j}, 16, v{PK+j}'); L.append(f'v_and_b32 v{G+2*j+1}, s47, v{PK+j}')
            for j in range(8): L.append(f'v_mul_f32 v{E+j}, s48, v{G+j}')
            for j in range(8): L.append(f'v_exp_f32 v{E+j}, v{E+j}')
            for j in range(4): L.append(f'v_cvt_pk_bf16_f32 v{PK+j}, v{u+o+2*j}, v{u+o+2*j+1}')
            for j in range(8): L.append(f'v_add_f32 v{E+j}, 1.0, v{E+j}')
            for j in range(8): L.append(f'v_rcp_f32 v{E+j}, v{E+j}')
            for j in range(4):
                L.append(f'v_lshlrev_b32 v{U+2*j}, 16, v{PK+j}'); L.append(f'v_and_b32 v{U+2*j+1}, s47, v{PK+j}')
            for j in range(8): L.append(f'v_mul_f32 v{G+j}, v{G+j}, v{E+j}')
            for j in range(4): L.append(f'v_cvt_pk_bf16_f32 v{PK+j}, v{G+2*j}, v{G+2*j+1}')
            for j in range(4):
                L.append(f'v_lshlrev_b32 v{G+2*j}, 16, v{PK+j}'); L.append(f'v_and_b32 v{G+2*j+1}, s47, v{PK+j}')
            for j in range(8): L.append(f'v_mul_f32 v{G+j}, v{G+j}, v{U+j}')
            for j in range(4): L.append(f'v_cvt_pk_bf16_f32 v{P+j}, v{G+2*j}, v{G+2*j+1}')
            if p == 0: L.append(f's_add_u32 s50, s45, {i*2048}')
            L.append(lambda P=P, p=p: vm.issue(f'S{i}', f'buffer_store_dwordx4 v[{P}:{P+3}], v10, s[20:23], s50 offen offset:{p*512}' + os.environ.get('STMOD', ' sc1')))
        return L
    PF = os.environ.get('K4PF', '0')
    if PF != '0':
        a('s_lshl_b32 s51, s37, 8'); a('s_lshl_b32 s52, s39, 6'); a('s_add_u32 s51, s51, s52')
        a('v_add_u32 v11, s51, v0')
        a('v_lshrrev_b32 v12, 1, v11'); a('v_mul_u32_u24 v12, 9216, v12')
        a('v_and_b32 v11, 1, v11'); a('v_lshl_add_u32 v12, v11, 7, v12')
        a('s_lshl_b32 s51, s36, 8')
        vm.issue('PF', 'buffer_load_dword v13, v12, s[4:7], s51 offen')
        vm.issue('PF', 'buffer_load_dword v14, v12, s[8:11], s51 offen')
        if PF == '2':
            vm.issue('PF', 'buffer_load_dword v13, v12, s[4:7], s51 offen offset:64')
            vm.issue('PF', 'buffer_load_dword v14, v12, s[8:11], s51 offen offset:64')
    def w_reads(st):
        slot = 1 + st % 3
        for kk in range(4):
            k = 4 * st + kk
            for mat in range(2):
                t, wb = wreg(k, mat)
                off = mat * 16384 + kk * 4096
                a(f'ds_read_b64_tr_b16 {t}[{wb}:{wb+1}], v{1+slot} offset:{off}')
                a(f'ds_read_b64_tr_b16 {t}[{wb+2}:{wb+3}], v{1+slot} offset:{off+1024}')
    XL = 16; XP = 28; XFv = 72; LT = 96; XN = 112; CB = 124; SB = 148
    RED = 9216
    copy_srd(a, 28, 12, SZ_X1T, WS_X1T); copy_srd(a, 32, 12, SZ_MOD, WS_MOD); copy_srd(a, 64, 12, SZ_X1, WS_X1)
    copy_srd(a, 68, 12, 4096, WS_CNT + CNT_OFF['k4'])
    a('s_lshl_b32 s57, s55, 4')
    for i in range(3):
        a(f'v_add_u32 v{11+i}, {256*i}, v15'); a(f'v_mul_u32_u24 v{11+i}, {X1T_STRIDE}, v{11+i}')
    for i in range(3): vm.issue('XL', f'buffer_load_dwordx4 v[{XL+4*i}:{XL+4*i+3}], v{11+i}, s[28:31], s57 offen')
    w_dma(0); w_dma(1); w_dma(2)
    a('v_lshrrev_b32 v172, 4, v15'); a('v_lshlrev_b32 v172, 1, v172')
    a('v_bfe_u32 v11, v15, 1, 1'); a('v_add_u32 v172, v172, v11'); a('v_lshlrev_b32 v172, 3, v172')
    a('v_bfe_u32 v11, v15, 2, 2'); a('v_add_u32 v172, v172, v11'); a('v_lshlrev_b32 v172, 4, v172')
    a('v_and_b32 v11, 1, v15'); a('v_lshl_add_u32 v172, v11, 3, v172')
    a('v_and_b32 v11, 7, v15'); a('v_lshrrev_b32 v12, 3, v15')
    a('v_mul_u32_u24 v173, 1152, v11'); a('v_lshl_add_u32 v173, v12, 4, v173')
    a('v_lshrrev_b32 v174, 1, v12'); a('v_lshlrev_b32 v174, 10, v174')
    a('v_and_b32 v13, 1, v12'); a('v_lshl_add_u32 v174, v13, 9, v174'); a('v_lshl_add_u32 v174, v11, 4, v174')
    a('v_lshlrev_b32 v175, 5, v12')
    a('v_lshlrev_b32 v13, 2, v11')
    a('s_lshl_b32 s58, s39, 5'); a('v_add_u32 v12, s58, v13')
    a('v_lshlrev_b32 v11, 4, v15')
    a('s_mul_i32 s58, s55, 9216')
    a('s_lshr_b32 s59, s55, 2'); a(f's_mul_i32 s59, s59, {36*1024}'); a('s_and_b32 s60, s55, 3'); a('s_lshl_b32 s60, s60, 7'); a('s_add_u32 s59, s59, s60')
    a(f's_mov_b32 s61, {4*2304}'); a(f's_mov_b32 s62, {3*2304}')
    vm.wait('XL')
    a(f'ds_write_b128 v11, v[{XL}:{XL+3}]'); a(f'ds_write_b128 v11, v[{XL+4}:{XL+7}] offset:4096')
    a('s_cmp_lg_u32 s39, 0'); a.branch('s_cbranch_scc1 K34_NW3')
    a(f'ds_write_b128 v11, v[{XL+8}:{XL+11}] offset:8192')
    a.label('K34_NW3')
    vm.wait('W0', ' lgkmcnt(0)'); a('s_barrier')
    stamp(a, 1, 'k4')
    base_ops = list(vm.ops)
    a('s_cmp_eq_u32 s39, 3'); a.branch('s_cbranch_scc1 K34_AUX')
    for i in range(3):
        vm.issue('M', f'buffer_load_dwordx4 v[{CB+8*i}:{CB+8*i+3}], v175, s[32:35], s61 offen offset:{768*i}')
        vm.issue('M', f'buffer_load_dwordx4 v[{CB+8*i+4}:{CB+8*i+7}], v175, s[32:35], s61 offen offset:{768*i+16}')
        vm.issue('M', f'buffer_load_dwordx4 v[{SB+8*i}:{SB+8*i+3}], v175, s[32:35], s62 offen offset:{768*i}')
        vm.issue('M', f'buffer_load_dwordx4 v[{SB+8*i+4}:{SB+8*i+7}], v175, s[32:35], s62 offen offset:{768*i+16}')
    for i in range(3):
        a(f'ds_read_b64_tr_b16 v[{XP+4*i}:{XP+4*i+1}], v172 offset:{3072*i}')
        a(f'ds_read_b64_tr_b16 v[{XP+4*i+2}:{XP+4*i+3}], v172 offset:{3072*i+64}')
    w_reads(0)
    a('s_waitcnt lgkmcnt(15)')
    for i in range(3): vm.issue('X1S', f'buffer_store_dwordx4 v[{XP+4*i}:{XP+4*i+3}], v173, s[64:67], s58 offen offset:{384*i}')
    def pre2(): vm.wait('W1')
    def post2(): w_dma(3); w_reads(1)
    def pre3(): vm.wait('W2')
    def post3(): w_dma(4); w_reads(2)
    ln_core(a, 3, XP, XFv, LT, 3, 12, 13, RED, XN, hooks=(pre2, post2, pre3, post3))
    vm.wait('M')
    n = 24
    for i in range(12): unpack_lo(a, XFv + 2 * i, XN + i); unpack_hi(a, XFv + 2 * i + 1, XN + i)
    for i in range(n): a(f'v_add_f32 v{CB+i}, 1.0, v{CB+i}')
    for i in range(12): a(f'v_cvt_pk_bf16_f32 v{LT+i}, v{CB+2*i}, v{CB+2*i+1}')
    for i in range(12): unpack_lo(a, CB + 2 * i, LT + i); unpack_hi(a, CB + 2 * i + 1, LT + i)
    for i in range(n): a(f'v_mul_f32 v{XFv+i}, v{XFv+i}, v{CB+i}')
    for i in range(12): a(f'v_cvt_pk_bf16_f32 v{LT+i}, v{XFv+2*i}, v{XFv+2*i+1}')
    for i in range(12): unpack_lo(a, XFv + 2 * i, LT + i); unpack_hi(a, XFv + 2 * i + 1, LT + i)
    for i in range(n): a(f'v_add_f32 v{XFv+i}, v{XFv+i}, v{SB+i}')
    for i in range(12): a(f'v_cvt_pk_bf16_f32 v{LT+i}, v{XFv+2*i}, v{XFv+2*i+1}')
    for i in range(3):
        a(f's_add_u32 s60, s59, {12288*i}')
        vm.issue('XFS', f'buffer_store_dwordx4 v[{LT+4*i}:{LT+4*i+3}], v174, s[16:19], s60 offen sc1')
    a('s_waitcnt lgkmcnt(0)'); a('s_barrier')
    w_dma(5)
    vm.wait('XFS')
    a.branch('s_branch K34_JOIN')
    a.label('K34_AUX')
    vm.ops = list(base_ops)
    w_reads(0); a('s_waitcnt lgkmcnt(0)'); vm.wait('W1'); a('s_barrier')
    w_dma(3); w_reads(1); a('s_waitcnt lgkmcnt(0)'); vm.wait('W2'); a('s_barrier')
    w_dma(4); w_reads(2); a('s_waitcnt lgkmcnt(0)'); a('s_barrier')
    w_dma(5)
    a.label('K34_JOIN')
    vm.ops = ['W3'] * 8 + ['W4'] * 8 + ['W5'] * 8
    a('s_barrier')
    stamp(a, 2, 'k4')
    a('s_cmp_lg_u32 s39, 0'); a.branch('s_cbranch_scc1 K34_NS')
    a('s_lshl_b32 s63, s37, 7')
    a('s_mov_b64 exec, 1'); a('v_mov_b32 v11, 1')
    a('buffer_atomic_add v11, off, s[68:71], s63 sc1')
    a('s_mov_b64 exec, -1')
    a.label('K34_NS')
    a('s_cmp_ge_u32 s3, 252'); a.branch('s_cbranch_scc1 K34_HEND')
    def nonloop():
        def tile(i):
            mf = [];
            fill = epilogue_list(i - 1) if i else []
            dma = x_dma_list(i + 3) if 0 < i <= 6 else []
            if K4W2 and 1 <= i <= 6:
                dma = dma + [f'v_add_u32 v13, {(i-1)*4096}, v14', lambda: vm.issue('PW', 'buffer_load_dwordx4 v[172:175], v13, s[24:27], 0 offen')]
            X = os.environ.get('K4X', '')
            if 'noepi' in X: fill = [f for f in fill if callable(f) or f.startswith('s_')]
            if 'nost' in X: fill = [f for f in fill if not callable(f)]
            if 'notrans' in X: fill = [f for f in fill if callable(f) or not ('exp' in f or 'rcp' in f)]
            for k in range(36):
                pre = []
                if k == 32 and i + 1 <= 9:
                    pre.append(lambda: vm.wait(f'X{i+1}'))
                    if 'nobar' not in X: pre.append('s_barrier')
                pre.append(xread(i, k + 4) if k + 4 < 36 else xread(i + 1, k + 4 - 36))
                pre.append('s_waitcnt lgkmcnt(4)')
                pre.append(mfma(i, k, 0))
                mf.append(pre); mf.append([mfma(i, k, 1)])
            interleave(a, mf[:64], fill)
            interleave(a, mf[64:], dma)
        stamp(a, 4, 'k4')
        for i in range(0, 9):
            tile(i)
            if i in (1, 4):
                stamp(a, {1:5,4:6}[i], 'k4')
                if 'k4' in STAMPS: a('s_waitcnt lgkmcnt(0)')
        a('s_cmp_eq_u32 s37, 0'); a.branch('s_cbranch_scc1 K4_T9')
        saved = list(vm.ops)
        run(epilogue_list(8))
        stamp(a, 7, 'k4')
        a('v_mov_b32 v0, v15')
        dump_stamps(a, 8, 'k4', 101)
        a('s_endpgm')
        vm.ops = saved
        a.label('K4_T9')
        tile(9)
        run(epilogue_list(9))
        a.label('K4_END')
        a('s_endpgm')

    for st in range(3, 9):
        vm.wait(f'W{st}')
        a('s_barrier')
        w_reads(st)
        a('s_waitcnt lgkmcnt(0)')
        if st == 5:
            a('s_cmp_lg_u32 s39, 0'); a.branch('s_cbranch_scc1 K34_PD')
            a('s_cmp_eq_u32 s37, 0'); a('s_cselect_b32 s56, 40, 36')
            a('s_mov_b32 s57, 0')
            a.label('K34_PL')
            a('buffer_load_dword v11, off, s[68:71], s63 sc1')
            a('s_waitcnt vmcnt(0)')
            a('v_readfirstlane_b32 s58, v11')
            a('s_cmp_ge_u32 s58, s56'); a.branch('s_cbranch_scc1 K34_PD')
            a('s_sleep 2')
            a('s_add_u32 s57, s57, 1'); a('s_cmp_lt_u32 s57, 0x10000'); a.branch('s_cbranch_scc1 K34_PL')
            a.label('K34_PD')
        a('s_barrier')
        if st < 6: w_dma(st + 3)
        if st == 5: stamp(a, 3, 'k4'); run(x_dma_list(0))
        if LOOP:
            if st in (6, 7):
                run(x_dma_list(st - 5))
                a('v_mov_b32 v13, 0x7ffffff0'); vm.issue('PW', 'buffer_load_dwordx4 v[172:175], v13, s[24:27], 0 offen')
        elif st >= 6: run(x_dma_list(st - 5))
    if LOOP:
        BIG = 0x40000000
        a('v_mov_b32 v2, v5'); a(f'v_add_u32 v3, {SLOT}, v5'); a('v_mov_b32 v1, 0x7ffffff0')
        a('s_mov_b32 s55, 0')
        a('s_cmp_eq_u32 s37, 0'); a('s_cselect_b32 s56, 6, 5'); a('s_cselect_b32 s61, 99, 8')
        a(f's_mov_b32 s57, {3*SLOT}'); a('s_mov_b32 s58, 0'); a('s_mov_b32 s60, 0')
        a(f's_add_u32 s43, s43, {3*SLOT}'); a('s_sub_u32 s45, s45, 2048')
    vm.wait('X0'); a('s_barrier')
    for k in range(4): a(xread(0, k))
    if LOOP:
        def lxread(par, k, nxt):
            b = XB + 4 * (k % 6); r = 2 + (par ^ nxt)
            return f'ds_read_b128 v[{b}:{b+3}], v{r} offset:{k*1024}'
        def lepi(par):
            L = []
            for f in epilogue_list(par):
                if callable(f): continue
                L.append(f)
            return L
        def lepi_full(par, vo):
            g = ACC + 32 * par; u = g + 16; L = []
            G = TMP; E = TMP + 8; U = TMP + 16; PK = TMP + 24
            for p in range(2):
                P = TMP + 28 + 4 * p
                o = 8 * p
                for j in range(4): L.append(f'v_cvt_pk_bf16_f32 v{PK+j}, v{g+o+2*j}, v{g+o+2*j+1}')
                for j in range(4):
                    L.append(f'v_lshlrev_b32 v{G+2*j}, 16, v{PK+j}'); L.append(f'v_and_b32 v{G+2*j+1}, s47, v{PK+j}')
                for j in range(8): L.append(f'v_mul_f32 v{E+j}, s48, v{G+j}')
                for j in range(8): L.append(f'v_exp_f32 v{E+j}, v{E+j}')
                for j in range(4): L.append(f'v_cvt_pk_bf16_f32 v{PK+j}, v{u+o+2*j}, v{u+o+2*j+1}')
                for j in range(8): L.append(f'v_add_f32 v{E+j}, 1.0, v{E+j}')
                for j in range(8): L.append(f'v_rcp_f32 v{E+j}, v{E+j}')
                for j in range(4):
                    L.append(f'v_lshlrev_b32 v{U+2*j}, 16, v{PK+j}'); L.append(f'v_and_b32 v{U+2*j+1}, s47, v{PK+j}')
                for j in range(8): L.append(f'v_mul_f32 v{G+j}, v{G+j}, v{E+j}')
                for j in range(4): L.append(f'v_cvt_pk_bf16_f32 v{PK+j}, v{G+2*j}, v{G+2*j+1}')
                for j in range(4):
                    L.append(f'v_lshlrev_b32 v{G+2*j}, 16, v{PK+j}'); L.append(f'v_and_b32 v{G+2*j+1}, s47, v{PK+j}')
                for j in range(8): L.append(f'v_mul_f32 v{G+j}, v{G+j}, v{U+j}')
                for j in range(4): L.append(f'v_cvt_pk_bf16_f32 v{P+j}, v{G+2*j}, v{G+2*j+1}')
                L.append(f'buffer_store_dwordx4 v[{P}:{P+3}], v{vo}, s[20:23], s45 offen offset:{p*512}' + os.environ.get('STMOD', ' sc1'))
            return L
        def ltile(par):
            fill = lepi_full(par ^ 1, 1 if par == 0 else 10) + ['s_add_u32 s45, s45, 2048']
            if par == 1: fill.append('v_mov_b32 v1, v10')
            ss = 57 + par
            dma = [f'v_xor_b32 v{2+par}, 0x12000, v{2+par}',
                   's_cmp_le_u32 s55, s56', f's_cselect_b32 s59, 0, {BIG}', 'v_add_u32 v4, s59, v5', f's_add_u32 s52, s44, s{ss}']
            for q in range(3):
                dma.append(f's_add_u32 m0, s52, {q*4096}'); dma.append(f's_add_u32 s49, s43, {q*4096}')
                for r in range(4 if q < 2 else 1):
                    dma.append(f'buffer_load_dwordx4 v4, s[16:19], s49 offen offset:{r*1024} sc1 lds')
            dma += ['s_cmp_le_u32 s55, 5', f's_cselect_b32 s59, s60, {BIG}', 'v_add_u32 v13, s59, v14',
                    'buffer_load_dwordx4 v[172:175], v13, s[24:27], 0 offen',
                    's_add_u32 s60, s60, 4096', f's_xor_b32 s{ss}, s{ss}, 0x12000', f's_add_u32 s43, s43, {SLOT}']
            mf = []
            for k in range(36):
                pre = []
                if k == 32: pre += ['s_waitcnt vmcnt(13)', 's_barrier']
                pre.append(lxread(par, k + 4, 0) if k + 4 < 36 else lxread(par, k + 4 - 36, 1))
                pre.append('s_waitcnt lgkmcnt(4)')
                pre.append(mfma(par, k, 0))
                mf.append(pre); mf.append([mfma(par, k, 1)])
            interleave(a, mf[:64], fill)
            interleave(a, mf[64:], dma)
        stamp(a, 4, 'k4')
        main = a
        def body():
            ltile(0)
            a('s_cmp_eq_u32 s55, s61'); a('s_cbranch_scc1 K34_F0')
            a('s_add_u32 s55, s55, 1')
            ltile(1)
            a('s_add_u32 s55, s55, 1')
            a('s_cmp_lt_u32 s55, 10'); a('s_cbranch_scc1 K34_LOOP')
        sv = (a.lines, a.hist, a.nops, a.count); a.lines = []; a.hist = []
        body(); h = list(a.hist)
        a.lines, a.hist, a.nops, a.count = sv
        a.label_h('K34_LOOP', h)
        body()
        run(lepi_full(1, 10))
        a('s_waitcnt vmcnt(0)')
        a('s_endpgm')
        a.label('K34_F0')
        a('s_nop 11')
        run(lepi_full(0, 10))
        stamp(a, 7, 'k4')
        a('v_mov_b32 v0, v15')
        dump_stamps(a, 8, 'k4', 101)
        a('s_waitcnt vmcnt(0)')
        a.label('K4_END')
        a('s_endpgm')
    else:
        nonloop()
    a.label('K34_HEND')
    a('s_waitcnt vmcnt(0)')
    a('s_endpgm')
    return kernel_desc('k34_kernel', 176 + 256, accum=176)
```

```python
from gen_common import *
from gen_k4 import VM, interleave
import os

ST5 = 17408; NS5 = 9
K5L = int(os.environ.get('K5L', '0'))
K5_LDS = ST5 * NS5 + 16
def gen_k5(a):
    a.raw(kernel_header('k5_kernel'))
    dbgt(a, 4, 4, 'DBGT_5')
    vm = VM(a)
    a('s_cmp_ge_u32 s2, 256'); a.branch('s_cbranch_scc1 K5_END')
    stamp(a, 0, 'k5')
    if TK: ticket_begin(a)
    load_ptr(a, 4, 'w2'); load_ptr(a, 12, 'ws')
    a('v_mov_b32 v15, v0')
    a('v_readfirstlane_b32 s35, v0'); a('s_lshr_b32 s35, s35, 6')
    a('s_and_b32 s39, s35, 3')
    a('v_and_b32 v0, 63, v0')
    a('v_lshlrev_b32 v1, 4, v0')
    a('s_mul_i32 s40, s39, 144')
    for q in range(3):
        a(f's_add_u32 s41, s40, {48*q}')
        a('v_add_u32 v10, s41, v0')
        a('v_mul_u32_u24 v11, 3641, v10'); a('v_lshrrev_b32 v11, 16, v11')
        a('v_mul_u32_u24 v12, 18, v11'); a('v_sub_u32 v12, v10, v12')
        a(f'v_mul_u32_u24 v{2+q}, 1152, v11'); a(f'v_lshl_add_u32 v{2+q}, v12, 4, v{2+q}')
    a('v_lshrrev_b32 v10, 5, v0'); a('v_lshlrev_b32 v10, 4, v10')
    a('v_bfe_u32 v11, v0, 4, 1'); a('v_lshl_add_u32 v10, v11, 2, v10')
    a('v_bfe_u32 v11, v0, 2, 2'); a('v_add_u32 v10, v10, v11'); a('v_mul_u32_u24 v5, 288, v10')
    a('v_and_b32 v11, 3, v0'); a('v_lshl_add_u32 v5, v11, 3, v5'); a('v_add_u32 v5, 8192, v5')
    a('s_lshl_b32 s40, s39, 11'); a('v_add_u32 v6, s40, v1')
    if TK:
        ticket(a, 'k5', 4, 3, K5_LDS - 16, wave_s=35)
        a('s_lshr_b32 s36, s3, 5'); a('s_and_b32 s37, s3, 31')
    else:
        a('s_and_b32 s36, s2, 7'); a('s_lshr_b32 s37, s2, 3')
    a('s_and_b32 s38, s36, 3')
    a('s_lshr_b32 s36, s36, 2'); a('s_lshl_b32 s36, s36, 3'); a('s_lshr_b32 s43, s37, 2'); a('s_add_u32 s36, s36, s43')
    a('s_and_b32 s37, s37, 3')
    a(f's_mul_i32 s41, s38, {36*131072}'); a('s_lshl_b32 s42, s36, 13'); a('s_add_u32 s41, s41, s42'); a('s_add_u32 s41, s41, s40')
    a(f's_mul_i32 s42, s38, {36*36864}'); a('s_mul_i32 s43, s37, 288'); a('s_add_u32 s42, s42, s43')
    a('s_mul_i32 s43, s39, 2304')
    a('s_mov_b32 s44, -1'); a('s_mov_b32 s45, 0xffff')
    a('s_waitcnt lgkmcnt(0)')
    make_srd(a, 4, 4608 * 1152)
    copy_srd(a, 16, 12, SZ_HH, WS_HH); copy_srd(a, 20, 12, SZ_PART, WS_PART)
    def dma_list(k):
        so = (k % NS5) * ST5; L = []
        L.append(f's_add_u32 m0, s40, {so}')
        L.append(f's_add_u32 s46, s41, {k*131072}')
        L.append(lambda: vm.issue(f'D{k}', 'buffer_load_dwordx4 v1, s[16:19], s46 offen lds'))
        L.append(lambda: vm.issue(f'D{k}', 'buffer_load_dwordx4 v1, s[16:19], s46 offen offset:1024 lds'))
        L.append(f's_add_u32 s46, s42, {k*36864}')
        def masked():
            a('s_mov_b64 exec, s[44:45]')
            for q in range(3):
                a(f's_add_u32 m0, s43, {so + 8192 + q*768}')
                vm.issue(f'D{k}', f'buffer_load_dwordx4 v{2+q}, s[4:7], s46 offen lds')
            a('s_mov_b64 exec, -1')
        L.append(masked)
        return L
    def dma(k):
        for f in dma_list(k): f() if callable(f) else a(f)
    def run(L):
        for f in L: f() if callable(f) else a(f)
    if K5L: a('s_cmp_ge_u32 s35, 4'); a.branch('s_cbranch_scc1 K5_LOAD')
    else:
        for k in range(8): dma(k)
        if int(os.environ.get('K5LOOP', '1')):
            for i in range(72): a(f'v_mov_b32 v{16+i}, 0')
        vm.wait('D0')
    ACC = 16; WF = 88; HF = 160
    def read_list(k):
        so = (k % NS5) * ST5; b = k % 2; L = []
        va = 7 + 2 * b; vb = 8 + 2 * b
        L.append(f'v_add_u32 v{va}, {so}, v5'); L.append(f'v_add_u32 v{vb}, {so}, v6')
        h = HF + 8 * b
        L.append(f'ds_read_b128 v[{h}:{h+3}], v{vb}'); L.append(f'ds_read_b128 v[{h+4}:{h+7}], v{vb} offset:1024')
        for dt in range(9):
            wv = WF + 36 * b + 4 * dt
            L.append(f'ds_read_b64_tr_b16 v[{wv}:{wv+1}], v{va} offset:{dt*32}')
            L.append(f'ds_read_b64_tr_b16 v[{wv+2}:{wv+3}], v{va} offset:{dt*32+2304}')
        return L
    LOOP5 = int(os.environ.get('K5LOOP', '1')) and not K5L
    a('s_barrier')
    stamp(a, 1, 'k5')
    run(read_list(0))
    if LOOP5:
        def lread(b):
            sr = 47 + (b ^ 1); L = []
            va = 7 + 2 * b; vb = 8 + 2 * b
            L.append(f'v_add_u32 v{va}, s{sr}, v5'); L.append(f'v_add_u32 v{vb}, s{sr}, v6')
            h = HF + 8 * b
            L.append(f'ds_read_b128 v[{h}:{h+3}], v{vb}'); L.append(f'ds_read_b128 v[{h+4}:{h+7}], v{vb} offset:1024')
            for dt in range(9):
                wv = WF + 36 * b + 4 * dt
                L.append(f'ds_read_b64_tr_b16 v[{wv}:{wv+1}], v{va} offset:{dt*32}')
                L.append(f'ds_read_b64_tr_b16 v[{wv+2}:{wv+3}], v{va} offset:{dt*32+2304}')
            return L
        def ldma():
            L = ['s_add_u32 m0, s40, s51',
                 'buffer_load_dwordx4 v1, s[16:19], s41 offen lds',
                 'buffer_load_dwordx4 v1, s[16:19], s41 offen offset:1024 lds',
                 's_add_u32 s49, s43, s51']
            def masked():
                a('s_mov_b64 exec, s[44:45]')
                for q in range(3):
                    a(f's_add_u32 m0, s49, {8192 + q*768}')
                    a(f'buffer_load_dwordx4 v{2+q}, s[4:7], s42 offen lds')
                a('s_mov_b64 exec, -1')
            L += [masked, 's_add_u32 s41, s41, 131072', 's_add_u32 s42, s42, 36864']
            return L
        def mfl(b):
            mf = []
            for dt in range(9):
                for tt in range(2):
                    acc = ACC + 4 * (9 * tt + dt); wv = WF + 36 * b + 4 * dt; h = HF + 8 * b + 4 * tt
                    mf.append([f'v_mfma_f32_16x16x32_bf16 v[{acc}:{acc+3}], v[{wv}:{wv+3}], v[{h}:{h+3}], v[{acc}:{acc+3}]'])
            return mf
        def it(b):
            me = 47 + b; ot = 47 + (b ^ 1); n = 'AB'[b]
            a(f's_mov_b32 s51, s{me}')
            a(f's_add_u32 s{me}, s{ot}, {ST5}'); a(f's_cmp_lt_u32 s{me}, {NS5*ST5}'); a(f's_cselect_b32 s{me}, s{me}, 0')
            a('s_cmp_ge_u32 s50, 14')
            if b == 0:
                a(f's_cbranch_scc1 K5_TW')
                a('s_waitcnt vmcnt(30) lgkmcnt(0)')
                a.label_nf('K5_WA')
            else:
                a(f's_cbranch_scc1 K5_WB')
                a('s_waitcnt vmcnt(30)')
                a.label_nf('K5_WB')
                a('s_waitcnt lgkmcnt(0)')
            a('s_barrier')
            mf = mfl(b)
            sr = me; bb = b ^ 1; L = []
            va = 7 + 2 * bb; vb = 8 + 2 * bb
            L.append(f'v_add_u32 v{va}, s{sr}, v5'); L.append(f'v_add_u32 v{vb}, s{sr}, v6')
            h = HF + 8 * bb
            L.append(f'ds_read_b128 v[{h}:{h+3}], v{vb}'); L.append(f'ds_read_b128 v[{h+4}:{h+7}], v{vb} offset:1024')
            for dt in range(9):
                wv = WF + 36 * bb + 4 * dt
                L.append(f'ds_read_b64_tr_b16 v[{wv}:{wv+1}], v{va} offset:{dt*32}')
                L.append(f'ds_read_b64_tr_b16 v[{wv+2}:{wv+3}], v{va} offset:{dt*32+2304}')
            interleave(a, mf[:14], L)
            a('s_cmp_ge_u32 s50, 14'); a(f's_cbranch_scc1 K5_ND{n}')
            interleave(a, mf[14:], ldma())
            a.label_nf(f'K5_J{n}')
        a(f's_mov_b32 s47, {8*ST5}'); a('s_mov_b32 s48, 0'); a('s_mov_b32 s50, 0')
        a(f's_add_u32 s41, s41, {8*131072}'); a(f's_add_u32 s42, s42, {8*36864}')
        a.label('K5_LOOP')
        it(0); it(1)
        a('s_add_u32 s50, s50, 1'); a('s_cmp_lt_u32 s50, 18'); a('s_cbranch_scc1 K5_LOOP')
        a.branch('s_branch K5_EPI')
        a.label('K5_TW')
        for t, nn in ((14, 25), (15, 15), (16, 5)):
            a(f's_cmp_lg_u32 s50, {t}'); a(f's_cbranch_scc1 K5_TW{t}')
            a(f's_waitcnt vmcnt({nn}) lgkmcnt(0)'); a('s_branch K5_WA')
            a.label_nf(f'K5_TW{t}')
        a('s_waitcnt vmcnt(0) lgkmcnt(0)'); a('s_branch K5_WA')
        for b in range(2):
            a.label(f'K5_ND{"AB"[b]}')
            for g_ in mfl(b)[14:]: a(g_[0])
            a(f's_branch K5_J{"AB"[b]}')
        a.label('K5_EPI')
        a('s_waitcnt lgkmcnt(0)'); a('s_nop 7')
    for k in range(36 if not LOOP5 else 0):
        b = k % 2
        if K5L or k + 1 >= 36: a('s_waitcnt lgkmcnt(0)')
        else: vm.wait(f'D{k+1}', ' lgkmcnt(0)')
        if k + 1 < 36: a('s_barrier')
        fill = read_list(k + 1) if k + 1 < 36 else []
        mf = []
        for dt in range(9):
            for tt in range(2):
                acc = ACC + 4 * (9 * tt + dt); wv = WF + 36 * b + 4 * dt; h = HF + 8 * b + 4 * tt
                c = '0' if k == 0 else f'v[{acc}:{acc+3}]'
                mf.append([f'v_mfma_f32_16x16x32_bf16 v[{acc}:{acc+3}], v[{wv}:{wv+3}], v[{h}:{h+3}], {c}'])
        interleave(a, mf[:14], fill)
        interleave(a, mf[14:], dma_list(k + 8) if (not K5L and k + 8 < 36) else [])
        if k in (11, 23): stamp(a, 2 if k == 11 else 3, 'k5')
    stamp(a, 4, 'k5')
    a('s_lshl_b32 s41, s38, 6'); a('s_lshl_b32 s42, s36, 2'); a('s_add_u32 s41, s41, s42'); a('s_add_u32 s41, s41, s37')
    a('s_lshl_b32 s41, s41, 2'); a('s_add_u32 s41, s41, s39'); a(f's_mul_i32 s41, s41, {10*1024}')
    MX = 88
    for tt in range(2):
        A0 = ACC + 36 * tt; m = MX + 24 * tt
        for c in range(4):
            a(f'v_max3_f32 v{m+c}, |v{A0+9*c}|, |v{A0+9*c+1}|, |v{A0+9*c+2}|')
        for j in range(3, 9, 2):
            for c in range(4): a(f'v_max3_f32 v{m+c}, |v{A0+9*c+j}|, |v{A0+9*c+j+1}|, v{m+c}')
        a(f'v_max3_f32 v{m}, v{m}, v{m+1}, v{m+2}'); a(f'v_max_f32 v{m}, v{m}, v{m+3}')
        a(f'v_frexp_exp_i32_f32 v{m+1}, v{m}')
        a(f'v_sub_u32 v{m+2}, 15, v{m+1}')
        a(f'v_max_i32 v{m+2}, -100, v{m+2}'); a(f'v_min_i32 v{m+2}, 100, v{m+2}')
        a(f'v_ldexp_f32 v{m+3}, 1.0, v{m+2}')
        a(f'v_sub_u32 v{m+2}, 0, v{m+2}'); a(f'v_ldexp_f32 v{m+22}, 1.0, v{m+2}')
        for i in range(36): a(f'v_mul_f32 v{A0+i}, v{A0+i}, v{m+3}')
        for i in range(18): a(f'v_cvt_pk_f16_f32 v{m+4+i}, v{A0+2*i}, v{A0+2*i+1}')
        a(f'v_mov_b32 v{m+23}, 0')
        for p in range(5):
            i = 5 * tt + p
            if i % 4 == 0 and i: a(f's_add_u32 s41, s41, 4096')
            a(f'buffer_store_dwordx4 v[{m+4+4*p}:{m+7+4*p}], v1, s[20:23], s41 offen offset:{(i%4)*1024}' + os.environ.get('STMOD5', ' sc1'))
    stamp(a, 5, 'k5')
    if 'k5' in STAMPS:
        a('v_mov_b32 v0, v15'); dump_stamps(a, 6, 'k5', 101)
    a('s_endpgm')
    if K5L:
        a.label('K5_LOAD')
        for k in range(NS5): dma(k)
        vm.wait('D0'); a('s_barrier')
        for k in range(35):
            vm.wait(f'D{k+1}'); a('s_barrier')
            if k + NS5 < 36: dma(k + NS5)
    a.label('K5_END')
    a('s_endpgm')
    return kernel_desc('k5_kernel', 176)

def gen_k6(a):
    a.raw(kernel_header('k6_kernel'))
    dbgt(a, 5, 5, 'DBGT_6')
    a('s_cmp_ge_u32 s2, 256'); a.branch('s_cbranch_scc1 K6_END')
    load_ptr(a, 4, 'ws'); load_ptr(a, 8, 'out')
    a('v_readfirstlane_b32 s3, v0'); a('s_lshr_b32 s3, s3, 6')
    a('v_and_b32 v0, 63, v0')
    a('v_lshlrev_b32 v1, 4, v0')
    a('s_lshr_b32 s21, s3, 1'); a('s_and_b32 s22, s3, 1')
    a('s_lshl_b32 s20, s2, 1'); a('s_add_u32 s20, s20, s21'); a('s_mul_i32 s20, s20, 5120')
    a('s_and_b32 s23, s2, 3')
    a('s_lshr_b32 s24, s2, 2'); a('s_and_b32 s25, s24, 3'); a('s_lshr_b32 s24, s24, 2')
    a('s_lshl_b32 s26, s24, 7'); a('s_lshl_b32 s27, s23, 5'); a('s_add_u32 s26, s26, s27'); a('s_lshl_b32 s27, s21, 4'); a('s_add_u32 s26, s26, s27')
    a('s_mul_i32 s27, s25, 144'); a('s_lshl_b32 s28, s22, 6'); a('s_add_u32 s27, s27, s28')
    a('s_mul_i32 s29, s26, 1152'); a('s_lshl_b32 s28, s27, 1'); a('s_add_u32 s29, s29, s28')
    a('s_lshl_b32 s30, s27, 2'); a(f's_add_u32 s30, s30, {5*2304}')
    a('v_and_b32 v2, 15, v0'); a('v_mul_u32_u24 v2, 1152, v2'); a('v_lshrrev_b32 v3, 4, v0'); a('v_lshl_add_u32 v2, v3, 3, v2')
    a('v_lshlrev_b32 v3, 4, v3')
    a('s_lshl_b32 s31, s22, 11'); a('s_add_u32 s31, s31, s20')
    a('s_waitcnt lgkmcnt(0)')
    copy_srd(a, 12, 4, SZ_PART, WS_PART); copy_srd(a, 16, 4, SZ_X1, WS_X1); copy_srd(a, 32, 4, SZ_MOD, WS_MOD)
    make_srd(a, 8, 2048 * 1152)
    SS = 64 * 4 * 10240
    a('s_cmp_eq_u32 s22, 1'); a.branch('s_cbranch_scc1 K6_B')
    for half in range(2):
        nf = 4 + half
        if half: a.label('K6_B')
        P = 8
        for s_ in range(4):
            if s_: a(f's_add_u32 s31, s31, {SS}'); a(f's_add_u32 s20, s20, {SS}')
            b = P + 12 * s_
            a(f'buffer_load_dwordx4 v[{b}:{b+3}], v1, s[12:15], s31 offen')
            a(f'buffer_load_dwordx4 v[{b+4}:{b+7}], v1, s[12:15], s31 offen offset:1024')
            if half: a(f'buffer_load_dwordx4 v[{b+8}:{b+11}], v1, s[12:15], s31 offen offset:2048')
            else:
                a(f's_add_u32 s36, s20, 4096')
                a(f'buffer_load_dword v{b+10}, v1, s[12:15], s36 offen offset:8')
        X = 56; G = 68; R = 88; T = 108
        for j in range(nf): a(f'buffer_load_dwordx2 v[{X+2*j}:{X+2*j+1}], v2, s[16:19], s29 offen offset:{j*32}')
        for j in range(nf): a(f'buffer_load_dwordx4 v[{G+4*j}:{G+4*j+3}], v3, s[32:35], s30 offen offset:{j*64}')
        n = 4 * nf
        for s_ in range(4):
            a(f's_waitcnt vmcnt({2*nf + 3*(3-s_)})')
            b = P + 12 * s_
            for i in range(n):
                src = b + i // 2
                sel = f'op_sel:[{i%2},0,0] op_sel_hi:[1,0,0]'
                if s_ == 0: a(f'v_fma_mix_f32 v{R+i}, v{src}, v{b+10}, 0 {sel}')
                else: a(f'v_fma_mix_f32 v{R+i}, v{src}, v{b+10}, v{R+i} {sel}')
        for i in range(n // 2): a(f'v_cvt_pk_bf16_f32 v{T+i}, v{R+2*i}, v{R+2*i+1}')
        for i in range(n // 2): unpack_lo(a, R + 2 * i, T + i); unpack_hi(a, R + 2 * i + 1, T + i)
        a('s_waitcnt vmcnt(0)')
        for i in range(n): a(f'v_mul_f32 v{R+i}, v{R+i}, v{G+i}')
        for i in range(n // 2): a(f'v_cvt_pk_bf16_f32 v{T+i}, v{R+2*i}, v{R+2*i+1}')
        for i in range(n // 2): unpack_lo(a, R + 2 * i, T + i); unpack_hi(a, R + 2 * i + 1, T + i)
        for i in range(n // 2): unpack_lo(a, P + 2 * i, X + i); unpack_hi(a, P + 2 * i + 1, X + i)
        for i in range(n): a(f'v_add_f32 v{R+i}, v{R+i}, v{P+i}')
        for i in range(n // 2): a(f'v_cvt_pk_bf16_f32 v{T+i}, v{R+2*i}, v{R+2*i+1}')
        for j in range(nf): a(f'buffer_store_dwordx2 v[{T+2*j}:{T+2*j+1}], v2, s[8:11], s29 offen offset:{j*32}')
        if half == 0:
            a('s_waitcnt vmcnt(0)'); dbgt(a, 5, 6, 'DBGT_6E'); a('s_endpgm')
    a.label('K6_END')
    a('s_endpgm')
    return kernel_desc('k6_kernel', 120)
```

```python
from gen_common import *

def ln_core(a, nch, xp, xf, tmp, nw, v_redw, v_redr, red_off, out_xn, hooks=None):
    n = 8 * nch
    for i in range(4 * nch):
        unpack_lo(a, xf + 2 * i, xp + i); unpack_hi(a, xf + 2 * i + 1, xp + i)
    s = tmp; t1 = tmp + 1
    for k in range(4): a(f'v_add_f32 v{tmp+2+k}, v{xf+k}, v{xf+4+k}')
    for i in range(8, n):
        a(f'v_add_f32 v{tmp+2+(i%4)}, v{tmp+2+(i%4)}, v{xf+i}')
    a(f'v_add_f32 v{tmp+2}, v{tmp+2}, v{tmp+3}')
    a(f'v_add_f32 v{tmp+4}, v{tmp+4}, v{tmp+5}')
    a(f'v_add_f32 v{s}, v{tmp+2}, v{tmp+4}')
    red_l8(a, s, t1)
    a(f'ds_write_b32 v{v_redw}, v{s} offset:{red_off}')
    a('s_waitcnt lgkmcnt(0)')
    if hooks: hooks[0]()
    a('s_barrier')
    if hooks: hooks[1]()
    def gather(off):
        for w in range(nw): a(f'ds_read_b32 v{tmp+2+w}, v{v_redr} offset:{off + w*32}')
        a('s_waitcnt lgkmcnt(0)')
        for w in range(1, nw): a(f'v_add_f32 v{tmp+2}, v{tmp+2}, v{tmp+2+w}')
    gather(red_off)
    mean = tmp
    a(f'v_mul_f32 v{mean}, {f32bits(1.0/576)}, v{tmp+2}')
    acc = [tmp + 2 + k for k in range(4)]
    d = tmp + 6
    for i in range(n):
        a(f'v_sub_f32 v{d + (i%4)}, v{xf+i}, v{mean}')
        if i < 4: a(f'v_mul_f32 v{acc[i]}, v{d+i}, v{d+i}')
        else: a(f'v_fmac_f32 v{acc[i%4]}, v{d+(i%4)}, v{d+(i%4)}')
    a(f'v_add_f32 v{acc[0]}, v{acc[0]}, v{acc[1]}')
    a(f'v_add_f32 v{acc[2]}, v{acc[2]}, v{acc[3]}')
    a(f'v_add_f32 v{t1}, v{acc[0]}, v{acc[2]}')
    red_l8(a, t1, tmp + 6)
    off2 = red_off + nw * 32
    a(f'ds_write_b32 v{v_redw}, v{t1} offset:{off2}')
    round_bf16_1(a, mean, mean)
    a('s_waitcnt lgkmcnt(0)')
    if hooks: hooks[2]()
    a('s_barrier')
    if hooks: hooks[3]()
    gather(off2)
    r = tmp + 1
    a(f'v_mul_f32 v{r}, {f32bits(1.0/576)}, v{tmp+2}')
    round_bf16_1(a, r, r)
    a(f'v_add_f32 v{r}, {f32bits(1e-5)}, v{r}')
    round_bf16_1(a, r, r)
    a(f'v_sqrt_f32 v{r}, v{r}')
    round_bf16_1(a, r, r)
    a(f'v_rcp_f32 v{r}, v{r}')
    for i in range(n): a(f'v_sub_f32 v{xf+i}, v{xf+i}, v{mean}')
    for i in range(4 * nch): a(f'v_cvt_pk_bf16_f32 v{out_xn+i}, v{xf+2*i}, v{xf+2*i+1}')
    for i in range(4 * nch):
        unpack_lo(a, xf + 2 * i, out_xn + i); unpack_hi(a, xf + 2 * i + 1, out_xn + i)
    for i in range(n): a(f'v_mul_f32 v{xf+i}, v{xf+i}, v{r}')
    for i in range(4 * nch): a(f'v_cvt_pk_bf16_f32 v{out_xn+i}, v{xf+2*i}, v{xf+2*i+1}')

N_MOD = 54; N_LN1 = 256; N_KG = 576
import os
N_PF = int(os.environ.get('NPF', '0'))
TLBW = int(os.environ.get('TLBW', '0'))
N_TW = 8 if TLBW else 0
K1_GRID = N_MOD + N_LN1 + N_KG + N_PF + N_TW
K1_LDS = 36864

def gen_k1(a):
    a.raw(kernel_header('k1_kernel'))
    dbgt(a, 0, 0, 'DBGT_1')
    a(f's_cmp_lt_u32 s2, {N_MOD}'); a.branch('s_cbranch_scc1 K1_MOD')
    a(f's_cmp_lt_u32 s2, {N_MOD+N_LN1}'); a.branch('s_cbranch_scc1 K1_LN')
    a(f's_cmp_lt_u32 s2, {N_MOD+N_LN1+N_KG}'); a.branch('s_cbranch_scc1 K1_KG')
    if N_TW:
        a(f's_cmp_ge_u32 s2, {K1_GRID}'); a.branch('s_cbranch_scc1 K1_END')
        load_ptr(a, 4, 'ws'); load_ptr(a, 8, 'w1'); load_ptr(a, 12, 'w3'); load_ptr(a, 16, 'w2'); load_ptr(a, 20, 'out')
        a(f'v_lshlrev_b32 v1, {TLBW}, v0')
        a('s_waitcnt lgkmcnt(0)')
        copy_srd(a, 24, 4, SZ_RK, WS_RK)
        make_srd(a, 4, WS_PART + 64 * 4 * 4 * 10240); make_srd(a, 8, 576 * 9216); make_srd(a, 12, 576 * 9216); make_srd(a, 16, 4608 * 1152); make_srd(a, 20, 2048 * 1152)
        r = 8
        span = 256 << TLBW
        for srd, size in ((4, WS_PART + 64 * 4 * 4 * 10240), (24, SZ_RK), (8, 576 * 9216), (12, 576 * 9216), (16, 4608 * 1152), (20, 2048 * 1152)):
            for i in range((size + span - 1) // span):
                if i: a(f'v_add_u32 v2, {i * span}, v1')
                a(f'buffer_load_dword v{r}, v{2 if i else 1}, s[{srd}:{srd+3}], 0 offen'); r += 1
        a('s_waitcnt vmcnt(0)')
    if N_PF:
        a(f's_cmp_ge_u32 s2, {K1_GRID}'); a.branch('s_cbranch_scc1 K1_END')
        a(f's_sub_u32 s3, s2, {N_MOD+N_LN1+N_KG}')
        a('s_mul_i32 s8, s3, 911'); a('s_lshr_b32 s8, s8, 16')
        a('s_mul_i32 s9, s8, 72'); a('s_sub_u32 s9, s3, s9')
        a('s_lshl_b32 s8, s8, 3'); a(f's_add_u32 s8, s8, {KA["w1"]}')
        a('s_load_dwordx2 s[4:5], s[0:1], s8')
        a('s_mul_i32 s9, s9, 73728')
        a('v_lshlrev_b32 v1, 4, v0')
        a('s_waitcnt lgkmcnt(0)')
        make_srd(a, 4, 576 * 9216)
        for i in range(18):
            a(f's_add_u32 s10, s9, {i*4096}')
            a(f'buffer_load_dwordx4 v[{8+4*i}:{11+4*i}], v1, s[4:7], s10 offen')
        a('s_waitcnt vmcnt(0)')
    a('s_endpgm')
    a.label('K1_MOD')
    load_ptr(a, 4, 'wmod'); load_ptr(a, 8, 'c'); load_ptr(a, 12, 'ws')
    a('v_and_b32 v1, 7, v0')
    a('v_lshrrev_b32 v2, 3, v0')
    a('v_mul_u32_u24 v3, 36, v2')
    a(f'v_mul_u32_u24 v4, {18*6912}, v2')
    a('v_lshl_add_u32 v4, v1, 4, v4')
    a('s_lshl_b32 s3, s2, 7')
    a('v_add_u32 v4, s3, v4')
    a('s_waitcnt lgkmcnt(0)')
    copy_srd(a, 40, 12, SZ_CNT, WS_CNT)
    make_srd(a, 4, 576 * 6912); make_srd(a, 8, 1152); make_srd(a, 12, SZ_MOD, WS_MOD)
    for i in range(4): a(f'v_mov_b32 v{112+i}, 0')
    a('v_lshlrev_b32 v116, 4, v0'); a('s_lshl_b32 s44, s2, 12'); a('v_add_u32 v116, s44, v116')
    a('buffer_store_dwordx4 v[112:115], v116, s[40:43], 0 offen')
    C = 8; W = 20
    a(f'buffer_load_dwordx4 v[{C}:{C+3}], v3, s[8:11], 0 offen')
    a(f'buffer_load_dwordx4 v[{C+4}:{C+7}], v3, s[8:11], 0 offen offset:16')
    a(f'buffer_load_dword v{C+8}, v3, s[8:11], 0 offen offset:32')
    for i in range(18):
        a(f's_mov_b32 s{16+i}, {i*6912}')
        a(f'buffer_load_dwordx4 v[{W+4*i}:{W+4*i+3}], v4, s[4:7], s{16+i} offen')
    S = 92
    a('s_waitcnt vmcnt(18)')
    for i in range(9):
        unpack_lo(a, S + 2 * i, C + i); unpack_hi(a, S + 2 * i + 1, C + i)
    T = 110
    for i in range(18): a(f'v_mul_f32 v{T+i}, {f32bits(-LOG2E)}, v{S+i}')
    for i in range(18): a(f'v_exp_f32 v{T+i}, v{T+i}')
    for i in range(18): a(f'v_add_f32 v{T+i}, 1.0, v{T+i}')
    for i in range(18): a(f'v_rcp_f32 v{T+i}, v{T+i}')
    for i in range(18): a(f'v_mul_f32 v{S+i}, v{S+i}, v{T+i}')
    for i in range(9): a(f'v_cvt_pk_bf16_f32 v{T+i}, v{S+2*i}, v{S+2*i+1}')
    for i in range(9):
        unpack_lo(a, S + 2 * i, T + i); unpack_hi(a, S + 2 * i + 1, T + i)
    ACC = 110; U = 118
    for i in range(18):
        a(f's_waitcnt vmcnt({17-i})')
        for j in range(4):
            unpack_lo(a, U + 2 * j, W + 4 * i + j); unpack_hi(a, U + 2 * j + 1, W + 4 * i + j)
        for j in range(8):
            if i == 0: a(f'v_mul_f32 v{ACC+j}, v{S+i}, v{U+j}')
            else: a(f'v_fmac_f32 v{ACC+j}, v{S+i}, v{U+j}')
    red_l8_multi(a, [ACC + j for j in range(8)], [U + j for j in range(8)])
    a('v_lshrrev_b32 v5, 6, v0')
    a('v_lshlrev_b32 v5, 8, v5')
    a('v_lshl_add_u32 v5, v1, 5, v5')
    a(f'ds_write_b128 v5, v[{ACC}:{ACC+3}]')
    a(f'ds_write_b128 v5, v[{ACC+4}:{ACC+7}] offset:16')
    a('s_waitcnt lgkmcnt(0)'); a('s_barrier')
    a('v_cmp_gt_u32 vcc, 64, v0')
    a('s_and_saveexec_b64 s[40:41], vcc')
    a.branch('s_cbranch_execz K1_END')
    a('v_lshlrev_b32 v6, 2, v0')
    for w in range(4): a(f'ds_read_b32 v{8+w}, v6 offset:{w*256}')
    a('s_waitcnt lgkmcnt(0)')
    a('v_add_f32 v8, v8, v9'); a('v_add_f32 v10, v10, v11'); a('v_add_f32 v8, v8, v10')
    round_bf16_1(a, 8, 8)
    a('s_lshl_b32 s3, s2, 8')
    a('v_add_u32 v6, s3, v6')
    a('buffer_store_dword v8, v6, s[12:15], 0 offen')
    a('s_endpgm')
    a.label('K1_LN')
    a('v_readfirstlane_b32 s4, v0')
    a('s_cmp_ge_u32 s4, 192'); a.branch('s_cbranch_scc1 K1_END')
    load_ptr(a, 4, 'u'); load_ptr(a, 8, 'ws')
    a(f's_sub_u32 s3, s2, {N_MOD}')
    a('v_and_b32 v1, 7, v0')
    a('v_lshrrev_b32 v2, 3, v0')
    a('v_mul_u32_u24 v3, 1152, v1')
    a('v_lshl_add_u32 v3, v2, 4, v3')
    a('s_mul_i32 s12, s3, 9216')
    a('s_waitcnt lgkmcnt(0)')
    make_srd(a, 4, 2048 * 1152); make_srd(a, 8, SZ_XT, WS_XT)
    XP = 8; XF = 20; TMP = 44; XN = 60
    for i in range(3):
        a(f'buffer_load_dwordx4 v[{XP+4*i}:{XP+4*i+3}], v3, s[4:7], s12 offen offset:{i*24*16}')
    RED = 72 * 288
    a('v_lshrrev_b32 v4, 6, v0')
    a('v_lshlrev_b32 v4, 5, v4')
    a('v_lshl_add_u32 v4, v1, 2, v4')
    a('v_lshlrev_b32 v5, 2, v1')
    a('v_mul_u32_u24 v6, 288, v2')
    a('v_lshl_add_u32 v6, v1, 2, v6')
    a('s_mov_b32 s14, 0x05040100'); a('s_mov_b32 s15, 0x07060302')
    a('s_waitcnt vmcnt(0)')
    ln_core(a, 3, XP, XF, TMP, 3, 4, 5, RED, XN)
    for i in range(3):
        for j in range(4):
            r = 4 * i + j
            a(f'v_perm_b32 v{XF+2*r}, v{XP+r}, v{XN+r}, s14')
            a(f'v_perm_b32 v{XF+2*r+1}, v{XP+r}, v{XN+r}, s15')
        for e in range(8):
            a(f'ds_write_b32 v6, v{XF+8*i+e} offset:{i*24*288 + e*32}')
    a('s_waitcnt lgkmcnt(0)'); a('s_barrier')
    a('v_lshrrev_b32 v1, 4, v0')
    a('v_mul_u32_u24 v1, 288, v1')
    a('v_and_b32 v2, 15, v0')
    a('v_lshl_add_u32 v1, v2, 4, v1')
    a('v_lshlrev_b32 v2, 4, v0')
    a(f's_mul_i32 s12, s3, {XT_STRIDE}')
    for j in range(6): a(f'ds_read_b128 v[{XF+4*j}:{XF+4*j+3}], v1 offset:{j*12*288}')
    for j in range(6):
        a(f's_waitcnt lgkmcnt({5-j})')
        a(f's_add_u32 s13, s12, {j*3072}')
        a(f'buffer_store_dwordx4 v[{XF+4*j}:{XF+4*j+3}], v2, s[8:11], s13 offen')
    a('s_endpgm')
    a.label('K1_KG')
    names = ['A_re', 'A_im', 'B_re', 'B_im', 'C_re', 'C_im']
    for i, nm in enumerate(names): load_ptr(a, 4 + 4 * i, nm)
    load_ptr(a, 28, 'log_dt'); load_ptr(a, 32, 'ws')
    a(f's_sub_u32 s3, s2, {N_MOD+N_LN1}')
    a('s_and_b32 s36, s3, 7'); a('s_mul_i32 s36, s36, 72'); a('s_lshr_b32 s37, s3, 3'); a('s_add_u32 s3, s36, s37')
    a('v_and_b32 v1, 127, v0')
    a('v_lshlrev_b32 v2, 1, v1')
    a('s_lshl_b32 s36, s3, 8')
    a('s_and_b32 s37, s3, -2'); a('s_lshl_b32 s37, s37, 1')
    a('v_readfirstlane_b32 s38, v0')
    a('s_waitcnt lgkmcnt(0)')
    a('s_load_dword s39, s[28:29], s37')
    for i in range(6): make_srd(a, 4 + 4 * i, 576 * 256)
    make_srd(a, 32, SZ_RK, WS_RK)
    for i in range(6): a(f'buffer_load_ushort v{8+i}, v2, s[{4+4*i}:{7+4*i}], s36 offen')
    KC = 33792
    GA = 100
    a('v_lshlrev_b32 v3, 3, v0')
    a('v_sub_u32 v3, 2047, v3')
    for e in range(9):
        a(f'v_subrev_u32 v{GA+e}, {e}, v3')
    for e in range(10): a(f'v_cvt_f32_u32 v{110+e}, v{GA+min(e,8)}')
    for e in range(5): a(f'v_cvt_pk_bf16_f32 v{120+e}, v{110+2*e}, v{110+2*e+1}')
    for e in range(4):
        a(f'v_and_b32 v{110+2*e}, 0xffff, v{120+e}')
        a(f'v_lshrrev_b32 v{110+2*e+1}, 16, v{120+e}')
    a('v_and_b32 v118, 0xffff, v124')
    a('v_cmp_gt_u32 vcc, 240, v0')
    for e in range(9): a(f'v_subrev_u32 v{110+e}, 17024, v{110+e}')
    for e in range(8): a(f'v_cndmask_b32 v{GA+e}, v{GA+e}, v{110+e}, vcc')
    a('v_cmp_gt_u32 vcc, 239, v0')
    a(f'v_cndmask_b32 v{GA+8}, v{GA+8}, v118, vcc')
    a(f'v_max_i32 v{GA+8}, 0, v{GA+8}')
    for e in range(9): a(f'v_lshlrev_b32 v{GA+e}, 1, v{GA+e}')
    a('s_lshr_b32 s40, s38, 6')
    a('s_and_b32 s41, s40, 1')
    a('s_lshr_b32 s42, s40, 1')
    a('v_and_b32 v4, 15, v0')
    a('s_lshl_b32 s43, s41, 4')
    a('v_add_u32 v4, s43, v4')
    a('v_bfe_u32 v5, v0, 4, 2')
    KW = 124
    a('s_cmp_eq_u32 s42, 0'); a.branch('s_cbranch_scc0 K1_KG_RT1')
    a('v_lshlrev_b32 v124, 3, v4')
    a('v_lshl_add_u32 v124, v5, 2, v124')
    a('v_lshlrev_b32 v6, 2, v4'); a('v_add_u32 v6, 256, v6')
    a('v_cmp_eq_u32 vcc, 2, v5'); a('v_cndmask_b32 v124, v124, v6, vcc')
    a('v_lshlrev_b32 v6, 1, v4'); a('v_add_u32 v6, 384, v6')
    a('v_cmp_eq_u32 vcc, 3, v5'); a('v_cndmask_b32 v124, v124, v6, vcc')
    a('v_mov_b32 v125, 1')
    a('v_mov_b32 v6, 64'); a('v_cndmask_b32 v126, 2, v6, vcc')
    a.branch('s_branch K1_KG_A')
    a.label('K1_KG_RT1')
    a('v_add_u32 v124, 700, v4')
    a('v_add_u32 v6, 640, v4'); a('v_cmp_eq_u32 vcc, 1, v5'); a('v_cndmask_b32 v124, v124, v6, vcc')
    a('v_add_u32 v6, 512, v4'); a('v_cmp_eq_u32 vcc, 0, v5'); a('v_cndmask_b32 v124, v124, v6, vcc')
    a('v_mov_b32 v6, 32'); a('v_mov_b32 v7, 64'); a('v_cndmask_b32 v125, v7, v6, vcc')
    a('v_lshlrev_b32 v126, 1, v125')
    a.label('K1_KG_A')
    a('v_add_u32 v127, v126, v125')
    a('v_add_u32 v125, v124, v125'); a('v_add_u32 v126, v124, v126'); a('v_add_u32 v127, v124, v127')
    for i in range(4): a(f'v_lshlrev_b32 v{124+i}, 1, v{124+i}')
    a('s_waitcnt lgkmcnt(0)')
    a('s_and_b32 s43, s3, 1'); a('s_lshl_b32 s43, s43, 4'); a('s_lshr_b32 s39, s39, s43'); a('s_lshl_b32 s39, s39, 16')
    a(f'v_mov_b32 v14, s39')
    a(f'v_mul_f32 v14, {f32bits(LOG2E)}, v14')
    a('v_exp_f32 v14, v14')
    round_bf16_1(a, 14, 14)
    a('s_waitcnt vmcnt(0)')
    for i in range(6): a(f'v_lshlrev_b32 v{8+i}, 16, v{8+i}')
    a('v_mul_f32 v8, v8, v14'); a('v_mul_f32 v9, v9, v14')
    a('v_mul_f32 v10, v10, v14'); a('v_mul_f32 v11, v11, v14')
    a(f'v_mul_f32 v8, {f32bits(LOG2E)}, v8')
    a(f'v_mul_f32 v9, {f32bits(0.15915494309189535)}, v9')
    cmul(a, 16, 12, 10)
    a(f'v_mul_f32 v16, {float(2**KSCALE_LOG2)}, v16'); a(f'v_mul_f32 v17, {float(2**KSCALE_LOG2)}, v17')
    def D(dst, al):
        a(f'v_mul_f32 v4, {float(al)}, v8'); a(f'v_mul_f32 v5, {float(al)}, v9')
        a('v_exp_f32 v4, v4'); a('v_fract_f32 v5, v5')
        a('v_cos_f32 v6, v5'); a('v_sin_f32 v7, v5')
        a(f'v_mul_f32 v{dst}, v4, v6'); a(f'v_mul_f32 v{dst+1}, v4, v7')
    UB = 0; VB = 16896
    a('v_lshlrev_b32 v3, 2, v1')
    def putU(r, src):
        a(f'v_cvt_pk_f16_f32 v2, v{src}, v{src+1}')
        a(f'ds_write_b32 v3, v2 offset:{UB + r*528}')
    def putV(j, src):
        a(f'v_cvt_pk_f16_f32 v2, v{src}, -v{src+1}')
        a(f'ds_write_b32 v3, v2 offset:{VB + j*528}')
    E8, EX, EY, P0, P1 = 18, 20, 22, 24, 26
    a('s_cmp_ge_u32 s38, 128'); a.branch('s_cbranch_scc1 K1_KG_H1')
    D(E8, 8); D(EX, 1); D(EY, 256)
    a(f'v_mov_b32 v{P0}, 1.0'); a(f'v_mov_b32 v{P0+1}, 0')
    putV(0, P0); putV(1, E8)
    cur, nxt = E8, P0
    for j in range(2, 16):
        cmul(a, nxt, cur, E8); putV(j, nxt)
        cur = nxt; nxt = P1 if nxt == P0 else P0
    cur = 16
    for r in range(8):
        if r > 0:
            nxt = P0 if cur != P0 else P1
            cmul(a, nxt, cur, EX); cur = nxt
        putU(r, cur)
        if r % 2 == 0:
            cmul(a, 28, cur, EY); putU(8 + r // 2, 28)
    a.branch('s_branch K1_KG_B')
    a.label('K1_KG_H1')
    D(E8, 8); D(P0, 128); D(EX, 4)
    cmul(a, EY, P0, P0)
    cmul(a, 28, EY, EY)
    cmul(a, 30, 28, 28)
    putV(16, P0)
    cur, nxt = P0, P1
    for j in range(17, 32):
        cmul(a, nxt, cur, E8); putV(j, nxt)
        cur, nxt = nxt, cur
    cmul(a, P0, 16, 28); putU(12, P0)
    cmul(a, P1, P0, EX); putU(13, P1)
    cmul(a, P1, P0, EY); putU(14, P1)
    cmul(a, P0, P1, EX); putU(15, P0)
    cmul(a, P0, 16, 30); putU(16, P0)
    cmul(a, P1, P0, EY); putU(17, P1)
    cmul(a, P0, P1, EY); putU(18, P0)
    cmul(a, P1, P0, EY); putU(19, P1)
    cmul(a, P0, P1, EY); putU(20, P0)
    a.label('K1_KG_B')
    a('v_and_b32 v4, 15, v0'); a('v_bfe_u32 v5, v0, 4, 2')
    a('s_lshl_b32 s43, s42, 4'); a('v_add_u32 v6, s43, v4'); a('v_mul_u32_u24 v6, 528, v6'); a('v_lshl_add_u32 v6, v5, 4, v6')
    a('s_lshl_b32 s43, s41, 4'); a('v_add_u32 v7, s43, v4'); a('v_mul_u32_u24 v7, 528, v7'); a('v_lshl_add_u32 v7, v5, 4, v7')
    a('s_waitcnt lgkmcnt(0)'); a('s_barrier')
    FA = 32; FB = 64
    for s in range(8):
        a(f'ds_read_b128 v[{FA+4*s}:{FA+4*s+3}], v6 offset:{UB + s*64}')
        a(f'ds_read_b128 v[{FB+4*s}:{FB+4*s+3}], v7 offset:{VB + s*64}')
    for s in range(8):
        a(f's_waitcnt lgkmcnt({14-2*s})')
        a(f'v_mfma_f32_16x16x32_f16 v[8:11], v[{FA+4*s}:{FA+4*s+3}], v[{FB+4*s}:{FB+4*s+3}], ' + ('0' if s == 0 else 'v[8:11]'))
    a('v_cvt_pk_f16_f32 v12, v8, v9'); a('v_cvt_pk_f16_f32 v13, v10, v11')
    a(f'ds_write_b16 v124, v12 offset:{KC}'); a(f'ds_write_b16_d16_hi v125, v12 offset:{KC}')
    a(f'ds_write_b16 v126, v13 offset:{KC}'); a(f'ds_write_b16_d16_hi v127, v13 offset:{KC}')
    a('s_waitcnt lgkmcnt(0)'); a('s_barrier')
    for e in range(9):
        a(f'ds_read_u16 v{24+e}, v{GA+e} offset:{KC}')
    a('v_lshlrev_b32 v2, 4, v0')
    a(f's_mul_i32 s36, s3, {RK_STRIDE}')
    a('s_add_u32 s37, s36, 4096')
    a('v_cmp_gt_u32 vcc, 255, v0')
    a('s_waitcnt lgkmcnt(0)')
    a('v_cndmask_b32 v32, 0, v32, vcc')
    for e in range(4): a(f'v_lshl_or_b32 v{16+e}, v{24+2*e+1}, 16, v{24+2*e}')
    for e in range(4): a(f'v_lshl_or_b32 v{20+e}, v{24+2*e+2}, 16, v{24+2*e+1}')
    a('buffer_store_dwordx4 v[16:19], v2, s[32:35], s36 offen')
    a('buffer_store_dwordx4 v[20:23], v2, s[32:35], s37 offen')
    a.label('K1_END')
    a('s_endpgm')
    return kernel_desc('k1_kernel', 128)
```

```python
from gen_common import *

def ln_core(a, nch, xp, xf, tmp, nw, v_redw, v_redr, red_off, out_xn, hooks=None):
    n = 8 * nch
    for i in range(4 * nch):
        unpack_lo(a, xf + 2 * i, xp + i); unpack_hi(a, xf + 2 * i + 1, xp + i)
    s = tmp; t1 = tmp + 1
    for k in range(4): a(f'v_add_f32 v{tmp+2+k}, v{xf+k}, v{xf+4+k}')
    for i in range(8, n):
        a(f'v_add_f32 v{tmp+2+(i%4)}, v{tmp+2+(i%4)}, v{xf+i}')
    a(f'v_add_f32 v{tmp+2}, v{tmp+2}, v{tmp+3}')
    a(f'v_add_f32 v{tmp+4}, v{tmp+4}, v{tmp+5}')
    a(f'v_add_f32 v{s}, v{tmp+2}, v{tmp+4}')
    red_l8(a, s, t1)
    a(f'ds_write_b32 v{v_redw}, v{s} offset:{red_off}')
    a('s_waitcnt lgkmcnt(0)')
    if hooks: hooks[0]()
    a('s_barrier')
    if hooks: hooks[1]()
    def gather(off):
        for w in range(nw): a(f'ds_read_b32 v{tmp+2+w}, v{v_redr} offset:{off + w*32}')
        a('s_waitcnt lgkmcnt(0)')
        for w in range(1, nw): a(f'v_add_f32 v{tmp+2}, v{tmp+2}, v{tmp+2+w}')
    gather(red_off)
    mean = tmp
    a(f'v_mul_f32 v{mean}, {f32bits(1.0/576)}, v{tmp+2}')
    acc = [tmp + 2 + k for k in range(4)]
    d = tmp + 6
    for i in range(n):
        a(f'v_sub_f32 v{d + (i%4)}, v{xf+i}, v{mean}')
        if i < 4: a(f'v_mul_f32 v{acc[i]}, v{d+i}, v{d+i}')
        else: a(f'v_fmac_f32 v{acc[i%4]}, v{d+(i%4)}, v{d+(i%4)}')
    a(f'v_add_f32 v{acc[0]}, v{acc[0]}, v{acc[1]}')
    a(f'v_add_f32 v{acc[2]}, v{acc[2]}, v{acc[3]}')
    a(f'v_add_f32 v{t1}, v{acc[0]}, v{acc[2]}')
    red_l8(a, t1, tmp + 6)
    off2 = red_off + nw * 32
    a(f'ds_write_b32 v{v_redw}, v{t1} offset:{off2}')
    round_bf16_1(a, mean, mean)
    a('s_waitcnt lgkmcnt(0)')
    if hooks: hooks[2]()
    a('s_barrier')
    if hooks: hooks[3]()
    gather(off2)
    r = tmp + 1
    a(f'v_mul_f32 v{r}, {f32bits(1.0/576)}, v{tmp+2}')
    round_bf16_1(a, r, r)
    a(f'v_add_f32 v{r}, {f32bits(1e-5)}, v{r}')
    round_bf16_1(a, r, r)
    a(f'v_sqrt_f32 v{r}, v{r}')
    round_bf16_1(a, r, r)
    a(f'v_rcp_f32 v{r}, v{r}')
    for i in range(n): a(f'v_sub_f32 v{xf+i}, v{xf+i}, v{mean}')
    for i in range(4 * nch): a(f'v_cvt_pk_bf16_f32 v{out_xn+i}, v{xf+2*i}, v{xf+2*i+1}')
    for i in range(4 * nch):
        unpack_lo(a, xf + 2 * i, out_xn + i); unpack_hi(a, xf + 2 * i + 1, out_xn + i)
    for i in range(n): a(f'v_mul_f32 v{xf+i}, v{xf+i}, v{r}')
    for i in range(4 * nch): a(f'v_cvt_pk_bf16_f32 v{out_xn+i}, v{xf+2*i}, v{xf+2*i+1}')

N_MOD = 54; N_LN1 = 256; N_KG = 576
import os
N_PF = int(os.environ.get('NPF', '0'))
TLBW = int(os.environ.get('TLBW', '21'))
N_TW = 8 if TLBW else 0
K1_GRID = N_MOD + N_LN1 + N_KG + N_PF + N_TW
K1_LDS = 36864

def gen_k1(a):
    a.raw(kernel_header('k1_kernel'))
    dbgt(a, 0, 0, 'DBGT_1')
    a(f's_cmp_lt_u32 s2, {N_MOD}'); a.branch('s_cbranch_scc1 K1_MOD')
    a(f's_cmp_lt_u32 s2, {N_MOD+N_LN1}'); a.branch('s_cbranch_scc1 K1_LN')
    a(f's_cmp_lt_u32 s2, {N_MOD+N_LN1+N_KG}'); a.branch('s_cbranch_scc1 K1_KG')
    if N_TW:
        a(f's_cmp_ge_u32 s2, {K1_GRID}'); a.branch('s_cbranch_scc1 K1_END')
        load_ptr(a, 4, 'ws'); load_ptr(a, 8, 'w1'); load_ptr(a, 12, 'w3'); load_ptr(a, 16, 'w2'); load_ptr(a, 20, 'out')
        a(f'v_lshlrev_b32 v1, {TLBW}, v0')
        a('s_waitcnt lgkmcnt(0)')
        copy_srd(a, 24, 4, SZ_RK, WS_RK)
        make_srd(a, 4, WS_W2P + SZ_W2P); make_srd(a, 8, 576 * 9216); make_srd(a, 12, 576 * 9216); make_srd(a, 16, 4608 * 1152); make_srd(a, 20, 2048 * 1152)
        r = 8
        span = 256 << TLBW
        for srd, size in ((4, WS_W2P + SZ_W2P), (24, SZ_RK), (8, 576 * 9216), (12, 576 * 9216), (16, 4608 * 1152), (20, 2048 * 1152)):
            for i in range((size + span - 1) // span):
                if i: a(f'v_add_u32 v2, {i * span}, v1')
                a(f'buffer_load_dword v{r}, v{2 if i else 1}, s[{srd}:{srd+3}], 0 offen'); r += 1
        a('s_waitcnt vmcnt(0)')
    if N_PF:
        a(f's_cmp_ge_u32 s2, {K1_GRID}'); a.branch('s_cbranch_scc1 K1_END')
        a(f's_sub_u32 s3, s2, {N_MOD+N_LN1+N_KG}')
        a('s_mul_i32 s8, s3, 911'); a('s_lshr_b32 s8, s8, 16')
        a('s_mul_i32 s9, s8, 72'); a('s_sub_u32 s9, s3, s9')
        a('s_lshl_b32 s8, s8, 3'); a(f's_add_u32 s8, s8, {KA["w1"]}')
        a('s_load_dwordx2 s[4:5], s[0:1], s8')
        a('s_mul_i32 s9, s9, 73728')
        a('v_lshlrev_b32 v1, 4, v0')
        a('s_waitcnt lgkmcnt(0)')
        make_srd(a, 4, 576 * 9216)
        for i in range(18):
            a(f's_add_u32 s10, s9, {i*4096}')
            a(f'buffer_load_dwordx4 v[{8+4*i}:{11+4*i}], v1, s[4:7], s10 offen')
        a('s_waitcnt vmcnt(0)')
    a('s_endpgm')
    a.label('K1_MOD')
    load_ptr(a, 4, 'wmod'); load_ptr(a, 8, 'c'); load_ptr(a, 12, 'ws')
    a('v_and_b32 v1, 7, v0')
    a('v_lshrrev_b32 v2, 3, v0')
    a('v_mul_u32_u24 v3, 36, v2')
    a(f'v_mul_u32_u24 v4, {18*6912}, v2')
    a('v_lshl_add_u32 v4, v1, 4, v4')
    a('s_lshl_b32 s3, s2, 7')
    a('v_add_u32 v4, s3, v4')
    a('s_waitcnt lgkmcnt(0)')
    copy_srd(a, 40, 12, SZ_CNT, WS_CNT)
    make_srd(a, 4, 576 * 6912); make_srd(a, 8, 1152); make_srd(a, 12, SZ_MOD, WS_MOD)
    for i in range(4): a(f'v_mov_b32 v{112+i}, 0')
    a('v_lshlrev_b32 v116, 4, v0'); a('s_lshl_b32 s44, s2, 12'); a('v_add_u32 v116, s44, v116')
    a('buffer_store_dwordx4 v[112:115], v116, s[40:43], 0 offen')
    C = 8; W = 20
    a(f'buffer_load_dwordx4 v[{C}:{C+3}], v3, s[8:11], 0 offen')
    a(f'buffer_load_dwordx4 v[{C+4}:{C+7}], v3, s[8:11], 0 offen offset:16')
    a(f'buffer_load_dword v{C+8}, v3, s[8:11], 0 offen offset:32')
    for i in range(18):
        a(f's_mov_b32 s{16+i}, {i*6912}')
        a(f'buffer_load_dwordx4 v[{W+4*i}:{W+4*i+3}], v4, s[4:7], s{16+i} offen')
    S = 92
    a('s_waitcnt vmcnt(18)')
    for i in range(9):
        unpack_lo(a, S + 2 * i, C + i); unpack_hi(a, S + 2 * i + 1, C + i)
    T = 110
    for i in range(18): a(f'v_mul_f32 v{T+i}, {f32bits(-LOG2E)}, v{S+i}')
    for i in range(18): a(f'v_exp_f32 v{T+i}, v{T+i}')
    for i in range(18): a(f'v_add_f32 v{T+i}, 1.0, v{T+i}')
    for i in range(18): a(f'v_rcp_f32 v{T+i}, v{T+i}')
    for i in range(18): a(f'v_mul_f32 v{S+i}, v{S+i}, v{T+i}')
    for i in range(9): a(f'v_cvt_pk_bf16_f32 v{T+i}, v{S+2*i}, v{S+2*i+1}')
    for i in range(9):
        unpack_lo(a, S + 2 * i, T + i); unpack_hi(a, S + 2 * i + 1, T + i)
    ACC = 110; U = 118
    for i in range(18):
        a(f's_waitcnt vmcnt({17-i})')
        for j in range(4):
            unpack_lo(a, U + 2 * j, W + 4 * i + j); unpack_hi(a, U + 2 * j + 1, W + 4 * i + j)
        for j in range(8):
            if i == 0: a(f'v_mul_f32 v{ACC+j}, v{S+i}, v{U+j}')
            else: a(f'v_fmac_f32 v{ACC+j}, v{S+i}, v{U+j}')
    red_l8_multi(a, [ACC + j for j in range(8)], [U + j for j in range(8)])
    a('v_lshrrev_b32 v5, 6, v0')
    a('v_lshlrev_b32 v5, 8, v5')
    a('v_lshl_add_u32 v5, v1, 5, v5')
    a(f'ds_write_b128 v5, v[{ACC}:{ACC+3}]')
    a(f'ds_write_b128 v5, v[{ACC+4}:{ACC+7}] offset:16')
    a('s_waitcnt lgkmcnt(0)'); a('s_barrier')
    a('v_cmp_gt_u32 vcc, 64, v0')
    a('s_and_saveexec_b64 s[40:41], vcc')
    a.branch('s_cbranch_execz K1_END')
    a('v_lshlrev_b32 v6, 2, v0')
    for w in range(4): a(f'ds_read_b32 v{8+w}, v6 offset:{w*256}')
    a('s_waitcnt lgkmcnt(0)')
    a('v_add_f32 v8, v8, v9'); a('v_add_f32 v10, v10, v11'); a('v_add_f32 v8, v8, v10')
    round_bf16_1(a, 8, 8)
    a('s_lshl_b32 s3, s2, 8')
    a('v_add_u32 v6, s3, v6')
    a('buffer_store_dword v8, v6, s[12:15], 0 offen')
    a('s_endpgm')
    a.label('K1_LN')
    a('v_readfirstlane_b32 s4, v0')
    a('s_cmp_ge_u32 s4, 192'); a.branch('s_cbranch_scc1 K1_END')
    load_ptr(a, 4, 'u'); load_ptr(a, 8, 'ws')
    a(f's_sub_u32 s3, s2, {N_MOD}')
    a('v_and_b32 v1, 7, v0')
    a('v_lshrrev_b32 v2, 3, v0')
    a('v_mul_u32_u24 v3, 1152, v1')
    a('v_lshl_add_u32 v3, v2, 4, v3')
    a('s_mul_i32 s12, s3, 9216')
    a('s_waitcnt lgkmcnt(0)')
    make_srd(a, 4, 2048 * 1152); make_srd(a, 8, SZ_XT, WS_XT)
    XP = 8; XF = 20; TMP = 44; XN = 60
    for i in range(3):
        a(f'buffer_load_dwordx4 v[{XP+4*i}:{XP+4*i+3}], v3, s[4:7], s12 offen offset:{i*24*16}')
    RED = 72 * 288
    a('v_lshrrev_b32 v4, 6, v0')
    a('v_lshlrev_b32 v4, 5, v4')
    a('v_lshl_add_u32 v4, v1, 2, v4')
    a('v_lshlrev_b32 v5, 2, v1')
    a('v_mul_u32_u24 v6, 288, v2')
    a('v_lshl_add_u32 v6, v1, 2, v6')
    a('s_mov_b32 s14, 0x05040100'); a('s_mov_b32 s15, 0x07060302')
    a('s_waitcnt vmcnt(0)')
    ln_core(a, 3, XP, XF, TMP, 3, 4, 5, RED, XN)
    for i in range(3):
        for j in range(4):
            r = 4 * i + j
            a(f'v_perm_b32 v{XF+2*r}, v{XP+r}, v{XN+r}, s14')
            a(f'v_perm_b32 v{XF+2*r+1}, v{XP+r}, v{XN+r}, s15')
        for e in range(8):
            a(f'ds_write_b32 v6, v{XF+8*i+e} offset:{i*24*288 + e*32}')
    a('s_waitcnt lgkmcnt(0)'); a('s_barrier')
    a('v_lshrrev_b32 v1, 4, v0')
    a('v_mul_u32_u24 v1, 288, v1')
    a('v_and_b32 v2, 15, v0')
    a('v_lshl_add_u32 v1, v2, 4, v1')
    a('v_lshlrev_b32 v2, 4, v0')
    a(f's_mul_i32 s12, s3, {XT_STRIDE}')
    for j in range(6): a(f'ds_read_b128 v[{XF+4*j}:{XF+4*j+3}], v1 offset:{j*12*288}')
    for j in range(6):
        a(f's_waitcnt lgkmcnt({5-j})')
        a(f's_add_u32 s13, s12, {j*3072}')
        a(f'buffer_store_dwordx4 v[{XF+4*j}:{XF+4*j+3}], v2, s[8:11], s13 offen')
    a('s_endpgm')
    a.label('K1_KG')
    names = ['A_re', 'A_im', 'B_re', 'B_im', 'C_re', 'C_im']
    for i, nm in enumerate(names): load_ptr(a, 4 + 4 * i, nm)
    load_ptr(a, 28, 'log_dt'); load_ptr(a, 32, 'ws')
    a(f's_sub_u32 s3, s2, {N_MOD+N_LN1}')
    K1IN = int(os.environ.get('K1IN', '0'))
    if K1IN == 2:
        a('s_cmp_ge_u32 s3, 288'); a('s_cselect_b32 s52, 8, 0'); a('s_cselect_b32 s53, 288, 0'); a('s_sub_u32 s53, s3, s53')
        a(f's_add_u32 s52, s52, {KA["w1"]}')
        a('s_load_dwordx2 s[44:45], s[0:1], s52')
        a('s_mul_i32 s53, s53, 18432')
        a('v_lshlrev_b32 v109, 4, v0'); a('v_add_u32 v109, s53, v109')
    elif K1IN == 1:
        load_ptr(a, 44, 'w1')
        a('s_mul_i32 s53, s3, 9216')
        a('v_lshlrev_b32 v109, 4, v0'); a('v_add_u32 v109, s53, v109')
    a('s_and_b32 s36, s3, 7'); a('s_mul_i32 s36, s36, 72'); a('s_lshr_b32 s37, s3, 3'); a('s_add_u32 s3, s36, s37')
    a('v_and_b32 v1, 127, v0')
    a('v_lshlrev_b32 v2, 1, v1')
    a('s_lshl_b32 s36, s3, 8')
    a('s_and_b32 s37, s3, -2'); a('s_lshl_b32 s37, s37, 1')
    a('v_readfirstlane_b32 s38, v0')
    a('s_waitcnt lgkmcnt(0)')
    a('s_load_dword s39, s[28:29], s37')
    for i in range(6): make_srd(a, 4 + 4 * i, 576 * 256)
    make_srd(a, 32, SZ_RK, WS_RK)
    for i in range(6): a(f'buffer_load_ushort v{8+i}, v2, s[{4+4*i}:{7+4*i}], s36 offen')
    NPFI = 0
    if K1IN:
        a(f's_mov_b32 s46, {576*9216}'); a('s_mov_b32 s47, 0x20000')
        full, part = (4, 2048) if K1IN == 2 else (2, 1024)
        for i in range(full):
            a(f'buffer_load_dwordx4 v[96:99], v109, s[44:47], 0 offen offset:0' if i == 0 else f'v_add_u32 v109, 4096, v109')
            if i: a(f'buffer_load_dwordx4 v[96:99], v109, s[44:47], 0 offen')
        a('v_add_u32 v109, 4096, v109')
        a(f'v_mov_b32 v119, 0x7ffffff0'); a(f'v_cmp_gt_u32 vcc, {part//16}, v0'); a('v_cndmask_b32 v109, v119, v109, vcc')
        a(f'buffer_load_dwordx4 v[96:99], v109, s[44:47], 0 offen')
        NPFI = full + 1
    KC = 33792
    GA = 100
    a('v_lshlrev_b32 v3, 3, v0')
    a('v_sub_u32 v3, 2047, v3')
    for e in range(9):
        a(f'v_subrev_u32 v{GA+e}, {e}, v3')
    for e in range(10): a(f'v_cvt_f32_u32 v{110+e}, v{GA+min(e,8)}')
    for e in range(5): a(f'v_cvt_pk_bf16_f32 v{120+e}, v{110+2*e}, v{110+2*e+1}')
    for e in range(4):
        a(f'v_and_b32 v{110+2*e}, 0xffff, v{120+e}')
        a(f'v_lshrrev_b32 v{110+2*e+1}, 16, v{120+e}')
    a('v_and_b32 v118, 0xffff, v124')
    a('v_cmp_gt_u32 vcc, 240, v0')
    for e in range(9): a(f'v_subrev_u32 v{110+e}, 17024, v{110+e}')
    for e in range(8): a(f'v_cndmask_b32 v{GA+e}, v{GA+e}, v{110+e}, vcc')
    a('v_cmp_gt_u32 vcc, 239, v0')
    a(f'v_cndmask_b32 v{GA+8}, v{GA+8}, v118, vcc')
    a(f'v_max_i32 v{GA+8}, 0, v{GA+8}')
    for e in range(9): a(f'v_lshlrev_b32 v{GA+e}, 1, v{GA+e}')
    a('s_lshr_b32 s40, s38, 6')
    a('s_and_b32 s41, s40, 1')
    a('s_lshr_b32 s42, s40, 1')
    a('v_and_b32 v4, 15, v0')
    a('s_lshl_b32 s43, s41, 4')
    a('v_add_u32 v4, s43, v4')
    a('v_bfe_u32 v5, v0, 4, 2')
    KW = 124
    a('s_cmp_eq_u32 s42, 0'); a.branch('s_cbranch_scc0 K1_KG_RT1')
    a('v_lshlrev_b32 v124, 3, v4')
    a('v_lshl_add_u32 v124, v5, 2, v124')
    a('v_lshlrev_b32 v6, 2, v4'); a('v_add_u32 v6, 256, v6')
    a('v_cmp_eq_u32 vcc, 2, v5'); a('v_cndmask_b32 v124, v124, v6, vcc')
    a('v_lshlrev_b32 v6, 1, v4'); a('v_add_u32 v6, 384, v6')
    a('v_cmp_eq_u32 vcc, 3, v5'); a('v_cndmask_b32 v124, v124, v6, vcc')
    a('v_mov_b32 v125, 1')
    a('v_mov_b32 v6, 64'); a('v_cndmask_b32 v126, 2, v6, vcc')
    a.branch('s_branch K1_KG_A')
    a.label('K1_KG_RT1')
    a('v_add_u32 v124, 700, v4')
    a('v_add_u32 v6, 640, v4'); a('v_cmp_eq_u32 vcc, 1, v5'); a('v_cndmask_b32 v124, v124, v6, vcc')
    a('v_add_u32 v6, 512, v4'); a('v_cmp_eq_u32 vcc, 0, v5'); a('v_cndmask_b32 v124, v124, v6, vcc')
    a('v_mov_b32 v6, 32'); a('v_mov_b32 v7, 64'); a('v_cndmask_b32 v125, v7, v6, vcc')
    a('v_lshlrev_b32 v126, 1, v125')
    a.label('K1_KG_A')
    a('v_add_u32 v127, v126, v125')
    a('v_add_u32 v125, v124, v125'); a('v_add_u32 v126, v124, v126'); a('v_add_u32 v127, v124, v127')
    for i in range(4): a(f'v_lshlrev_b32 v{124+i}, 1, v{124+i}')
    a('s_waitcnt lgkmcnt(0)')
    a('s_and_b32 s43, s3, 1'); a('s_lshl_b32 s43, s43, 4'); a('s_lshr_b32 s39, s39, s43'); a('s_lshl_b32 s39, s39, 16')
    a(f'v_mov_b32 v14, s39')
    a(f'v_mul_f32 v14, {f32bits(LOG2E)}, v14')
    a('v_exp_f32 v14, v14')
    round_bf16_1(a, 14, 14)
    a(f's_waitcnt vmcnt({NPFI})')
    for i in range(6): a(f'v_lshlrev_b32 v{8+i}, 16, v{8+i}')
    a('v_mul_f32 v8, v8, v14'); a('v_mul_f32 v9, v9, v14')
    a('v_mul_f32 v10, v10, v14'); a('v_mul_f32 v11, v11, v14')
    a(f'v_mul_f32 v8, {f32bits(LOG2E)}, v8')
    a(f'v_mul_f32 v9, {f32bits(0.15915494309189535)}, v9')
    cmul(a, 16, 12, 10)
    a(f'v_mul_f32 v16, {float(2**KSCALE_LOG2)}, v16'); a(f'v_mul_f32 v17, {float(2**KSCALE_LOG2)}, v17')
    def D(dst, al):
        a(f'v_mul_f32 v4, {float(al)}, v8'); a(f'v_mul_f32 v5, {float(al)}, v9')
        a('v_exp_f32 v4, v4'); a('v_fract_f32 v5, v5')
        a('v_cos_f32 v6, v5'); a('v_sin_f32 v7, v5')
        a(f'v_mul_f32 v{dst}, v4, v6'); a(f'v_mul_f32 v{dst+1}, v4, v7')
    UB = 0; VB = 16896
    a('v_lshlrev_b32 v3, 2, v1')
    def putU(r, src):
        a(f'v_cvt_pk_f16_f32 v2, v{src}, v{src+1}')
        a(f'ds_write_b32 v3, v2 offset:{UB + r*528}')
    def putV(j, src):
        a(f'v_cvt_pk_f16_f32 v2, v{src}, -v{src+1}')
        a(f'ds_write_b32 v3, v2 offset:{VB + j*528}')
    E8, EX, EY, P0, P1 = 18, 20, 22, 24, 26
    a('s_cmp_ge_u32 s38, 128'); a.branch('s_cbranch_scc1 K1_KG_H1')
    D(E8, 8); D(EX, 1); D(EY, 256)
    a(f'v_mov_b32 v{P0}, 1.0'); a(f'v_mov_b32 v{P0+1}, 0')
    putV(0, P0); putV(1, E8)
    cur, nxt = E8, P0
    for j in range(2, 16):
        cmul(a, nxt, cur, E8); putV(j, nxt)
        cur = nxt; nxt = P1 if nxt == P0 else P0
    cur = 16
    for r in range(8):
        if r > 0:
            nxt = P0 if cur != P0 else P1
            cmul(a, nxt, cur, EX); cur = nxt
        putU(r, cur)
        if r % 2 == 0:
            cmul(a, 28, cur, EY); putU(8 + r // 2, 28)
    a.branch('s_branch K1_KG_B')
    a.label('K1_KG_H1')
    D(E8, 8); D(P0, 128); D(EX, 4)
    cmul(a, EY, P0, P0)
    cmul(a, 28, EY, EY)
    cmul(a, 30, 28, 28)
    putV(16, P0)
    cur, nxt = P0, P1
    for j in range(17, 32):
        cmul(a, nxt, cur, E8); putV(j, nxt)
        cur, nxt = nxt, cur
    cmul(a, P0, 16, 28); putU(12, P0)
    cmul(a, P1, P0, EX); putU(13, P1)
    cmul(a, P1, P0, EY); putU(14, P1)
    cmul(a, P0, P1, EX); putU(15, P0)
    cmul(a, P0, 16, 30); putU(16, P0)
    cmul(a, P1, P0, EY); putU(17, P1)
    cmul(a, P0, P1, EY); putU(18, P0)
    cmul(a, P1, P0, EY); putU(19, P1)
    cmul(a, P0, P1, EY); putU(20, P0)
    a.label('K1_KG_B')
    a('v_and_b32 v4, 15, v0'); a('v_bfe_u32 v5, v0, 4, 2')
    a('s_lshl_b32 s43, s42, 4'); a('v_add_u32 v6, s43, v4'); a('v_mul_u32_u24 v6, 528, v6'); a('v_lshl_add_u32 v6, v5, 4, v6')
    a('s_lshl_b32 s43, s41, 4'); a('v_add_u32 v7, s43, v4'); a('v_mul_u32_u24 v7, 528, v7'); a('v_lshl_add_u32 v7, v5, 4, v7')
    a('s_waitcnt lgkmcnt(0)'); a('s_barrier')
    FA = 32; FB = 64
    for s in range(8):
        a(f'ds_read_b128 v[{FA+4*s}:{FA+4*s+3}], v6 offset:{UB + s*64}')
        a(f'ds_read_b128 v[{FB+4*s}:{FB+4*s+3}], v7 offset:{VB + s*64}')
    for s in range(8):
        a(f's_waitcnt lgkmcnt({14-2*s})')
        a(f'v_mfma_f32_16x16x32_f16 v[8:11], v[{FA+4*s}:{FA+4*s+3}], v[{FB+4*s}:{FB+4*s+3}], ' + ('0' if s == 0 else 'v[8:11]'))
    a('v_cvt_pk_f16_f32 v12, v8, v9'); a('v_cvt_pk_f16_f32 v13, v10, v11')
    a(f'ds_write_b16 v124, v12 offset:{KC}'); a(f'ds_write_b16_d16_hi v125, v12 offset:{KC}')
    a(f'ds_write_b16 v126, v13 offset:{KC}'); a(f'ds_write_b16_d16_hi v127, v13 offset:{KC}')
    a('s_waitcnt lgkmcnt(0)'); a('s_barrier')
    for e in range(9):
        a(f'ds_read_u16 v{24+e}, v{GA+e} offset:{KC}')
    a('v_lshlrev_b32 v2, 4, v0')
    a(f's_mul_i32 s36, s3, {RK_STRIDE}')
    a('s_add_u32 s37, s36, 4096')
    a('v_cmp_gt_u32 vcc, 255, v0')
    a('s_waitcnt lgkmcnt(0)')
    a('v_cndmask_b32 v32, 0, v32, vcc')
    for e in range(4): a(f'v_lshl_or_b32 v{16+e}, v{24+2*e+1}, 16, v{24+2*e}')
    for e in range(4): a(f'v_lshl_or_b32 v{20+e}, v{24+2*e+2}, 16, v{24+2*e+1}')
    a('buffer_store_dwordx4 v[16:19], v2, s[32:35], s36 offen')
    a('buffer_store_dwordx4 v[20:23], v2, s[32:35], s37 offen')
    a.label('K1_END')
    a('s_endpgm')
    return kernel_desc('k1_kernel', 128)
```

```python
from gen_common import *
from gen_k1 import ln_core
import os

K2_LDS = 4608 + 32768 + 8320 + 16
K2_RC = 4608 + 32768
K2PF = int(os.environ.get('K2PF', '0')); K3PF = int(os.environ.get('K3PF', '0')); K2IN = int(os.environ.get('K2IN', '1'))
K1IN = int(os.environ.get('K1IN', '0'))
if K1IN == 2: K2IN = 0
K2_GRID = 576 + K2PF; K3_GRID = 256 + K3PF
def gen_k2(a):
    a.raw(kernel_header('k2_kernel'))
    dbgt(a, 1, 1, 'DBGT_2')
    a('s_cmp_ge_u32 s2, 576'); a.branch('s_cbranch_scc1 K2_PF' if K2PF else 's_cbranch_scc1 K2_END')
    stamp(a, 0, 'k2')
    if TK: ticket_begin(a)
    load_ptr(a, 4, 'ws'); load_ptr(a, 24, 'Dskip')
    a('v_readfirstlane_b32 s38, v0'); a('s_lshr_b32 s38, s38, 6')
    a('v_and_b32 v1, 15, v0')
    a('v_bfe_u32 v2, v0, 4, 2')
    if TK: ticket(a, 'k2', 9, 3, K2_LDS - 16, wave_s=38)
    else:
        a('s_and_b32 s36, s2, 7'); a('s_mul_i32 s36, s36, 72'); a('s_lshr_b32 s37, s2, 3'); a('s_add_u32 s3, s36, s37')
    a('s_and_b32 s37, s3, -2'); a('s_lshl_b32 s37, s37, 1')
    a('s_lshl_b32 s39, s3, 2')
    a('s_waitcnt lgkmcnt(0)')
    stamp(a, 1, 'k2')
    a('s_load_dword s40, s[24:25], s37')
    if K2IN and K1IN == 1:
        load_ptr(a, 56, 'w3')
        a('s_mul_i32 s53, s3, 9216')
        a('v_lshlrev_b32 v154, 4, v0'); a('v_add_u32 v154, s53, v154')
    elif K2IN:
        a('s_cmp_ge_u32 s3, 288'); a('s_cselect_b32 s52, 8, 0'); a('s_cselect_b32 s53, 288, 0'); a('s_sub_u32 s53, s3, s53')
        a(f's_add_u32 s52, s52, {KA["w1"]}')
        a('s_load_dwordx2 s[56:57], s[0:1], s52')
        a('s_mul_i32 s53, s53, 18432')
        a('v_lshlrev_b32 v154, 4, v0'); a('v_add_u32 v154, s53, v154')
    copy_srd(a, 8, 4, SZ_RK, WS_RK); copy_srd(a, 12, 4, SZ_XT, WS_XT); copy_srd(a, 16, 4, SZ_X1T, WS_X1T)
    a('s_add_u32 s20, s4, s39'); a('s_addc_u32 s21, s5, 0')
    a(f's_load_dword s41, s[20:21], {WS_MOD}')
    a(f's_load_dword s42, s[20:21], {WS_MOD+2304}')
    a(f's_load_dword s43, s[20:21], {WS_MOD+4608}')
    a('v_lshrrev_b32 v3, 1, v2')
    a('v_lshl_add_u32 v3, v1, 1, v3')
    a(f'v_mul_u32_u24 v3, {XT_STRIDE}, v3')
    a('v_and_b32 v4, 1, v2')
    a('v_lshl_add_u32 v3, v4, 4, v3')
    a(f's_mul_i32 s44, s38, {64*XT_STRIDE}')
    a('s_lshl_b32 s45, s3, 5'); a('s_add_u32 s44, s44, s45')
    a(f's_add_u32 s45, s44, {32*XT_STRIDE}')
    XW = 8
    a(f'buffer_load_dwordx4 v[{XW}:{XW+3}], v3, s[12:15], s44 offen')
    a(f'buffer_load_dwordx4 v[{XW+4}:{XW+7}], v3, s[12:15], s45 offen')
    a('v_and_b32 v4, 63, v0'); a('v_lshlrev_b32 v4, 4, v4')
    a(f's_mul_i32 s46, s3, {RK_STRIDE}')
    a('s_lshl_b32 s47, s38, 10'); a('s_add_u32 s46, s46, s47')
    a(f's_add_u32 m0, s47, {K2_RC}')
    a('buffer_load_dwordx4 v4, s[8:11], s46 offen lds')
    a('s_add_u32 s46, s46, 4096')
    a(f's_add_u32 m0, s47, {K2_RC+4160}')
    a('buffer_load_dwordx4 v4, s[8:11], s46 offen lds')
    a('v_lshlrev_b32 v152, 3, v2'); a('v_sub_u32 v152, v152, v1'); a('v_add_u32 v152, 15, v152')
    a('v_and_b32 v153, 1, v152'); a('v_and_b32 v152, -2, v152'); a('v_lshlrev_b32 v152, 1, v152')
    a('v_mul_u32_u24 v153, 4160, v153'); a('v_add_u32 v152, v152, v153')
    a(f'v_add_u32 v152, {K2_RC}, v152')
    a('s_sub_u32 s47, 7, s38'); a('s_lshl_b32 s47, s47, 9'); a('v_add_u32 v153, s47, v152')
    a('s_lshl_b32 s48, s38, 9'); a('v_add_u32 v152, s48, v152')
    T1 = 32; T2 = 64
    for i in range(4): a(f'v_mov_b32 v{16+i}, 0')
    a('v_lshlrev_b32 v5, 4, v0')
    a('v_cmp_gt_u32 vcc, 30, v0')
    a('s_and_saveexec_b64 s[50:51], vcc')
    a.branch('s_cbranch_execz K2_Z')
    a('ds_write_b128 v5, v[16:19]')
    a('v_cmp_gt_u32 vcc, 4, v0')
    a('s_and_b64 exec, exec, vcc')
    a(f'ds_write_b128 v5, v[16:19] offset:{K2_RC+4096}')
    a(f'ds_write_b128 v5, v[16:19] offset:{K2_RC+4160+4096}')
    a.label('K2_Z')
    a('s_mov_b64 exec, s[50:51]')
    D = 96
    for i in range(32): a(f'v_mov_b32 v{D+i}, 0')
    a('v_lshlrev_b32 v5, 5, v1'); a('v_lshl_add_u32 v5, v2, 3, v5')
    a('s_lshl_b32 s49, s38, 10'); a('v_add_u32 v5, s49, v5')
    a('v_lshlrev_b32 v6, 5, v1'); a('v_lshl_add_u32 v6, v2, 4, v6')
    a('s_waitcnt lgkmcnt(0)')
    a('s_and_b32 s45, s3, 1'); a('s_lshl_b32 s45, s45, 4'); a('s_lshr_b32 s40, s40, s45'); a('s_lshl_b32 s40, s40, 16')
    a('v_mov_b32 v7, s42'); a('v_add_f32 v7, 1.0, v7'); round_bf16_1(a, 7, 7)
    stamp(a, 2, 'k2')
    a('s_waitcnt vmcnt(2)')
    stamp(a, 3, 'k2')
    HF = 16; HD = 24; TP = 28
    for i in range(8): unpack_lo(a, HF + i, XW + i)
    for i in range(8): a(f'v_mul_f32 v{HF+i}, v{HF+i}, v7')
    for i in range(4): a(f'v_cvt_pk_bf16_f32 v{TP+i}, v{HF+2*i}, v{HF+2*i+1}')
    for i in range(4): unpack_lo(a, HF + 2 * i, TP + i); unpack_hi(a, HF + 2 * i + 1, TP + i)
    for i in range(8): a(f'v_add_f32 v{HF+i}, s41, v{HF+i}')
    for i in range(4): a(f'v_cvt_pk_bf16_f32 v{TP+i}, v{HF+2*i}, v{HF+2*i+1}')
    for i in range(4): unpack_lo(a, HF + 2 * i, TP + i); unpack_hi(a, HF + 2 * i + 1, TP + i)
    for i in range(4): a(f'v_cvt_pk_f16_f32 v{TP+i}, v{HF+2*i}, v{HF+2*i+1}')
    a(f'ds_write_b64 v5, v[{TP}:{TP+1}] offset:480')
    a(f'ds_write_b64 v5, v[{TP+2}:{TP+3}] offset:{480+512}')
    for i in range(8): a(f'v_mul_f32 v{HF+i}, s40, v{HF+i}')
    for i in range(4): a(f'v_cvt_pk_bf16_f32 v{HD+i}, v{HF+2*i}, v{HF+2*i+1}')
    a('s_waitcnt vmcnt(0) lgkmcnt(0)'); a('s_barrier')
    if K2IN:
        a(f's_mov_b32 s58, {576*9216}'); a('s_mov_b32 s59, 0x20000')
        for i in range(5 if K1IN == 0 else 3):
            a(f's_mov_b32 s60, {i*4096}')
            if K1IN == 0 and i == 4: a('s_cmp_ge_u32 s38, 2'); a.branch('s_cbranch_scc1 K2_PFS')
            if K1IN == 1 and i == 2: a('s_cmp_ge_u32 s38, 1'); a.branch('s_cbranch_scc1 K2_PFS')
            a(f'buffer_load_dwordx4 v[156:159], v154, s[56:59], s60 offen')
        a.label('K2_PFS')
    for r in range(8):
        a(f'ds_read2_b32 v[{T1+4*r}:{T1+4*r+1}], v153 offset0:{16*r} offset1:{16*r+1}')
        a(f'ds_read2_b32 v[{T1+4*r+2}:{T1+4*r+3}], v153 offset0:{16*r+2} offset1:{16*r+3}')
    for r in range(8):
        a(f'ds_read2_b32 v[{T2+4*r}:{T2+4*r+1}], v152 offset0:{16*r} offset1:{16*r+1}')
        a(f'ds_read2_b32 v[{T2+4*r+2}:{T2+4*r+3}], v152 offset0:{16*r+2} offset1:{16*r+3}')
    a('s_waitcnt lgkmcnt(0)')
    stamp(a, 4, 'k2')
    HB = 128; NH = 6
    for w in range(1, 4):
        a(f's_cmp_eq_u32 s38, {w}'); a.branch(f's_cbranch_scc1 K2_W{w}')
    for w in range(4):
        if w: a.label(f'K2_W{w}')
        gs = [(G, r) for G in range(7, 15 - w) for r in range(8)]
        def rd(k):
            G, r = gs[k]; g = 8 * G + r; b = HB + 4 * (k % NH)
            a(f'ds_read_b128 v[{b}:{b+3}], v6 offset:{64*(g-56)}')
        for k in range(min(NH - 1, len(gs))): rd(k)
        for k, (G, r) in enumerate(gs):
            if k + NH - 1 < len(gs): rd(k + NH - 1)
            outstanding = min(NH - 1, len(gs) - 1 - k)
            a(f's_waitcnt lgkmcnt({outstanding})')
            b = HB + 4 * (k % NH)
            c1 = G - 7 + w
            a(f'v_mfma_f32_16x16x32_f16 v[{D+4*c1}:{D+4*c1+3}], v[{T1+4*r}:{T1+4*r+3}], v[{b}:{b+3}], v[{D+4*c1}:{D+4*c1+3}]')
            if G <= 7 + w:
                c2 = G - w
                a(f'v_mfma_f32_16x16x32_f16 v[{D+4*c2}:{D+4*c2+3}], v[{T2+4*r}:{T2+4*r+3}], v[{b}:{b+3}], v[{D+4*c2}:{D+4*c2+3}]')
        if w < 3: a.branch('s_branch K2_RED')
    a.label('K2_RED')
    stamp(a, 5, 'k2')
    a('v_and_b32 v4, 63, v0'); a('v_lshlrev_b32 v4, 4, v4')
    a('s_lshl_b32 s49, s38, 13'); a('v_add_u32 v5, s49, v4')
    for c in range(8): a(f'ds_write_b128 v5, v[{D+4*c}:{D+4*c+3}] offset:{4608 + c*1024}')
    a('s_lshl_b32 s49, s38, 11'); a('v_add_u32 v4, s49, v4')
    a('s_waitcnt lgkmcnt(0)'); a('s_barrier')
    stamp(a, 6, 'k2')
    PB = 32
    for cc in range(2):
        for w in range(4):
            b = PB + 16 * cc + 4 * w
            a(f'ds_read_b128 v[{b}:{b+3}], v4 offset:{4608 + w*8192 + cc*1024}')
    a('v_lshlrev_b32 v5, 5, v1'); a('v_lshl_add_u32 v5, v2, 3, v5')
    a(f's_mul_i32 s46, s3, {X1T_STRIDE}'); a('s_lshl_b32 s49, s38, 10'); a('s_add_u32 s46, s46, s49')
    for cc in range(2):
        a(f's_waitcnt lgkmcnt({4*(1-cc)})')
        b = PB + 16 * cc
        for i in range(4):
            a(f'v_add_f32 v{b+i}, v{b+i}, v{b+4+i}'); a(f'v_add_f32 v{b+8+i}, v{b+8+i}, v{b+12+i}')
        for i in range(4): a(f'v_add_f32 v{b+i}, v{b+i}, v{b+8+i}')
        for i in range(4): a(f'v_mul_f32 v{b+i}, {f32bits(2.0**-KSCALE_LOG2)}, v{b+i}')
        t = b + 4
        for i in range(2): a(f'v_cvt_pk_bf16_f32 v{t+i}, v{b+2*i}, v{b+2*i+1}')
        for i in range(2): unpack_lo(a, b + 2 * i, t + i); unpack_hi(a, b + 2 * i + 1, t + i)
        for i in range(2): unpack_lo(a, t + 2 + 2 * i, HD + 2 * cc + i); unpack_hi(a, t + 3 + 2 * i, HD + 2 * cc + i)
        for i in range(4): a(f'v_add_f32 v{b+i}, v{b+i}, v{t+2+i}')
        for i in range(2): a(f'v_cvt_pk_bf16_f32 v{t+i}, v{b+2*i}, v{b+2*i+1}')
        for i in range(2): unpack_lo(a, b + 2 * i, t + i); unpack_hi(a, b + 2 * i + 1, t + i)
        for i in range(4): a(f'v_mul_f32 v{b+i}, s43, v{b+i}')
        for i in range(2): a(f'v_cvt_pk_bf16_f32 v{t+i}, v{b+2*i}, v{b+2*i+1}')
        for i in range(2): unpack_lo(a, b + 2 * i, t + i); unpack_hi(a, b + 2 * i + 1, t + i)
        for i in range(4): unpack_hi(a, t + 2 + i, XW + 4 * cc + i)
        for i in range(4): a(f'v_add_f32 v{b+i}, v{b+i}, v{t+2+i}')
        for i in range(2): a(f'v_cvt_pk_bf16_f32 v{t+i}, v{b+2*i}, v{b+2*i+1}')
        a(f'buffer_store_dwordx2 v[{t}:{t+1}], v5, s[16:19], s46 offen offset:{cc*512}')
    stamp(a, 7, 'k2')
    dump_stamps(a, 8, 'k2', 300)
    a.label('K2_END')
    a('s_endpgm')
    if K2PF:
        a.label('K2_PF')
        a(f's_cmp_ge_u32 s2, {576+K2PF}'); a.branch('s_cbranch_scc1 K2_END2')
        a('s_sub_u32 s3, s2, 576')
        a('s_cmp_ge_u32 s3, 72'); a('s_cselect_b32 s8, 8, 0'); a('s_cselect_b32 s9, 72, 0'); a('s_sub_u32 s9, s3, s9')
        a(f's_add_u32 s8, s8, {KA["w1"]}')
        a('s_load_dwordx2 s[4:5], s[0:1], s8')
        a('s_mul_i32 s9, s9, 73728')
        a('v_lshlrev_b32 v1, 4, v0')
        a('s_waitcnt lgkmcnt(0)')
        make_srd(a, 4, 576 * 9216)
        for i in range(18):
            a(f's_add_u32 s10, s9, {i*4096}')
            a(f'buffer_load_dwordx4 v[{8+4*i}:{11+4*i}], v1, s[4:7], s10 offen')
        a('s_waitcnt vmcnt(0)')
        a.label('K2_END2')
        a('s_endpgm')
    return kernel_desc('k2_kernel', 160)

K3_LDS = 9216 + 1024 + 16
def gen_k3(a):
    a.raw(kernel_header('k3_kernel'))
    dbgt(a, 2, 2, 'DBGT_3')
    a('s_cmp_ge_u32 s2, 256'); a.branch('s_cbranch_scc1 K3_PF' if K3PF else 's_cbranch_scc1 K3_END')
    if TK: ticket_begin(a)
    load_ptr(a, 4, 'ws')
    a(f'v_mul_u32_u24 v1, {X1T_STRIDE}, v0')
    a('v_and_b32 v2, 7, v0')
    a('v_lshrrev_b32 v3, 3, v0')
    a('v_lshlrev_b32 v4, 5, v3')
    if TK: ticket(a, 'k3', 4, 3, K3_LDS - 16, vt=(62, 63))
    else:
        a('s_and_b32 s36, s2, 7'); a('s_lshl_b32 s36, s36, 5'); a('s_lshr_b32 s37, s2, 3'); a('s_add_u32 s3, s36, s37')
    a('s_lshl_b32 s20, s3, 4')
    a('s_waitcnt lgkmcnt(0)')
    copy_srd(a, 8, 4, SZ_X1T, WS_X1T); copy_srd(a, 12, 4, SZ_MOD, WS_MOD); copy_srd(a, 16, 4, SZ_XF, WS_XF); copy_srd(a, 24, 4, SZ_X1, WS_X1)
    a('buffer_load_dwordx4 v[8:11], v1, s[8:11], s20 offen')
    CB = 40; SB = 48
    a(f's_mov_b32 s21, {4*2304}'); a(f's_mov_b32 s22, {3*2304}')
    a(f'buffer_load_dwordx4 v[{CB}:{CB+3}], v4, s[12:15], s21 offen')
    a(f'buffer_load_dwordx4 v[{CB+4}:{CB+7}], v4, s[12:15], s21 offen offset:16')
    a(f'buffer_load_dwordx4 v[{SB}:{SB+3}], v4, s[12:15], s22 offen')
    a(f'buffer_load_dwordx4 v[{SB+4}:{SB+7}], v4, s[12:15], s22 offen offset:16')
    a('v_lshlrev_b32 v5, 4, v0')
    a('v_lshrrev_b32 v6, 4, v0'); a('v_lshlrev_b32 v6, 1, v6')
    a('v_bfe_u32 v7, v0, 1, 1'); a('v_add_u32 v6, v6, v7'); a('v_lshlrev_b32 v6, 3, v6')
    a('v_bfe_u32 v7, v0, 2, 2'); a('v_add_u32 v6, v6, v7'); a('v_lshlrev_b32 v6, 4, v6')
    a('v_and_b32 v7, 1, v0'); a('v_lshl_add_u32 v6, v7, 3, v6')
    RED = 9216
    a('v_lshrrev_b32 v12, 6, v0'); a('v_lshlrev_b32 v12, 5, v12'); a('v_lshl_add_u32 v12, v2, 2, v12')
    a('v_lshlrev_b32 v13, 2, v2')
    a('s_waitcnt vmcnt(4)')
    a('ds_write_b128 v5, v[8:11]')
    a('s_waitcnt lgkmcnt(0)'); a('s_barrier')
    XP = 8; XF = 16; TMP = 24; XN = 56
    a(f'ds_read_b64_tr_b16 v[{XP}:{XP+1}], v6')
    a(f'ds_read_b64_tr_b16 v[{XP+2}:{XP+3}], v6 offset:64')
    a('v_mul_u32_u24 v1, 1152, v2'); a('v_lshl_add_u32 v1, v3, 4, v1')
    a('s_mul_i32 s20, s3, 9216')
    a('v_lshrrev_b32 v4, 1, v3'); a('v_lshlrev_b32 v4, 10, v4')
    a('v_and_b32 v5, 1, v3'); a('v_lshl_add_u32 v4, v5, 9, v4'); a('v_lshl_add_u32 v4, v2, 4, v4')
    a('s_lshr_b32 s21, s3, 2'); a(f's_mul_i32 s21, s21, {36*1024}')
    a('s_and_b32 s22, s3, 3'); a('s_lshl_b32 s22, s22, 7'); a('s_add_u32 s21, s21, s22')
    a('s_waitcnt lgkmcnt(0)')
    a(f'buffer_store_dwordx4 v[{XP}:{XP+3}], v1, s[24:27], s20 offen')
    ln_core(a, 1, XP, XF, TMP, 9, 12, 13, RED, XN)
    a('s_waitcnt vmcnt(1)')
    for i in range(4): unpack_lo(a, XF + 2 * i, XN + i); unpack_hi(a, XF + 2 * i + 1, XN + i)
    for i in range(8): a(f'v_add_f32 v{CB+i}, 1.0, v{CB+i}')
    for i in range(4): a(f'v_cvt_pk_bf16_f32 v{TMP+i}, v{CB+2*i}, v{CB+2*i+1}')
    for i in range(4): unpack_lo(a, CB + 2 * i, TMP + i); unpack_hi(a, CB + 2 * i + 1, TMP + i)
    for i in range(8): a(f'v_mul_f32 v{XF+i}, v{XF+i}, v{CB+i}')
    for i in range(4): a(f'v_cvt_pk_bf16_f32 v{TMP+i}, v{XF+2*i}, v{XF+2*i+1}')
    for i in range(4): unpack_lo(a, XF + 2 * i, TMP + i); unpack_hi(a, XF + 2 * i + 1, TMP + i)
    for i in range(8): a(f'v_add_f32 v{XF+i}, v{XF+i}, v{SB+i}')
    for i in range(4): a(f'v_cvt_pk_bf16_f32 v{TMP+i}, v{XF+2*i}, v{XF+2*i+1}')
    a(f'buffer_store_dwordx4 v[{TMP}:{TMP+3}], v4, s[16:19], s21 offen')
    a.label('K3_END')
    a('s_endpgm')
    if K3PF:
        a.label('K3_PF')
        a(f's_cmp_ge_u32 s2, {256+K3PF}'); a.branch('s_cbranch_scc1 K3_END2')
        load_ptr(a, 4, 'w2')
        a('s_sub_u32 s3, s2, 256')
        a('s_mul_i32 s9, s3, 73728')
        a('v_lshlrev_b32 v1, 4, v0')
        a('s_waitcnt lgkmcnt(0)')
        make_srd(a, 4, 4608 * 1152)
        for i in range(8):
            a(f's_add_u32 s10, s9, {i*9216}')
            a(f'buffer_load_dwordx4 v[{8+4*i}:{11+4*i}], v1, s[4:7], s10 offen')
        a('s_waitcnt vmcnt(0)')
        a.label('K3_END2')
        a('s_endpgm')
    return kernel_desc('k3_kernel', 64)
```

```python
from gen_common import *
import os
from gen_k4 import VM, interleave, SLOT, K4_LDS
from gen_k1 import ln_core

LOOP = int(os.environ.get('K34L', '1'))
def gen_k34(a):
    a.raw(kernel_header('k34_kernel'))

    vm = VM(a)
    a('s_cmp_ge_u32 s2, 256'); a.branch('s_cbranch_scc1 K4_END')
    if not TK:
        a('s_and_b32 s36, s2, 7'); a('s_lshl_b32 s36, s36, 5'); a('s_lshr_b32 s37, s2, 3'); a('s_add_u32 s3, s36, s37')
    stamp(a, 0, 'k4')
    if TK: ticket_begin(a)
    load_ptr(a, 4, 'w1'); load_ptr(a, 8, 'w3'); load_ptr(a, 12, 'ws')
    K4W2 = int(os.environ.get('K4W2', '1'))
    if K4W2: load_ptr(a, 24, 'w2')
    a('v_mov_b32 v15, v0')
    a('v_readfirstlane_b32 s39, v0'); a('s_lshr_b32 s39, s39, 6')
    a('v_and_b32 v0, 63, v0')
    a('v_lshrrev_b32 v11, 4, v0'); a('v_mul_u32_u24 v1, 9216, v11')
    a('v_bfe_u32 v12, v0, 2, 2'); a('v_xor_b32 v12, v12, v11'); a('v_lshl_add_u32 v1, v12, 6, v1')
    a('v_and_b32 v12, 3, v0'); a('v_lshl_add_u32 v1, v12, 4, v1')
    a('v_bfe_u32 v12, v0, 2, 2')
    a('v_lshrrev_b32 v13, 5, v0')
    a('v_lshl_add_u32 v13, v13, 3, v12'); a('v_lshlrev_b32 v2, 8, v13')
    a('v_xor_b32 v12, s39, v12'); a('v_lshl_add_u32 v2, v12, 6, v2')
    a('v_bfe_u32 v12, v0, 4, 1'); a('v_lshl_add_u32 v2, v12, 5, v2')
    a('v_and_b32 v12, 3, v0'); a('v_lshl_add_u32 v2, v12, 3, v2')
    a(f'v_add_u32 v4, {3*SLOT}, v2'); a(f'v_add_u32 v3, {2*SLOT}, v2'); a(f'v_add_u32 v2, {SLOT}, v2')
    a('v_lshlrev_b32 v5, 4, v0')
    for s in range(1, 4): a(f'v_add_u32 v{5+s}, {s*SLOT}, v5')
    a('v_bfe_u32 v12, v0, 4, 1'); a('v_lshlrev_b32 v10, 10, v12')
    a('v_lshrrev_b32 v12, 5, v0'); a('v_lshl_add_u32 v10, v12, 8, v10')
    a('v_and_b32 v12, 15, v0'); a('v_lshl_add_u32 v10, v12, 4, v10')
    a('s_mul_i32 s36, s3, 9363'); a('s_lshr_b32 s36, s36, 16')
    a('s_mul_i32 s37, s36, 7'); a('s_sub_u32 s37, s3, s37')
    a('s_mul_i32 s38, s37, 9'); a('s_cmp_gt_u32 s37, 0'); a('s_addc_u32 s38, s38, 0')
    a('s_lshl_b32 s55, s38, 2'); a('s_add_u32 s55, s55, s36')
    a('s_sub_u32 s56, s3, 216')
    a('s_cmp_ge_u32 s3, 252')
    a('s_cselect_b32 s55, s56, s55'); a('s_cselect_b32 s36, 0, s36'); a('s_cselect_b32 s37, 0, s37'); a('s_cselect_b32 s38, 0, s38')
    a('s_lshl_b32 s40, s36, 8')
    a(f's_mul_i32 s41, s39, {16*9216}'); a('s_add_u32 s40, s40, s41')
    a('s_lshl_b32 s42, s39, 12')
    a(f's_mul_i32 s43, s38, {SLOT}'); a('s_mul_i32 s44, s39, 9216'); a('s_add_u32 s43, s43, s44')
    a('s_lshl_b32 s45, s36, 2'); a('s_add_u32 s45, s45, s39'); a('s_lshl_b32 s45, s45, 7'); a('s_lshl_b32 s46, s38, 1'); a('s_add_u32 s45, s45, s46'); a('s_lshl_b32 s45, s45, 10')
    a('s_mov_b32 s47, 0xffff0000'); a(f's_mov_b32 s48, {f32bits(-LOG2E)}')
    a('s_waitcnt lgkmcnt(0)')
    make_srd(a, 4, 576 * 9216); make_srd(a, 8, 576 * 9216)
    copy_srd(a, 16, 12, SZ_XF, WS_XF); copy_srd(a, 20, 12, SZ_HH, WS_HH)
    if K4W2:
        make_srd(a, 24, 4608 * 1152)
        a('s_mul_i32 s53, s3, 21504'); a('s_lshl_b32 s54, s39, 10'); a('s_add_u32 s53, s53, s54')
        a('v_lshlrev_b32 v14, 4, v0'); a('v_add_u32 v14, s53, v14')
    def w_dma(st):
        slot = 1 + st % 3
        for mat in range(2):
            for q in range(4):
                a(f's_add_u32 m0, s42, {slot*SLOT + mat*16384 + q*1024}')
                a(f's_add_u32 s49, s40, {(64*st + 4*q)*9216}')
                vm.issue(f'W{st}', f'buffer_load_dwordx4 v1, s[{4+4*mat}:{7+4*mat}], s49 offen lds')
    def x_dma_list(i):
        slot = i % 4; L = []
        for q in range(3):
            L.append(f's_add_u32 m0, s44, {slot*SLOT + q*4096}')
            L.append(f's_add_u32 s49, s43, {i*SLOT + q*4096}')
            for r in range(4 if q < 2 else 1):
                L.append(lambda r=r: vm.issue(f'X{i}', f'buffer_load_dwordx4 v5, s[16:19], s49 offen offset:{r*1024} sc1 lds'))
        return L
    def run(L):
        for f in L: f() if callable(f) else a(f)
    XB = 16; WV = 40; ACC = 72; TMP = 136
    def wreg(k, mat):
        if k < 32: b = 8 * k + 4 * mat; return 'a', b
        b = WV + 8 * (k - 32) + 4 * mat; return 'v', b
    def xread(i, k):
        n = 36 * i + k; b = XB + 4 * (n % 6)
        return f'ds_read_b128 v[{b}:{b+3}], v{5 + i % 4} offset:{k*1024}'
    def mfma(i, k, mat):
        n = 36 * i + k; b = XB + 4 * (n % 6)
        t, wb = wreg(k, mat); acc = ACC + 32 * (i % 2) + 16 * mat
        c = '0' if k == 0 else f'v[{acc}:{acc+15}]'
        return f'v_mfma_f32_32x32x16_bf16 v[{acc}:{acc+15}], {t}[{wb}:{wb+3}], v[{b}:{b+3}], {c}'
    def epilogue_list(i):
        g = ACC + 32 * (i % 2); u = g + 16; L = []
        G = TMP; E = TMP + 8; U = TMP + 16; PK = TMP + 24;
        for p in range(2):
            P = TMP + 28 + 4 * p
            o = 8 * p
            for j in range(4): L.append(f'v_cvt_pk_bf16_f32 v{PK+j}, v{g+o+2*j}, v{g+o+2*j+1}')
            for j in range(4):
                L.append(f'v_lshlrev_b32 v{G+2*j}, 16, v{PK+j}'); L.append(f'v_and_b32 v{G+2*j+1}, s47, v{PK+j}')
            for j in range(8): L.append(f'v_mul_f32 v{E+j}, s48, v{G+j}')
            for j in range(8): L.append(f'v_exp_f32 v{E+j}, v{E+j}')
            for j in range(4): L.append(f'v_cvt_pk_bf16_f32 v{PK+j}, v{u+o+2*j}, v{u+o+2*j+1}')
            for j in range(8): L.append(f'v_add_f32 v{E+j}, 1.0, v{E+j}')
            for j in range(8): L.append(f'v_rcp_f32 v{E+j}, v{E+j}')
            for j in range(4):
                L.append(f'v_lshlrev_b32 v{U+2*j}, 16, v{PK+j}'); L.append(f'v_and_b32 v{U+2*j+1}, s47, v{PK+j}')
            for j in range(8): L.append(f'v_mul_f32 v{G+j}, v{G+j}, v{E+j}')
            for j in range(4): L.append(f'v_cvt_pk_bf16_f32 v{PK+j}, v{G+2*j}, v{G+2*j+1}')
            for j in range(4):
                L.append(f'v_lshlrev_b32 v{G+2*j}, 16, v{PK+j}'); L.append(f'v_and_b32 v{G+2*j+1}, s47, v{PK+j}')
            for j in range(8): L.append(f'v_mul_f32 v{G+j}, v{G+j}, v{U+j}')
            for j in range(4): L.append(f'v_cvt_pk_bf16_f32 v{P+j}, v{G+2*j}, v{G+2*j+1}')
            if p == 0: L.append(f's_add_u32 s50, s45, {i*2048}')
            L.append(lambda P=P, p=p: vm.issue(f'S{i}', f'buffer_store_dwordx4 v[{P}:{P+3}], v10, s[20:23], s50 offen offset:{p*512}' + os.environ.get('STMOD', ' sc1')))
        return L
    PF = os.environ.get('K4PF', '0')
    if PF != '0':
        a('s_lshl_b32 s51, s37, 8'); a('s_lshl_b32 s52, s39, 6'); a('s_add_u32 s51, s51, s52')
        a('v_add_u32 v11, s51, v0')
        a('v_lshrrev_b32 v12, 1, v11'); a('v_mul_u32_u24 v12, 9216, v12')
        a('v_and_b32 v11, 1, v11'); a('v_lshl_add_u32 v12, v11, 7, v12')
        a('s_lshl_b32 s51, s36, 8')
        vm.issue('PF', 'buffer_load_dword v13, v12, s[4:7], s51 offen')
        vm.issue('PF', 'buffer_load_dword v14, v12, s[8:11], s51 offen')
        if PF == '2':
            vm.issue('PF', 'buffer_load_dword v13, v12, s[4:7], s51 offen offset:64')
            vm.issue('PF', 'buffer_load_dword v14, v12, s[8:11], s51 offen offset:64')
    def w_reads(st):
        slot = 1 + st % 3
        for kk in range(4):
            k = 4 * st + kk
            for mat in range(2):
                t, wb = wreg(k, mat)
                off = mat * 16384 + kk * 4096
                a(f'ds_read_b64_tr_b16 {t}[{wb}:{wb+1}], v{1+slot} offset:{off}')
                a(f'ds_read_b64_tr_b16 {t}[{wb+2}:{wb+3}], v{1+slot} offset:{off+1024}')
    XL = 16; XP = 28; XFv = 72; LT = 96; XN = 112; CB = 124; SB = 148
    RED = 9216
    copy_srd(a, 28, 12, SZ_X1T, WS_X1T); copy_srd(a, 32, 12, SZ_MOD, WS_MOD); copy_srd(a, 64, 12, SZ_X1, WS_X1)
    copy_srd(a, 68, 12, 4096, WS_CNT + CNT_OFF['k4'])
    a('s_lshl_b32 s57, s55, 4')
    for i in range(3):
        a(f'v_add_u32 v{11+i}, {256*i}, v15'); a(f'v_mul_u32_u24 v{11+i}, {X1T_STRIDE}, v{11+i}')
    for i in range(3): vm.issue('XL', f'buffer_load_dwordx4 v[{XL+4*i}:{XL+4*i+3}], v{11+i}, s[28:31], s57 offen')
    w_dma(0); w_dma(1); w_dma(2)
    a('v_lshrrev_b32 v172, 4, v15'); a('v_lshlrev_b32 v172, 1, v172')
    a('v_bfe_u32 v11, v15, 1, 1'); a('v_add_u32 v172, v172, v11'); a('v_lshlrev_b32 v172, 3, v172')
    a('v_bfe_u32 v11, v15, 2, 2'); a('v_add_u32 v172, v172, v11'); a('v_lshlrev_b32 v172, 4, v172')
    a('v_and_b32 v11, 1, v15'); a('v_lshl_add_u32 v172, v11, 3, v172')
    a('v_and_b32 v11, 7, v15'); a('v_lshrrev_b32 v12, 3, v15')
    a('v_mul_u32_u24 v173, 1152, v11'); a('v_lshl_add_u32 v173, v12, 4, v173')
    a('v_lshrrev_b32 v174, 1, v12'); a('v_lshlrev_b32 v174, 10, v174')
    a('v_and_b32 v13, 1, v12'); a('v_lshl_add_u32 v174, v13, 9, v174'); a('v_lshl_add_u32 v174, v11, 4, v174')
    a('v_lshlrev_b32 v175, 5, v12')
    a('v_lshlrev_b32 v13, 2, v11')
    a('s_lshl_b32 s58, s39, 5'); a('v_add_u32 v12, s58, v13')
    a('v_lshlrev_b32 v11, 4, v15')
    a('s_mul_i32 s58, s55, 9216')
    a('s_lshr_b32 s59, s55, 2'); a(f's_mul_i32 s59, s59, {36*1024}'); a('s_and_b32 s60, s55, 3'); a('s_lshl_b32 s60, s60, 7'); a('s_add_u32 s59, s59, s60')
    a(f's_mov_b32 s61, {4*2304}'); a(f's_mov_b32 s62, {3*2304}')
    vm.wait('XL')
    a(f'ds_write_b128 v11, v[{XL}:{XL+3}]'); a(f'ds_write_b128 v11, v[{XL+4}:{XL+7}] offset:4096')
    a('s_cmp_lg_u32 s39, 0'); a.branch('s_cbranch_scc1 K34_NW3')
    a(f'ds_write_b128 v11, v[{XL+8}:{XL+11}] offset:8192')
    a.label('K34_NW3')
    vm.wait('W0', ' lgkmcnt(0)'); a('s_barrier')
    stamp(a, 1, 'k4')
    base_ops = list(vm.ops)
    a('s_cmp_eq_u32 s39, 3'); a.branch('s_cbranch_scc1 K34_AUX')
    for i in range(3):
        vm.issue('M', f'buffer_load_dwordx4 v[{CB+8*i}:{CB+8*i+3}], v175, s[32:35], s61 offen offset:{768*i}')
        vm.issue('M', f'buffer_load_dwordx4 v[{CB+8*i+4}:{CB+8*i+7}], v175, s[32:35], s61 offen offset:{768*i+16}')
        vm.issue('M', f'buffer_load_dwordx4 v[{SB+8*i}:{SB+8*i+3}], v175, s[32:35], s62 offen offset:{768*i}')
        vm.issue('M', f'buffer_load_dwordx4 v[{SB+8*i+4}:{SB+8*i+7}], v175, s[32:35], s62 offen offset:{768*i+16}')
    for i in range(3):
        a(f'ds_read_b64_tr_b16 v[{XP+4*i}:{XP+4*i+1}], v172 offset:{3072*i}')
        a(f'ds_read_b64_tr_b16 v[{XP+4*i+2}:{XP+4*i+3}], v172 offset:{3072*i+64}')
    w_reads(0)
    a('s_waitcnt lgkmcnt(15)')
    for i in range(3): vm.issue('X1S', f'buffer_store_dwordx4 v[{XP+4*i}:{XP+4*i+3}], v173, s[64:67], s58 offen offset:{384*i}')
    def pre2(): vm.wait('W1')
    def post2(): w_dma(3); w_reads(1)
    def pre3(): vm.wait('W2')
    def post3(): w_dma(4); w_reads(2)
    ln_core(a, 3, XP, XFv, LT, 3, 12, 13, RED, XN, hooks=(pre2, post2, pre3, post3))
    vm.wait('M')
    n = 24
    for i in range(12): unpack_lo(a, XFv + 2 * i, XN + i); unpack_hi(a, XFv + 2 * i + 1, XN + i)
    for i in range(n): a(f'v_add_f32 v{CB+i}, 1.0, v{CB+i}')
    for i in range(12): a(f'v_cvt_pk_bf16_f32 v{LT+i}, v{CB+2*i}, v{CB+2*i+1}')
    for i in range(12): unpack_lo(a, CB + 2 * i, LT + i); unpack_hi(a, CB + 2 * i + 1, LT + i)
    for i in range(n): a(f'v_mul_f32 v{XFv+i}, v{XFv+i}, v{CB+i}')
    for i in range(12): a(f'v_cvt_pk_bf16_f32 v{LT+i}, v{XFv+2*i}, v{XFv+2*i+1}')
    for i in range(12): unpack_lo(a, XFv + 2 * i, LT + i); unpack_hi(a, XFv + 2 * i + 1, LT + i)
    for i in range(n): a(f'v_add_f32 v{XFv+i}, v{XFv+i}, v{SB+i}')
    for i in range(12): a(f'v_cvt_pk_bf16_f32 v{LT+i}, v{XFv+2*i}, v{XFv+2*i+1}')
    for i in range(3):
        a(f's_add_u32 s60, s59, {12288*i}')
        vm.issue('XFS', f'buffer_store_dwordx4 v[{LT+4*i}:{LT+4*i+3}], v174, s[16:19], s60 offen sc1')
    a('s_waitcnt lgkmcnt(0)'); a('s_barrier')
    w_dma(5)
    vm.wait('XFS')
    a.branch('s_branch K34_JOIN')
    a.label('K34_AUX')
    vm.ops = list(base_ops)
    w_reads(0); a('s_waitcnt lgkmcnt(0)'); vm.wait('W1'); a('s_barrier')
    w_dma(3); w_reads(1); a('s_waitcnt lgkmcnt(0)'); vm.wait('W2'); a('s_barrier')
    w_dma(4); w_reads(2); a('s_waitcnt lgkmcnt(0)'); a('s_barrier')
    w_dma(5)
    a.label('K34_JOIN')
    vm.ops = ['W3'] * 8 + ['W4'] * 8 + ['W5'] * 8
    a('s_barrier')
    stamp(a, 2, 'k4')
    a('s_cmp_lg_u32 s39, 0'); a.branch('s_cbranch_scc1 K34_NS')
    a('s_lshl_b32 s63, s37, 7')
    a('s_mov_b64 exec, 1'); a('v_mov_b32 v11, 1')
    a('buffer_atomic_add v11, off, s[68:71], s63 sc1')
    a('s_mov_b64 exec, -1')
    a.label('K34_NS')
    a('s_cmp_ge_u32 s3, 252'); a.branch('s_cbranch_scc1 K34_HEND')
    def nonloop():
        def tile(i):
            mf = [];
            fill = epilogue_list(i - 1) if i else []
            dma = x_dma_list(i + 3) if 0 < i <= 6 else []
            if K4W2 and 1 <= i <= 6:
                dma = dma + [f'v_add_u32 v13, {(i-1)*4096}, v14', lambda: vm.issue('PW', 'buffer_load_dwordx4 v[172:175], v13, s[24:27], 0 offen')]
            X = os.environ.get('K4X', '')
            if 'noepi' in X: fill = [f for f in fill if callable(f) or f.startswith('s_')]
            if 'nost' in X: fill = [f for f in fill if not callable(f)]
            if 'notrans' in X: fill = [f for f in fill if callable(f) or not ('exp' in f or 'rcp' in f)]
            for k in range(36):
                pre = []
                if k == 32 and i + 1 <= 9:
                    pre.append(lambda: vm.wait(f'X{i+1}'))
                    if 'nobar' not in X: pre.append('s_barrier')
                pre.append(xread(i, k + 4) if k + 4 < 36 else xread(i + 1, k + 4 - 36))
                pre.append('s_waitcnt lgkmcnt(4)')
                pre.append(mfma(i, k, 0))
                mf.append(pre); mf.append([mfma(i, k, 1)])
            interleave(a, mf[:64], fill)
            interleave(a, mf[64:], dma)
        stamp(a, 4, 'k4')
        for i in range(0, 9):
            tile(i)
            if i in (1, 4):
                stamp(a, {1:5,4:6}[i], 'k4')
                if 'k4' in STAMPS: a('s_waitcnt lgkmcnt(0)')
        a('s_cmp_eq_u32 s37, 0'); a.branch('s_cbranch_scc1 K4_T9')
        saved = list(vm.ops)
        run(epilogue_list(8))
        stamp(a, 7, 'k4')
        a('v_mov_b32 v0, v15')
        dump_stamps(a, 8, 'k4', 101)
        a('s_endpgm')
        vm.ops = saved
        a.label('K4_T9')
        tile(9)
        run(epilogue_list(9))
        a.label('K4_END')
        a('s_endpgm')

    for st in range(3, 9):
        vm.wait(f'W{st}')
        a('s_barrier')
        w_reads(st)
        a('s_waitcnt lgkmcnt(0)')
        if st == 5:
            a('s_cmp_lg_u32 s39, 0'); a.branch('s_cbranch_scc1 K34_PD')
            a('s_cmp_eq_u32 s37, 0'); a('s_cselect_b32 s56, 40, 36')
            a('s_mov_b32 s57, 0')
            a.label('K34_PL')
            a('buffer_load_dword v11, off, s[68:71], s63 sc1')
            a('s_waitcnt vmcnt(0)')
            a('v_readfirstlane_b32 s58, v11')
            a('s_cmp_ge_u32 s58, s56'); a.branch('s_cbranch_scc1 K34_PD')
            a('s_sleep 2')
            a('s_add_u32 s57, s57, 1'); a('s_cmp_lt_u32 s57, 0x10000'); a.branch('s_cbranch_scc1 K34_PL')
            a.label('K34_PD')
        a('s_barrier')
        if st < 6: w_dma(st + 3)
        if st == 5: stamp(a, 3, 'k4'); run(x_dma_list(0))
        if LOOP:
            if st in (6, 7):
                run(x_dma_list(st - 5))
                a('v_mov_b32 v13, 0x7ffffff0')
                for _ in range(2 if W2P else 1): vm.issue('PW', 'buffer_load_dwordx4 v[172:175], v13, s[24:27], 0 offen')
        elif st >= 6: run(x_dma_list(st - 5))
    if LOOP:
        BIG = 0x40000000
        a('v_mov_b32 v2, v5'); a(f'v_add_u32 v3, {SLOT}, v5'); a('v_mov_b32 v1, 0x7ffffff0')
        a('s_mov_b32 s55, 0')
        a('s_cmp_eq_u32 s37, 0'); a('s_cselect_b32 s56, 6, 5'); a('s_cselect_b32 s61, 99, 8')
        a(f's_mov_b32 s57, {3*SLOT}'); a('s_mov_b32 s58, 0'); a('s_mov_b32 s60, 0')
        a(f's_add_u32 s43, s43, {3*SLOT}'); a('s_sub_u32 s45, s45, 2048')
        if W2P:
            copy_srd(a, 32, 12, SZ_W2P, WS_W2P)
            a('s_mov_b32 s28, 0x38e38e39'); a('s_mov_b32 s29, 8928'); a('s_mov_b32 s30, 288'); a('s_mov_b32 s31, 27648')
    vm.wait('X0'); a('s_barrier')
    for k in range(4): a(xread(0, k))
    if LOOP:
        def lxread(par, k, nxt):
            b = XB + 4 * (k % 6); r = 2 + (par ^ nxt)
            return f'ds_read_b128 v[{b}:{b+3}], v{r} offset:{k*1024}'
        def lepi(par):
            L = []
            for f in epilogue_list(par):
                if callable(f): continue
                L.append(f)
            return L
        def lepi_full(par, vo):
            g = ACC + 32 * par; u = g + 16; L = []
            G = TMP; E = TMP + 8; U = TMP + 16; PK = TMP + 24
            for p in range(2):
                P = TMP + 28 + 4 * p
                o = 8 * p
                for j in range(4): L.append(f'v_cvt_pk_bf16_f32 v{PK+j}, v{g+o+2*j}, v{g+o+2*j+1}')
                for j in range(4):
                    L.append(f'v_lshlrev_b32 v{G+2*j}, 16, v{PK+j}'); L.append(f'v_and_b32 v{G+2*j+1}, s47, v{PK+j}')
                for j in range(8): L.append(f'v_mul_f32 v{E+j}, s48, v{G+j}')
                for j in range(8): L.append(f'v_exp_f32 v{E+j}, v{E+j}')
                for j in range(4): L.append(f'v_cvt_pk_bf16_f32 v{PK+j}, v{u+o+2*j}, v{u+o+2*j+1}')
                for j in range(8): L.append(f'v_add_f32 v{E+j}, 1.0, v{E+j}')
                for j in range(8): L.append(f'v_rcp_f32 v{E+j}, v{E+j}')
                for j in range(4):
                    L.append(f'v_lshlrev_b32 v{U+2*j}, 16, v{PK+j}'); L.append(f'v_and_b32 v{U+2*j+1}, s47, v{PK+j}')
                for j in range(8): L.append(f'v_mul_f32 v{G+j}, v{G+j}, v{E+j}')
                for j in range(4): L.append(f'v_cvt_pk_bf16_f32 v{PK+j}, v{G+2*j}, v{G+2*j+1}')
                for j in range(4):
                    L.append(f'v_lshlrev_b32 v{G+2*j}, 16, v{PK+j}'); L.append(f'v_and_b32 v{G+2*j+1}, s47, v{PK+j}')
                for j in range(8): L.append(f'v_mul_f32 v{G+j}, v{G+j}, v{U+j}')
                for j in range(4): L.append(f'v_cvt_pk_bf16_f32 v{P+j}, v{G+2*j}, v{G+2*j+1}')
                L.append(f'buffer_store_dwordx4 v[{P}:{P+3}], v{vo}, s[20:23], s45 offen offset:{p*512}' + os.environ.get('STMOD', ' sc1'))
            return L
        def ltile(par):
            fill = lepi_full(par ^ 1, 1 if par == 0 else 10) + ['s_add_u32 s45, s45, 2048']
            if par == 1: fill.append('v_mov_b32 v1, v10')
            Q = 172 if (par == 0 or not W2P) else 6
            if W2P:
                ad = ['s_sub_u32 s62, s60, 8192', 'v_add_u32 v11, s62, v14', 'v_lshrrev_b32 v12, 7, v11', 'v_mul_hi_u32 v12, v12, s28',
                      'v_lshrrev_b32 v12, 1, v12', 'v_lshrrev_b32 v11, 4, v11', 'v_mul_u32_u24 v0, 72, v12', 'v_sub_u32 v11, v11, v0',
                      'v_mul_u32_u24 v0, 3641, v11', 'v_lshrrev_b32 v0, 16, v0', 'v_lshlrev_b32 v11, 4, v11',
                      'v_mad_u32_u24 v11, v0, s29, v11', 'v_mad_u32_u24 v11, v12, s30, v11', 'v_lshrrev_b32 v12, 5, v12', 'v_mad_u32_u24 v11, v12, s31, v11',
                      lambda: (a('s_sub_u32 s62, s55, 2'), a('s_cmp_lt_u32 s62, 6'), a('s_cselect_b64 vcc, -1, 0'), a('v_mov_b32 v13, 0x7ffffff0'), a('v_cndmask_b32 v11, v13, v11, vcc'))]
                step = max(1, len(fill) // (len(ad) + 1)); nf = []
                for n_, f_ in enumerate(fill):
                    nf.append(f_)
                    if n_ % step == step - 1 and ad: nf.append(ad.pop(0))
                fill = nf + ad
            ss = 57 + par
            dma = [f'v_xor_b32 v{2+par}, 0x12000, v{2+par}',
                   's_cmp_le_u32 s55, s56', f's_cselect_b32 s59, 0, {BIG}', 'v_add_u32 v4, s59, v5', f's_add_u32 s52, s44, s{ss}']
            for q in range(3):
                dma.append(f's_add_u32 m0, s52, {q*4096}'); dma.append(f's_add_u32 s49, s43, {q*4096}')
                for r in range(4 if q < 2 else 1):
                    dma.append(f'buffer_load_dwordx4 v4, s[16:19], s49 offen offset:{r*1024} sc1 lds')
            if W2P: dma.append(f'buffer_store_dwordx4 v[{Q}:{Q+3}], v11, s[32:35], 0 offen sc1')
            dma += ['s_cmp_le_u32 s55, 5', f's_cselect_b32 s59, s60, {BIG}', 'v_add_u32 v13, s59, v14',
                    f'buffer_load_dwordx4 v[{Q}:{Q+3}], v13, s[24:27], 0 offen',
                    's_add_u32 s60, s60, 4096', f's_xor_b32 s{ss}, s{ss}, 0x12000', f's_add_u32 s43, s43, {SLOT}']
            mf = []
            for k in range(36):
                pre = []
                if k == 32: pre += [f's_waitcnt vmcnt({15 if W2P else 13})', 's_barrier']
                pre.append(lxread(par, k + 4, 0) if k + 4 < 36 else lxread(par, k + 4 - 36, 1))
                pre.append('s_waitcnt lgkmcnt(4)')
                pre.append(mfma(par, k, 0))
                mf.append(pre); mf.append([mfma(par, k, 1)])
            interleave(a, mf[:64], fill)
            interleave(a, mf[64:], dma)
        stamp(a, 4, 'k4')
        main = a
        def body():
            ltile(0)
            a('s_cmp_eq_u32 s55, s61'); a('s_cbranch_scc1 K34_F0')
            a('s_add_u32 s55, s55, 1')
            ltile(1)
            a('s_add_u32 s55, s55, 1')
            a('s_cmp_lt_u32 s55, 10'); a('s_cbranch_scc1 K34_LOOP')
        sv = (a.lines, a.hist, a.nops, a.count); a.lines = []; a.hist = []
        body(); h = list(a.hist)
        a.lines, a.hist, a.nops, a.count = sv
        a.label_h('K34_LOOP', h)
        body()
        run(lepi_full(1, 10))
        a('s_waitcnt vmcnt(0)')
        a('s_endpgm')
        a.label('K34_F0')
        a('s_nop 11')
        run(lepi_full(0, 10))
        stamp(a, 7, 'k4')
        a('v_mov_b32 v0, v15')
        dump_stamps(a, 8, 'k4', 101)
        a('s_waitcnt vmcnt(0)')
        a.label('K4_END')
        a('s_endpgm')
    else:
        nonloop()
    a.label('K34_HEND')
    a('s_waitcnt vmcnt(0)')
    a('s_endpgm')
    return kernel_desc('k34_kernel', 176 + 256, accum=176)
```

```python
from gen_common import *
from gen_k4 import VM, interleave
import os

ST5 = 17408; NS5 = 9
K5L = int(os.environ.get('K5L', '0'))
K5_LDS = ST5 * NS5 + 16
K5A = int(os.environ.get('K5A', '1'))
def gen_k5(a):
    if K5A: return gen_k5a(a)
    a.raw(kernel_header('k5_kernel'))
    dbgt(a, 4, 4, 'DBGT_5')
    vm = VM(a)
    a('s_cmp_ge_u32 s2, 256'); a.branch('s_cbranch_scc1 K5_END')
    stamp(a, 0, 'k5')
    if TK: ticket_begin(a)
    load_ptr(a, 4, 'w2'); load_ptr(a, 12, 'ws')
    a('v_mov_b32 v15, v0')
    a('v_readfirstlane_b32 s35, v0'); a('s_lshr_b32 s35, s35, 6')
    a('s_and_b32 s39, s35, 3')
    a('v_and_b32 v0, 63, v0')
    a('v_lshlrev_b32 v1, 4, v0')
    a('s_mul_i32 s40, s39, 144')
    for q in range(3):
        a(f's_add_u32 s41, s40, {48*q}')
        a('v_add_u32 v10, s41, v0')
        a('v_mul_u32_u24 v11, 3641, v10'); a('v_lshrrev_b32 v11, 16, v11')
        a('v_mul_u32_u24 v12, 18, v11'); a('v_sub_u32 v12, v10, v12')
        a(f'v_mul_u32_u24 v{2+q}, 1152, v11'); a(f'v_lshl_add_u32 v{2+q}, v12, 4, v{2+q}')
    a('v_lshrrev_b32 v10, 5, v0'); a('v_lshlrev_b32 v10, 4, v10')
    a('v_bfe_u32 v11, v0, 4, 1'); a('v_lshl_add_u32 v10, v11, 2, v10')
    a('v_bfe_u32 v11, v0, 2, 2'); a('v_add_u32 v10, v10, v11'); a('v_mul_u32_u24 v5, 288, v10')
    a('v_and_b32 v11, 3, v0'); a('v_lshl_add_u32 v5, v11, 3, v5'); a('v_add_u32 v5, 8192, v5')
    a('s_lshl_b32 s40, s39, 11'); a('v_add_u32 v6, s40, v1')
    if TK:
        ticket(a, 'k5', 4, 3, K5_LDS - 16, wave_s=35)
        a('s_lshr_b32 s36, s3, 5'); a('s_and_b32 s37, s3, 31')
    else:
        a('s_and_b32 s36, s2, 7'); a('s_lshr_b32 s37, s2, 3')
    a('s_and_b32 s38, s36, 3')
    a('s_lshr_b32 s36, s36, 2'); a('s_lshl_b32 s36, s36, 3'); a('s_lshr_b32 s43, s37, 2'); a('s_add_u32 s36, s36, s43')
    a('s_and_b32 s37, s37, 3')
    a(f's_mul_i32 s41, s38, {36*131072}'); a('s_lshl_b32 s42, s36, 13'); a('s_add_u32 s41, s41, s42'); a('s_add_u32 s41, s41, s40')
    a(f's_mul_i32 s42, s38, {36*36864}'); a('s_mul_i32 s43, s37, 288'); a('s_add_u32 s42, s42, s43')
    a('s_mul_i32 s43, s39, 2304')
    a('s_mov_b32 s44, -1'); a('s_mov_b32 s45, 0xffff')
    a('s_waitcnt lgkmcnt(0)')
    make_srd(a, 4, 4608 * 1152)
    copy_srd(a, 16, 12, SZ_HH, WS_HH); copy_srd(a, 20, 12, SZ_PART, WS_PART)
    def dma_list(k):
        so = (k % NS5) * ST5; L = []
        L.append(f's_add_u32 m0, s40, {so}')
        L.append(f's_add_u32 s46, s41, {k*131072}')
        L.append(lambda: vm.issue(f'D{k}', 'buffer_load_dwordx4 v1, s[16:19], s46 offen lds'))
        L.append(lambda: vm.issue(f'D{k}', 'buffer_load_dwordx4 v1, s[16:19], s46 offen offset:1024 lds'))
        L.append(f's_add_u32 s46, s42, {k*36864}')
        def masked():
            a('s_mov_b64 exec, s[44:45]')
            for q in range(3):
                a(f's_add_u32 m0, s43, {so + 8192 + q*768}')
                vm.issue(f'D{k}', f'buffer_load_dwordx4 v{2+q}, s[4:7], s46 offen lds')
            a('s_mov_b64 exec, -1')
        L.append(masked)
        return L
    def dma(k):
        for f in dma_list(k): f() if callable(f) else a(f)
    def run(L):
        for f in L: f() if callable(f) else a(f)
    if K5L: a('s_cmp_ge_u32 s35, 4'); a.branch('s_cbranch_scc1 K5_LOAD')
    else:
        for k in range(8): dma(k)
        if int(os.environ.get('K5LOOP', '1')):
            for i in range(72): a(f'v_mov_b32 v{16+i}, 0')
        vm.wait('D0')
    ACC = 16; WF = 88; HF = 160
    def read_list(k):
        so = (k % NS5) * ST5; b = k % 2; L = []
        va = 7 + 2 * b; vb = 8 + 2 * b
        L.append(f'v_add_u32 v{va}, {so}, v5'); L.append(f'v_add_u32 v{vb}, {so}, v6')
        h = HF + 8 * b
        L.append(f'ds_read_b128 v[{h}:{h+3}], v{vb}'); L.append(f'ds_read_b128 v[{h+4}:{h+7}], v{vb} offset:1024')
        for dt in range(9):
            wv = WF + 36 * b + 4 * dt
            L.append(f'ds_read_b64_tr_b16 v[{wv}:{wv+1}], v{va} offset:{dt*32}')
            L.append(f'ds_read_b64_tr_b16 v[{wv+2}:{wv+3}], v{va} offset:{dt*32+2304}')
        return L
    LOOP5 = int(os.environ.get('K5LOOP', '1')) and not K5L
    a('s_barrier')
    stamp(a, 1, 'k5')
    run(read_list(0))
    if LOOP5:
        def lread(b):
            sr = 47 + (b ^ 1); L = []
            va = 7 + 2 * b; vb = 8 + 2 * b
            L.append(f'v_add_u32 v{va}, s{sr}, v5'); L.append(f'v_add_u32 v{vb}, s{sr}, v6')
            h = HF + 8 * b
            L.append(f'ds_read_b128 v[{h}:{h+3}], v{vb}'); L.append(f'ds_read_b128 v[{h+4}:{h+7}], v{vb} offset:1024')
            for dt in range(9):
                wv = WF + 36 * b + 4 * dt
                L.append(f'ds_read_b64_tr_b16 v[{wv}:{wv+1}], v{va} offset:{dt*32}')
                L.append(f'ds_read_b64_tr_b16 v[{wv+2}:{wv+3}], v{va} offset:{dt*32+2304}')
            return L
        def ldma():
            L = ['s_add_u32 m0, s40, s51',
                 'buffer_load_dwordx4 v1, s[16:19], s41 offen lds',
                 'buffer_load_dwordx4 v1, s[16:19], s41 offen offset:1024 lds',
                 's_add_u32 s49, s43, s51']
            def masked():
                a('s_mov_b64 exec, s[44:45]')
                for q in range(3):
                    a(f's_add_u32 m0, s49, {8192 + q*768}')
                    a(f'buffer_load_dwordx4 v{2+q}, s[4:7], s42 offen lds')
                a('s_mov_b64 exec, -1')
            L += [masked, 's_add_u32 s41, s41, 131072', 's_add_u32 s42, s42, 36864']
            return L
        def mfl(b):
            mf = []
            for dt in range(9):
                for tt in range(2):
                    acc = ACC + 4 * (9 * tt + dt); wv = WF + 36 * b + 4 * dt; h = HF + 8 * b + 4 * tt
                    mf.append([f'v_mfma_f32_16x16x32_bf16 v[{acc}:{acc+3}], v[{wv}:{wv+3}], v[{h}:{h+3}], v[{acc}:{acc+3}]'])
            return mf
        def it(b):
            me = 47 + b; ot = 47 + (b ^ 1); n = 'AB'[b]
            a(f's_mov_b32 s51, s{me}')
            a(f's_add_u32 s{me}, s{ot}, {ST5}'); a(f's_cmp_lt_u32 s{me}, {NS5*ST5}'); a(f's_cselect_b32 s{me}, s{me}, 0')
            a('s_cmp_ge_u32 s50, 14')
            if b == 0:
                a(f's_cbranch_scc1 K5_TW')
                a('s_waitcnt vmcnt(30) lgkmcnt(0)')
                a.label_nf('K5_WA')
            else:
                a(f's_cbranch_scc1 K5_WB')
                a('s_waitcnt vmcnt(30)')
                a.label_nf('K5_WB')
                a('s_waitcnt lgkmcnt(0)')
            a('s_barrier')
            mf = mfl(b)
            sr = me; bb = b ^ 1; L = []
            va = 7 + 2 * bb; vb = 8 + 2 * bb
            L.append(f'v_add_u32 v{va}, s{sr}, v5'); L.append(f'v_add_u32 v{vb}, s{sr}, v6')
            h = HF + 8 * bb
            L.append(f'ds_read_b128 v[{h}:{h+3}], v{vb}'); L.append(f'ds_read_b128 v[{h+4}:{h+7}], v{vb} offset:1024')
            for dt in range(9):
                wv = WF + 36 * bb + 4 * dt
                L.append(f'ds_read_b64_tr_b16 v[{wv}:{wv+1}], v{va} offset:{dt*32}')
                L.append(f'ds_read_b64_tr_b16 v[{wv+2}:{wv+3}], v{va} offset:{dt*32+2304}')
            interleave(a, mf[:14], L)
            a('s_cmp_ge_u32 s50, 14'); a(f's_cbranch_scc1 K5_ND{n}')
            interleave(a, mf[14:], ldma())
            a.label_nf(f'K5_J{n}')
        a(f's_mov_b32 s47, {8*ST5}'); a('s_mov_b32 s48, 0'); a('s_mov_b32 s50, 0')
        a(f's_add_u32 s41, s41, {8*131072}'); a(f's_add_u32 s42, s42, {8*36864}')
        a.label('K5_LOOP')
        it(0); it(1)
        a('s_add_u32 s50, s50, 1'); a('s_cmp_lt_u32 s50, 18'); a('s_cbranch_scc1 K5_LOOP')
        a.branch('s_branch K5_EPI')
        a.label('K5_TW')
        for t, nn in ((14, 25), (15, 15), (16, 5)):
            a(f's_cmp_lg_u32 s50, {t}'); a(f's_cbranch_scc1 K5_TW{t}')
            a(f's_waitcnt vmcnt({nn}) lgkmcnt(0)'); a('s_branch K5_WA')
            a.label_nf(f'K5_TW{t}')
        a('s_waitcnt vmcnt(0) lgkmcnt(0)'); a('s_branch K5_WA')
        for b in range(2):
            a.label(f'K5_ND{"AB"[b]}')
            for g_ in mfl(b)[14:]: a(g_[0])
            a(f's_branch K5_J{"AB"[b]}')
        a.label('K5_EPI')
        a('s_waitcnt lgkmcnt(0)'); a('s_nop 7')
    for k in range(36 if not LOOP5 else 0):
        b = k % 2
        if K5L or k + 1 >= 36: a('s_waitcnt lgkmcnt(0)')
        else: vm.wait(f'D{k+1}', ' lgkmcnt(0)')
        if k + 1 < 36: a('s_barrier')
        fill = read_list(k + 1) if k + 1 < 36 else []
        mf = []
        for dt in range(9):
            for tt in range(2):
                acc = ACC + 4 * (9 * tt + dt); wv = WF + 36 * b + 4 * dt; h = HF + 8 * b + 4 * tt
                c = '0' if k == 0 else f'v[{acc}:{acc+3}]'
                mf.append([f'v_mfma_f32_16x16x32_bf16 v[{acc}:{acc+3}], v[{wv}:{wv+3}], v[{h}:{h+3}], {c}'])
        interleave(a, mf[:14], fill)
        interleave(a, mf[14:], dma_list(k + 8) if (not K5L and k + 8 < 36) else [])
        if k in (11, 23): stamp(a, 2 if k == 11 else 3, 'k5')
    stamp(a, 4, 'k5')
    k5_epilogue(a, ACC)
    stamp(a, 5, 'k5')
    if 'k5' in STAMPS:
        a('v_mov_b32 v0, v15'); dump_stamps(a, 6, 'k5', 101)
    a('s_endpgm')
    if K5L:
        a.label('K5_LOAD')
        for k in range(NS5): dma(k)
        vm.wait('D0'); a('s_barrier')
        for k in range(35):
            vm.wait(f'D{k+1}'); a('s_barrier')
            if k + NS5 < 36: dma(k + NS5)
    a.label('K5_END')
    a('s_endpgm')
    return kernel_desc('k5_kernel', 176)


def gen_k5a(a):
    a.raw(kernel_header('k5_kernel'))
    a('s_cmp_ge_u32 s2, 256'); a.branch('s_cbranch_scc1 K5_END')
    stamp(a, 0, 'k5')
    load_ptr(a, 4, 'w2'); load_ptr(a, 12, 'ws')
    a('v_mov_b32 v15, v0')
    a('v_readfirstlane_b32 s39, v0'); a('s_lshr_b32 s39, s39, 6')
    a('v_and_b32 v0, 63, v0')
    a('v_lshlrev_b32 v1, 4, v0')
    a('s_mul_i32 s40, s39, 144')
    for q in range(3):
        a(f's_add_u32 s41, s40, {48*q}')
        a('v_add_u32 v10, s41, v0')
        if W2P: a(f'v_lshlrev_b32 v{2+q}, 4, v10'); continue
        a('v_mul_u32_u24 v11, 3641, v10'); a('v_lshrrev_b32 v11, 16, v11')
        a('v_mul_u32_u24 v12, 18, v11'); a('v_sub_u32 v12, v10, v12')
        a(f'v_mul_u32_u24 v{2+q}, 1152, v11'); a(f'v_lshl_add_u32 v{2+q}, v12, 4, v{2+q}')
    D = int(os.environ.get('K5D', '6')); STW = 9216; NSW = D + 1
    a('v_lshrrev_b32 v10, 5, v0'); a('v_lshlrev_b32 v10, 4, v10')
    a('v_bfe_u32 v11, v0, 4, 1'); a('v_lshl_add_u32 v10, v11, 2, v10')
    a('v_bfe_u32 v11, v0, 2, 2'); a('v_add_u32 v10, v10, v11'); a('v_mul_u32_u24 v5, 288, v10')
    a('v_and_b32 v11, 3, v0'); a('v_lshl_add_u32 v5, v11, 3, v5')
    a('s_lshl_b32 s40, s39, 11')
    a('s_and_b32 s36, s2, 7'); a('s_lshr_b32 s37, s2, 3')
    a('s_and_b32 s38, s36, 3')
    a('s_lshr_b32 s36, s36, 2'); a('s_lshl_b32 s36, s36, 3'); a('s_lshr_b32 s43, s37, 2'); a('s_add_u32 s36, s36, s43')
    a('s_and_b32 s37, s37, 3')
    a(f's_mul_i32 s41, s38, {36*131072}'); a('s_lshl_b32 s42, s36, 13'); a('s_add_u32 s41, s41, s42'); a('s_add_u32 s41, s41, s40')
    a(f's_mul_i32 s42, s38, {36*36864}'); a(f's_mul_i32 s43, s37, {9216 if W2P else 288}'); a('s_add_u32 s42, s42, s43')
    a('s_mul_i32 s43, s39, 2304')
    a('s_mov_b32 s44, -1'); a('s_mov_b32 s45, 0xffff')
    a('s_waitcnt lgkmcnt(0)')
    if W2P: copy_srd(a, 4, 12, SZ_W2P, WS_W2P)
    else: make_srd(a, 4, 4608 * 1152)
    copy_srd(a, 16, 12, SZ_HH, WS_HH); copy_srd(a, 20, 12, SZ_PART, WS_PART)
    ACC = 16; WF = 88; NR = 12
    def hh_loads(slot):
        h = 8 * slot
        return [f'buffer_load_dwordx4 a[{h}:{h+3}], v1, s[16:19], s41 offen',
                f'buffer_load_dwordx4 a[{h+4}:{h+7}], v1, s[16:19], s41 offen offset:1024']
    def w_dma(base_s):
        def masked():
            a('s_mov_b64 exec, s[44:45]')
            for q in range(3):
                a(f's_add_u32 m0, s{base_s}, {q*768}')
                a(f'buffer_load_dwordx4 v{2+q}, s[4:7], s42 offen lds')
            a('s_mov_b64 exec, -1')
        return masked
    def run(L):
        for f in L: f() if callable(f) else a(f)
    for k in range(D):
        a(f's_add_u32 s49, s43, {k*STW}')
        run(hh_loads(k)); w_dma(49)()
        a('s_add_u32 s41, s41, 131072'); a('s_add_u32 s42, s42, 36864')
    for i in range(72): a(f'v_mov_b32 v{16+i}, 0')
    a(f's_mov_b32 s47, {D*STW}'); a('s_mov_b32 s48, 0'); a('s_mov_b32 s50, 0')
    a(f's_waitcnt vmcnt({5*(D-1)})'); a('s_barrier')
    stamp(a, 1, 'k5')
    def reads(bb, areg):
        L = []
        for dt in range(9):
            wv = WF + 36 * bb + 4 * dt
            L.append(f'ds_read_b64_tr_b16 v[{wv}:{wv+1}], v{areg} offset:{dt*32}')
            L.append(f'ds_read_b64_tr_b16 v[{wv+2}:{wv+3}], v{areg} offset:{dt*32+2304}')
        return L
    run(reads(0, 5))
    def mfl(j):
        b = j % 2; mf = []
        for dt in range(9):
            for tt in range(2):
                acc = ACC + 4 * (9 * tt + dt); wv = WF + 36 * b + 4 * dt; h = 8 * j + 4 * tt
                mf.append([f'v_mfma_f32_16x16x32_bf16 v[{acc}:{acc+3}], v[{wv}:{wv+3}], a[{h}:{h+3}], v[{acc}:{acc+3}]'])
        return mf
    tailw = {j: 5 * (10 - j) for j in range(13 - D, 11)}
    WM = 5 * (D - 2); JN = 12 - D
    def it(j):
        b = j % 2; me = 47 + b; ot = 47 + (b ^ 1)
        a(f's_mov_b32 s51, s{me}')
        a(f's_add_u32 s{me}, s{ot}, {STW}'); a(f's_cmp_lt_u32 s{me}, {NSW*STW}'); a(f's_cselect_b32 s{me}, s{me}, 0')
        if j in tailw:
            a('s_cmp_eq_u32 s50, 2'); a(f's_cbranch_scc1 K5_TW{j}')
            a(f's_waitcnt vmcnt({WM}) lgkmcnt(0)')
            a.label_nf(f'K5_WB{j}')
        else:
            a(f's_waitcnt vmcnt({WM}) lgkmcnt(0)')
        a('s_barrier')
        mf = mfl(j)
        va = 7 + (b ^ 1)
        L = [f'v_add_u32 v{va}, s{me}, v5', 's_add_u32 s49, s43, s51'] + reads(b ^ 1, va)
        interleave(a, mf[:14], L)
        dma = hh_loads((j + D) % NR) + [w_dma(49), 's_add_u32 s41, s41, 131072', 's_add_u32 s42, s42, 36864']
        if j >= JN:
            a('s_cmp_eq_u32 s50, 2'); a(f's_cbranch_scc1 K5_ND{j}')
        interleave(a, mf[14:], dma)
        if j >= JN: a.label_nf(f'K5_J{j}')
    a.label('K5_LOOP')
    for j in range(12): it(j)
    a('s_add_u32 s50, s50, 1'); a('s_cmp_lt_u32 s50, 3'); a('s_cbranch_scc1 K5_LOOP')
    a.branch('s_branch K5_EPI')
    for j, nn in tailw.items():
        a.label(f'K5_TW{j}')
        a(f's_waitcnt vmcnt({nn}) lgkmcnt(0)'); a(f's_branch K5_WB{j}')
    for j in range(JN, 12):
        a.label(f'K5_ND{j}')
        for g_ in mfl(j)[14:]: a(g_[0])
        a(f's_branch K5_J{j}')
    a.label('K5_EPI')
    a('s_waitcnt lgkmcnt(0)'); a('s_nop 7')
    stamp(a, 4, 'k5')
    k5_epilogue(a, ACC)
    stamp(a, 5, 'k5')
    if 'k5' in STAMPS:
        a('v_mov_b32 v0, v15'); dump_stamps(a, 6, 'k5', 101)
    a.label('K5_END')
    a('s_endpgm')
    return kernel_desc('k5_kernel', 176 + 8 * NR, accum=176)

def k5_epilogue(a, ACC):
    a('s_lshl_b32 s41, s38, 6'); a('s_lshl_b32 s42, s36, 2'); a('s_add_u32 s41, s41, s42'); a('s_add_u32 s41, s41, s37')
    a('s_lshl_b32 s41, s41, 2'); a('s_add_u32 s41, s41, s39'); a(f's_mul_i32 s41, s41, {10*1024}')
    MX = 88
    for tt in range(2):
        A0 = ACC + 36 * tt; m = MX + 24 * tt
        for c in range(4):
            a(f'v_max3_f32 v{m+c}, |v{A0+9*c}|, |v{A0+9*c+1}|, |v{A0+9*c+2}|')
        for j in range(3, 9, 2):
            for c in range(4): a(f'v_max3_f32 v{m+c}, |v{A0+9*c+j}|, |v{A0+9*c+j+1}|, v{m+c}')
        a(f'v_max3_f32 v{m}, v{m}, v{m+1}, v{m+2}'); a(f'v_max_f32 v{m}, v{m}, v{m+3}')
        a(f'v_frexp_exp_i32_f32 v{m+1}, v{m}')
        a(f'v_sub_u32 v{m+2}, 15, v{m+1}')
        a(f'v_max_i32 v{m+2}, -100, v{m+2}'); a(f'v_min_i32 v{m+2}, 100, v{m+2}')
        a(f'v_ldexp_f32 v{m+3}, 1.0, v{m+2}')
        a(f'v_sub_u32 v{m+2}, 0, v{m+2}'); a(f'v_ldexp_f32 v{m+22}, 1.0, v{m+2}')
        for i in range(36): a(f'v_mul_f32 v{A0+i}, v{A0+i}, v{m+3}')
        for i in range(18): a(f'v_cvt_pk_f16_f32 v{m+4+i}, v{A0+2*i}, v{A0+2*i+1}')
        a(f'v_mov_b32 v{m+23}, 0')
        for p in range(5):
            i = 5 * tt + p
            if i % 4 == 0 and i: a(f's_add_u32 s41, s41, 4096')
            a(f'buffer_store_dwordx4 v[{m+4+4*p}:{m+7+4*p}], v1, s[20:23], s41 offen offset:{(i%4)*1024}' + os.environ.get('STMOD5', ' sc1'))

def gen_k6(a):
    a.raw(kernel_header('k6_kernel'))
    dbgt(a, 5, 5, 'DBGT_6')
    a('s_cmp_ge_u32 s2, 256'); a.branch('s_cbranch_scc1 K6_END')
    load_ptr(a, 4, 'ws'); load_ptr(a, 8, 'out')
    a('v_readfirstlane_b32 s3, v0'); a('s_lshr_b32 s3, s3, 6')
    a('v_and_b32 v0, 63, v0')
    a('v_lshlrev_b32 v1, 4, v0')
    a('s_lshr_b32 s21, s3, 1'); a('s_and_b32 s22, s3, 1')
    a('s_lshl_b32 s20, s2, 1'); a('s_add_u32 s20, s20, s21'); a('s_mul_i32 s20, s20, 5120')
    a('s_and_b32 s23, s2, 3')
    a('s_lshr_b32 s24, s2, 2'); a('s_and_b32 s25, s24, 3'); a('s_lshr_b32 s24, s24, 2')
    a('s_lshl_b32 s26, s24, 7'); a('s_lshl_b32 s27, s23, 5'); a('s_add_u32 s26, s26, s27'); a('s_lshl_b32 s27, s21, 4'); a('s_add_u32 s26, s26, s27')
    a('s_mul_i32 s27, s25, 144'); a('s_lshl_b32 s28, s22, 6'); a('s_add_u32 s27, s27, s28')
    a('s_mul_i32 s29, s26, 1152'); a('s_lshl_b32 s28, s27, 1'); a('s_add_u32 s29, s29, s28')
    a('s_lshl_b32 s30, s27, 2'); a(f's_add_u32 s30, s30, {5*2304}')
    a('v_and_b32 v2, 15, v0'); a('v_mul_u32_u24 v2, 1152, v2'); a('v_lshrrev_b32 v3, 4, v0'); a('v_lshl_add_u32 v2, v3, 3, v2')
    a('v_lshlrev_b32 v3, 4, v3')
    a('s_lshl_b32 s31, s22, 11'); a('s_add_u32 s31, s31, s20')
    a('s_waitcnt lgkmcnt(0)')
    copy_srd(a, 12, 4, SZ_PART, WS_PART); copy_srd(a, 16, 4, SZ_X1, WS_X1); copy_srd(a, 32, 4, SZ_MOD, WS_MOD)
    make_srd(a, 8, 2048 * 1152)
    SS = 64 * 4 * 10240
    a('s_cmp_eq_u32 s22, 1'); a.branch('s_cbranch_scc1 K6_B')
    for half in range(2):
        nf = 4 + half
        if half: a.label('K6_B')
        P = 8
        for s_ in range(4):
            if s_: a(f's_add_u32 s31, s31, {SS}'); a(f's_add_u32 s20, s20, {SS}')
            b = P + 12 * s_
            a(f'buffer_load_dwordx4 v[{b}:{b+3}], v1, s[12:15], s31 offen')
            a(f'buffer_load_dwordx4 v[{b+4}:{b+7}], v1, s[12:15], s31 offen offset:1024')
            if half: a(f'buffer_load_dwordx4 v[{b+8}:{b+11}], v1, s[12:15], s31 offen offset:2048')
            else:
                a(f's_add_u32 s36, s20, 4096')
                a(f'buffer_load_dword v{b+10}, v1, s[12:15], s36 offen offset:8')
        X = 56; G = 68; R = 88; T = 108
        for j in range(nf): a(f'buffer_load_dwordx2 v[{X+2*j}:{X+2*j+1}], v2, s[16:19], s29 offen offset:{j*32}')
        for j in range(nf): a(f'buffer_load_dwordx4 v[{G+4*j}:{G+4*j+3}], v3, s[32:35], s30 offen offset:{j*64}')
        n = 4 * nf
        for s_ in range(4):
            a(f's_waitcnt vmcnt({2*nf + 3*(3-s_)})')
            b = P + 12 * s_
            for i in range(n):
                src = b + i // 2
                sel = f'op_sel:[{i%2},0,0] op_sel_hi:[1,0,0]'
                if s_ == 0: a(f'v_fma_mix_f32 v{R+i}, v{src}, v{b+10}, 0 {sel}')
                else: a(f'v_fma_mix_f32 v{R+i}, v{src}, v{b+10}, v{R+i} {sel}')
        for i in range(n // 2): a(f'v_cvt_pk_bf16_f32 v{T+i}, v{R+2*i}, v{R+2*i+1}')
        for i in range(n // 2): unpack_lo(a, R + 2 * i, T + i); unpack_hi(a, R + 2 * i + 1, T + i)
        a('s_waitcnt vmcnt(0)')
        for i in range(n): a(f'v_mul_f32 v{R+i}, v{R+i}, v{G+i}')
        for i in range(n // 2): a(f'v_cvt_pk_bf16_f32 v{T+i}, v{R+2*i}, v{R+2*i+1}')
        for i in range(n // 2): unpack_lo(a, R + 2 * i, T + i); unpack_hi(a, R + 2 * i + 1, T + i)
        for i in range(n // 2): unpack_lo(a, P + 2 * i, X + i); unpack_hi(a, P + 2 * i + 1, X + i)
        for i in range(n): a(f'v_add_f32 v{R+i}, v{R+i}, v{P+i}')
        for i in range(n // 2): a(f'v_cvt_pk_bf16_f32 v{T+i}, v{R+2*i}, v{R+2*i+1}')
        for j in range(nf): a(f'buffer_store_dwordx2 v[{T+2*j}:{T+2*j+1}], v2, s[8:11], s29 offen offset:{j*32}')
        if half == 0:
            a('s_waitcnt vmcnt(0)'); dbgt(a, 5, 6, 'DBGT_6E'); a('s_endpgm')
    a.label('K6_END')
    a('s_endpgm')
    return kernel_desc('k6_kernel', 120)
```

```python
from gen_common import *

def ln_core(a, nch, xp, xf, tmp, nw, v_redw, v_redr, red_off, out_xn, hooks=None):
    n = 8 * nch
    for i in range(4 * nch):
        unpack_lo(a, xf + 2 * i, xp + i); unpack_hi(a, xf + 2 * i + 1, xp + i)
    s = tmp; t1 = tmp + 1
    for k in range(4): a(f'v_add_f32 v{tmp+2+k}, v{xf+k}, v{xf+4+k}')
    for i in range(8, n):
        a(f'v_add_f32 v{tmp+2+(i%4)}, v{tmp+2+(i%4)}, v{xf+i}')
    a(f'v_add_f32 v{tmp+2}, v{tmp+2}, v{tmp+3}')
    a(f'v_add_f32 v{tmp+4}, v{tmp+4}, v{tmp+5}')
    a(f'v_add_f32 v{s}, v{tmp+2}, v{tmp+4}')
    red_l8(a, s, t1)
    a(f'ds_write_b32 v{v_redw}, v{s} offset:{red_off}')
    a('s_waitcnt lgkmcnt(0)')
    if hooks: hooks[0]()
    a('s_barrier')
    late = hooks is not None and len(hooks) > 4 and hooks[4]
    if hooks and not late: hooks[1]()
    def gather(off, mid=None):
        for w in range(nw): a(f'ds_read_b32 v{tmp+2+w}, v{v_redr} offset:{off + w*32}')
        if mid: mid(); a('s_waitcnt lgkmcnt(15)')
        else: a('s_waitcnt lgkmcnt(0)')
        for w in range(1, nw): a(f'v_add_f32 v{tmp+2}, v{tmp+2}, v{tmp+2+w}')
    gather(red_off, hooks[1] if late else None)
    mean = tmp
    a(f'v_mul_f32 v{mean}, {f32bits(1.0/576)}, v{tmp+2}')
    acc = [tmp + 2 + k for k in range(4)]
    d = tmp + 6
    for i in range(n):
        a(f'v_sub_f32 v{d + (i%4)}, v{xf+i}, v{mean}')
        if i < 4: a(f'v_mul_f32 v{acc[i]}, v{d+i}, v{d+i}')
        else: a(f'v_fmac_f32 v{acc[i%4]}, v{d+(i%4)}, v{d+(i%4)}')
    a(f'v_add_f32 v{acc[0]}, v{acc[0]}, v{acc[1]}')
    a(f'v_add_f32 v{acc[2]}, v{acc[2]}, v{acc[3]}')
    a(f'v_add_f32 v{t1}, v{acc[0]}, v{acc[2]}')
    red_l8(a, t1, tmp + 6)
    off2 = red_off + nw * 32
    a(f'ds_write_b32 v{v_redw}, v{t1} offset:{off2}')
    round_bf16_1(a, mean, mean)
    a('s_waitcnt lgkmcnt(0)')
    if hooks: hooks[2]()
    a('s_barrier')
    if hooks and not late: hooks[3]()
    gather(off2, hooks[3] if late else None)
    r = tmp + 1
    a(f'v_mul_f32 v{r}, {f32bits(1.0/576)}, v{tmp+2}')
    round_bf16_1(a, r, r)
    a(f'v_add_f32 v{r}, {f32bits(1e-5)}, v{r}')
    round_bf16_1(a, r, r)
    a(f'v_sqrt_f32 v{r}, v{r}')
    round_bf16_1(a, r, r)
    a(f'v_rcp_f32 v{r}, v{r}')
    for i in range(n): a(f'v_sub_f32 v{xf+i}, v{xf+i}, v{mean}')
    for i in range(4 * nch): a(f'v_cvt_pk_bf16_f32 v{out_xn+i}, v{xf+2*i}, v{xf+2*i+1}')
    for i in range(4 * nch):
        unpack_lo(a, xf + 2 * i, out_xn + i); unpack_hi(a, xf + 2 * i + 1, out_xn + i)
    for i in range(n): a(f'v_mul_f32 v{xf+i}, v{xf+i}, v{r}')
    for i in range(4 * nch): a(f'v_cvt_pk_bf16_f32 v{out_xn+i}, v{xf+2*i}, v{xf+2*i+1}')

N_MOD = 54; N_LN1 = 256; N_KG = 576
import os
N_PF = int(os.environ.get('NPF', '0'))
TLBW = int(os.environ.get('TLBW', '21'))
N_TW = 8 if TLBW else 0
K1_GRID = N_MOD + N_LN1 + N_KG + N_PF + N_TW
K1_LDS = 36864

def gen_k1(a):
    a.raw(kernel_header('k1_kernel'))
    dbgt(a, 0, 0, 'DBGT_1')
    a(f's_cmp_lt_u32 s2, {N_MOD}'); a.branch('s_cbranch_scc1 K1_MOD')
    a(f's_cmp_lt_u32 s2, {N_MOD+N_LN1}'); a.branch('s_cbranch_scc1 K1_LN')
    a(f's_cmp_lt_u32 s2, {N_MOD+N_LN1+N_KG}'); a.branch('s_cbranch_scc1 K1_KG')
    if N_TW:
        a(f's_cmp_ge_u32 s2, {K1_GRID}'); a.branch('s_cbranch_scc1 K1_END')
        load_ptr(a, 4, 'ws'); load_ptr(a, 8, 'w1'); load_ptr(a, 12, 'w3'); load_ptr(a, 16, 'w2'); load_ptr(a, 20, 'out')
        a(f'v_lshlrev_b32 v1, {TLBW}, v0')
        a('s_waitcnt lgkmcnt(0)')
        copy_srd(a, 24, 4, SZ_RK, WS_RK)
        make_srd(a, 4, WS_W2P + SZ_W2P); make_srd(a, 8, 576 * 9216); make_srd(a, 12, 576 * 9216); make_srd(a, 16, 4608 * 1152); make_srd(a, 20, 2048 * 1152)
        r = 8
        span = 256 << TLBW
        for srd, size in ((4, WS_W2P + SZ_W2P), (24, SZ_RK), (8, 576 * 9216), (12, 576 * 9216), (16, 4608 * 1152), (20, 2048 * 1152)):
            for i in range((size + span - 1) // span):
                if i: a(f'v_add_u32 v2, {i * span}, v1')
                a(f'buffer_load_dword v{r}, v{2 if i else 1}, s[{srd}:{srd+3}], 0 offen'); r += 1
        if int(os.environ.get('SPEC', '1')):
            a(f's_sub_u32 s30, s2, {N_MOD+N_LN1+N_KG+N_PF}')
            a('s_cmp_ge_u32 s30, 7'); a.branch('s_cbranch_scc1 K1_TW_E')
            a(f's_add_u32 s32, s4, {hex(WS_XF)}'); a('s_addc_u32 s33, s5, 0'); a(f's_mov_b32 s34, {hex(SZ_XF)}'); a('s_mov_b32 s35, 0x20000')
            a('s_mul_i32 s31, s30, 9'); a('s_cmp_gt_u32 s30, 0'); a('s_addc_u32 s31, s31, 0'); a('s_mul_i32 s31, s31, 36864')
            for i in range(4): a(f'v_mov_b32 v{40+i}, -1')
            a('v_lshlrev_b32 v3, 4, v0')
            for i in range(9):
                a(f'buffer_store_dwordx4 v[40:43], v3, s[32:35], s31 offen')
                if i < 8: a('s_add_u32 s31, s31, 4096')
            a.label('K1_TW_E')
        a('s_waitcnt vmcnt(0)')
    if N_PF:
        a(f's_cmp_ge_u32 s2, {K1_GRID}'); a.branch('s_cbranch_scc1 K1_END')
        a(f's_sub_u32 s3, s2, {N_MOD+N_LN1+N_KG}')
        a('s_mul_i32 s8, s3, 911'); a('s_lshr_b32 s8, s8, 16')
        a('s_mul_i32 s9, s8, 72'); a('s_sub_u32 s9, s3, s9')
        a('s_lshl_b32 s8, s8, 3'); a(f's_add_u32 s8, s8, {KA["w1"]}')
        a('s_load_dwordx2 s[4:5], s[0:1], s8')
        a('s_mul_i32 s9, s9, 73728')
        a('v_lshlrev_b32 v1, 4, v0')
        a('s_waitcnt lgkmcnt(0)')
        make_srd(a, 4, 576 * 9216)
        for i in range(18):
            a(f's_add_u32 s10, s9, {i*4096}')
            a(f'buffer_load_dwordx4 v[{8+4*i}:{11+4*i}], v1, s[4:7], s10 offen')
        a('s_waitcnt vmcnt(0)')
    a('s_endpgm')
    a.label('K1_MOD')
    load_ptr(a, 4, 'wmod'); load_ptr(a, 8, 'c'); load_ptr(a, 12, 'ws')
    a('v_and_b32 v1, 7, v0')
    a('v_lshrrev_b32 v2, 3, v0')
    a('v_mul_u32_u24 v3, 36, v2')
    a(f'v_mul_u32_u24 v4, {18*6912}, v2')
    a('v_lshl_add_u32 v4, v1, 4, v4')
    a('s_lshl_b32 s3, s2, 7')
    a('v_add_u32 v4, s3, v4')
    a('s_waitcnt lgkmcnt(0)')
    copy_srd(a, 40, 12, SZ_CNT, WS_CNT)
    make_srd(a, 4, 576 * 6912); make_srd(a, 8, 1152); make_srd(a, 12, SZ_MOD, WS_MOD)
    for i in range(4): a(f'v_mov_b32 v{112+i}, 0')
    a('v_lshlrev_b32 v116, 4, v0'); a('s_lshl_b32 s44, s2, 12'); a('v_add_u32 v116, s44, v116')
    a('buffer_store_dwordx4 v[112:115], v116, s[40:43], 0 offen')
    C = 8; W = 20
    a(f'buffer_load_dwordx4 v[{C}:{C+3}], v3, s[8:11], 0 offen')
    a(f'buffer_load_dwordx4 v[{C+4}:{C+7}], v3, s[8:11], 0 offen offset:16')
    a(f'buffer_load_dword v{C+8}, v3, s[8:11], 0 offen offset:32')
    for i in range(18):
        a(f's_mov_b32 s{16+i}, {i*6912}')
        a(f'buffer_load_dwordx4 v[{W+4*i}:{W+4*i+3}], v4, s[4:7], s{16+i} offen')
    S = 92
    a('s_waitcnt vmcnt(18)')
    for i in range(9):
        unpack_lo(a, S + 2 * i, C + i); unpack_hi(a, S + 2 * i + 1, C + i)
    T = 110
    for i in range(18): a(f'v_mul_f32 v{T+i}, {f32bits(-LOG2E)}, v{S+i}')
    for i in range(18): a(f'v_exp_f32 v{T+i}, v{T+i}')
    for i in range(18): a(f'v_add_f32 v{T+i}, 1.0, v{T+i}')
    for i in range(18): a(f'v_rcp_f32 v{T+i}, v{T+i}')
    for i in range(18): a(f'v_mul_f32 v{S+i}, v{S+i}, v{T+i}')
    for i in range(9): a(f'v_cvt_pk_bf16_f32 v{T+i}, v{S+2*i}, v{S+2*i+1}')
    for i in range(9):
        unpack_lo(a, S + 2 * i, T + i); unpack_hi(a, S + 2 * i + 1, T + i)
    ACC = 110; U = 118
    for i in range(18):
        a(f's_waitcnt vmcnt({17-i})')
        for j in range(4):
            unpack_lo(a, U + 2 * j, W + 4 * i + j); unpack_hi(a, U + 2 * j + 1, W + 4 * i + j)
        for j in range(8):
            if i == 0: a(f'v_mul_f32 v{ACC+j}, v{S+i}, v{U+j}')
            else: a(f'v_fmac_f32 v{ACC+j}, v{S+i}, v{U+j}')
    red_l8_multi(a, [ACC + j for j in range(8)], [U + j for j in range(8)])
    a('v_lshrrev_b32 v5, 6, v0')
    a('v_lshlrev_b32 v5, 8, v5')
    a('v_lshl_add_u32 v5, v1, 5, v5')
    a(f'ds_write_b128 v5, v[{ACC}:{ACC+3}]')
    a(f'ds_write_b128 v5, v[{ACC+4}:{ACC+7}] offset:16')
    a('s_waitcnt lgkmcnt(0)'); a('s_barrier')
    a('v_cmp_gt_u32 vcc, 64, v0')
    a('s_and_saveexec_b64 s[40:41], vcc')
    a.branch('s_cbranch_execz K1_END')
    a('v_lshlrev_b32 v6, 2, v0')
    for w in range(4): a(f'ds_read_b32 v{8+w}, v6 offset:{w*256}')
    a('s_waitcnt lgkmcnt(0)')
    a('v_add_f32 v8, v8, v9'); a('v_add_f32 v10, v10, v11'); a('v_add_f32 v8, v8, v10')
    round_bf16_1(a, 8, 8)
    a('s_lshl_b32 s3, s2, 8')
    a('v_add_u32 v6, s3, v6')
    a('buffer_store_dword v8, v6, s[12:15], 0 offen')
    a('s_endpgm')
    a.label('K1_LN')
    a('v_readfirstlane_b32 s4, v0')
    a('s_cmp_ge_u32 s4, 192'); a.branch('s_cbranch_scc1 K1_END')
    load_ptr(a, 4, 'u'); load_ptr(a, 8, 'ws')
    a(f's_sub_u32 s3, s2, {N_MOD}')
    a('v_and_b32 v1, 7, v0')
    a('v_lshrrev_b32 v2, 3, v0')
    a('v_mul_u32_u24 v3, 1152, v1')
    a('v_lshl_add_u32 v3, v2, 4, v3')
    a('s_mul_i32 s12, s3, 9216')
    a('s_waitcnt lgkmcnt(0)')
    make_srd(a, 4, 2048 * 1152); make_srd(a, 8, SZ_XT, WS_XT)
    XP = 8; XF = 20; TMP = 44; XN = 60
    for i in range(3):
        a(f'buffer_load_dwordx4 v[{XP+4*i}:{XP+4*i+3}], v3, s[4:7], s12 offen offset:{i*24*16}')
    RED = 72 * 288
    a('v_lshrrev_b32 v4, 6, v0')
    a('v_lshlrev_b32 v4, 5, v4')
    a('v_lshl_add_u32 v4, v1, 2, v4')
    a('v_lshlrev_b32 v5, 2, v1')
    a('v_mul_u32_u24 v6, 288, v2')
    a('v_lshl_add_u32 v6, v1, 2, v6')
    a('s_mov_b32 s14, 0x05040100'); a('s_mov_b32 s15, 0x07060302')
    a('s_waitcnt vmcnt(0)')
    ln_core(a, 3, XP, XF, TMP, 3, 4, 5, RED, XN)
    for i in range(3):
        for j in range(4):
            r = 4 * i + j
            a(f'v_perm_b32 v{XF+2*r}, v{XP+r}, v{XN+r}, s14')
            a(f'v_perm_b32 v{XF+2*r+1}, v{XP+r}, v{XN+r}, s15')
        for e in range(8):
            a(f'ds_write_b32 v6, v{XF+8*i+e} offset:{i*24*288 + e*32}')
    a('s_waitcnt lgkmcnt(0)'); a('s_barrier')
    a('v_lshrrev_b32 v1, 4, v0')
    a('v_mul_u32_u24 v1, 288, v1')
    a('v_and_b32 v2, 15, v0')
    a('v_lshl_add_u32 v1, v2, 4, v1')
    a('v_lshlrev_b32 v2, 4, v0')
    a(f's_mul_i32 s12, s3, {XT_STRIDE}')
    for j in range(6): a(f'ds_read_b128 v[{XF+4*j}:{XF+4*j+3}], v1 offset:{j*12*288}')
    for j in range(6):
        a(f's_waitcnt lgkmcnt({5-j})')
        a(f's_add_u32 s13, s12, {j*3072}')
        a(f'buffer_store_dwordx4 v[{XF+4*j}:{XF+4*j+3}], v2, s[8:11], s13 offen')
    a('s_endpgm')
    a.label('K1_KG')
    names = ['A_re', 'A_im', 'B_re', 'B_im', 'C_re', 'C_im']
    for i, nm in enumerate(names): load_ptr(a, 4 + 4 * i, nm)
    load_ptr(a, 28, 'log_dt'); load_ptr(a, 32, 'ws')
    a(f's_sub_u32 s3, s2, {N_MOD+N_LN1}')
    K1IN = int(os.environ.get('K1IN', '0'))
    if K1IN == 2:
        a('s_cmp_ge_u32 s3, 288'); a('s_cselect_b32 s52, 8, 0'); a('s_cselect_b32 s53, 288, 0'); a('s_sub_u32 s53, s3, s53')
        a(f's_add_u32 s52, s52, {KA["w1"]}')
        a('s_load_dwordx2 s[44:45], s[0:1], s52')
        a('s_mul_i32 s53, s53, 18432')
        a('v_lshlrev_b32 v109, 4, v0'); a('v_add_u32 v109, s53, v109')
    elif K1IN == 1:
        load_ptr(a, 44, 'w1')
        a('s_mul_i32 s53, s3, 9216')
        a('v_lshlrev_b32 v109, 4, v0'); a('v_add_u32 v109, s53, v109')
    a('s_and_b32 s36, s3, 7'); a('s_mul_i32 s36, s36, 72'); a('s_lshr_b32 s37, s3, 3'); a('s_add_u32 s3, s36, s37')
    a('v_and_b32 v1, 127, v0')
    a('v_lshlrev_b32 v2, 1, v1')
    a('s_lshl_b32 s36, s3, 8')
    a('s_and_b32 s37, s3, -2'); a('s_lshl_b32 s37, s37, 1')
    a('v_readfirstlane_b32 s38, v0')
    a('s_waitcnt lgkmcnt(0)')
    a('s_load_dword s39, s[28:29], s37')
    for i in range(6): make_srd(a, 4 + 4 * i, 576 * 256)
    make_srd(a, 32, SZ_RK, WS_RK)
    for i in range(6): a(f'buffer_load_ushort v{8+i}, v2, s[{4+4*i}:{7+4*i}], s36 offen')
    NPFI = 0
    if K1IN:
        a(f's_mov_b32 s46, {576*9216}'); a('s_mov_b32 s47, 0x20000')
        full, part = (4, 2048) if K1IN == 2 else (2, 1024)
        for i in range(full):
            a(f'buffer_load_dwordx4 v[96:99], v109, s[44:47], 0 offen offset:0' if i == 0 else f'v_add_u32 v109, 4096, v109')
            if i: a(f'buffer_load_dwordx4 v[96:99], v109, s[44:47], 0 offen')
        a('v_add_u32 v109, 4096, v109')
        a(f'v_mov_b32 v119, 0x7ffffff0'); a(f'v_cmp_gt_u32 vcc, {part//16}, v0'); a('v_cndmask_b32 v109, v119, v109, vcc')
        a(f'buffer_load_dwordx4 v[96:99], v109, s[44:47], 0 offen')
        NPFI = full + 1
    KC = 33792
    GA = 100
    a('v_lshlrev_b32 v3, 3, v0')
    a('v_sub_u32 v3, 2047, v3')
    for e in range(9):
        a(f'v_subrev_u32 v{GA+e}, {e}, v3')
    for e in range(10): a(f'v_cvt_f32_u32 v{110+e}, v{GA+min(e,8)}')
    for e in range(5): a(f'v_cvt_pk_bf16_f32 v{120+e}, v{110+2*e}, v{110+2*e+1}')
    for e in range(4):
        a(f'v_and_b32 v{110+2*e}, 0xffff, v{120+e}')
        a(f'v_lshrrev_b32 v{110+2*e+1}, 16, v{120+e}')
    a('v_and_b32 v118, 0xffff, v124')
    a('v_cmp_gt_u32 vcc, 240, v0')
    for e in range(9): a(f'v_subrev_u32 v{110+e}, 17024, v{110+e}')
    for e in range(8): a(f'v_cndmask_b32 v{GA+e}, v{GA+e}, v{110+e}, vcc')
    a('v_cmp_gt_u32 vcc, 239, v0')
    a(f'v_cndmask_b32 v{GA+8}, v{GA+8}, v118, vcc')
    a(f'v_max_i32 v{GA+8}, 0, v{GA+8}')
    for e in range(9): a(f'v_lshlrev_b32 v{GA+e}, 1, v{GA+e}')
    a('s_lshr_b32 s40, s38, 6')
    a('s_and_b32 s41, s40, 1')
    a('s_lshr_b32 s42, s40, 1')
    a('v_and_b32 v4, 15, v0')
    a('s_lshl_b32 s43, s41, 4')
    a('v_add_u32 v4, s43, v4')
    a('v_bfe_u32 v5, v0, 4, 2')
    KW = 124
    a('s_cmp_eq_u32 s42, 0'); a.branch('s_cbranch_scc0 K1_KG_RT1')
    a('v_lshlrev_b32 v124, 3, v4')
    a('v_lshl_add_u32 v124, v5, 2, v124')
    a('v_lshlrev_b32 v6, 2, v4'); a('v_add_u32 v6, 256, v6')
    a('v_cmp_eq_u32 vcc, 2, v5'); a('v_cndmask_b32 v124, v124, v6, vcc')
    a('v_lshlrev_b32 v6, 1, v4'); a('v_add_u32 v6, 384, v6')
    a('v_cmp_eq_u32 vcc, 3, v5'); a('v_cndmask_b32 v124, v124, v6, vcc')
    a('v_mov_b32 v125, 1')
    a('v_mov_b32 v6, 64'); a('v_cndmask_b32 v126, 2, v6, vcc')
    a.branch('s_branch K1_KG_A')
    a.label('K1_KG_RT1')
    a('v_add_u32 v124, 700, v4')
    a('v_add_u32 v6, 640, v4'); a('v_cmp_eq_u32 vcc, 1, v5'); a('v_cndmask_b32 v124, v124, v6, vcc')
    a('v_add_u32 v6, 512, v4'); a('v_cmp_eq_u32 vcc, 0, v5'); a('v_cndmask_b32 v124, v124, v6, vcc')
    a('v_mov_b32 v6, 32'); a('v_mov_b32 v7, 64'); a('v_cndmask_b32 v125, v7, v6, vcc')
    a('v_lshlrev_b32 v126, 1, v125')
    a.label('K1_KG_A')
    a('v_add_u32 v127, v126, v125')
    a('v_add_u32 v125, v124, v125'); a('v_add_u32 v126, v124, v126'); a('v_add_u32 v127, v124, v127')
    for i in range(4): a(f'v_lshlrev_b32 v{124+i}, 1, v{124+i}')
    a('s_waitcnt lgkmcnt(0)')
    a('s_and_b32 s43, s3, 1'); a('s_lshl_b32 s43, s43, 4'); a('s_lshr_b32 s39, s39, s43'); a('s_lshl_b32 s39, s39, 16')
    a(f'v_mov_b32 v14, s39')
    a(f'v_mul_f32 v14, {f32bits(LOG2E)}, v14')
    a('v_exp_f32 v14, v14')
    round_bf16_1(a, 14, 14)
    a(f's_waitcnt vmcnt({NPFI})')
    for i in range(6): a(f'v_lshlrev_b32 v{8+i}, 16, v{8+i}')
    a('v_mul_f32 v8, v8, v14'); a('v_mul_f32 v9, v9, v14')
    a('v_mul_f32 v10, v10, v14'); a('v_mul_f32 v11, v11, v14')
    a(f'v_mul_f32 v8, {f32bits(LOG2E)}, v8')
    a(f'v_mul_f32 v9, {f32bits(0.15915494309189535)}, v9')
    cmul(a, 16, 12, 10)
    a(f'v_mul_f32 v16, {float(2**KSCALE_LOG2)}, v16'); a(f'v_mul_f32 v17, {float(2**KSCALE_LOG2)}, v17')
    def D(dst, al):
        a(f'v_mul_f32 v4, {float(al)}, v8'); a(f'v_mul_f32 v5, {float(al)}, v9')
        a('v_exp_f32 v4, v4'); a('v_fract_f32 v5, v5')
        a('v_cos_f32 v6, v5'); a('v_sin_f32 v7, v5')
        a(f'v_mul_f32 v{dst}, v4, v6'); a(f'v_mul_f32 v{dst+1}, v4, v7')
    UB = 0; VB = 16896
    a('v_lshlrev_b32 v3, 2, v1')
    def putU(r, src):
        a(f'v_cvt_pk_f16_f32 v2, v{src}, v{src+1}')
        a(f'ds_write_b32 v3, v2 offset:{UB + r*528}')
    def putV(j, src):
        a(f'v_cvt_pk_f16_f32 v2, v{src}, -v{src+1}')
        a(f'ds_write_b32 v3, v2 offset:{VB + j*528}')
    E8, EX, EY, P0, P1 = 18, 20, 22, 24, 26
    a('s_cmp_ge_u32 s38, 128'); a.branch('s_cbranch_scc1 K1_KG_H1')
    D(E8, 8); D(EX, 1); D(EY, 256)
    a(f'v_mov_b32 v{P0}, 1.0'); a(f'v_mov_b32 v{P0+1}, 0')
    putV(0, P0); putV(1, E8)
    cur, nxt = E8, P0
    for j in range(2, 16):
        cmul(a, nxt, cur, E8); putV(j, nxt)
        cur = nxt; nxt = P1 if nxt == P0 else P0
    cur = 16
    for r in range(8):
        if r > 0:
            nxt = P0 if cur != P0 else P1
            cmul(a, nxt, cur, EX); cur = nxt
        putU(r, cur)
        if r % 2 == 0:
            cmul(a, 28, cur, EY); putU(8 + r // 2, 28)
    a.branch('s_branch K1_KG_B')
    a.label('K1_KG_H1')
    D(E8, 8); D(P0, 128); D(EX, 4)
    cmul(a, EY, P0, P0)
    cmul(a, 28, EY, EY)
    cmul(a, 30, 28, 28)
    putV(16, P0)
    cur, nxt = P0, P1
    for j in range(17, 32):
        cmul(a, nxt, cur, E8); putV(j, nxt)
        cur, nxt = nxt, cur
    cmul(a, P0, 16, 28); putU(12, P0)
    cmul(a, P1, P0, EX); putU(13, P1)
    cmul(a, P1, P0, EY); putU(14, P1)
    cmul(a, P0, P1, EX); putU(15, P0)
    cmul(a, P0, 16, 30); putU(16, P0)
    cmul(a, P1, P0, EY); putU(17, P1)
    cmul(a, P0, P1, EY); putU(18, P0)
    cmul(a, P1, P0, EY); putU(19, P1)
    cmul(a, P0, P1, EY); putU(20, P0)
    a.label('K1_KG_B')
    a('v_and_b32 v4, 15, v0'); a('v_bfe_u32 v5, v0, 4, 2')
    a('s_lshl_b32 s43, s42, 4'); a('v_add_u32 v6, s43, v4'); a('v_mul_u32_u24 v6, 528, v6'); a('v_lshl_add_u32 v6, v5, 4, v6')
    a('s_lshl_b32 s43, s41, 4'); a('v_add_u32 v7, s43, v4'); a('v_mul_u32_u24 v7, 528, v7'); a('v_lshl_add_u32 v7, v5, 4, v7')
    a('s_waitcnt lgkmcnt(0)'); a('s_barrier')
    FA = 32; FB = 64
    for s in range(8):
        a(f'ds_read_b128 v[{FA+4*s}:{FA+4*s+3}], v6 offset:{UB + s*64}')
        a(f'ds_read_b128 v[{FB+4*s}:{FB+4*s+3}], v7 offset:{VB + s*64}')
    for s in range(8):
        a(f's_waitcnt lgkmcnt({14-2*s})')
        a(f'v_mfma_f32_16x16x32_f16 v[8:11], v[{FA+4*s}:{FA+4*s+3}], v[{FB+4*s}:{FB+4*s+3}], ' + ('0' if s == 0 else 'v[8:11]'))
    a('v_cvt_pk_f16_f32 v12, v8, v9'); a('v_cvt_pk_f16_f32 v13, v10, v11')
    a(f'ds_write_b16 v124, v12 offset:{KC}'); a(f'ds_write_b16_d16_hi v125, v12 offset:{KC}')
    a(f'ds_write_b16 v126, v13 offset:{KC}'); a(f'ds_write_b16_d16_hi v127, v13 offset:{KC}')
    a('s_waitcnt lgkmcnt(0)'); a('s_barrier')
    for e in range(9):
        a(f'ds_read_u16 v{24+e}, v{GA+e} offset:{KC}')
    a('v_lshlrev_b32 v2, 4, v0')
    a(f's_mul_i32 s36, s3, {RK_STRIDE}')
    a('s_add_u32 s37, s36, 4096')
    a('v_cmp_gt_u32 vcc, 255, v0')
    a('s_waitcnt lgkmcnt(0)')
    a('v_cndmask_b32 v32, 0, v32, vcc')
    for e in range(4): a(f'v_lshl_or_b32 v{16+e}, v{24+2*e+1}, 16, v{24+2*e}')
    for e in range(4): a(f'v_lshl_or_b32 v{20+e}, v{24+2*e+2}, 16, v{24+2*e+1}')
    a('buffer_store_dwordx4 v[16:19], v2, s[32:35], s36 offen')
    a('buffer_store_dwordx4 v[20:23], v2, s[32:35], s37 offen')
    a.label('K1_END')
    a('s_endpgm')
    return kernel_desc('k1_kernel', 128)
```

```python
from gen_common import *
import os
from gen_k4 import VM, interleave, SLOT, K4_LDS
from gen_k1 import ln_core

LOOP = int(os.environ.get('K34L', '1'))
EARLY = int(os.environ.get('EARLY', '0'))
POLLW = int(os.environ.get('POLLW', '1'))
SPEC = int(os.environ.get('SPEC', '1')) and LOOP
RAWW = int(os.environ.get('RAWW', '0')) and SPEC
GH = int(os.environ.get('GH', '1'))
T0B = int(os.environ.get('T0B', '1'))
def gen_k34(a):
    a.raw(kernel_header('k34_kernel'))

    vm = VM(a)
    a('s_cmp_ge_u32 s2, 256'); a.branch('s_cbranch_scc1 K4_END')
    if not TK:
        a('s_and_b32 s36, s2, 7'); a('s_lshl_b32 s36, s36, 5'); a('s_lshr_b32 s37, s2, 3'); a('s_add_u32 s3, s36, s37')
    stamp(a, 0, 'k4')
    if TK: ticket_begin(a)
    load_ptr(a, 4, 'w1'); load_ptr(a, 8, 'w3'); load_ptr(a, 12, 'ws')
    K4W2 = int(os.environ.get('K4W2', '1'))
    if K4W2: load_ptr(a, 24, 'w2')
    a('v_mov_b32 v15, v0')
    a('v_readfirstlane_b32 s39, v0'); a('s_lshr_b32 s39, s39, 6')
    a('v_and_b32 v0, 63, v0')
    a('v_lshrrev_b32 v11, 4, v0'); a('v_mul_u32_u24 v1, 9216, v11')
    a('v_bfe_u32 v12, v0, 2, 2'); a('v_xor_b32 v12, v12, v11'); a('v_lshl_add_u32 v1, v12, 6, v1')
    a('v_and_b32 v12, 3, v0'); a('v_lshl_add_u32 v1, v12, 4, v1')
    a('v_bfe_u32 v12, v0, 2, 2')
    a('v_lshrrev_b32 v13, 5, v0')
    a('v_lshl_add_u32 v13, v13, 3, v12'); a('v_lshlrev_b32 v2, 8, v13')
    a('v_xor_b32 v12, s39, v12'); a('v_lshl_add_u32 v2, v12, 6, v2')
    a('v_bfe_u32 v12, v0, 4, 1'); a('v_lshl_add_u32 v2, v12, 5, v2')
    a('v_and_b32 v12, 3, v0'); a('v_lshl_add_u32 v2, v12, 3, v2')
    a(f'v_add_u32 v4, {3*SLOT}, v2'); a(f'v_add_u32 v3, {2*SLOT}, v2'); a(f'v_add_u32 v2, {SLOT}, v2')
    a('v_lshlrev_b32 v5, 4, v0')
    for s in range(1, 4): a(f'v_add_u32 v{5+s}, {s*SLOT}, v5')
    a('v_bfe_u32 v12, v0, 4, 1'); a('v_lshlrev_b32 v10, 10, v12')
    a('v_lshrrev_b32 v12, 5, v0'); a('v_lshl_add_u32 v10, v12, 8, v10')
    a('v_and_b32 v12, 15, v0'); a('v_lshl_add_u32 v10, v12, 4, v10')
    a('s_mul_i32 s36, s3, 9363'); a('s_lshr_b32 s36, s36, 16')
    a('s_mul_i32 s37, s36, 7'); a('s_sub_u32 s37, s3, s37')
    a('s_mul_i32 s38, s37, 9'); a('s_cmp_gt_u32 s37, 0'); a('s_addc_u32 s38, s38, 0')
    if SPEC:
        a('s_and_b32 s54, s2, 7'); a('s_lshr_b32 s56, s2, 3'); a('s_lshr_b32 s55, s56, 2')
        a('s_cmp_eq_u32 s55, 7'); a('s_cselect_b32 s57, 0, s55'); a('s_cselect_b32 s72, 9, 8')
        a('s_cmp_eq_u32 s54, 7'); a('s_cselect_b32 s54, s57, s54'); a('s_cselect_b32 s55, s72, s55')
        a('s_mul_i32 s57, s54, 9'); a('s_cmp_gt_u32 s54, 0'); a('s_addc_u32 s57, s57, s55')
        a('s_lshl_b32 s55, s57, 2'); a('s_and_b32 s56, s56, 3'); a('s_add_u32 s55, s55, s56')
        a('s_lshl_b32 s72, s54, 7')
        a('s_cmp_ge_u32 s3, 252')
        a('s_cselect_b32 s36, 0, s36'); a('s_cselect_b32 s37, 0, s37'); a('s_cselect_b32 s38, 0, s38')
    else:
        a('s_lshl_b32 s55, s38, 2'); a('s_add_u32 s55, s55, s36')
        a('s_sub_u32 s56, s3, 216')
        a('s_cmp_ge_u32 s3, 252')
        a('s_cselect_b32 s55, s56, s55'); a('s_cselect_b32 s36, 0, s36'); a('s_cselect_b32 s37, 0, s37'); a('s_cselect_b32 s38, 0, s38')
    a('s_lshl_b32 s40, s36, 8')
    a(f's_mul_i32 s41, s39, {16*9216}'); a('s_add_u32 s40, s40, s41')
    a('s_lshl_b32 s42, s39, 12')
    a(f's_mul_i32 s43, s38, {SLOT}'); a('s_mul_i32 s44, s39, 9216'); a('s_add_u32 s43, s43, s44')
    a('s_lshl_b32 s45, s36, 2'); a('s_add_u32 s45, s45, s39'); a('s_lshl_b32 s45, s45, 7'); a('s_lshl_b32 s46, s38, 1'); a('s_add_u32 s45, s45, s46'); a('s_lshl_b32 s45, s45, 10')
    a('s_mov_b32 s47, 0xffff0000'); a(f's_mov_b32 s48, {f32bits(-LOG2E)}')
    a('s_waitcnt lgkmcnt(0)')
    make_srd(a, 4, 576 * 9216); make_srd(a, 8, 576 * 9216)
    copy_srd(a, 16, 12, SZ_XF, WS_XF); copy_srd(a, 20, 12, SZ_HH, WS_HH)
    if K4W2:
        make_srd(a, 24, 4608 * 1152)
        a('s_mul_i32 s53, s3, 21504'); a('s_lshl_b32 s54, s39, 10'); a('s_add_u32 s53, s53, s54')
        a('v_lshlrev_b32 v14, 4, v0'); a('v_add_u32 v14, s53, v14')
    def w_dma(st):
        slot = 1 + st % 3
        for mat in range(2):
            for q in range(4):
                a(f's_add_u32 m0, s42, {slot*SLOT + mat*16384 + q*1024}')
                a(f's_add_u32 s49, s40, {(64*st + 4*q)*9216}')
                vm.issue(f'W{st}', f'buffer_load_dwordx4 v1, s[{4+4*mat}:{7+4*mat}], s49 offen lds')
    def x_dma_list(i):
        slot = i % 4; L = []
        for q in range(3):
            L.append(f's_add_u32 m0, s44, {slot*SLOT + q*4096}')
            L.append(f's_add_u32 s49, s43, {i*SLOT + q*4096}')
            for r in range(4 if q < 2 else 1):
                L.append(lambda r=r: vm.issue(f'X{i}', f'buffer_load_dwordx4 v5, s[16:19], s49 offen offset:{r*1024} sc1 lds'))
        return L
    def run(L):
        for f in L: f() if callable(f) else a(f)
    XB = 16; WV = 40; ACC = 72; TMP = 136
    def wreg(k, mat):
        if k < 32: b = 8 * k + 4 * mat; return 'a', b
        b = WV + 8 * (k - 32) + 4 * mat; return 'v', b
    def xread(i, k):
        n = 36 * i + k; b = XB + 4 * (n % 6)
        return f'ds_read_b128 v[{b}:{b+3}], v{5 + i % 4} offset:{k*1024}'
    def mfma(i, k, mat):
        n = 36 * i + k; b = XB + 4 * (n % 6)
        t, wb = wreg(k, mat); acc = ACC + 32 * (i % 2) + 16 * mat
        c = '0' if k == 0 else f'v[{acc}:{acc+15}]'
        return f'v_mfma_f32_32x32x16_bf16 v[{acc}:{acc+15}], {t}[{wb}:{wb+3}], v[{b}:{b+3}], {c}'
    def epilogue_list(i):
        g = ACC + 32 * (i % 2); u = g + 16; L = []
        G = TMP; E = TMP + 8; U = TMP + 16; PK = TMP + 24;
        for p in range(2):
            P = TMP + 28 + 4 * p
            o = 8 * p
            for j in range(4): L.append(f'v_cvt_pk_bf16_f32 v{PK+j}, v{g+o+2*j}, v{g+o+2*j+1}')
            for j in range(4):
                L.append(f'v_lshlrev_b32 v{G+2*j}, 16, v{PK+j}'); L.append(f'v_and_b32 v{G+2*j+1}, s47, v{PK+j}')
            for j in range(8): L.append(f'v_mul_f32 v{E+j}, s48, v{G+j}')
            for j in range(8): L.append(f'v_exp_f32 v{E+j}, v{E+j}')
            for j in range(4): L.append(f'v_cvt_pk_bf16_f32 v{PK+j}, v{u+o+2*j}, v{u+o+2*j+1}')
            for j in range(8): L.append(f'v_add_f32 v{E+j}, 1.0, v{E+j}')
            for j in range(8): L.append(f'v_rcp_f32 v{E+j}, v{E+j}')
            for j in range(4):
                L.append(f'v_lshlrev_b32 v{U+2*j}, 16, v{PK+j}'); L.append(f'v_and_b32 v{U+2*j+1}, s47, v{PK+j}')
            for j in range(8): L.append(f'v_mul_f32 v{G+j}, v{G+j}, v{E+j}')
            for j in range(4): L.append(f'v_cvt_pk_bf16_f32 v{PK+j}, v{G+2*j}, v{G+2*j+1}')
            for j in range(4):
                L.append(f'v_lshlrev_b32 v{G+2*j}, 16, v{PK+j}'); L.append(f'v_and_b32 v{G+2*j+1}, s47, v{PK+j}')
            for j in range(8): L.append(f'v_mul_f32 v{G+j}, v{G+j}, v{U+j}')
            for j in range(4): L.append(f'v_cvt_pk_bf16_f32 v{P+j}, v{G+2*j}, v{G+2*j+1}')
            if p == 0: L.append(f's_add_u32 s50, s45, {i*2048}')
            L.append(lambda P=P, p=p: vm.issue(f'S{i}', f'buffer_store_dwordx4 v[{P}:{P+3}], v10, s[20:23], s50 offen offset:{p*512}' + os.environ.get('STMOD', ' sc1')))
        return L
    PF = os.environ.get('K4PF', '0')
    if PF != '0':
        a('s_lshl_b32 s51, s37, 8'); a('s_lshl_b32 s52, s39, 6'); a('s_add_u32 s51, s51, s52')
        a('v_add_u32 v11, s51, v0')
        a('v_lshrrev_b32 v12, 1, v11'); a('v_mul_u32_u24 v12, 9216, v12')
        a('v_and_b32 v11, 1, v11'); a('v_lshl_add_u32 v12, v11, 7, v12')
        a('s_lshl_b32 s51, s36, 8')
        vm.issue('PF', 'buffer_load_dword v13, v12, s[4:7], s51 offen')
        vm.issue('PF', 'buffer_load_dword v14, v12, s[8:11], s51 offen')
        if PF == '2':
            vm.issue('PF', 'buffer_load_dword v13, v12, s[4:7], s51 offen offset:64')
            vm.issue('PF', 'buffer_load_dword v14, v12, s[8:11], s51 offen offset:64')
    RAWR = {6: ('a', 192), 7: ('a', 224), 8: ('v', 40)}
    def w_raw(st):
        t, base = RAWR[st]
        for mat in range(2):
            for q in range(4):
                r = base + 4 * (mat * 4 + q)
                a(f's_add_u32 s49, s40, {(64*st + 4*q)*9216}')
                vm.issue(f'R{st}', f'buffer_load_dwordx4 {t}[{r}:{r+3}], v1, s[{4+4*mat}:{7+4*mat}], s49 offen')
    def w_put(st, slot):
        t, base = RAWR[st]
        for mat in range(2):
            for q in range(4):
                r = base + 4 * (mat * 4 + q)
                a(f'ds_write_b128 v9, {t}[{r}:{r+3}] offset:{(slot-1)*SLOT + mat*16384 + q*1024}')
    def w_reads(st, slot=None):
        if slot is None: slot = 1 + st % 3
        for kk in range(4):
            k = 4 * st + kk
            for mat in range(2):
                t, wb = wreg(k, mat)
                off = mat * 16384 + kk * 4096
                a(f'ds_read_b64_tr_b16 {t}[{wb}:{wb+1}], v{1+slot} offset:{off}')
                a(f'ds_read_b64_tr_b16 {t}[{wb+2}:{wb+3}], v{1+slot} offset:{off+1024}')
    XL = 16; XP = 28; XFv = 72; LT = 96; XN = 112; CB = 124; SB = 148
    RED = 9216
    copy_srd(a, 28, 12, SZ_X1T, WS_X1T); copy_srd(a, 32, 12, SZ_MOD, WS_MOD); copy_srd(a, 64, 12, SZ_X1, WS_X1)
    copy_srd(a, 68, 12, 4096, WS_CNT + CNT_OFF['k4'])
    a('s_lshl_b32 s57, s55, 4')
    for i in range(3):
        a(f'v_add_u32 v{11+i}, {256*i}, v15'); a(f'v_mul_u32_u24 v{11+i}, {X1T_STRIDE}, v{11+i}')
    for i in range(3): vm.issue('XL', f'buffer_load_dwordx4 v[{XL+4*i}:{XL+4*i+3}], v{11+i}, s[28:31], s57 offen')
    w_dma(0); w_dma(1); w_dma(2)
    if RAWW: w_raw(6); a('v_add_u32 v9, s42, v6')
    a('v_lshrrev_b32 v172, 4, v15'); a('v_lshlrev_b32 v172, 1, v172')
    a('v_bfe_u32 v11, v15, 1, 1'); a('v_add_u32 v172, v172, v11'); a('v_lshlrev_b32 v172, 3, v172')
    a('v_bfe_u32 v11, v15, 2, 2'); a('v_add_u32 v172, v172, v11'); a('v_lshlrev_b32 v172, 4, v172')
    a('v_and_b32 v11, 1, v15'); a('v_lshl_add_u32 v172, v11, 3, v172')
    a('v_and_b32 v11, 7, v15'); a('v_lshrrev_b32 v12, 3, v15')
    a('v_mul_u32_u24 v173, 1152, v11'); a('v_lshl_add_u32 v173, v12, 4, v173')
    a('v_lshrrev_b32 v174, 1, v12'); a('v_lshlrev_b32 v174, 10, v174')
    a('v_and_b32 v13, 1, v12'); a('v_lshl_add_u32 v174, v13, 9, v174'); a('v_lshl_add_u32 v174, v11, 4, v174')
    a('v_lshlrev_b32 v175, 5, v12')
    a('v_lshlrev_b32 v13, 2, v11')
    a('s_lshl_b32 s58, s39, 5'); a('v_add_u32 v12, s58, v13')
    a('v_lshlrev_b32 v11, 4, v15')
    a('s_mul_i32 s58, s55, 9216')
    a('s_lshr_b32 s59, s55, 2'); a(f's_mul_i32 s59, s59, {36*1024}'); a('s_and_b32 s60, s55, 3'); a('s_lshl_b32 s60, s60, 7'); a('s_add_u32 s59, s59, s60')
    a(f's_mov_b32 s61, {4*2304}'); a(f's_mov_b32 s62, {3*2304}')
    vm.wait('XL')
    a(f'ds_write_b128 v11, v[{XL}:{XL+3}]'); a(f'ds_write_b128 v11, v[{XL+4}:{XL+7}] offset:4096')
    a('s_cmp_lg_u32 s39, 0'); a.branch('s_cbranch_scc1 K34_NW3')
    a(f'ds_write_b128 v11, v[{XL+8}:{XL+11}] offset:8192')
    a.label('K34_NW3')
    vm.wait('W0', ' lgkmcnt(0)'); a('s_barrier')
    stamp(a, 1, 'k4')
    base_ops = list(vm.ops)
    a('s_cmp_eq_u32 s39, 3'); a.branch('s_cbranch_scc1 K34_AUX')
    for i in range(3):
        vm.issue('M', f'buffer_load_dwordx4 v[{CB+8*i}:{CB+8*i+3}], v175, s[32:35], s61 offen offset:{768*i}')
        vm.issue('M', f'buffer_load_dwordx4 v[{CB+8*i+4}:{CB+8*i+7}], v175, s[32:35], s61 offen offset:{768*i+16}')
        vm.issue('M', f'buffer_load_dwordx4 v[{SB+8*i}:{SB+8*i+3}], v175, s[32:35], s62 offen offset:{768*i}')
        vm.issue('M', f'buffer_load_dwordx4 v[{SB+8*i+4}:{SB+8*i+7}], v175, s[32:35], s62 offen offset:{768*i+16}')
    if RAWW: w_raw(7)
    for i in range(3):
        a(f'ds_read_b64_tr_b16 v[{XP+4*i}:{XP+4*i+1}], v172 offset:{3072*i}')
        a(f'ds_read_b64_tr_b16 v[{XP+4*i+2}:{XP+4*i+3}], v172 offset:{3072*i+64}')
    w_reads(0)
    a('s_waitcnt lgkmcnt(15)')
    for i in range(3): vm.issue('X1S', f'buffer_store_dwordx4 v[{XP+4*i}:{XP+4*i+3}], v173, s[64:67], s58 offen offset:{384*i}')
    def pre2(): vm.wait('W1')
    def post2(): w_dma(3); w_reads(1)
    def pre3(): vm.wait('W2')
    def post3(): w_dma(4); w_reads(2)
    ln_core(a, 3, XP, XFv, LT, 3, 12, 13, RED, XN, hooks=(pre2, post2, pre3, post3, GH))
    vm.wait('M')
    n = 24
    for i in range(12): unpack_lo(a, XFv + 2 * i, XN + i); unpack_hi(a, XFv + 2 * i + 1, XN + i)
    for i in range(n): a(f'v_add_f32 v{CB+i}, 1.0, v{CB+i}')
    for i in range(12): a(f'v_cvt_pk_bf16_f32 v{LT+i}, v{CB+2*i}, v{CB+2*i+1}')
    for i in range(12): unpack_lo(a, CB + 2 * i, LT + i); unpack_hi(a, CB + 2 * i + 1, LT + i)
    for i in range(n): a(f'v_mul_f32 v{XFv+i}, v{XFv+i}, v{CB+i}')
    for i in range(12): a(f'v_cvt_pk_bf16_f32 v{LT+i}, v{XFv+2*i}, v{XFv+2*i+1}')
    for i in range(12): unpack_lo(a, XFv + 2 * i, LT + i); unpack_hi(a, XFv + 2 * i + 1, LT + i)
    for i in range(n): a(f'v_add_f32 v{XFv+i}, v{XFv+i}, v{SB+i}')
    for i in range(12): a(f'v_cvt_pk_bf16_f32 v{LT+i}, v{XFv+2*i}, v{XFv+2*i+1}')
    for i in range(3):
        a(f's_add_u32 s60, s59, {12288*i}')
        vm.issue('XFS', f'buffer_store_dwordx4 v[{LT+4*i}:{LT+4*i+3}], v174, s[16:19], s60 offen sc1')
    if RAWW: w_raw(8)
    a('s_waitcnt lgkmcnt(0)'); a('s_barrier')
    w_dma(5)
    def stage(st):
        vm.wait(f'W{st}'); a('s_barrier'); w_reads(st); a('s_waitcnt lgkmcnt(0)'); a('s_barrier'); w_dma(st + 3)
    if EARLY: stage(3); stage(4)
    vm.wait('XFS')
    a.branch('s_branch K34_JOIN')
    a.label('K34_AUX')
    vm.ops = list(base_ops)
    if RAWW: w_raw(7)
    w_reads(0); a('s_waitcnt lgkmcnt(0)'); vm.wait('W1'); a('s_barrier')
    w_dma(3); w_reads(1); a('s_waitcnt lgkmcnt(0)'); vm.wait('W2'); a('s_barrier')
    w_dma(4); w_reads(2)
    if RAWW: w_raw(8)
    a('s_waitcnt lgkmcnt(0)'); a('s_barrier')
    w_dma(5)
    if EARLY: stage(3); stage(4)
    if RAWW: vm.wait('W4')
    a.label('K34_JOIN')
    vm.ops = (['W5'] * 8 + ['W6'] * 8 + ['W7'] * 8) if EARLY else (['W3'] * 8 + ['W4'] * 8 + ['W5'] * 8)
    if RAWW: vm.ops = ['R8'] * 8 + ['W5'] * 8
    a('s_barrier')
    stamp(a, 2, 'k4')
    a('s_lshl_b32 s63, s37, 7')
    a('s_cmp_lg_u32 s39, 0'); a.branch('s_cbranch_scc1 K34_NS')
    a('s_mov_b64 exec, 1'); a('v_mov_b32 v11, 1')
    a(f'buffer_atomic_add v11, off, s[68:71], s{72 if SPEC else 63} sc1')
    a('s_mov_b64 exec, -1')
    a.label('K34_NS')
    a('s_cmp_ge_u32 s3, 252'); a.branch('s_cbranch_scc1 K34_HEND')
    if RAWW: w_reads(3, 1); w_reads(4, 2)
    if SPEC: run(x_dma_list(0))
    def nonloop():
        def tile(i):
            mf = [];
            fill = epilogue_list(i - 1) if i else []
            dma = x_dma_list(i + 3) if 0 < i <= 6 else []
            if K4W2 and 1 <= i <= 6:
                dma = dma + [f'v_add_u32 v13, {(i-1)*4096}, v14', lambda: vm.issue('PW', 'buffer_load_dwordx4 v[172:175], v13, s[24:27], 0 offen')]
            X = os.environ.get('K4X', '')
            if 'noepi' in X: fill = [f for f in fill if callable(f) or f.startswith('s_')]
            if 'nost' in X: fill = [f for f in fill if not callable(f)]
            if 'notrans' in X: fill = [f for f in fill if callable(f) or not ('exp' in f or 'rcp' in f)]
            for k in range(36):
                pre = []
                if k == 32 and i + 1 <= 9:
                    pre.append(lambda: vm.wait(f'X{i+1}'))
                    if 'nobar' not in X: pre.append('s_barrier')
                pre.append(xread(i, k + 4) if k + 4 < 36 else xread(i + 1, k + 4 - 36))
                pre.append('s_waitcnt lgkmcnt(4)')
                pre.append(mfma(i, k, 0))
                mf.append(pre); mf.append([mfma(i, k, 1)])
            interleave(a, mf[:64], fill)
            interleave(a, mf[64:], dma)
        stamp(a, 4, 'k4')
        for i in range(0, 9):
            tile(i)
            if i in (1, 4):
                stamp(a, {1:5,4:6}[i], 'k4')
                if 'k4' in STAMPS: a('s_waitcnt lgkmcnt(0)')
        a('s_cmp_eq_u32 s37, 0'); a.branch('s_cbranch_scc1 K4_T9')
        saved = list(vm.ops)
        run(epilogue_list(8))
        stamp(a, 7, 'k4')
        a('v_mov_b32 v0, v15')
        dump_stamps(a, 8, 'k4', 101)
        a('s_endpgm')
        vm.ops = saved
        a.label('K4_T9')
        tile(9)
        run(epilogue_list(9))
        a.label('K4_END')
        a('s_endpgm')

    def poll(first_issued):
        a('s_cmp_lg_u32 s39, 0'); a.branch('s_cbranch_scc1 K34_PD')
        a('s_cmp_eq_u32 s37, 0'); a('s_cselect_b32 s56, 40, 36')
        a('s_mov_b32 s57, 0')
        if first_issued is not None:
            a(f's_waitcnt vmcnt({first_issued})'); a.branch('s_branch K34_PC')
        a.label('K34_PL')
        a('buffer_load_dword v11, off, s[68:71], s63 sc1')
        a('s_waitcnt vmcnt(0)')
        if first_issued is not None: a.label('K34_PC')
        a('v_readfirstlane_b32 s58, v11')
        a('s_cmp_ge_u32 s58, s56'); a.branch('s_cbranch_scc1 K34_PD')
        a('s_sleep 2')
        a('s_add_u32 s57, s57, 1'); a('s_cmp_lt_u32 s57, 0x10000'); a.branch('s_cbranch_scc1 K34_PL')
        a.label('K34_PD')
    def x_validate_own():
        a('s_mul_i32 s59, s39, 9216'); a('v_add_u32 v11, s59, v5')
        for i in range(9): a(f'ds_read_b128 v[{TMP+4*i}:{TMP+4*i+3}], v11 offset:{i*1024}')
        for i in range(9):
            a(f's_waitcnt lgkmcnt({8-i})')
            if i == 0: a(f'v_max3_u32 v12, v{TMP}, v{TMP+1}, v{TMP+2}'); a(f'v_max_u32 v12, v12, v{TMP+3}')
            else: a(f'v_max3_u32 v12, v{TMP+4*i}, v{TMP+4*i+1}, v12'); a(f'v_max3_u32 v12, v{TMP+4*i+2}, v{TMP+4*i+3}, v12')
        a('v_cmp_eq_u32 vcc, -1, v12')
        a('s_cmp_lg_u64 vcc, 0'); a('s_cselect_b32 s59, 1, 0')
        a('v_mov_b32 v12, s59'); a('s_lshl_b32 s59, s39, 2'); a(f's_add_u32 s59, s59, {4*SLOT}'); a('v_mov_b32 v11, s59')
        a('ds_write_b32 v11, v12')
    def x12_dma(i):
        return x_dma_list(i) + ['v_mov_b32 v13, 0x7ffffff0',
                                lambda: vm.issue('PW', 'buffer_load_dwordx4 v[172:175], v13, s[24:27], 0 offen')]
    if RAWW:
        a('s_waitcnt lgkmcnt(0)'); a('s_barrier')
        w_put(6, 1); w_put(7, 2)
        a('s_waitcnt lgkmcnt(0)'); a('s_barrier')
        a('s_cmp_lg_u32 s39, 0'); a.branch('s_cbranch_scc1 K34_P0')
        a('buffer_load_dword v173, off, s[68:71], s63 sc1')
        a.label('K34_P0')
        w_reads(6, 1); w_reads(7, 2)
        vm.wait('W5', ' lgkmcnt(0)'); a('s_barrier')
        a('s_cmp_lg_u32 s39, 0'); a.branch('s_cbranch_scc1 K34_P1')
        a('buffer_load_dword v174, off, s[68:71], s63 sc1')
        a.label('K34_P1')
        w_put(8, 1); w_reads(5, 3)
        a('s_cmp_lg_u32 s39, 0'); a.branch('s_cbranch_scc1 K34_P2')
        a('s_waitcnt vmcnt(2)'); a.branch('s_branch K34_P3')
        a.label('K34_P2'); a('s_waitcnt vmcnt(0)')
        a.label('K34_P3')
        x_validate_own()
        a('s_waitcnt lgkmcnt(0)'); a('s_barrier')
        stamp(a, 3, 'k4')
        a(f'v_mov_b32 v11, {4*SLOT}'); a(f'ds_read_b128 v[{TMP}:{TMP+3}], v11')
        w_reads(8, 1)
        a('s_cmp_lg_u32 s39, 0'); a.branch('s_cbranch_scc1 K34_PD')
        a('s_cmp_eq_u32 s37, 0'); a('s_cselect_b32 s56, 40, 36')
        a('s_mov_b32 s57, 0')
        a('s_waitcnt vmcnt(1)'); a('v_readfirstlane_b32 s58, v173')
        a('s_cmp_ge_u32 s58, s56'); a.branch('s_cbranch_scc1 K34_PD')
        a('s_waitcnt vmcnt(0)'); a.branch('s_branch K34_PC')
        a.label('K34_PL')
        a('buffer_load_dword v174, off, s[68:71], s63 sc1')
        a('s_waitcnt vmcnt(0)')
        a.label('K34_PC')
        a('v_readfirstlane_b32 s58, v174')
        a('s_cmp_ge_u32 s58, s56'); a.branch('s_cbranch_scc1 K34_PD')
        a('s_add_u32 s57, s57, 1'); a('s_cmp_lt_u32 s57, 0x10000'); a.branch('s_cbranch_scc1 K34_PL')
        a.label('K34_PD')
        a('s_waitcnt lgkmcnt(0)')
        a(f'v_or3_b32 v12, v{TMP}, v{TMP+1}, v{TMP+2}'); a(f'v_or_b32 v12, v12, v{TMP+3}')
        a('v_readfirstlane_b32 s59, v12')
        a('s_barrier')
        a('s_cmp_eq_u32 s59, 0'); a.branch('s_cbranch_scc1 K34_XOK')
        for q in range(3):
            a(f's_add_u32 m0, s44, {q*4096}'); a(f's_add_u32 s49, s43, {q*4096}')
            for r in range(4 if q < 2 else 1): a(f'buffer_load_dwordx4 v5, s[16:19], s49 offen offset:{r*1024} sc0 sc1 lds')
        a('s_waitcnt vmcnt(0)'); a('s_barrier')
        a.label('K34_XOK')
        if 'k4' in STAMPS: a('s_mul_i32 s96, s59, 100'); a('s_add_u32 s96, s96, s90'); a('s_mov_b32 s95, s90')
        vm.ops = []
        if not T0B: run(x12_dma(1)); run(x12_dma(2))
    for st in range(5 if EARLY else 3, 9 if not RAWW else 0):
        vm.wait(f'W{st}')
        a('s_barrier')
        w_reads(st)
        a('s_waitcnt lgkmcnt(0)')
        if st == 5 and not SPEC and not POLLW: poll(None)
        if st == 6 and SPEC: poll(8)
        a('s_barrier')
        if st == 5 and (SPEC or POLLW):
            a('s_cmp_lg_u32 s39, 0'); a.branch('s_cbranch_scc1 K34_P0')
            a('buffer_load_dword v11, off, s[68:71], s63 sc1')
            a.label('K34_P0')
        if st < 6: w_dma(st + 3)
        if st == 5:
            if not SPEC and POLLW: poll(8); a('s_barrier')
            stamp(a, 3, 'k4')
            if not SPEC: run(x_dma_list(0))
        if LOOP:
            if st in (6, 7):
                run(x_dma_list(st - 5))
                a('v_mov_b32 v13, 0x7ffffff0')
                for _ in range(2 if W2P else 1): vm.issue('PW', 'buffer_load_dwordx4 v[172:175], v13, s[24:27], 0 offen')
        elif st >= 6: run(x_dma_list(st - 5))
    if LOOP:
        BIG = 0x40000000
        a('v_mov_b32 v2, v5'); a(f'v_add_u32 v3, {SLOT}, v5'); a('v_mov_b32 v1, 0x7ffffff0')
        a('s_mov_b32 s55, 0')
        a('s_cmp_eq_u32 s37, 0'); a('s_cselect_b32 s56, 6, 5'); a('s_cselect_b32 s61, 99, 8')
        a(f's_mov_b32 s57, {3*SLOT}'); a('s_mov_b32 s58, 0'); a('s_mov_b32 s60, 0')
        a(f's_add_u32 s43, s43, {3*SLOT}'); a('s_sub_u32 s45, s45, 2048')
        if W2P:
            copy_srd(a, 32, 12, SZ_W2P, WS_W2P)
            a('s_mov_b32 s28, 0x38e38e39'); a('s_mov_b32 s29, 8928'); a('s_mov_b32 s30, 288'); a('s_mov_b32 s31, 27648')
    if not RAWW: vm.wait('X0'); a('s_barrier')
    if SPEC and not RAWW:
        a('s_mul_i32 s59, s39, 9216'); a('v_add_u32 v11, s59, v5')
        for i in range(9): a(f'ds_read_b128 v[{TMP+4*i}:{TMP+4*i+3}], v11 offset:{i*1024}')
        for i in range(9):
            a(f's_waitcnt lgkmcnt({8-i})')
            if i == 0: a(f'v_max3_u32 v12, v{TMP}, v{TMP+1}, v{TMP+2}'); a(f'v_max_u32 v12, v12, v{TMP+3}')
            else: a(f'v_max3_u32 v12, v{TMP+4*i}, v{TMP+4*i+1}, v12'); a(f'v_max3_u32 v12, v{TMP+4*i+2}, v{TMP+4*i+3}, v12')
        a('v_cmp_eq_u32 vcc, -1, v12')
        a('s_cmp_lg_u64 vcc, 0'); a('s_cselect_b32 s59, 1, 0')
        a('v_mov_b32 v12, s59'); a('s_lshl_b32 s59, s39, 2'); a(f's_add_u32 s59, s59, {4*SLOT}'); a('v_mov_b32 v11, s59')
        a('ds_write_b32 v11, v12'); a('s_waitcnt lgkmcnt(0)'); a('s_barrier')
        a(f'v_mov_b32 v11, {4*SLOT}'); a(f'ds_read_b128 v[{TMP}:{TMP+3}], v11'); a('s_waitcnt lgkmcnt(0)')
        a(f'v_or3_b32 v12, v{TMP}, v{TMP+1}, v{TMP+2}'); a(f'v_or_b32 v12, v12, v{TMP+3}')
        a('v_readfirstlane_b32 s59, v12')
        a('s_cmp_eq_u32 s59, 0'); a.branch('s_cbranch_scc1 K34_XOK')
        for q in range(3):
            a(f's_add_u32 m0, s44, {q*4096}'); a(f's_sub_u32 s49, s43, {3*SLOT - q*4096}')
            for r in range(4 if q < 2 else 1): a(f'buffer_load_dwordx4 v5, s[16:19], s49 offen offset:{r*1024} sc0 sc1 lds')
        a('s_waitcnt vmcnt(0)'); a('s_barrier')
        a.label('K34_XOK')
        if 'k4' in STAMPS: a('s_mul_i32 s96, s59, 100'); a('s_add_u32 s96, s96, s90'); a('s_mov_b32 s95, s90')
    for k in range(4): a(xread(0, k))
    if LOOP:
        def lxread(par, k, nxt):
            b = XB + 4 * (k % 6); r = 2 + (par ^ nxt)
            return f'ds_read_b128 v[{b}:{b+3}], v{r} offset:{k*1024}'
        def lepi(par):
            L = []
            for f in epilogue_list(par):
                if callable(f): continue
                L.append(f)
            return L
        def lepi_full(par, vo):
            g = ACC + 32 * par; u = g + 16; L = []
            G = TMP; E = TMP + 8; U = TMP + 16; PK = TMP + 24
            for p in range(2):
                P = TMP + 28 + 4 * p
                o = 8 * p
                for j in range(4): L.append(f'v_cvt_pk_bf16_f32 v{PK+j}, v{g+o+2*j}, v{g+o+2*j+1}')
                for j in range(4):
                    L.append(f'v_lshlrev_b32 v{G+2*j}, 16, v{PK+j}'); L.append(f'v_and_b32 v{G+2*j+1}, s47, v{PK+j}')
                for j in range(8): L.append(f'v_mul_f32 v{E+j}, s48, v{G+j}')
                for j in range(8): L.append(f'v_exp_f32 v{E+j}, v{E+j}')
                for j in range(4): L.append(f'v_cvt_pk_bf16_f32 v{PK+j}, v{u+o+2*j}, v{u+o+2*j+1}')
                for j in range(8): L.append(f'v_add_f32 v{E+j}, 1.0, v{E+j}')
                for j in range(8): L.append(f'v_rcp_f32 v{E+j}, v{E+j}')
                for j in range(4):
                    L.append(f'v_lshlrev_b32 v{U+2*j}, 16, v{PK+j}'); L.append(f'v_and_b32 v{U+2*j+1}, s47, v{PK+j}')
                for j in range(8): L.append(f'v_mul_f32 v{G+j}, v{G+j}, v{E+j}')
                for j in range(4): L.append(f'v_cvt_pk_bf16_f32 v{PK+j}, v{G+2*j}, v{G+2*j+1}')
                for j in range(4):
                    L.append(f'v_lshlrev_b32 v{G+2*j}, 16, v{PK+j}'); L.append(f'v_and_b32 v{G+2*j+1}, s47, v{PK+j}')
                for j in range(8): L.append(f'v_mul_f32 v{G+j}, v{G+j}, v{U+j}')
                for j in range(4): L.append(f'v_cvt_pk_bf16_f32 v{P+j}, v{G+2*j}, v{G+2*j+1}')
                L.append(f'buffer_store_dwordx4 v[{P}:{P+3}], v{vo}, s[20:23], s45 offen offset:{p*512}' + os.environ.get('STMOD', ' sc1'))
            return L
        uid = [0]
        T0K1 = int(os.environ.get('T0K1', '1')); T0K2 = int(os.environ.get('T0K2', '7'))
        def ltile(par):
            fill = lepi_full(par ^ 1, 1 if par == 0 else 10) + ['s_add_u32 s45, s45, 2048']
            if par == 1: fill.append('v_mov_b32 v1, v10')
            Q = 172 if (par == 0 or not W2P) else 6
            if W2P:
                ad = ['s_sub_u32 s62, s60, 8192', 'v_add_u32 v11, s62, v14', 'v_lshrrev_b32 v12, 7, v11', 'v_mul_hi_u32 v12, v12, s28',
                      'v_lshrrev_b32 v12, 1, v12', 'v_lshrrev_b32 v11, 4, v11', 'v_mul_u32_u24 v0, 72, v12', 'v_sub_u32 v11, v11, v0',
                      'v_mul_u32_u24 v0, 3641, v11', 'v_lshrrev_b32 v0, 16, v0', 'v_lshlrev_b32 v11, 4, v11',
                      'v_mad_u32_u24 v11, v0, s29, v11', 'v_mad_u32_u24 v11, v12, s30, v11', 'v_lshrrev_b32 v12, 5, v12', 'v_mad_u32_u24 v11, v12, s31, v11',
                      lambda: (a('s_sub_u32 s62, s55, 2'), a('s_cmp_lt_u32 s62, 6'), a('s_cselect_b64 vcc, -1, 0'), a('v_mov_b32 v13, 0x7ffffff0'), a('v_cndmask_b32 v11, v13, v11, vcc'))]
                step = max(1, len(fill) // (len(ad) + 1)); nf = []
                for n_, f_ in enumerate(fill):
                    nf.append(f_)
                    if n_ % step == step - 1 and ad: nf.append(ad.pop(0))
                fill = nf + ad
            ss = 57 + par
            dma = [f'v_xor_b32 v{2+par}, 0x12000, v{2+par}',
                   's_cmp_le_u32 s55, s56', f's_cselect_b32 s59, 0, {BIG}', 'v_add_u32 v4, s59, v5', f's_add_u32 s52, s44, s{ss}']
            for q in range(3):
                dma.append(f's_add_u32 m0, s52, {q*4096}'); dma.append(f's_add_u32 s49, s43, {q*4096}')
                for r in range(4 if q < 2 else 1):
                    dma.append(f'buffer_load_dwordx4 v4, s[16:19], s49 offen offset:{r*1024} sc1 lds')
            if W2P: dma.append(f'buffer_store_dwordx4 v[{Q}:{Q+3}], v11, s[32:35], 0 offen sc1')
            dma += ['s_cmp_le_u32 s55, 5', f's_cselect_b32 s59, s60, {BIG}', 'v_add_u32 v13, s59, v14',
                    f'buffer_load_dwordx4 v[{Q}:{Q+3}], v13, s[24:27], 0 offen',
                    's_add_u32 s60, s60, 4096', f's_xor_b32 s{ss}, s{ss}, 0x12000', f's_add_u32 s43, s43, {SLOT}']
            def t0blk(i):
                a('s_cmp_lg_u32 s55, 0'); a(f's_cbranch_scc1 K34_B{i}_{uid[0]}')
                h = list(a.hist)
                for q in range(3):
                    a(f's_add_u32 m0, s44, {i*SLOT + q*4096}'); a(f's_sub_u32 s49, s43, {(3-i)*SLOT - q*4096}')
                    for r in range(4 if q < 2 else 1):
                        a(f'buffer_load_dwordx4 v5, s[16:19], s49 offen offset:{r*1024} sc1 lds')
                a('v_mov_b32 v13, 0x7ffffff0'); a('buffer_load_dwordx4 v[172:175], v13, s[24:27], 0 offen')
                a.label_nf(f'K34_B{i}_{uid[0]}'); a.hist = h
            mf = []
            for k in range(36):
                pre = []
                if par == 0 and RAWW and T0B and k in (T0K1, T0K2): pre.append(lambda k=k: t0blk(1 if k == T0K1 else 2))
                if k == 32: pre += [f's_waitcnt vmcnt({15 if W2P else 13})', 's_barrier']
                pre.append(lxread(par, k + 4, 0) if k + 4 < 36 else lxread(par, k + 4 - 36, 1))
                pre.append('s_waitcnt lgkmcnt(4)')
                pre.append(mfma(par, k, 0))
                mf.append(pre); mf.append([mfma(par, k, 1)])
            interleave(a, mf[:64], fill)
            interleave(a, mf[64:], dma)
        stamp(a, 4, 'k4')
        main = a
        def body():
            ltile(0)
            a('s_cmp_eq_u32 s55, s61'); a('s_cbranch_scc1 K34_F0')
            a('s_add_u32 s55, s55, 1')
            ltile(1)
            a('s_add_u32 s55, s55, 1')
            a('s_cmp_lt_u32 s55, 10'); a('s_cbranch_scc1 K34_LOOP')
        sv = (a.lines, a.hist, a.nops, a.count); a.lines = []; a.hist = []
        body(); h = list(a.hist)
        a.lines, a.hist, a.nops, a.count = sv
        a.label_h('K34_LOOP', h)
        body()
        run(lepi_full(1, 10))
        a('s_waitcnt vmcnt(0)')
        a('s_endpgm')
        a.label('K34_F0')
        a('s_nop 11')
        run(lepi_full(0, 10))
        stamp(a, 7, 'k4')
        a('v_mov_b32 v0, v15')
        dump_stamps(a, 8, 'k4', 101)
        a('s_waitcnt vmcnt(0)')
        a.label('K4_END')
        a('s_endpgm')
    else:
        nonloop()
    a.label('K34_HEND')
    a('s_waitcnt vmcnt(0)')
    a('s_endpgm')
    return kernel_desc('k34_kernel', 176 + 256, accum=176)
```

```python
from gen_k4 import *
from gen_k56 import *
launches = [('k4_kernel', 256, 256, K4_LDS), ('k5_kernel', 256, 512 if K5L else 256, K5_LDS), ('k6_kernel', 256, 256, 0)]
gens = [gen_k4, gen_k5, gen_k6]

if F56 and K5A:
    launches = launches[:2]; gens = gens[:2]
```

```python
from gen_common import *
from gen_k4 import VM, interleave
import os

ST5 = 17408; NS5 = 9
K5L = int(os.environ.get('K5L', '0'))
K5_LDS = ST5 * NS5 + 16
K5A = int(os.environ.get('K5A', '1'))
def gen_k5(a):
    if K5A: return gen_k5a(a)
    a.raw(kernel_header('k5_kernel'))
    dbgt(a, 4, 4, 'DBGT_5')
    vm = VM(a)
    a('s_cmp_ge_u32 s2, 256'); a.branch('s_cbranch_scc1 K5_END')
    stamp(a, 0, 'k5')
    if TK: ticket_begin(a)
    load_ptr(a, 4, 'w2'); load_ptr(a, 12, 'ws')
    a('v_mov_b32 v15, v0')
    a('v_readfirstlane_b32 s35, v0'); a('s_lshr_b32 s35, s35, 6')
    a('s_and_b32 s39, s35, 3')
    a('v_and_b32 v0, 63, v0')
    a('v_lshlrev_b32 v1, 4, v0')
    a('s_mul_i32 s40, s39, 144')
    for q in range(3):
        a(f's_add_u32 s41, s40, {48*q}')
        a('v_add_u32 v10, s41, v0')
        a('v_mul_u32_u24 v11, 3641, v10'); a('v_lshrrev_b32 v11, 16, v11')
        a('v_mul_u32_u24 v12, 18, v11'); a('v_sub_u32 v12, v10, v12')
        a(f'v_mul_u32_u24 v{2+q}, 1152, v11'); a(f'v_lshl_add_u32 v{2+q}, v12, 4, v{2+q}')
    a('v_lshrrev_b32 v10, 5, v0'); a('v_lshlrev_b32 v10, 4, v10')
    a('v_bfe_u32 v11, v0, 4, 1'); a('v_lshl_add_u32 v10, v11, 2, v10')
    a('v_bfe_u32 v11, v0, 2, 2'); a('v_add_u32 v10, v10, v11'); a('v_mul_u32_u24 v5, 288, v10')
    a('v_and_b32 v11, 3, v0'); a('v_lshl_add_u32 v5, v11, 3, v5'); a('v_add_u32 v5, 8192, v5')
    a('s_lshl_b32 s40, s39, 11'); a('v_add_u32 v6, s40, v1')
    if TK:
        ticket(a, 'k5', 4, 3, K5_LDS - 16, wave_s=35)
        a('s_lshr_b32 s36, s3, 5'); a('s_and_b32 s37, s3, 31')
    else:
        a('s_and_b32 s36, s2, 7'); a('s_lshr_b32 s37, s2, 3')
    a('s_and_b32 s38, s36, 3')
    a('s_lshr_b32 s36, s36, 2'); a('s_lshl_b32 s36, s36, 3'); a('s_lshr_b32 s43, s37, 2'); a('s_add_u32 s36, s36, s43')
    a('s_and_b32 s37, s37, 3')
    a(f's_mul_i32 s41, s38, {36*131072}'); a('s_lshl_b32 s42, s36, 13'); a('s_add_u32 s41, s41, s42'); a('s_add_u32 s41, s41, s40')
    a(f's_mul_i32 s42, s38, {36*36864}'); a('s_mul_i32 s43, s37, 288'); a('s_add_u32 s42, s42, s43')
    a('s_mul_i32 s43, s39, 2304')
    a('s_mov_b32 s44, -1'); a('s_mov_b32 s45, 0xffff')
    a('s_waitcnt lgkmcnt(0)')
    make_srd(a, 4, 4608 * 1152)
    copy_srd(a, 16, 12, SZ_HH, WS_HH); copy_srd(a, 20, 12, SZ_PART, WS_PART)
    def dma_list(k):
        so = (k % NS5) * ST5; L = []
        L.append(f's_add_u32 m0, s40, {so}')
        L.append(f's_add_u32 s46, s41, {k*131072}')
        L.append(lambda: vm.issue(f'D{k}', 'buffer_load_dwordx4 v1, s[16:19], s46 offen lds'))
        L.append(lambda: vm.issue(f'D{k}', 'buffer_load_dwordx4 v1, s[16:19], s46 offen offset:1024 lds'))
        L.append(f's_add_u32 s46, s42, {k*36864}')
        def masked():
            a('s_mov_b64 exec, s[44:45]')
            for q in range(3):
                a(f's_add_u32 m0, s43, {so + 8192 + q*768}')
                vm.issue(f'D{k}', f'buffer_load_dwordx4 v{2+q}, s[4:7], s46 offen lds')
            a('s_mov_b64 exec, -1')
        L.append(masked)
        return L
    def dma(k):
        for f in dma_list(k): f() if callable(f) else a(f)
    def run(L):
        for f in L: f() if callable(f) else a(f)
    if K5L: a('s_cmp_ge_u32 s35, 4'); a.branch('s_cbranch_scc1 K5_LOAD')
    else:
        for k in range(8): dma(k)
        if int(os.environ.get('K5LOOP', '1')):
            for i in range(72): a(f'v_mov_b32 v{16+i}, 0')
        vm.wait('D0')
    ACC = 16; WF = 88; HF = 160
    def read_list(k):
        so = (k % NS5) * ST5; b = k % 2; L = []
        va = 7 + 2 * b; vb = 8 + 2 * b
        L.append(f'v_add_u32 v{va}, {so}, v5'); L.append(f'v_add_u32 v{vb}, {so}, v6')
        h = HF + 8 * b
        L.append(f'ds_read_b128 v[{h}:{h+3}], v{vb}'); L.append(f'ds_read_b128 v[{h+4}:{h+7}], v{vb} offset:1024')
        for dt in range(9):
            wv = WF + 36 * b + 4 * dt
            L.append(f'ds_read_b64_tr_b16 v[{wv}:{wv+1}], v{va} offset:{dt*32}')
            L.append(f'ds_read_b64_tr_b16 v[{wv+2}:{wv+3}], v{va} offset:{dt*32+2304}')
        return L
    LOOP5 = int(os.environ.get('K5LOOP', '1')) and not K5L
    a('s_barrier')
    stamp(a, 1, 'k5')
    run(read_list(0))
    if LOOP5:
        def lread(b):
            sr = 47 + (b ^ 1); L = []
            va = 7 + 2 * b; vb = 8 + 2 * b
            L.append(f'v_add_u32 v{va}, s{sr}, v5'); L.append(f'v_add_u32 v{vb}, s{sr}, v6')
            h = HF + 8 * b
            L.append(f'ds_read_b128 v[{h}:{h+3}], v{vb}'); L.append(f'ds_read_b128 v[{h+4}:{h+7}], v{vb} offset:1024')
            for dt in range(9):
                wv = WF + 36 * b + 4 * dt
                L.append(f'ds_read_b64_tr_b16 v[{wv}:{wv+1}], v{va} offset:{dt*32}')
                L.append(f'ds_read_b64_tr_b16 v[{wv+2}:{wv+3}], v{va} offset:{dt*32+2304}')
            return L
        def ldma():
            L = ['s_add_u32 m0, s40, s51',
                 'buffer_load_dwordx4 v1, s[16:19], s41 offen lds',
                 'buffer_load_dwordx4 v1, s[16:19], s41 offen offset:1024 lds',
                 's_add_u32 s49, s43, s51']
            def masked():
                a('s_mov_b64 exec, s[44:45]')
                for q in range(3):
                    a(f's_add_u32 m0, s49, {8192 + q*768}')
                    a(f'buffer_load_dwordx4 v{2+q}, s[4:7], s42 offen lds')
                a('s_mov_b64 exec, -1')
            L += [masked, 's_add_u32 s41, s41, 131072', 's_add_u32 s42, s42, 36864']
            return L
        def mfl(b):
            mf = []
            for dt in range(9):
                for tt in range(2):
                    acc = ACC + 4 * (9 * tt + dt); wv = WF + 36 * b + 4 * dt; h = HF + 8 * b + 4 * tt
                    mf.append([f'v_mfma_f32_16x16x32_bf16 v[{acc}:{acc+3}], v[{wv}:{wv+3}], v[{h}:{h+3}], v[{acc}:{acc+3}]'])
            return mf
        def it(b):
            me = 47 + b; ot = 47 + (b ^ 1); n = 'AB'[b]
            a(f's_mov_b32 s51, s{me}')
            a(f's_add_u32 s{me}, s{ot}, {ST5}'); a(f's_cmp_lt_u32 s{me}, {NS5*ST5}'); a(f's_cselect_b32 s{me}, s{me}, 0')
            a('s_cmp_ge_u32 s50, 14')
            if b == 0:
                a(f's_cbranch_scc1 K5_TW')
                a('s_waitcnt vmcnt(30) lgkmcnt(0)')
                a.label_nf('K5_WA')
            else:
                a(f's_cbranch_scc1 K5_WB')
                a('s_waitcnt vmcnt(30)')
                a.label_nf('K5_WB')
                a('s_waitcnt lgkmcnt(0)')
            a('s_barrier')
            mf = mfl(b)
            sr = me; bb = b ^ 1; L = []
            va = 7 + 2 * bb; vb = 8 + 2 * bb
            L.append(f'v_add_u32 v{va}, s{sr}, v5'); L.append(f'v_add_u32 v{vb}, s{sr}, v6')
            h = HF + 8 * bb
            L.append(f'ds_read_b128 v[{h}:{h+3}], v{vb}'); L.append(f'ds_read_b128 v[{h+4}:{h+7}], v{vb} offset:1024')
            for dt in range(9):
                wv = WF + 36 * bb + 4 * dt
                L.append(f'ds_read_b64_tr_b16 v[{wv}:{wv+1}], v{va} offset:{dt*32}')
                L.append(f'ds_read_b64_tr_b16 v[{wv+2}:{wv+3}], v{va} offset:{dt*32+2304}')
            interleave(a, mf[:14], L)
            a('s_cmp_ge_u32 s50, 14'); a(f's_cbranch_scc1 K5_ND{n}')
            interleave(a, mf[14:], ldma())
            a.label_nf(f'K5_J{n}')
        a(f's_mov_b32 s47, {8*ST5}'); a('s_mov_b32 s48, 0'); a('s_mov_b32 s50, 0')
        a(f's_add_u32 s41, s41, {8*131072}'); a(f's_add_u32 s42, s42, {8*36864}')
        a.label('K5_LOOP')
        it(0); it(1)
        a('s_add_u32 s50, s50, 1'); a('s_cmp_lt_u32 s50, 18'); a('s_cbranch_scc1 K5_LOOP')
        a.branch('s_branch K5_EPI')
        a.label('K5_TW')
        for t, nn in ((14, 25), (15, 15), (16, 5)):
            a(f's_cmp_lg_u32 s50, {t}'); a(f's_cbranch_scc1 K5_TW{t}')
            a(f's_waitcnt vmcnt({nn}) lgkmcnt(0)'); a('s_branch K5_WA')
            a.label_nf(f'K5_TW{t}')
        a('s_waitcnt vmcnt(0) lgkmcnt(0)'); a('s_branch K5_WA')
        for b in range(2):
            a.label(f'K5_ND{"AB"[b]}')
            for g_ in mfl(b)[14:]: a(g_[0])
            a(f's_branch K5_J{"AB"[b]}')
        a.label('K5_EPI')
        a('s_waitcnt lgkmcnt(0)'); a('s_nop 7')
    for k in range(36 if not LOOP5 else 0):
        b = k % 2
        if K5L or k + 1 >= 36: a('s_waitcnt lgkmcnt(0)')
        else: vm.wait(f'D{k+1}', ' lgkmcnt(0)')
        if k + 1 < 36: a('s_barrier')
        fill = read_list(k + 1) if k + 1 < 36 else []
        mf = []
        for dt in range(9):
            for tt in range(2):
                acc = ACC + 4 * (9 * tt + dt); wv = WF + 36 * b + 4 * dt; h = HF + 8 * b + 4 * tt
                c = '0' if k == 0 else f'v[{acc}:{acc+3}]'
                mf.append([f'v_mfma_f32_16x16x32_bf16 v[{acc}:{acc+3}], v[{wv}:{wv+3}], v[{h}:{h+3}], {c}'])
        interleave(a, mf[:14], fill)
        interleave(a, mf[14:], dma_list(k + 8) if (not K5L and k + 8 < 36) else [])
        if k in (11, 23): stamp(a, 2 if k == 11 else 3, 'k5')
    stamp(a, 4, 'k5')
    k5_epilogue(a, ACC)
    stamp(a, 5, 'k5')
    if 'k5' in STAMPS:
        a('v_mov_b32 v0, v15'); dump_stamps(a, 6, 'k5', 101)
    a('s_endpgm')
    if K5L:
        a.label('K5_LOAD')
        for k in range(NS5): dma(k)
        vm.wait('D0'); a('s_barrier')
        for k in range(35):
            vm.wait(f'D{k+1}'); a('s_barrier')
            if k + NS5 < 36: dma(k + NS5)
    a.label('K5_END')
    a('s_endpgm')
    return kernel_desc('k5_kernel', 176)


F56 = int(os.environ.get('F56', '1'))
def gen_k5a(a):
    a.raw(kernel_header('k5_kernel'))
    a('s_cmp_ge_u32 s2, 256'); a.branch('s_cbranch_scc1 K5_END')
    stamp(a, 0, 'k5')
    load_ptr(a, 4, 'w2'); load_ptr(a, 12, 'ws')
    if F56: load_ptr(a, 8, 'out')
    a('v_mov_b32 v15, v0')
    a('v_readfirstlane_b32 s39, v0'); a('s_lshr_b32 s39, s39, 6')
    a('v_and_b32 v0, 63, v0')
    a('v_lshlrev_b32 v1, 4, v0')
    a('s_mul_i32 s40, s39, 144')
    for q in range(3):
        a(f's_add_u32 s41, s40, {48*q}')
        a('v_add_u32 v10, s41, v0')
        if W2P: a(f'v_lshlrev_b32 v{2+q}, 4, v10'); continue
        a('v_mul_u32_u24 v11, 3641, v10'); a('v_lshrrev_b32 v11, 16, v11')
        a('v_mul_u32_u24 v12, 18, v11'); a('v_sub_u32 v12, v10, v12')
        a(f'v_mul_u32_u24 v{2+q}, 1152, v11'); a(f'v_lshl_add_u32 v{2+q}, v12, 4, v{2+q}')
    D = int(os.environ.get('K5D', '6')); STW = 9216; NSW = D + 1
    a('v_lshrrev_b32 v10, 5, v0'); a('v_lshlrev_b32 v10, 4, v10')
    a('v_bfe_u32 v11, v0, 4, 1'); a('v_lshl_add_u32 v10, v11, 2, v10')
    a('v_bfe_u32 v11, v0, 2, 2'); a('v_add_u32 v10, v10, v11'); a('v_mul_u32_u24 v5, 288, v10')
    a('v_and_b32 v11, 3, v0'); a('v_lshl_add_u32 v5, v11, 3, v5')
    a('s_lshl_b32 s40, s39, 11')
    a('s_and_b32 s36, s2, 7'); a('s_lshr_b32 s37, s2, 3')
    a('s_and_b32 s38, s36, 3')
    a('s_lshr_b32 s36, s36, 2'); a('s_lshl_b32 s36, s36, 3'); a('s_lshr_b32 s43, s37, 2'); a('s_add_u32 s36, s36, s43')
    a('s_and_b32 s37, s37, 3')
    a(f's_mul_i32 s41, s38, {36*131072}'); a('s_lshl_b32 s42, s36, 13'); a('s_add_u32 s41, s41, s42'); a('s_add_u32 s41, s41, s40')
    a(f's_mul_i32 s42, s38, {36*36864}'); a(f's_mul_i32 s43, s37, {9216 if W2P else 288}'); a('s_add_u32 s42, s42, s43')
    a('s_mul_i32 s43, s39, 2304')
    a('s_mov_b32 s44, -1'); a('s_mov_b32 s45, 0xffff')
    a('s_waitcnt lgkmcnt(0)')
    if W2P: copy_srd(a, 4, 12, SZ_W2P, WS_W2P)
    else: make_srd(a, 4, 4608 * 1152)
    copy_srd(a, 16, 12, SZ_HH, WS_HH); copy_srd(a, 20, 12, SZ_PART, WS_PART)
    if F56:
        make_srd(a, 8, 2048 * 1152); copy_srd(a, 24, 12, SZ_MOD, WS_MOD); copy_srd(a, 28, 12, SZ_X1, WS_X1)
        copy_srd(a, 52, 12, 4096, WS_CNT + CNT_OFF['k5'])
    ACC = 16; WF = 88; NR = 12
    def hh_loads(slot):
        h = 8 * slot
        return [f'buffer_load_dwordx4 a[{h}:{h+3}], v1, s[16:19], s41 offen',
                f'buffer_load_dwordx4 a[{h+4}:{h+7}], v1, s[16:19], s41 offen offset:1024']
    def w_dma(base_s):
        def masked():
            a('s_mov_b64 exec, s[44:45]')
            for q in range(3):
                a(f's_add_u32 m0, s{base_s}, {q*768}')
                a(f'buffer_load_dwordx4 v{2+q}, s[4:7], s42 offen lds')
            a('s_mov_b64 exec, -1')
        return masked
    def run(L):
        for f in L: f() if callable(f) else a(f)
    for k in range(D):
        a(f's_add_u32 s49, s43, {k*STW}')
        run(hh_loads(k)); w_dma(49)()
        a('s_add_u32 s41, s41, 131072'); a('s_add_u32 s42, s42, 36864')
    for i in range(72): a(f'v_mov_b32 v{16+i}, 0')
    a(f's_mov_b32 s47, {D*STW}'); a('s_mov_b32 s48, 0'); a('s_mov_b32 s50, 0')
    a(f's_waitcnt vmcnt({5*(D-1)})'); a('s_barrier')
    stamp(a, 1, 'k5')
    def reads(bb, areg):
        L = []
        for dt in range(9):
            wv = WF + 36 * bb + 4 * dt
            L.append(f'ds_read_b64_tr_b16 v[{wv}:{wv+1}], v{areg} offset:{dt*32}')
            L.append(f'ds_read_b64_tr_b16 v[{wv+2}:{wv+3}], v{areg} offset:{dt*32+2304}')
        return L
    run(reads(0, 5))
    def mfl(j):
        b = j % 2; mf = []
        for dt in range(9):
            for tt in range(2):
                acc = ACC + 4 * (9 * tt + dt); wv = WF + 36 * b + 4 * dt; h = 8 * j + 4 * tt
                mf.append([f'v_mfma_f32_16x16x32_bf16 v[{acc}:{acc+3}], v[{wv}:{wv+3}], a[{h}:{h+3}], v[{acc}:{acc+3}]'])
        return mf
    tailw = {j: 5 * (10 - j) for j in range(13 - D, 11)}
    WM = 5 * (D - 2); JN = 12 - D
    def it(j):
        b = j % 2; me = 47 + b; ot = 47 + (b ^ 1)
        a(f's_mov_b32 s51, s{me}')
        a(f's_add_u32 s{me}, s{ot}, {STW}'); a(f's_cmp_lt_u32 s{me}, {NSW*STW}'); a(f's_cselect_b32 s{me}, s{me}, 0')
        if j in tailw:
            a('s_cmp_eq_u32 s50, 2'); a(f's_cbranch_scc1 K5_TW{j}')
            a(f's_waitcnt vmcnt({WM}) lgkmcnt(0)')
            a.label_nf(f'K5_WB{j}')
        else:
            a(f's_waitcnt vmcnt({WM}) lgkmcnt(0)')
        a('s_barrier')
        mf = mfl(j)
        va = 7 + (b ^ 1)
        L = [f'v_add_u32 v{va}, s{me}, v5', 's_add_u32 s49, s43, s51'] + reads(b ^ 1, va)
        interleave(a, mf[:14], L)
        dma = hh_loads((j + D) % NR) + [w_dma(49), 's_add_u32 s41, s41, 131072', 's_add_u32 s42, s42, 36864']
        if j >= JN:
            a('s_cmp_eq_u32 s50, 2'); a(f's_cbranch_scc1 K5_ND{j}')
        interleave(a, mf[14:], dma)
        if j >= JN: a.label_nf(f'K5_J{j}')
    a.label('K5_LOOP')
    for j in range(12): it(j)
    a('s_add_u32 s50, s50, 1'); a('s_cmp_lt_u32 s50, 3'); a('s_cbranch_scc1 K5_LOOP')
    a.branch('s_branch K5_EPI')
    for j, nn in tailw.items():
        a.label(f'K5_TW{j}')
        a(f's_waitcnt vmcnt({nn}) lgkmcnt(0)'); a(f's_branch K5_WB{j}')
    for j in range(JN, 12):
        a.label(f'K5_ND{j}')
        for g_ in mfl(j)[14:]: a(g_[0])
        a(f's_branch K5_J{j}')
    a.label('K5_EPI')
    a('s_waitcnt lgkmcnt(0)'); a('s_nop 7')
    stamp(a, 4, 'k5')
    if F56: k56_pre(a)
    k5_epilogue(a, ACC)
    stamp(a, 5, 'k5')
    if 'k5' in STAMPS and not F56:
        a('v_mov_b32 v0, v15'); dump_stamps(a, 6, 'k5', 101)
    if F56: k56_tail(a)
    a.label('K5_END')
    a('s_endpgm')
    return kernel_desc('k5_kernel', 176 + 8 * NR, accum=176)

def k56_pre(a):
    a('s_lshr_b32 s56, s39, 1'); a('s_and_b32 s57, s39, 1')
    a('s_lshl_b32 s58, s36, 2'); a('s_add_u32 s58, s58, s37')
    a('s_lshl_b32 s65, s58, 6')
    a('s_lshl_b32 s59, s58, 2'); a('s_add_u32 s59, s59, s38'); a('s_lshl_b32 s59, s59, 1'); a('s_add_u32 s59, s59, s56'); a('s_mul_i32 s59, s59, 5120')
    a('s_lshl_b32 s60, s36, 7'); a('s_lshl_b32 s61, s38, 5'); a('s_add_u32 s60, s60, s61'); a('s_lshl_b32 s61, s56, 4'); a('s_add_u32 s60, s60, s61')
    a('s_mul_i32 s61, s37, 144'); a('s_lshl_b32 s62, s57, 6'); a('s_add_u32 s61, s61, s62')
    a('s_mul_i32 s62, s60, 1152'); a('s_lshl_b32 s63, s61, 1'); a('s_add_u32 s62, s62, s63')
    a('s_lshl_b32 s63, s61, 2'); a(f's_add_u32 s63, s63, {5*2304}')
    a('v_and_b32 v2, 15, v0'); a('v_mul_u32_u24 v2, 1152, v2'); a('v_lshrrev_b32 v3, 4, v0'); a('v_lshl_add_u32 v2, v3, 3, v2')
    a('v_lshlrev_b32 v3, 4, v3')
    a('s_lshl_b32 s64, s57, 11'); a('s_add_u32 s64, s64, s59')
    X = 136; G = 148
    for j in range(5): a(f'buffer_load_dwordx2 v[{X+2*j}:{X+2*j+1}], v2, s[28:31], s62 offen offset:{j*32}')
    for j in range(5): a(f'buffer_load_dwordx4 v[{G+4*j}:{G+4*j+3}], v3, s[24:27], s63 offen offset:{j*64}')

def k56_tail(a):
    a('s_waitcnt vmcnt(0)'); a('s_barrier')
    stamp(a, 6, 'k5')
    a('s_cmp_lg_u32 s39, 0'); a.branch('s_cbranch_scc1 K5_PD')
    a('s_mov_b64 exec, 1'); a('v_mov_b32 v11, 1')
    a('buffer_atomic_add v11, off, s[52:55], s65 sc0 sc1')
    a('s_mov_b64 exec, -1')
    a('s_mov_b32 s67, 0')
    a('s_waitcnt vmcnt(0)'); a('v_readfirstlane_b32 s66, v11')
    a('s_cmp_ge_u32 s66, 3'); a.branch('s_cbranch_scc1 K5_PD')
    a.label('K5_PL')
    a('buffer_load_dword v11, off, s[52:55], s65 sc1')
    a('s_waitcnt vmcnt(0)'); a('v_readfirstlane_b32 s66, v11')
    a('s_cmp_ge_u32 s66, 4'); a.branch('s_cbranch_scc1 K5_PD')
    a('s_add_u32 s67, s67, 1'); a('s_cmp_lt_u32 s67, 0x10000'); a.branch('s_cbranch_scc1 K5_PL')
    a.label('K5_PD')
    a('s_barrier')
    stamp(a, 7, 'k5')
    SS = 64 * 4 * 10240
    a('s_cmp_eq_u32 s57, 1'); a.branch('s_cbranch_scc1 K5_HB')
    for half in range(2):
        nf = 4 + half
        if half: a.label('K5_HB')
        P = 8
        for s_ in range(4):
            if s_: a(f's_add_u32 s64, s64, {SS}'); a(f's_add_u32 s59, s59, {SS}')
            b = P + 12 * s_
            a(f'buffer_load_dwordx4 v[{b}:{b+3}], v1, s[20:23], s64 offen sc1')
            a(f'buffer_load_dwordx4 v[{b+4}:{b+7}], v1, s[20:23], s64 offen offset:1024 sc1')
            if half: a(f'buffer_load_dwordx4 v[{b+8}:{b+11}], v1, s[20:23], s64 offen offset:2048 sc1')
            else:
                a(f's_add_u32 s60, s59, 4096')
                a(f'buffer_load_dword v{b+10}, v1, s[20:23], s60 offen offset:8 sc1')
        X = 136; G = 148; R = 88; T = 108
        n = 4 * nf
        for s_ in range(4):
            a(f's_waitcnt vmcnt({3*(3-s_)})')
            b = P + 12 * s_
            for i in range(n):
                src = b + i // 2
                sel = f'op_sel:[{i%2},0,0] op_sel_hi:[1,0,0]'
                if s_ == 0: a(f'v_fma_mix_f32 v{R+i}, v{src}, v{b+10}, 0 {sel}')
                else: a(f'v_fma_mix_f32 v{R+i}, v{src}, v{b+10}, v{R+i} {sel}')
        for i in range(n // 2): a(f'v_cvt_pk_bf16_f32 v{T+i}, v{R+2*i}, v{R+2*i+1}')
        for i in range(n // 2): unpack_lo(a, R + 2 * i, T + i); unpack_hi(a, R + 2 * i + 1, T + i)
        for i in range(n): a(f'v_mul_f32 v{R+i}, v{R+i}, v{G+i}')
        for i in range(n // 2): a(f'v_cvt_pk_bf16_f32 v{T+i}, v{R+2*i}, v{R+2*i+1}')
        for i in range(n // 2): unpack_lo(a, R + 2 * i, T + i); unpack_hi(a, R + 2 * i + 1, T + i)
        for i in range(n // 2): unpack_lo(a, P + 2 * i, X + i); unpack_hi(a, P + 2 * i + 1, X + i)
        for i in range(n): a(f'v_add_f32 v{R+i}, v{R+i}, v{P+i}')
        for i in range(n // 2): a(f'v_cvt_pk_bf16_f32 v{T+i}, v{R+2*i}, v{R+2*i+1}')
        for j in range(nf): a(f'buffer_store_dwordx2 v[{T+2*j}:{T+2*j+1}], v2, s[8:11], s62 offen offset:{j*32}')
        if 'k5' in STAMPS:
            a('v_mov_b32 v0, v15'); dump_stamps(a, 8, 'k5', 101, sfx=str(half))
        if half == 0: a('s_endpgm')

def k5_epilogue(a, ACC):
    a('s_lshl_b32 s41, s38, 6'); a('s_lshl_b32 s42, s36, 2'); a('s_add_u32 s41, s41, s42'); a('s_add_u32 s41, s41, s37')
    a('s_lshl_b32 s41, s41, 2'); a('s_add_u32 s41, s41, s39'); a(f's_mul_i32 s41, s41, {10*1024}')
    MX = 88
    for tt in range(2):
        A0 = ACC + 36 * tt; m = MX + 24 * tt
        for c in range(4):
            a(f'v_max3_f32 v{m+c}, |v{A0+9*c}|, |v{A0+9*c+1}|, |v{A0+9*c+2}|')
        for j in range(3, 9, 2):
            for c in range(4): a(f'v_max3_f32 v{m+c}, |v{A0+9*c+j}|, |v{A0+9*c+j+1}|, v{m+c}')
        a(f'v_max3_f32 v{m}, v{m}, v{m+1}, v{m+2}'); a(f'v_max_f32 v{m}, v{m}, v{m+3}')
        a(f'v_frexp_exp_i32_f32 v{m+1}, v{m}')
        a(f'v_sub_u32 v{m+2}, 15, v{m+1}')
        a(f'v_max_i32 v{m+2}, -100, v{m+2}'); a(f'v_min_i32 v{m+2}, 100, v{m+2}')
        a(f'v_ldexp_f32 v{m+3}, 1.0, v{m+2}')
        a(f'v_sub_u32 v{m+2}, 0, v{m+2}'); a(f'v_ldexp_f32 v{m+22}, 1.0, v{m+2}')
        for i in range(36): a(f'v_mul_f32 v{A0+i}, v{A0+i}, v{m+3}')
        for i in range(18): a(f'v_cvt_pk_f16_f32 v{m+4+i}, v{A0+2*i}, v{A0+2*i+1}')
        a(f'v_mov_b32 v{m+23}, 0')
        for p in range(5):
            i = 5 * tt + p
            if i % 4 == 0 and i: a(f's_add_u32 s41, s41, 4096')
            a(f'buffer_store_dwordx4 v[{m+4+4*p}:{m+7+4*p}], v1, s[20:23], s41 offen offset:{(i%4)*1024}' + os.environ.get('STMOD5', ' sc1'))

def gen_k6(a):
    a.raw(kernel_header('k6_kernel'))
    dbgt(a, 5, 5, 'DBGT_6')
    a('s_cmp_ge_u32 s2, 256'); a.branch('s_cbranch_scc1 K6_END')
    load_ptr(a, 4, 'ws'); load_ptr(a, 8, 'out')
    a('v_readfirstlane_b32 s3, v0'); a('s_lshr_b32 s3, s3, 6')
    a('v_and_b32 v0, 63, v0')
    a('v_lshlrev_b32 v1, 4, v0')
    a('s_lshr_b32 s21, s3, 1'); a('s_and_b32 s22, s3, 1')
    a('s_lshl_b32 s20, s2, 1'); a('s_add_u32 s20, s20, s21'); a('s_mul_i32 s20, s20, 5120')
    a('s_and_b32 s23, s2, 3')
    a('s_lshr_b32 s24, s2, 2'); a('s_and_b32 s25, s24, 3'); a('s_lshr_b32 s24, s24, 2')
    a('s_lshl_b32 s26, s24, 7'); a('s_lshl_b32 s27, s23, 5'); a('s_add_u32 s26, s26, s27'); a('s_lshl_b32 s27, s21, 4'); a('s_add_u32 s26, s26, s27')
    a('s_mul_i32 s27, s25, 144'); a('s_lshl_b32 s28, s22, 6'); a('s_add_u32 s27, s27, s28')
    a('s_mul_i32 s29, s26, 1152'); a('s_lshl_b32 s28, s27, 1'); a('s_add_u32 s29, s29, s28')
    a('s_lshl_b32 s30, s27, 2'); a(f's_add_u32 s30, s30, {5*2304}')
    a('v_and_b32 v2, 15, v0'); a('v_mul_u32_u24 v2, 1152, v2'); a('v_lshrrev_b32 v3, 4, v0'); a('v_lshl_add_u32 v2, v3, 3, v2')
    a('v_lshlrev_b32 v3, 4, v3')
    a('s_lshl_b32 s31, s22, 11'); a('s_add_u32 s31, s31, s20')
    a('s_waitcnt lgkmcnt(0)')
    copy_srd(a, 12, 4, SZ_PART, WS_PART); copy_srd(a, 16, 4, SZ_X1, WS_X1); copy_srd(a, 32, 4, SZ_MOD, WS_MOD)
    make_srd(a, 8, 2048 * 1152)
    SS = 64 * 4 * 10240
    a('s_cmp_eq_u32 s22, 1'); a.branch('s_cbranch_scc1 K6_B')
    for half in range(2):
        nf = 4 + half
        if half: a.label('K6_B')
        P = 8
        for s_ in range(4):
            if s_: a(f's_add_u32 s31, s31, {SS}'); a(f's_add_u32 s20, s20, {SS}')
            b = P + 12 * s_
            a(f'buffer_load_dwordx4 v[{b}:{b+3}], v1, s[12:15], s31 offen')
            a(f'buffer_load_dwordx4 v[{b+4}:{b+7}], v1, s[12:15], s31 offen offset:1024')
            if half: a(f'buffer_load_dwordx4 v[{b+8}:{b+11}], v1, s[12:15], s31 offen offset:2048')
            else:
                a(f's_add_u32 s36, s20, 4096')
                a(f'buffer_load_dword v{b+10}, v1, s[12:15], s36 offen offset:8')
        X = 56; G = 68; R = 88; T = 108
        for j in range(nf): a(f'buffer_load_dwordx2 v[{X+2*j}:{X+2*j+1}], v2, s[16:19], s29 offen offset:{j*32}')
        for j in range(nf): a(f'buffer_load_dwordx4 v[{G+4*j}:{G+4*j+3}], v3, s[32:35], s30 offen offset:{j*64}')
        n = 4 * nf
        for s_ in range(4):
            a(f's_waitcnt vmcnt({2*nf + 3*(3-s_)})')
            b = P + 12 * s_
            for i in range(n):
                src = b + i // 2
                sel = f'op_sel:[{i%2},0,0] op_sel_hi:[1,0,0]'
                if s_ == 0: a(f'v_fma_mix_f32 v{R+i}, v{src}, v{b+10}, 0 {sel}')
                else: a(f'v_fma_mix_f32 v{R+i}, v{src}, v{b+10}, v{R+i} {sel}')
        for i in range(n // 2): a(f'v_cvt_pk_bf16_f32 v{T+i}, v{R+2*i}, v{R+2*i+1}')
        for i in range(n // 2): unpack_lo(a, R + 2 * i, T + i); unpack_hi(a, R + 2 * i + 1, T + i)
        a('s_waitcnt vmcnt(0)')
        for i in range(n): a(f'v_mul_f32 v{R+i}, v{R+i}, v{G+i}')
        for i in range(n // 2): a(f'v_cvt_pk_bf16_f32 v{T+i}, v{R+2*i}, v{R+2*i+1}')
        for i in range(n // 2): unpack_lo(a, R + 2 * i, T + i); unpack_hi(a, R + 2 * i + 1, T + i)
        for i in range(n // 2): unpack_lo(a, P + 2 * i, X + i); unpack_hi(a, P + 2 * i + 1, X + i)
        for i in range(n): a(f'v_add_f32 v{R+i}, v{R+i}, v{P+i}')
        for i in range(n // 2): a(f'v_cvt_pk_bf16_f32 v{T+i}, v{R+2*i}, v{R+2*i+1}')
        for j in range(nf): a(f'buffer_store_dwordx2 v[{T+2*j}:{T+2*j+1}], v2, s[8:11], s29 offen offset:{j*32}')
        if half == 0:
            a('s_waitcnt vmcnt(0)'); dbgt(a, 5, 6, 'DBGT_6E'); a('s_endpgm')
    a.label('K6_END')
    a('s_endpgm')
    return kernel_desc('k6_kernel', 120)
```

```python
from gen_common import *

def ln_core(a, nch, xp, xf, tmp, nw, v_redw, v_redr, red_off, out_xn, hooks=None):
    n = 8 * nch
    for i in range(4 * nch):
        unpack_lo(a, xf + 2 * i, xp + i); unpack_hi(a, xf + 2 * i + 1, xp + i)
    s = tmp; t1 = tmp + 1
    for k in range(4): a(f'v_add_f32 v{tmp+2+k}, v{xf+k}, v{xf+4+k}')
    for i in range(8, n):
        a(f'v_add_f32 v{tmp+2+(i%4)}, v{tmp+2+(i%4)}, v{xf+i}')
    a(f'v_add_f32 v{tmp+2}, v{tmp+2}, v{tmp+3}')
    a(f'v_add_f32 v{tmp+4}, v{tmp+4}, v{tmp+5}')
    a(f'v_add_f32 v{s}, v{tmp+2}, v{tmp+4}')
    red_l8(a, s, t1)
    a(f'ds_write_b32 v{v_redw}, v{s} offset:{red_off}')
    a('s_waitcnt lgkmcnt(0)')
    if hooks: hooks[0]()
    a('s_barrier')
    late = hooks is not None and len(hooks) > 4 and hooks[4]
    if hooks and not late: hooks[1]()
    def gather(off, mid=None):
        for w in range(nw): a(f'ds_read_b32 v{tmp+2+w}, v{v_redr} offset:{off + w*32}')
        if mid: mid(); a('s_waitcnt lgkmcnt(15)')
        else: a('s_waitcnt lgkmcnt(0)')
        for w in range(1, nw): a(f'v_add_f32 v{tmp+2}, v{tmp+2}, v{tmp+2+w}')
    gather(red_off, hooks[1] if late else None)
    mean = tmp
    a(f'v_mul_f32 v{mean}, {f32bits(1.0/576)}, v{tmp+2}')
    acc = [tmp + 2 + k for k in range(4)]
    d = tmp + 6
    for i in range(n):
        a(f'v_sub_f32 v{d + (i%4)}, v{xf+i}, v{mean}')
        if i < 4: a(f'v_mul_f32 v{acc[i]}, v{d+i}, v{d+i}')
        else: a(f'v_fmac_f32 v{acc[i%4]}, v{d+(i%4)}, v{d+(i%4)}')
    a(f'v_add_f32 v{acc[0]}, v{acc[0]}, v{acc[1]}')
    a(f'v_add_f32 v{acc[2]}, v{acc[2]}, v{acc[3]}')
    a(f'v_add_f32 v{t1}, v{acc[0]}, v{acc[2]}')
    red_l8(a, t1, tmp + 6)
    off2 = red_off + nw * 32
    a(f'ds_write_b32 v{v_redw}, v{t1} offset:{off2}')
    round_bf16_1(a, mean, mean)
    a('s_waitcnt lgkmcnt(0)')
    if hooks: hooks[2]()
    a('s_barrier')
    if hooks and not late: hooks[3]()
    gather(off2, hooks[3] if late else None)
    r = tmp + 1
    a(f'v_mul_f32 v{r}, {f32bits(1.0/576)}, v{tmp+2}')
    round_bf16_1(a, r, r)
    a(f'v_add_f32 v{r}, {f32bits(1e-5)}, v{r}')
    round_bf16_1(a, r, r)
    a(f'v_sqrt_f32 v{r}, v{r}')
    round_bf16_1(a, r, r)
    a(f'v_rcp_f32 v{r}, v{r}')
    for i in range(n): a(f'v_sub_f32 v{xf+i}, v{xf+i}, v{mean}')
    for i in range(4 * nch): a(f'v_cvt_pk_bf16_f32 v{out_xn+i}, v{xf+2*i}, v{xf+2*i+1}')
    for i in range(4 * nch):
        unpack_lo(a, xf + 2 * i, out_xn + i); unpack_hi(a, xf + 2 * i + 1, out_xn + i)
    for i in range(n): a(f'v_mul_f32 v{xf+i}, v{xf+i}, v{r}')
    for i in range(4 * nch): a(f'v_cvt_pk_bf16_f32 v{out_xn+i}, v{xf+2*i}, v{xf+2*i+1}')

N_MOD = 54; N_LN1 = 256; N_KG = 576
import os
N_PF = int(os.environ.get('NPF', '0'))
TLBW = int(os.environ.get('TLBW', '21'))
N_TW = 8 if TLBW else 0
K1_GRID = N_MOD + N_LN1 + N_KG + N_PF + N_TW
K1_LDS = 36864
F12 = int(os.environ.get('F12', '0'))
N_PROD = N_MOD + N_LN1
def arrive(a, vt=2):
    a('s_and_b32 s68, s2, 63'); a('s_lshl_b32 s68, s68, 2')
    a('s_mov_b64 exec, 1'); a(f'v_mov_b32 v{vt}, 1')
    a(f'buffer_atomic_add v{vt}, off, s[64:67], s68 sc1')
def dbg_srd(a):
    a('s_mov_b32 s66, 256'); a('s_mov_b32 s67, 0x20000')

def gen_k1(a):
    a.raw(kernel_header('k1_kernel'))
    if F12: load_ptr(a, 64, 'dbg')
    K1W = int(os.environ.get('K1W', '200'))
    stamp(a, 0, 'k1')
    if 'k1' in STAMPS: a('s_mov_b32 s91, s90'); a('s_mov_b32 s92, s90'); a('s_mov_b32 s93, s90')
    def fin(tag):
        if 'k1' not in STAMPS: return
        a('s_mov_b64 exec, -1'); stamp(a, 2, 'k1'); a('s_waitcnt vmcnt(0)'); stamp(a, 3, 'k1')
        dump_stamps(a, 4, 'k1', K1W, sfx=tag)
    dbgt(a, 0, 0, 'DBGT_1')
    a(f's_cmp_lt_u32 s2, {N_MOD}'); a.branch('s_cbranch_scc1 K1_MOD')
    a(f's_cmp_lt_u32 s2, {N_MOD+N_LN1}'); a.branch('s_cbranch_scc1 K1_LN')
    a(f's_cmp_lt_u32 s2, {N_MOD+N_LN1+N_KG}'); a.branch('s_cbranch_scc1 K1_KG')
    if N_TW:
        a(f's_cmp_ge_u32 s2, {K1_GRID}'); a.branch('s_cbranch_scc1 K1_END')
        load_ptr(a, 4, 'ws'); load_ptr(a, 8, 'w1'); load_ptr(a, 12, 'w3'); load_ptr(a, 16, 'w2'); load_ptr(a, 20, 'out')
        a(f'v_lshlrev_b32 v1, {TLBW}, v0')
        a('s_waitcnt lgkmcnt(0)')
        copy_srd(a, 24, 4, SZ_RK, WS_RK)
        make_srd(a, 4, WS_W2P + SZ_W2P); make_srd(a, 8, 576 * 9216); make_srd(a, 12, 576 * 9216); make_srd(a, 16, 4608 * 1152); make_srd(a, 20, 2048 * 1152)
        r = 8
        span = 256 << TLBW
        if F12:
            a('v_add_u32 v4, 0x8000, v1'); a('v_mov_b32 v5, 0x7ffffff0'); a('v_lshrrev_b32 v6, 1, v0'); a('v_cmp_eq_u32 vcc, 1, v6'); a('v_cndmask_b32 v4, v4, v5, vcc')
            a(f'buffer_load_dword v{r}, v4, s[4:7], 0 offen'); r += 1
        for srd, size in ((4, WS_W2P + SZ_W2P), (24, SZ_RK), (8, 576 * 9216), (12, 576 * 9216), (16, 4608 * 1152), (20, 2048 * 1152)):
            if F12 and srd in (4, 24): continue
            for i in range((size + span - 1) // span):
                if i: a(f'v_add_u32 v2, {i * span}, v1')
                a(f'buffer_load_dword v{r}, v{2 if i else 1}, s[{srd}:{srd+3}], 0 offen'); r += 1
        if int(os.environ.get('SPEC', '1')):
            a(f's_sub_u32 s30, s2, {N_MOD+N_LN1+N_KG+N_PF}')
            a('s_cmp_ge_u32 s30, 7'); a.branch('s_cbranch_scc1 K1_TW_E')
            a(f's_add_u32 s32, s4, {hex(WS_XF)}'); a('s_addc_u32 s33, s5, 0'); a(f's_mov_b32 s34, {hex(SZ_XF)}'); a('s_mov_b32 s35, 0x20000')
            a('s_mul_i32 s31, s30, 9'); a('s_cmp_gt_u32 s30, 0'); a('s_addc_u32 s31, s31, 0'); a('s_mul_i32 s31, s31, 36864')
            for i in range(4): a(f'v_mov_b32 v{40+i}, -1')
            a('v_lshlrev_b32 v3, 4, v0')
            for i in range(9):
                a(f'buffer_store_dwordx4 v[40:43], v3, s[32:35], s31 offen')
                if i < 8: a('s_add_u32 s31, s31, 4096')
            a.label('K1_TW_E')
        fin('tw')
        a('s_waitcnt vmcnt(0)')
    if N_PF:
        a(f's_cmp_ge_u32 s2, {K1_GRID}'); a.branch('s_cbranch_scc1 K1_END')
        a(f's_sub_u32 s3, s2, {N_MOD+N_LN1+N_KG}')
        a('s_mul_i32 s8, s3, 911'); a('s_lshr_b32 s8, s8, 16')
        a('s_mul_i32 s9, s8, 72'); a('s_sub_u32 s9, s3, s9')
        a('s_lshl_b32 s8, s8, 3'); a(f's_add_u32 s8, s8, {KA["w1"]}')
        a('s_load_dwordx2 s[4:5], s[0:1], s8')
        a('s_mul_i32 s9, s9, 73728')
        a('v_lshlrev_b32 v1, 4, v0')
        a('s_waitcnt lgkmcnt(0)')
        make_srd(a, 4, 576 * 9216)
        for i in range(18):
            a(f's_add_u32 s10, s9, {i*4096}')
            a(f'buffer_load_dwordx4 v[{8+4*i}:{11+4*i}], v1, s[4:7], s10 offen')
        a('s_waitcnt vmcnt(0)')
    a('s_endpgm')
    a.label('K1_MOD')
    load_ptr(a, 4, 'wmod'); load_ptr(a, 8, 'c'); load_ptr(a, 12, 'ws')
    a('v_and_b32 v1, 7, v0')
    a('v_lshrrev_b32 v2, 3, v0')
    a('v_mul_u32_u24 v3, 36, v2')
    a(f'v_mul_u32_u24 v4, {18*6912}, v2')
    a('v_lshl_add_u32 v4, v1, 4, v4')
    a('s_lshl_b32 s3, s2, 7')
    a('v_add_u32 v4, s3, v4')
    a('s_waitcnt lgkmcnt(0)')
    copy_srd(a, 40, 12, SZ_CNT, WS_CNT)
    make_srd(a, 4, 576 * 6912); make_srd(a, 8, 1152); make_srd(a, 12, SZ_MOD, WS_MOD)
    for i in range(4): a(f'v_mov_b32 v{112+i}, 0')
    a('v_lshlrev_b32 v116, 4, v0'); a('s_lshl_b32 s44, s2, 12'); a('v_add_u32 v116, s44, v116')
    a('buffer_store_dwordx4 v[112:115], v116, s[40:43], 0 offen')
    C = 8; W = 20
    a(f'buffer_load_dwordx4 v[{C}:{C+3}], v3, s[8:11], 0 offen')
    a(f'buffer_load_dwordx4 v[{C+4}:{C+7}], v3, s[8:11], 0 offen offset:16')
    a(f'buffer_load_dword v{C+8}, v3, s[8:11], 0 offen offset:32')
    for i in range(18):
        a(f's_mov_b32 s{16+i}, {i*6912}')
        a(f'buffer_load_dwordx4 v[{W+4*i}:{W+4*i+3}], v4, s[4:7], s{16+i} offen')
    S = 92
    a('s_waitcnt vmcnt(18)')
    stamp(a, 1, 'k1')
    for i in range(9):
        unpack_lo(a, S + 2 * i, C + i); unpack_hi(a, S + 2 * i + 1, C + i)
    T = 110
    for i in range(18): a(f'v_mul_f32 v{T+i}, {f32bits(-LOG2E)}, v{S+i}')
    for i in range(18): a(f'v_exp_f32 v{T+i}, v{T+i}')
    for i in range(18): a(f'v_add_f32 v{T+i}, 1.0, v{T+i}')
    for i in range(18): a(f'v_rcp_f32 v{T+i}, v{T+i}')
    for i in range(18): a(f'v_mul_f32 v{S+i}, v{S+i}, v{T+i}')
    for i in range(9): a(f'v_cvt_pk_bf16_f32 v{T+i}, v{S+2*i}, v{S+2*i+1}')
    for i in range(9):
        unpack_lo(a, S + 2 * i, T + i); unpack_hi(a, S + 2 * i + 1, T + i)
    ACC = 110; U = 118
    for i in range(18):
        a(f's_waitcnt vmcnt({17-i})')
        for j in range(4):
            unpack_lo(a, U + 2 * j, W + 4 * i + j); unpack_hi(a, U + 2 * j + 1, W + 4 * i + j)
        for j in range(8):
            if i == 0: a(f'v_mul_f32 v{ACC+j}, v{S+i}, v{U+j}')
            else: a(f'v_fmac_f32 v{ACC+j}, v{S+i}, v{U+j}')
    red_l8_multi(a, [ACC + j for j in range(8)], [U + j for j in range(8)])
    a('v_lshrrev_b32 v5, 6, v0')
    a('v_lshlrev_b32 v5, 8, v5')
    a('v_lshl_add_u32 v5, v1, 5, v5')
    a(f'ds_write_b128 v5, v[{ACC}:{ACC+3}]')
    a(f'ds_write_b128 v5, v[{ACC+4}:{ACC+7}] offset:16')
    a('s_waitcnt lgkmcnt(0)'); a('s_barrier')
    a('v_cmp_gt_u32 vcc, 64, v0')
    a('s_and_saveexec_b64 s[40:41], vcc')
    a.branch('s_cbranch_execz K1_END')
    a('v_lshlrev_b32 v6, 2, v0')
    for w in range(4): a(f'ds_read_b32 v{8+w}, v6 offset:{w*256}')
    a('s_waitcnt lgkmcnt(0)')
    a('v_add_f32 v8, v8, v9'); a('v_add_f32 v10, v10, v11'); a('v_add_f32 v8, v8, v10')
    round_bf16_1(a, 8, 8)
    a('s_lshl_b32 s3, s2, 8')
    a('v_add_u32 v6, s3, v6')
    a('buffer_store_dword v8, v6, s[12:15], 0 offen' + (' sc1' if F12 else ''))
    if F12: dbg_srd(a); a('s_waitcnt vmcnt(0)'); arrive(a)
    fin('mod')
    a('s_endpgm')
    a.label('K1_LN')
    a('v_readfirstlane_b32 s4, v0')
    a('s_cmp_ge_u32 s4, 192'); a.branch('s_cbranch_scc1 K1_END')
    load_ptr(a, 4, 'u'); load_ptr(a, 8, 'ws')
    a(f's_sub_u32 s3, s2, {N_MOD}')
    a('v_and_b32 v1, 7, v0')
    a('v_lshrrev_b32 v2, 3, v0')
    a('v_mul_u32_u24 v3, 1152, v1')
    a('v_lshl_add_u32 v3, v2, 4, v3')
    a('s_mul_i32 s12, s3, 9216')
    a('s_waitcnt lgkmcnt(0)')
    make_srd(a, 4, 2048 * 1152); make_srd(a, 8, SZ_XT, WS_XT)
    XP = 8; XF = 20; TMP = 44; XN = 60
    for i in range(3):
        a(f'buffer_load_dwordx4 v[{XP+4*i}:{XP+4*i+3}], v3, s[4:7], s12 offen offset:{i*24*16}')
    RED = 72 * 288
    a('v_lshrrev_b32 v4, 6, v0')
    a('v_lshlrev_b32 v4, 5, v4')
    a('v_lshl_add_u32 v4, v1, 2, v4')
    a('v_lshlrev_b32 v5, 2, v1')
    a('v_mul_u32_u24 v6, 288, v2')
    a('v_lshl_add_u32 v6, v1, 2, v6')
    a('s_mov_b32 s14, 0x05040100'); a('s_mov_b32 s15, 0x07060302')
    a('s_waitcnt vmcnt(0)')
    stamp(a, 1, 'k1')
    ln_core(a, 3, XP, XF, TMP, 3, 4, 5, RED, XN)
    for i in range(3):
        for j in range(4):
            r = 4 * i + j
            a(f'v_perm_b32 v{XF+2*r}, v{XP+r}, v{XN+r}, s14')
            a(f'v_perm_b32 v{XF+2*r+1}, v{XP+r}, v{XN+r}, s15')
        for e in range(8):
            a(f'ds_write_b32 v6, v{XF+8*i+e} offset:{i*24*288 + e*32}')
    a('s_waitcnt lgkmcnt(0)'); a('s_barrier')
    a('v_lshrrev_b32 v1, 4, v0')
    a('v_mul_u32_u24 v1, 288, v1')
    a('v_and_b32 v2, 15, v0')
    a('v_lshl_add_u32 v1, v2, 4, v1')
    a('v_lshlrev_b32 v2, 4, v0')
    a(f's_mul_i32 s12, s3, {XT_STRIDE}')
    for j in range(6): a(f'ds_read_b128 v[{XF+4*j}:{XF+4*j+3}], v1 offset:{j*12*288}')
    for j in range(6):
        a(f's_waitcnt lgkmcnt({5-j})')
        a(f's_add_u32 s13, s12, {j*3072}')
        a(f'buffer_store_dwordx4 v[{XF+4*j}:{XF+4*j+3}], v2, s[8:11], s13 offen' + (' sc1' if F12 else ''))
    if F12:
        dbg_srd(a); a('v_readfirstlane_b32 s4, v0')
        a('s_waitcnt vmcnt(0)'); a('s_barrier')
        a('s_cmp_lg_u32 s4, 0'); a.branch('s_cbranch_scc1 K1_END')
        arrive(a)
    fin('ln')
    a('s_endpgm')
    a.label('K1_KG')
    if F12: stamp(a, 0, 'k2')
    names = ['A_re', 'A_im', 'B_re', 'B_im', 'C_re', 'C_im']
    for i, nm in enumerate(names): load_ptr(a, 4 + 4 * i, nm)
    load_ptr(a, 28, 'log_dt'); load_ptr(a, 32, 'ws')
    a(f's_sub_u32 s3, s2, {N_MOD+N_LN1}')
    K1IN = int(os.environ.get('K1IN', '0'))
    if K1IN == 2:
        a('s_cmp_ge_u32 s3, 288'); a('s_cselect_b32 s52, 8, 0'); a('s_cselect_b32 s53, 288, 0'); a('s_sub_u32 s53, s3, s53')
        a(f's_add_u32 s52, s52, {KA["w1"]}')
        a('s_load_dwordx2 s[44:45], s[0:1], s52')
        a('s_mul_i32 s53, s53, 18432')
        a('v_lshlrev_b32 v109, 4, v0'); a('v_add_u32 v109, s53, v109')
    elif K1IN == 1:
        load_ptr(a, 44, 'w1')
        a('s_mul_i32 s53, s3, 9216')
        a('v_lshlrev_b32 v109, 4, v0'); a('v_add_u32 v109, s53, v109')
    a('s_and_b32 s36, s3, 7'); a('s_mul_i32 s36, s36, 72'); a('s_lshr_b32 s37, s3, 3'); a('s_add_u32 s3, s36, s37')
    a('v_and_b32 v1, 127, v0')
    a('v_lshlrev_b32 v2, 1, v1')
    a('s_lshl_b32 s36, s3, 8')
    a('s_and_b32 s37, s3, -2'); a('s_lshl_b32 s37, s37, 1')
    a('v_readfirstlane_b32 s38, v0')
    a('s_waitcnt lgkmcnt(0)')
    a('s_load_dword s39, s[28:29], s37')
    for i in range(6): make_srd(a, 4 + 4 * i, 576 * 256)
    make_srd(a, 32, SZ_RK, WS_RK)
    for i in range(6): a(f'buffer_load_ushort v{8+i}, v2, s[{4+4*i}:{7+4*i}], s36 offen')
    NPFI = 0
    if K1IN:
        a(f's_mov_b32 s46, {576*9216}'); a('s_mov_b32 s47, 0x20000')
        full, part = (4, 2048) if K1IN == 2 else (2, 1024)
        for i in range(full):
            a(f'buffer_load_dwordx4 v[96:99], v109, s[44:47], 0 offen offset:0' if i == 0 else f'v_add_u32 v109, 4096, v109')
            if i: a(f'buffer_load_dwordx4 v[96:99], v109, s[44:47], 0 offen')
        a('v_add_u32 v109, 4096, v109')
        a(f'v_mov_b32 v119, 0x7ffffff0'); a(f'v_cmp_gt_u32 vcc, {part//16}, v0'); a('v_cndmask_b32 v109, v119, v109, vcc')
        a(f'buffer_load_dwordx4 v[96:99], v109, s[44:47], 0 offen')
        NPFI = full + 1
    KC = 33792
    GA = 100
    a('v_lshlrev_b32 v3, 3, v0')
    a('v_sub_u32 v3, 2047, v3')
    for e in range(9):
        a(f'v_subrev_u32 v{GA+e}, {e}, v3')
    for e in range(10): a(f'v_cvt_f32_u32 v{110+e}, v{GA+min(e,8)}')
    for e in range(5): a(f'v_cvt_pk_bf16_f32 v{120+e}, v{110+2*e}, v{110+2*e+1}')
    for e in range(4):
        a(f'v_and_b32 v{110+2*e}, 0xffff, v{120+e}')
        a(f'v_lshrrev_b32 v{110+2*e+1}, 16, v{120+e}')
    a('v_and_b32 v118, 0xffff, v124')
    a('v_cmp_gt_u32 vcc, 240, v0')
    for e in range(9): a(f'v_subrev_u32 v{110+e}, 17024, v{110+e}')
    for e in range(8): a(f'v_cndmask_b32 v{GA+e}, v{GA+e}, v{110+e}, vcc')
    a('v_cmp_gt_u32 vcc, 239, v0')
    a(f'v_cndmask_b32 v{GA+8}, v{GA+8}, v118, vcc')
    a(f'v_max_i32 v{GA+8}, 0, v{GA+8}')
    for e in range(9): a(f'v_lshlrev_b32 v{GA+e}, 1, v{GA+e}')
    a('s_lshr_b32 s40, s38, 6')
    a('s_and_b32 s41, s40, 1')
    a('s_lshr_b32 s42, s40, 1')
    a('v_and_b32 v4, 15, v0')
    a('s_lshl_b32 s43, s41, 4')
    a('v_add_u32 v4, s43, v4')
    a('v_bfe_u32 v5, v0, 4, 2')
    KW = 124
    a('s_cmp_eq_u32 s42, 0'); a.branch('s_cbranch_scc0 K1_KG_RT1')
    a('v_lshlrev_b32 v124, 3, v4')
    a('v_lshl_add_u32 v124, v5, 2, v124')
    a('v_lshlrev_b32 v6, 2, v4'); a('v_add_u32 v6, 256, v6')
    a('v_cmp_eq_u32 vcc, 2, v5'); a('v_cndmask_b32 v124, v124, v6, vcc')
    a('v_lshlrev_b32 v6, 1, v4'); a('v_add_u32 v6, 384, v6')
    a('v_cmp_eq_u32 vcc, 3, v5'); a('v_cndmask_b32 v124, v124, v6, vcc')
    a('v_mov_b32 v125, 1')
    a('v_mov_b32 v6, 64'); a('v_cndmask_b32 v126, 2, v6, vcc')
    a.branch('s_branch K1_KG_A')
    a.label('K1_KG_RT1')
    a('v_add_u32 v124, 700, v4')
    a('v_add_u32 v6, 640, v4'); a('v_cmp_eq_u32 vcc, 1, v5'); a('v_cndmask_b32 v124, v124, v6, vcc')
    a('v_add_u32 v6, 512, v4'); a('v_cmp_eq_u32 vcc, 0, v5'); a('v_cndmask_b32 v124, v124, v6, vcc')
    a('v_mov_b32 v6, 32'); a('v_mov_b32 v7, 64'); a('v_cndmask_b32 v125, v7, v6, vcc')
    a('v_lshlrev_b32 v126, 1, v125')
    a.label('K1_KG_A')
    a('v_add_u32 v127, v126, v125')
    a('v_add_u32 v125, v124, v125'); a('v_add_u32 v126, v124, v126'); a('v_add_u32 v127, v124, v127')
    for i in range(4): a(f'v_lshlrev_b32 v{124+i}, 1, v{124+i}')
    a('s_waitcnt lgkmcnt(0)')
    a('s_and_b32 s43, s3, 1'); a('s_lshl_b32 s43, s43, 4'); a('s_lshr_b32 s39, s39, s43'); a('s_lshl_b32 s39, s39, 16')
    a(f'v_mov_b32 v14, s39')
    a(f'v_mul_f32 v14, {f32bits(LOG2E)}, v14')
    a('v_exp_f32 v14, v14')
    round_bf16_1(a, 14, 14)
    a(f's_waitcnt vmcnt({NPFI})')
    stamp(a, 1, 'k1')
    for i in range(6): a(f'v_lshlrev_b32 v{8+i}, 16, v{8+i}')
    a('v_mul_f32 v8, v8, v14'); a('v_mul_f32 v9, v9, v14')
    a('v_mul_f32 v10, v10, v14'); a('v_mul_f32 v11, v11, v14')
    a(f'v_mul_f32 v8, {f32bits(LOG2E)}, v8')
    a(f'v_mul_f32 v9, {f32bits(0.15915494309189535)}, v9')
    cmul(a, 16, 12, 10)
    a(f'v_mul_f32 v16, {float(2**KSCALE_LOG2)}, v16'); a(f'v_mul_f32 v17, {float(2**KSCALE_LOG2)}, v17')
    def D(dst, al):
        a(f'v_mul_f32 v4, {float(al)}, v8'); a(f'v_mul_f32 v5, {float(al)}, v9')
        a('v_exp_f32 v4, v4'); a('v_fract_f32 v5, v5')
        a('v_cos_f32 v6, v5'); a('v_sin_f32 v7, v5')
        a(f'v_mul_f32 v{dst}, v4, v6'); a(f'v_mul_f32 v{dst+1}, v4, v7')
    UB = 0; VB = 16896
    a('v_lshlrev_b32 v3, 2, v1')
    def putU(r, src):
        a(f'v_cvt_pk_f16_f32 v2, v{src}, v{src+1}')
        a(f'ds_write_b32 v3, v2 offset:{UB + r*528}')
    def putV(j, src):
        a(f'v_cvt_pk_f16_f32 v2, v{src}, -v{src+1}')
        a(f'ds_write_b32 v3, v2 offset:{VB + j*528}')
    E8, EX, EY, P0, P1 = 18, 20, 22, 24, 26
    a('s_cmp_ge_u32 s38, 128'); a.branch('s_cbranch_scc1 K1_KG_H1')
    D(E8, 8); D(EX, 1); D(EY, 256)
    a(f'v_mov_b32 v{P0}, 1.0'); a(f'v_mov_b32 v{P0+1}, 0')
    putV(0, P0); putV(1, E8)
    cur, nxt = E8, P0
    for j in range(2, 16):
        cmul(a, nxt, cur, E8); putV(j, nxt)
        cur = nxt; nxt = P1 if nxt == P0 else P0
    cur = 16
    for r in range(8):
        if r > 0:
            nxt = P0 if cur != P0 else P1
            cmul(a, nxt, cur, EX); cur = nxt
        putU(r, cur)
        if r % 2 == 0:
            cmul(a, 28, cur, EY); putU(8 + r // 2, 28)
    a.branch('s_branch K1_KG_B')
    a.label('K1_KG_H1')
    D(E8, 8); D(P0, 128); D(EX, 4)
    cmul(a, EY, P0, P0)
    cmul(a, 28, EY, EY)
    cmul(a, 30, 28, 28)
    putV(16, P0)
    cur, nxt = P0, P1
    for j in range(17, 32):
        cmul(a, nxt, cur, E8); putV(j, nxt)
        cur, nxt = nxt, cur
    cmul(a, P0, 16, 28); putU(12, P0)
    cmul(a, P1, P0, EX); putU(13, P1)
    cmul(a, P1, P0, EY); putU(14, P1)
    cmul(a, P0, P1, EX); putU(15, P0)
    cmul(a, P0, 16, 30); putU(16, P0)
    cmul(a, P1, P0, EY); putU(17, P1)
    cmul(a, P0, P1, EY); putU(18, P0)
    cmul(a, P1, P0, EY); putU(19, P1)
    cmul(a, P0, P1, EY); putU(20, P0)
    a.label('K1_KG_B')
    a('v_and_b32 v4, 15, v0'); a('v_bfe_u32 v5, v0, 4, 2')
    a('s_lshl_b32 s43, s42, 4'); a('v_add_u32 v6, s43, v4'); a('v_mul_u32_u24 v6, 528, v6'); a('v_lshl_add_u32 v6, v5, 4, v6')
    a('s_lshl_b32 s43, s41, 4'); a('v_add_u32 v7, s43, v4'); a('v_mul_u32_u24 v7, 528, v7'); a('v_lshl_add_u32 v7, v5, 4, v7')
    if F12:
        dbg_srd(a)
        a('v_and_b32 v97, 63, v0'); a('v_lshlrev_b32 v97, 2, v97')
        a('buffer_load_dword v96, v97, s[64:67], 0 offen sc1')
    a('s_waitcnt lgkmcnt(0)'); a('s_barrier')
    FA = 32; FB = 64
    for s in range(8):
        a(f'ds_read_b128 v[{FA+4*s}:{FA+4*s+3}], v6 offset:{UB + s*64}')
        a(f'ds_read_b128 v[{FB+4*s}:{FB+4*s+3}], v7 offset:{VB + s*64}')
    for s in range(8):
        a(f's_waitcnt lgkmcnt({14-2*s})')
        a(f'v_mfma_f32_16x16x32_f16 v[8:11], v[{FA+4*s}:{FA+4*s+3}], v[{FB+4*s}:{FB+4*s+3}], ' + ('0' if s == 0 else 'v[8:11]'))
    a('v_cvt_pk_f16_f32 v12, v8, v9'); a('v_cvt_pk_f16_f32 v13, v10, v11')
    a(f'ds_write_b16 v124, v12 offset:{KC}'); a(f'ds_write_b16_d16_hi v125, v12 offset:{KC}')
    a(f'ds_write_b16 v126, v13 offset:{KC}'); a(f'ds_write_b16_d16_hi v127, v13 offset:{KC}')
    a('s_waitcnt lgkmcnt(0)'); a('s_barrier')
    for e in range(9):
        a(f'ds_read_u16 v{24+e}, v{GA+e} offset:{KC}')
    a('v_lshlrev_b32 v2, 4, v0')
    a(f's_mul_i32 s36, s3, {RK_STRIDE}')
    a('s_add_u32 s37, s36, 4096')
    a('v_cmp_gt_u32 vcc, 255, v0')
    a('s_waitcnt lgkmcnt(0)')
    a('v_cndmask_b32 v32, 0, v32, vcc')
    for e in range(4): a(f'v_lshl_or_b32 v{16+e}, v{24+2*e+1}, 16, v{24+2*e}')
    for e in range(4): a(f'v_lshl_or_b32 v{20+e}, v{24+2*e+2}, 16, v{24+2*e+1}')
    if F12:
        from gen_k23 import k2_body, K2_RC
        a(f'ds_write_b128 v2, v[16:19] offset:{K2_RC}'); a(f'ds_write_b128 v2, v[20:23] offset:{K2_RC+4160}')
        k2_body(a, True)
    else:
        a('buffer_store_dwordx4 v[16:19], v2, s[32:35], s36 offen')
        a('buffer_store_dwordx4 v[20:23], v2, s[32:35], s37 offen')
        fin('kg')
    a.label('K1_END')
    a('s_endpgm')
    return kernel_desc('k1_kernel', 160 if F12 else 128)
```

```python
from gen_common import *
from gen_k1 import ln_core
import os

K2_LDS = 4608 + 32768 + 8320 + 16
K2_RC = 4608 + 32768
K2PF = int(os.environ.get('K2PF', '0')); K3PF = int(os.environ.get('K3PF', '0')); K2IN = int(os.environ.get('K2IN', '1'))
K1IN = int(os.environ.get('K1IN', '0'))
if K1IN == 2: K2IN = 0
K2_GRID = 576 + K2PF; K3_GRID = 256 + K3PF
def gen_k2(a):
    a.raw(kernel_header('k2_kernel'))
    dbgt(a, 1, 1, 'DBGT_2')
    a('s_cmp_ge_u32 s2, 576'); a.branch('s_cbranch_scc1 K2_PF' if K2PF else 's_cbranch_scc1 K2_END')
    k2_body(a, False)
    return k2_rest(a)
def k2_body(a, fused):
    if not fused: stamp(a, 0, 'k2')
    if TK: ticket_begin(a)
    load_ptr(a, 4, 'ws'); load_ptr(a, 24, 'Dskip')
    a('v_readfirstlane_b32 s38, v0'); a('s_lshr_b32 s38, s38, 6')
    a('v_and_b32 v1, 15, v0')
    a('v_bfe_u32 v2, v0, 4, 2')
    if TK: ticket(a, 'k2', 9, 3, K2_LDS - 16, wave_s=38)
    elif not fused:
        a('s_and_b32 s36, s2, 7'); a('s_mul_i32 s36, s36, 72'); a('s_lshr_b32 s37, s2, 3'); a('s_add_u32 s3, s36, s37')
    a('s_and_b32 s37, s3, -2'); a('s_lshl_b32 s37, s37, 1')
    a('s_lshl_b32 s39, s3, 2')
    a('s_waitcnt lgkmcnt(0)')
    stamp(a, 1, 'k2')
    a('s_load_dword s40, s[24:25], s37')
    if K2IN and K1IN == 1:
        load_ptr(a, 56, 'w3')
        a('s_mul_i32 s53, s3, 9216')
        a('v_lshlrev_b32 v154, 4, v0'); a('v_add_u32 v154, s53, v154')
    elif K2IN:
        a('s_cmp_ge_u32 s3, 288'); a('s_cselect_b32 s52, 8, 0'); a('s_cselect_b32 s53, 288, 0'); a('s_sub_u32 s53, s3, s53')
        a(f's_add_u32 s52, s52, {KA["w1"]}')
        a('s_load_dwordx2 s[56:57], s[0:1], s52')
        a('s_mul_i32 s53, s53, 18432')
        a('v_lshlrev_b32 v154, 4, v0'); a('v_add_u32 v154, s53, v154')
    copy_srd(a, 8, 4, SZ_RK, WS_RK); copy_srd(a, 12, 4, SZ_XT, WS_XT); copy_srd(a, 16, 4, SZ_X1T, WS_X1T)
    if fused:
        a('v_lshrrev_b32 v3, 1, v2')
        a('v_lshl_add_u32 v3, v1, 1, v3')
        a(f'v_mul_u32_u24 v3, {XT_STRIDE}, v3')
        a('v_and_b32 v4, 1, v2')
        a('v_lshl_add_u32 v3, v4, 4, v3')
        a(f's_mul_i32 s44, s38, {64*XT_STRIDE}')
        a('s_lshl_b32 s45, s3, 5'); a('s_add_u32 s44, s44, s45')
        a(f's_add_u32 s45, s44, {32*XT_STRIDE}')
        stamp(a, 4, 'k2')
        a('s_cmp_lg_u32 s38, 0'); a.branch('s_cbranch_scc1 K12_PD')
        a('s_mov_b32 s69, 0')
        a('v_cmp_gt_u32 vcc, 54, v0'); a('v_cndmask_b32 v98, 4, 5, vcc')
        a('s_waitcnt vmcnt(0)'); a.branch('s_branch K12_PC')
        a.label('K12_PL')
        a(f"s_sleep {os.environ.get('K12S', '8')}")
        a('buffer_load_dword v96, v97, s[64:67], 0 offen sc1')
        a('s_waitcnt vmcnt(0)')
        a.label('K12_PC')
        a('v_cmp_lt_u32 vcc, v96, v98')
        a('s_cmp_eq_u64 vcc, 0'); a.branch('s_cbranch_scc1 K12_PD')
        a('s_add_u32 s69, s69, 1'); a('s_cmp_lt_u32 s69, 0x10000'); a.branch('s_cbranch_scc1 K12_PL')
        a.label('K12_PD')
        a('s_barrier')
        stamp(a, 5, 'k2')
    a('s_add_u32 s20, s4, s39'); a('s_addc_u32 s21, s5, 0')
    a(f's_load_dword s41, s[20:21], {WS_MOD}')
    a(f's_load_dword s42, s[20:21], {WS_MOD+2304}')
    a(f's_load_dword s43, s[20:21], {WS_MOD+4608}')
    if not fused:
        a('v_lshrrev_b32 v3, 1, v2')
        a('v_lshl_add_u32 v3, v1, 1, v3')
        a(f'v_mul_u32_u24 v3, {XT_STRIDE}, v3')
        a('v_and_b32 v4, 1, v2')
        a('v_lshl_add_u32 v3, v4, 4, v3')
        a(f's_mul_i32 s44, s38, {64*XT_STRIDE}')
        a('s_lshl_b32 s45, s3, 5'); a('s_add_u32 s44, s44, s45')
        a(f's_add_u32 s45, s44, {32*XT_STRIDE}')
    XW = 8
    a(f'buffer_load_dwordx4 v[{XW}:{XW+3}], v3, s[12:15], s44 offen')
    a(f'buffer_load_dwordx4 v[{XW+4}:{XW+7}], v3, s[12:15], s45 offen')
    if not fused:
        a('v_and_b32 v4, 63, v0'); a('v_lshlrev_b32 v4, 4, v4')
        a(f's_mul_i32 s46, s3, {RK_STRIDE}')
        a('s_lshl_b32 s47, s38, 10'); a('s_add_u32 s46, s46, s47')
        a(f's_add_u32 m0, s47, {K2_RC}')
        a('buffer_load_dwordx4 v4, s[8:11], s46 offen lds')
        a('s_add_u32 s46, s46, 4096')
        a(f's_add_u32 m0, s47, {K2_RC+4160}')
        a('buffer_load_dwordx4 v4, s[8:11], s46 offen lds')
    a('v_lshlrev_b32 v152, 3, v2'); a('v_sub_u32 v152, v152, v1'); a('v_add_u32 v152, 15, v152')
    a('v_and_b32 v153, 1, v152'); a('v_and_b32 v152, -2, v152'); a('v_lshlrev_b32 v152, 1, v152')
    a('v_mul_u32_u24 v153, 4160, v153'); a('v_add_u32 v152, v152, v153')
    a(f'v_add_u32 v152, {K2_RC}, v152')
    a('s_sub_u32 s47, 7, s38'); a('s_lshl_b32 s47, s47, 9'); a('v_add_u32 v153, s47, v152')
    a('s_lshl_b32 s48, s38, 9'); a('v_add_u32 v152, s48, v152')
    T1 = 32; T2 = 64
    for i in range(4): a(f'v_mov_b32 v{16+i}, 0')
    a('v_lshlrev_b32 v5, 4, v0')
    a('v_cmp_gt_u32 vcc, 30, v0')
    a('s_and_saveexec_b64 s[50:51], vcc')
    a.branch('s_cbranch_execz K2_Z')
    a('ds_write_b128 v5, v[16:19]')
    a('v_cmp_gt_u32 vcc, 4, v0')
    a('s_and_b64 exec, exec, vcc')
    a(f'ds_write_b128 v5, v[16:19] offset:{K2_RC+4096}')
    a(f'ds_write_b128 v5, v[16:19] offset:{K2_RC+4160+4096}')
    a.label('K2_Z')
    a('s_mov_b64 exec, s[50:51]')
    D = 96
    for i in range(32): a(f'v_mov_b32 v{D+i}, 0')
    a('v_lshlrev_b32 v5, 5, v1'); a('v_lshl_add_u32 v5, v2, 3, v5')
    a('s_lshl_b32 s49, s38, 10'); a('v_add_u32 v5, s49, v5')
    a('v_lshlrev_b32 v6, 5, v1'); a('v_lshl_add_u32 v6, v2, 4, v6')
    a('s_waitcnt lgkmcnt(0)')
    a('s_and_b32 s45, s3, 1'); a('s_lshl_b32 s45, s45, 4'); a('s_lshr_b32 s40, s40, s45'); a('s_lshl_b32 s40, s40, 16')
    a('v_mov_b32 v7, s42'); a('v_add_f32 v7, 1.0, v7'); round_bf16_1(a, 7, 7)
    stamp(a, 2, 'k2')
    a('s_waitcnt vmcnt(0)' if fused else 's_waitcnt vmcnt(2)')
    stamp(a, 3, 'k2')
    HF = 16; HD = 24; TP = 28
    for i in range(8): unpack_lo(a, HF + i, XW + i)
    for i in range(8): a(f'v_mul_f32 v{HF+i}, v{HF+i}, v7')
    for i in range(4): a(f'v_cvt_pk_bf16_f32 v{TP+i}, v{HF+2*i}, v{HF+2*i+1}')
    for i in range(4): unpack_lo(a, HF + 2 * i, TP + i); unpack_hi(a, HF + 2 * i + 1, TP + i)
    for i in range(8): a(f'v_add_f32 v{HF+i}, s41, v{HF+i}')
    for i in range(4): a(f'v_cvt_pk_bf16_f32 v{TP+i}, v{HF+2*i}, v{HF+2*i+1}')
    for i in range(4): unpack_lo(a, HF + 2 * i, TP + i); unpack_hi(a, HF + 2 * i + 1, TP + i)
    for i in range(4): a(f'v_cvt_pk_f16_f32 v{TP+i}, v{HF+2*i}, v{HF+2*i+1}')
    a(f'ds_write_b64 v5, v[{TP}:{TP+1}] offset:480')
    a(f'ds_write_b64 v5, v[{TP+2}:{TP+3}] offset:{480+512}')
    for i in range(8): a(f'v_mul_f32 v{HF+i}, s40, v{HF+i}')
    for i in range(4): a(f'v_cvt_pk_bf16_f32 v{HD+i}, v{HF+2*i}, v{HF+2*i+1}')
    a('s_waitcnt vmcnt(0) lgkmcnt(0)'); a('s_barrier')
    if K2IN:
        a(f's_mov_b32 s58, {576*9216}'); a('s_mov_b32 s59, 0x20000')
        for i in range(5 if K1IN == 0 else 3):
            a(f's_mov_b32 s60, {i*4096}')
            if K1IN == 0 and i == 4: a('s_cmp_ge_u32 s38, 2'); a.branch('s_cbranch_scc1 K2_PFS')
            if K1IN == 1 and i == 2: a('s_cmp_ge_u32 s38, 1'); a.branch('s_cbranch_scc1 K2_PFS')
            a(f'buffer_load_dwordx4 v[156:159], v154, s[56:59], s60 offen')
        a.label('K2_PFS')
    for r in range(8):
        a(f'ds_read2_b32 v[{T1+4*r}:{T1+4*r+1}], v153 offset0:{16*r} offset1:{16*r+1}')
        a(f'ds_read2_b32 v[{T1+4*r+2}:{T1+4*r+3}], v153 offset0:{16*r+2} offset1:{16*r+3}')
    for r in range(8):
        a(f'ds_read2_b32 v[{T2+4*r}:{T2+4*r+1}], v152 offset0:{16*r} offset1:{16*r+1}')
        a(f'ds_read2_b32 v[{T2+4*r+2}:{T2+4*r+3}], v152 offset0:{16*r+2} offset1:{16*r+3}')
    a('s_waitcnt lgkmcnt(0)')
    if not fused: stamp(a, 4, 'k2')
    HB = 128; NH = 6
    for w in range(1, 4):
        a(f's_cmp_eq_u32 s38, {w}'); a.branch(f's_cbranch_scc1 K2_W{w}')
    for w in range(4):
        if w: a.label(f'K2_W{w}')
        gs = [(G, r) for G in range(7, 15 - w) for r in range(8)]
        def rd(k):
            G, r = gs[k]; g = 8 * G + r; b = HB + 4 * (k % NH)
            a(f'ds_read_b128 v[{b}:{b+3}], v6 offset:{64*(g-56)}')
        for k in range(min(NH - 1, len(gs))): rd(k)
        for k, (G, r) in enumerate(gs):
            if k + NH - 1 < len(gs): rd(k + NH - 1)
            outstanding = min(NH - 1, len(gs) - 1 - k)
            a(f's_waitcnt lgkmcnt({outstanding})')
            b = HB + 4 * (k % NH)
            c1 = G - 7 + w
            a(f'v_mfma_f32_16x16x32_f16 v[{D+4*c1}:{D+4*c1+3}], v[{T1+4*r}:{T1+4*r+3}], v[{b}:{b+3}], v[{D+4*c1}:{D+4*c1+3}]')
            if G <= 7 + w:
                c2 = G - w
                a(f'v_mfma_f32_16x16x32_f16 v[{D+4*c2}:{D+4*c2+3}], v[{T2+4*r}:{T2+4*r+3}], v[{b}:{b+3}], v[{D+4*c2}:{D+4*c2+3}]')
        if w < 3: a.branch('s_branch K2_RED')
    a.label('K2_RED')
    if not fused: stamp(a, 5, 'k2')
    a('v_and_b32 v4, 63, v0'); a('v_lshlrev_b32 v4, 4, v4')
    a('s_lshl_b32 s49, s38, 13'); a('v_add_u32 v5, s49, v4')
    for c in range(8): a(f'ds_write_b128 v5, v[{D+4*c}:{D+4*c+3}] offset:{4608 + c*1024}')
    a('s_lshl_b32 s49, s38, 11'); a('v_add_u32 v4, s49, v4')
    a('s_waitcnt lgkmcnt(0)'); a('s_barrier')
    stamp(a, 6, 'k2')
    PB = 32
    for cc in range(2):
        for w in range(4):
            b = PB + 16 * cc + 4 * w
            a(f'ds_read_b128 v[{b}:{b+3}], v4 offset:{4608 + w*8192 + cc*1024}')
    a('v_lshlrev_b32 v5, 5, v1'); a('v_lshl_add_u32 v5, v2, 3, v5')
    a(f's_mul_i32 s46, s3, {X1T_STRIDE}'); a('s_lshl_b32 s49, s38, 10'); a('s_add_u32 s46, s46, s49')
    for cc in range(2):
        a(f's_waitcnt lgkmcnt({4*(1-cc)})')
        b = PB + 16 * cc
        for i in range(4):
            a(f'v_add_f32 v{b+i}, v{b+i}, v{b+4+i}'); a(f'v_add_f32 v{b+8+i}, v{b+8+i}, v{b+12+i}')
        for i in range(4): a(f'v_add_f32 v{b+i}, v{b+i}, v{b+8+i}')
        for i in range(4): a(f'v_mul_f32 v{b+i}, {f32bits(2.0**-KSCALE_LOG2)}, v{b+i}')
        t = b + 4
        for i in range(2): a(f'v_cvt_pk_bf16_f32 v{t+i}, v{b+2*i}, v{b+2*i+1}')
        for i in range(2): unpack_lo(a, b + 2 * i, t + i); unpack_hi(a, b + 2 * i + 1, t + i)
        for i in range(2): unpack_lo(a, t + 2 + 2 * i, HD + 2 * cc + i); unpack_hi(a, t + 3 + 2 * i, HD + 2 * cc + i)
        for i in range(4): a(f'v_add_f32 v{b+i}, v{b+i}, v{t+2+i}')
        for i in range(2): a(f'v_cvt_pk_bf16_f32 v{t+i}, v{b+2*i}, v{b+2*i+1}')
        for i in range(2): unpack_lo(a, b + 2 * i, t + i); unpack_hi(a, b + 2 * i + 1, t + i)
        for i in range(4): a(f'v_mul_f32 v{b+i}, s43, v{b+i}')
        for i in range(2): a(f'v_cvt_pk_bf16_f32 v{t+i}, v{b+2*i}, v{b+2*i+1}')
        for i in range(2): unpack_lo(a, b + 2 * i, t + i); unpack_hi(a, b + 2 * i + 1, t + i)
        for i in range(4): unpack_hi(a, t + 2 + i, XW + 4 * cc + i)
        for i in range(4): a(f'v_add_f32 v{b+i}, v{b+i}, v{t+2+i}')
        for i in range(2): a(f'v_cvt_pk_bf16_f32 v{t+i}, v{b+2*i}, v{b+2*i+1}')
        a(f'buffer_store_dwordx2 v[{t}:{t+1}], v5, s[16:19], s46 offen offset:{cc*512}')
    stamp(a, 7, 'k2')
    dump_stamps(a, 8, 'k2', 610 if fused else 300)
def k2_rest(a):
    a.label('K2_END')
    a('s_endpgm')
    if K2PF:
        a.label('K2_PF')
        a(f's_cmp_ge_u32 s2, {576+K2PF}'); a.branch('s_cbranch_scc1 K2_END2')
        a('s_sub_u32 s3, s2, 576')
        a('s_cmp_ge_u32 s3, 72'); a('s_cselect_b32 s8, 8, 0'); a('s_cselect_b32 s9, 72, 0'); a('s_sub_u32 s9, s3, s9')
        a(f's_add_u32 s8, s8, {KA["w1"]}')
        a('s_load_dwordx2 s[4:5], s[0:1], s8')
        a('s_mul_i32 s9, s9, 73728')
        a('v_lshlrev_b32 v1, 4, v0')
        a('s_waitcnt lgkmcnt(0)')
        make_srd(a, 4, 576 * 9216)
        for i in range(18):
            a(f's_add_u32 s10, s9, {i*4096}')
            a(f'buffer_load_dwordx4 v[{8+4*i}:{11+4*i}], v1, s[4:7], s10 offen')
        a('s_waitcnt vmcnt(0)')
        a.label('K2_END2')
        a('s_endpgm')
    return kernel_desc('k2_kernel', 160)

K3_LDS = 9216 + 1024 + 16
def gen_k3(a):
    a.raw(kernel_header('k3_kernel'))
    dbgt(a, 2, 2, 'DBGT_3')
    a('s_cmp_ge_u32 s2, 256'); a.branch('s_cbranch_scc1 K3_PF' if K3PF else 's_cbranch_scc1 K3_END')
    if TK: ticket_begin(a)
    load_ptr(a, 4, 'ws')
    a(f'v_mul_u32_u24 v1, {X1T_STRIDE}, v0')
    a('v_and_b32 v2, 7, v0')
    a('v_lshrrev_b32 v3, 3, v0')
    a('v_lshlrev_b32 v4, 5, v3')
    if TK: ticket(a, 'k3', 4, 3, K3_LDS - 16, vt=(62, 63))
    else:
        a('s_and_b32 s36, s2, 7'); a('s_lshl_b32 s36, s36, 5'); a('s_lshr_b32 s37, s2, 3'); a('s_add_u32 s3, s36, s37')
    a('s_lshl_b32 s20, s3, 4')
    a('s_waitcnt lgkmcnt(0)')
    copy_srd(a, 8, 4, SZ_X1T, WS_X1T); copy_srd(a, 12, 4, SZ_MOD, WS_MOD); copy_srd(a, 16, 4, SZ_XF, WS_XF); copy_srd(a, 24, 4, SZ_X1, WS_X1)
    a('buffer_load_dwordx4 v[8:11], v1, s[8:11], s20 offen')
    CB = 40; SB = 48
    a(f's_mov_b32 s21, {4*2304}'); a(f's_mov_b32 s22, {3*2304}')
    a(f'buffer_load_dwordx4 v[{CB}:{CB+3}], v4, s[12:15], s21 offen')
    a(f'buffer_load_dwordx4 v[{CB+4}:{CB+7}], v4, s[12:15], s21 offen offset:16')
    a(f'buffer_load_dwordx4 v[{SB}:{SB+3}], v4, s[12:15], s22 offen')
    a(f'buffer_load_dwordx4 v[{SB+4}:{SB+7}], v4, s[12:15], s22 offen offset:16')
    a('v_lshlrev_b32 v5, 4, v0')
    a('v_lshrrev_b32 v6, 4, v0'); a('v_lshlrev_b32 v6, 1, v6')
    a('v_bfe_u32 v7, v0, 1, 1'); a('v_add_u32 v6, v6, v7'); a('v_lshlrev_b32 v6, 3, v6')
    a('v_bfe_u32 v7, v0, 2, 2'); a('v_add_u32 v6, v6, v7'); a('v_lshlrev_b32 v6, 4, v6')
    a('v_and_b32 v7, 1, v0'); a('v_lshl_add_u32 v6, v7, 3, v6')
    RED = 9216
    a('v_lshrrev_b32 v12, 6, v0'); a('v_lshlrev_b32 v12, 5, v12'); a('v_lshl_add_u32 v12, v2, 2, v12')
    a('v_lshlrev_b32 v13, 2, v2')
    a('s_waitcnt vmcnt(4)')
    a('ds_write_b128 v5, v[8:11]')
    a('s_waitcnt lgkmcnt(0)'); a('s_barrier')
    XP = 8; XF = 16; TMP = 24; XN = 56
    a(f'ds_read_b64_tr_b16 v[{XP}:{XP+1}], v6')
    a(f'ds_read_b64_tr_b16 v[{XP+2}:{XP+3}], v6 offset:64')
    a('v_mul_u32_u24 v1, 1152, v2'); a('v_lshl_add_u32 v1, v3, 4, v1')
    a('s_mul_i32 s20, s3, 9216')
    a('v_lshrrev_b32 v4, 1, v3'); a('v_lshlrev_b32 v4, 10, v4')
    a('v_and_b32 v5, 1, v3'); a('v_lshl_add_u32 v4, v5, 9, v4'); a('v_lshl_add_u32 v4, v2, 4, v4')
    a('s_lshr_b32 s21, s3, 2'); a(f's_mul_i32 s21, s21, {36*1024}')
    a('s_and_b32 s22, s3, 3'); a('s_lshl_b32 s22, s22, 7'); a('s_add_u32 s21, s21, s22')
    a('s_waitcnt lgkmcnt(0)')
    a(f'buffer_store_dwordx4 v[{XP}:{XP+3}], v1, s[24:27], s20 offen')
    ln_core(a, 1, XP, XF, TMP, 9, 12, 13, RED, XN)
    a('s_waitcnt vmcnt(1)')
    for i in range(4): unpack_lo(a, XF + 2 * i, XN + i); unpack_hi(a, XF + 2 * i + 1, XN + i)
    for i in range(8): a(f'v_add_f32 v{CB+i}, 1.0, v{CB+i}')
    for i in range(4): a(f'v_cvt_pk_bf16_f32 v{TMP+i}, v{CB+2*i}, v{CB+2*i+1}')
    for i in range(4): unpack_lo(a, CB + 2 * i, TMP + i); unpack_hi(a, CB + 2 * i + 1, TMP + i)
    for i in range(8): a(f'v_mul_f32 v{XF+i}, v{XF+i}, v{CB+i}')
    for i in range(4): a(f'v_cvt_pk_bf16_f32 v{TMP+i}, v{XF+2*i}, v{XF+2*i+1}')
    for i in range(4): unpack_lo(a, XF + 2 * i, TMP + i); unpack_hi(a, XF + 2 * i + 1, TMP + i)
    for i in range(8): a(f'v_add_f32 v{XF+i}, v{XF+i}, v{SB+i}')
    for i in range(4): a(f'v_cvt_pk_bf16_f32 v{TMP+i}, v{XF+2*i}, v{XF+2*i+1}')
    a(f'buffer_store_dwordx4 v[{TMP}:{TMP+3}], v4, s[16:19], s21 offen')
    a.label('K3_END')
    a('s_endpgm')
    if K3PF:
        a.label('K3_PF')
        a(f's_cmp_ge_u32 s2, {256+K3PF}'); a.branch('s_cbranch_scc1 K3_END2')
        load_ptr(a, 4, 'w2')
        a('s_sub_u32 s3, s2, 256')
        a('s_mul_i32 s9, s3, 73728')
        a('v_lshlrev_b32 v1, 4, v0')
        a('s_waitcnt lgkmcnt(0)')
        make_srd(a, 4, 4608 * 1152)
        for i in range(8):
            a(f's_add_u32 s10, s9, {i*9216}')
            a(f'buffer_load_dwordx4 v[{8+4*i}:{11+4*i}], v1, s[4:7], s10 offen')
        a('s_waitcnt vmcnt(0)')
        a.label('K3_END2')
        a('s_endpgm')
    return kernel_desc('k3_kernel', 64)
```

```python
from gen_common import *
import os
from gen_k4 import VM, interleave, SLOT, K4_LDS
from gen_k1 import ln_core

LOOP = int(os.environ.get('K34L', '1'))
EARLY = int(os.environ.get('EARLY', '0'))
POLLW = int(os.environ.get('POLLW', '1'))
SPEC = int(os.environ.get('SPEC', '1')) and LOOP
RAWW = int(os.environ.get('RAWW', '0')) and SPEC
GH = int(os.environ.get('GH', '1'))
T0B = int(os.environ.get('T0B', '1'))
F345 = int(os.environ.get('F345', '1'))
def gen_k34(a):
    a.raw(kernel_header('k34_kernel'))

    vm = VM(a)
    a('s_cmp_ge_u32 s2, 256'); a.branch('s_cbranch_scc1 K4_END')
    if not TK:
        a('s_and_b32 s36, s2, 7'); a('s_lshl_b32 s36, s36, 5'); a('s_lshr_b32 s37, s2, 3'); a('s_add_u32 s3, s36, s37')
    stamp(a, 0, 'k4')
    if TK: ticket_begin(a)
    load_ptr(a, 4, 'w1'); load_ptr(a, 8, 'w3'); load_ptr(a, 12, 'ws')
    K4W2 = int(os.environ.get('K4W2', '1'))
    if K4W2: load_ptr(a, 24, 'w2')
    a('v_mov_b32 v15, v0')
    a('v_readfirstlane_b32 s39, v0'); a('s_lshr_b32 s39, s39, 6')
    a('v_and_b32 v0, 63, v0')
    a('v_lshrrev_b32 v11, 4, v0'); a('v_mul_u32_u24 v1, 9216, v11')
    a('v_bfe_u32 v12, v0, 2, 2'); a('v_xor_b32 v12, v12, v11'); a('v_lshl_add_u32 v1, v12, 6, v1')
    a('v_and_b32 v12, 3, v0'); a('v_lshl_add_u32 v1, v12, 4, v1')
    a('v_bfe_u32 v12, v0, 2, 2')
    a('v_lshrrev_b32 v13, 5, v0')
    a('v_lshl_add_u32 v13, v13, 3, v12'); a('v_lshlrev_b32 v2, 8, v13')
    a('v_xor_b32 v12, s39, v12'); a('v_lshl_add_u32 v2, v12, 6, v2')
    a('v_bfe_u32 v12, v0, 4, 1'); a('v_lshl_add_u32 v2, v12, 5, v2')
    a('v_and_b32 v12, 3, v0'); a('v_lshl_add_u32 v2, v12, 3, v2')
    a(f'v_add_u32 v4, {3*SLOT}, v2'); a(f'v_add_u32 v3, {2*SLOT}, v2'); a(f'v_add_u32 v2, {SLOT}, v2')
    a('v_lshlrev_b32 v5, 4, v0')
    for s in range(1, 4): a(f'v_add_u32 v{5+s}, {s*SLOT}, v5')
    a('v_bfe_u32 v12, v0, 4, 1'); a('v_lshlrev_b32 v10, 10, v12')
    a('v_lshrrev_b32 v12, 5, v0'); a('v_lshl_add_u32 v10, v12, 8, v10')
    a('v_and_b32 v12, 15, v0'); a('v_lshl_add_u32 v10, v12, 4, v10')
    a('s_mul_i32 s36, s3, 9363'); a('s_lshr_b32 s36, s36, 16')
    a('s_mul_i32 s37, s36, 7'); a('s_sub_u32 s37, s3, s37')
    a('s_mul_i32 s38, s37, 9'); a('s_cmp_gt_u32 s37, 0'); a('s_addc_u32 s38, s38, 0')
    if SPEC:
        a('s_and_b32 s54, s2, 7'); a('s_lshr_b32 s56, s2, 3'); a('s_lshr_b32 s55, s56, 2')
        a('s_cmp_eq_u32 s55, 7'); a('s_cselect_b32 s57, 0, s55'); a('s_cselect_b32 s72, 9, 8')
        a('s_cmp_eq_u32 s54, 7'); a('s_cselect_b32 s54, s57, s54'); a('s_cselect_b32 s55, s72, s55')
        a('s_mul_i32 s57, s54, 9'); a('s_cmp_gt_u32 s54, 0'); a('s_addc_u32 s57, s57, s55')
        a('s_lshl_b32 s55, s57, 2'); a('s_and_b32 s56, s56, 3'); a('s_add_u32 s55, s55, s56')
        a('s_lshl_b32 s72, s54, 7')
        a('s_cmp_ge_u32 s3, 252')
        a('s_cselect_b32 s36, 0, s36'); a('s_cselect_b32 s37, 0, s37'); a('s_cselect_b32 s38, 0, s38')
    else:
        a('s_lshl_b32 s55, s38, 2'); a('s_add_u32 s55, s55, s36')
        a('s_sub_u32 s56, s3, 216')
        a('s_cmp_ge_u32 s3, 252')
        a('s_cselect_b32 s55, s56, s55'); a('s_cselect_b32 s36, 0, s36'); a('s_cselect_b32 s37, 0, s37'); a('s_cselect_b32 s38, 0, s38')
    a('s_lshl_b32 s40, s36, 8')
    a(f's_mul_i32 s41, s39, {16*9216}'); a('s_add_u32 s40, s40, s41')
    a('s_lshl_b32 s42, s39, 12')
    a(f's_mul_i32 s43, s38, {SLOT}'); a('s_mul_i32 s44, s39, 9216'); a('s_add_u32 s43, s43, s44')
    a('s_lshl_b32 s45, s36, 2'); a('s_add_u32 s45, s45, s39'); a('s_lshl_b32 s45, s45, 7'); a('s_lshl_b32 s46, s38, 1'); a('s_add_u32 s45, s45, s46'); a('s_lshl_b32 s45, s45, 10')
    a('s_mov_b32 s47, 0xffff0000'); a(f's_mov_b32 s48, {f32bits(-LOG2E)}')
    a('s_waitcnt lgkmcnt(0)')
    make_srd(a, 4, 576 * 9216); make_srd(a, 8, 576 * 9216)
    copy_srd(a, 16, 12, SZ_XF, WS_XF); copy_srd(a, 20, 12, SZ_HH, WS_HH)
    if K4W2:
        make_srd(a, 24, 4608 * 1152)
        a('s_mul_i32 s53, s3, 21504'); a('s_lshl_b32 s54, s39, 10'); a('s_add_u32 s53, s53, s54')
        a('v_lshlrev_b32 v14, 4, v0'); a('v_add_u32 v14, s53, v14')
    def w_dma(st):
        slot = 1 + st % 3
        for mat in range(2):
            for q in range(4):
                a(f's_add_u32 m0, s42, {slot*SLOT + mat*16384 + q*1024}')
                a(f's_add_u32 s49, s40, {(64*st + 4*q)*9216}')
                vm.issue(f'W{st}', f'buffer_load_dwordx4 v1, s[{4+4*mat}:{7+4*mat}], s49 offen lds')
    def x_dma_list(i):
        slot = i % 4; L = []
        for q in range(3):
            L.append(f's_add_u32 m0, s44, {slot*SLOT + q*4096}')
            L.append(f's_add_u32 s49, s43, {i*SLOT + q*4096}')
            for r in range(4 if q < 2 else 1):
                L.append(lambda r=r: vm.issue(f'X{i}', f'buffer_load_dwordx4 v5, s[16:19], s49 offen offset:{r*1024} sc1 lds'))
        return L
    def run(L):
        for f in L: f() if callable(f) else a(f)
    XB = 16; WV = 40; ACC = 72; TMP = 136
    def wreg(k, mat):
        if k < 32: b = 8 * k + 4 * mat; return 'a', b
        b = WV + 8 * (k - 32) + 4 * mat; return 'v', b
    def xread(i, k):
        n = 36 * i + k; b = XB + 4 * (n % 6)
        return f'ds_read_b128 v[{b}:{b+3}], v{5 + i % 4} offset:{k*1024}'
    def mfma(i, k, mat):
        n = 36 * i + k; b = XB + 4 * (n % 6)
        t, wb = wreg(k, mat); acc = ACC + 32 * (i % 2) + 16 * mat
        c = '0' if k == 0 else f'v[{acc}:{acc+15}]'
        return f'v_mfma_f32_32x32x16_bf16 v[{acc}:{acc+15}], {t}[{wb}:{wb+3}], v[{b}:{b+3}], {c}'
    def epilogue_list(i):
        g = ACC + 32 * (i % 2); u = g + 16; L = []
        G = TMP; E = TMP + 8; U = TMP + 16; PK = TMP + 24;
        for p in range(2):
            P = TMP + 28 + 4 * p
            o = 8 * p
            for j in range(4): L.append(f'v_cvt_pk_bf16_f32 v{PK+j}, v{g+o+2*j}, v{g+o+2*j+1}')
            for j in range(4):
                L.append(f'v_lshlrev_b32 v{G+2*j}, 16, v{PK+j}'); L.append(f'v_and_b32 v{G+2*j+1}, s47, v{PK+j}')
            for j in range(8): L.append(f'v_mul_f32 v{E+j}, s48, v{G+j}')
            for j in range(8): L.append(f'v_exp_f32 v{E+j}, v{E+j}')
            for j in range(4): L.append(f'v_cvt_pk_bf16_f32 v{PK+j}, v{u+o+2*j}, v{u+o+2*j+1}')
            for j in range(8): L.append(f'v_add_f32 v{E+j}, 1.0, v{E+j}')
            for j in range(8): L.append(f'v_rcp_f32 v{E+j}, v{E+j}')
            for j in range(4):
                L.append(f'v_lshlrev_b32 v{U+2*j}, 16, v{PK+j}'); L.append(f'v_and_b32 v{U+2*j+1}, s47, v{PK+j}')
            for j in range(8): L.append(f'v_mul_f32 v{G+j}, v{G+j}, v{E+j}')
            for j in range(4): L.append(f'v_cvt_pk_bf16_f32 v{PK+j}, v{G+2*j}, v{G+2*j+1}')
            for j in range(4):
                L.append(f'v_lshlrev_b32 v{G+2*j}, 16, v{PK+j}'); L.append(f'v_and_b32 v{G+2*j+1}, s47, v{PK+j}')
            for j in range(8): L.append(f'v_mul_f32 v{G+j}, v{G+j}, v{U+j}')
            for j in range(4): L.append(f'v_cvt_pk_bf16_f32 v{P+j}, v{G+2*j}, v{G+2*j+1}')
            if p == 0: L.append(f's_add_u32 s50, s45, {i*2048}')
            L.append(lambda P=P, p=p: vm.issue(f'S{i}', f'buffer_store_dwordx4 v[{P}:{P+3}], v10, s[20:23], s50 offen offset:{p*512}' + os.environ.get('STMOD', ' sc1')))
        return L
    PF = os.environ.get('K4PF', '0')
    def w_pf():
        if PF == '0': return
        a('s_lshl_b32 s51, s37, 8'); a('s_lshl_b32 s52, s39, 6'); a('s_add_u32 s51, s51, s52')
        a('v_add_u32 v40, s51, v0')
        a('v_lshrrev_b32 v41, 1, v40'); a('v_mul_u32_u24 v41, 9216, v41')
        a('v_and_b32 v40, 1, v40'); a('v_lshl_add_u32 v41, v40, 7, v41')
        a('s_lshl_b32 s51, s36, 8')
        vm.issue('PF', 'buffer_load_dword v42, v41, s[4:7], s51 offen')
        vm.issue('PF', 'buffer_load_dword v43, v41, s[8:11], s51 offen')
        if PF == '2':
            vm.issue('PF', 'buffer_load_dword v44, v41, s[4:7], s51 offen offset:64')
            vm.issue('PF', 'buffer_load_dword v45, v41, s[8:11], s51 offen offset:64')
    RAWR = {6: ('a', 192), 7: ('a', 224), 8: ('v', 40)}
    def w_raw(st):
        t, base = RAWR[st]
        for mat in range(2):
            for q in range(4):
                r = base + 4 * (mat * 4 + q)
                a(f's_add_u32 s49, s40, {(64*st + 4*q)*9216}')
                vm.issue(f'R{st}', f'buffer_load_dwordx4 {t}[{r}:{r+3}], v1, s[{4+4*mat}:{7+4*mat}], s49 offen')
    def w_put(st, slot):
        t, base = RAWR[st]
        for mat in range(2):
            for q in range(4):
                r = base + 4 * (mat * 4 + q)
                a(f'ds_write_b128 v9, {t}[{r}:{r+3}] offset:{(slot-1)*SLOT + mat*16384 + q*1024}')
    def w_reads(st, slot=None):
        if slot is None: slot = 1 + st % 3
        for kk in range(4):
            k = 4 * st + kk
            for mat in range(2):
                t, wb = wreg(k, mat)
                off = mat * 16384 + kk * 4096
                a(f'ds_read_b64_tr_b16 {t}[{wb}:{wb+1}], v{1+slot} offset:{off}')
                a(f'ds_read_b64_tr_b16 {t}[{wb+2}:{wb+3}], v{1+slot} offset:{off+1024}')
    XL = 16; XP = 28; XFv = 72; LT = 96; XN = 112; CB = 124; SB = 148
    RED = 9216
    copy_srd(a, 28, 12, SZ_X1T, WS_X1T); copy_srd(a, 32, 12, SZ_MOD, WS_MOD); copy_srd(a, 64, 12, SZ_X1, WS_X1)
    copy_srd(a, 68, 12, 4096, WS_CNT + CNT_OFF['k4'])
    a('s_lshl_b32 s57, s55, 4')
    for i in range(3):
        a(f'v_add_u32 v{11+i}, {256*i}, v15'); a(f'v_mul_u32_u24 v{11+i}, {X1T_STRIDE}, v{11+i}')
    for i in range(3): vm.issue('XL', f'buffer_load_dwordx4 v[{XL+4*i}:{XL+4*i+3}], v{11+i}, s[28:31], s57 offen')
    w_pf()
    w_dma(0); w_dma(1); w_dma(2)
    if RAWW: w_raw(6); a('v_add_u32 v9, s42, v6')
    a('v_lshrrev_b32 v172, 4, v15'); a('v_lshlrev_b32 v172, 1, v172')
    a('v_bfe_u32 v11, v15, 1, 1'); a('v_add_u32 v172, v172, v11'); a('v_lshlrev_b32 v172, 3, v172')
    a('v_bfe_u32 v11, v15, 2, 2'); a('v_add_u32 v172, v172, v11'); a('v_lshlrev_b32 v172, 4, v172')
    a('v_and_b32 v11, 1, v15'); a('v_lshl_add_u32 v172, v11, 3, v172')
    a('v_and_b32 v11, 7, v15'); a('v_lshrrev_b32 v12, 3, v15')
    a('v_mul_u32_u24 v173, 1152, v11'); a('v_lshl_add_u32 v173, v12, 4, v173')
    a('v_lshrrev_b32 v174, 1, v12'); a('v_lshlrev_b32 v174, 10, v174')
    a('v_and_b32 v13, 1, v12'); a('v_lshl_add_u32 v174, v13, 9, v174'); a('v_lshl_add_u32 v174, v11, 4, v174')
    a('v_lshlrev_b32 v175, 5, v12')
    a('v_lshlrev_b32 v13, 2, v11')
    a('s_lshl_b32 s58, s39, 5'); a('v_add_u32 v12, s58, v13')
    a('v_lshlrev_b32 v11, 4, v15')
    a('s_mul_i32 s58, s55, 9216')
    a('s_lshr_b32 s59, s55, 2'); a(f's_mul_i32 s59, s59, {36*1024}'); a('s_and_b32 s60, s55, 3'); a('s_lshl_b32 s60, s60, 7'); a('s_add_u32 s59, s59, s60')
    a(f's_mov_b32 s61, {4*2304}'); a(f's_mov_b32 s62, {3*2304}')
    vm.wait('XL')
    a(f'ds_write_b128 v11, v[{XL}:{XL+3}]'); a(f'ds_write_b128 v11, v[{XL+4}:{XL+7}] offset:4096')
    a('s_cmp_lg_u32 s39, 0'); a.branch('s_cbranch_scc1 K34_NW3')
    a(f'ds_write_b128 v11, v[{XL+8}:{XL+11}] offset:8192')
    a.label('K34_NW3')
    vm.wait('W0', ' lgkmcnt(0)'); a('s_barrier')
    stamp(a, 1, 'k4')
    base_ops = list(vm.ops)
    a('s_cmp_eq_u32 s39, 3'); a.branch('s_cbranch_scc1 K34_AUX')
    for i in range(3):
        vm.issue('M', f'buffer_load_dwordx4 v[{CB+8*i}:{CB+8*i+3}], v175, s[32:35], s61 offen offset:{768*i}')
        vm.issue('M', f'buffer_load_dwordx4 v[{CB+8*i+4}:{CB+8*i+7}], v175, s[32:35], s61 offen offset:{768*i+16}')
        vm.issue('M', f'buffer_load_dwordx4 v[{SB+8*i}:{SB+8*i+3}], v175, s[32:35], s62 offen offset:{768*i}')
        vm.issue('M', f'buffer_load_dwordx4 v[{SB+8*i+4}:{SB+8*i+7}], v175, s[32:35], s62 offen offset:{768*i+16}')
    if RAWW: w_raw(7)
    for i in range(3):
        a(f'ds_read_b64_tr_b16 v[{XP+4*i}:{XP+4*i+1}], v172 offset:{3072*i}')
        a(f'ds_read_b64_tr_b16 v[{XP+4*i+2}:{XP+4*i+3}], v172 offset:{3072*i+64}')
    w_reads(0)
    a('s_waitcnt lgkmcnt(15)')
    for i in range(3): vm.issue('X1S', f'buffer_store_dwordx4 v[{XP+4*i}:{XP+4*i+3}], v173, s[64:67], s58 offen offset:{384*i}')
    def pre2(): vm.wait('W1')
    def post2(): w_dma(3); w_reads(1)
    def pre3(): vm.wait('W2')
    def post3(): w_dma(4); w_reads(2)
    ln_core(a, 3, XP, XFv, LT, 3, 12, 13, RED, XN, hooks=(pre2, post2, pre3, post3, GH))
    vm.wait('M')
    n = 24
    for i in range(12): unpack_lo(a, XFv + 2 * i, XN + i); unpack_hi(a, XFv + 2 * i + 1, XN + i)
    for i in range(n): a(f'v_add_f32 v{CB+i}, 1.0, v{CB+i}')
    for i in range(12): a(f'v_cvt_pk_bf16_f32 v{LT+i}, v{CB+2*i}, v{CB+2*i+1}')
    for i in range(12): unpack_lo(a, CB + 2 * i, LT + i); unpack_hi(a, CB + 2 * i + 1, LT + i)
    for i in range(n): a(f'v_mul_f32 v{XFv+i}, v{XFv+i}, v{CB+i}')
    for i in range(12): a(f'v_cvt_pk_bf16_f32 v{LT+i}, v{XFv+2*i}, v{XFv+2*i+1}')
    for i in range(12): unpack_lo(a, XFv + 2 * i, LT + i); unpack_hi(a, XFv + 2 * i + 1, LT + i)
    for i in range(n): a(f'v_add_f32 v{XFv+i}, v{XFv+i}, v{SB+i}')
    for i in range(12): a(f'v_cvt_pk_bf16_f32 v{LT+i}, v{XFv+2*i}, v{XFv+2*i+1}')
    for i in range(3):
        a(f's_add_u32 s60, s59, {12288*i}')
        vm.issue('XFS', f'buffer_store_dwordx4 v[{LT+4*i}:{LT+4*i+3}], v174, s[16:19], s60 offen sc1')
    if RAWW: w_raw(8)
    a('s_waitcnt lgkmcnt(0)'); a('s_barrier')
    w_dma(5)
    def stage(st):
        vm.wait(f'W{st}'); a('s_barrier'); w_reads(st); a('s_waitcnt lgkmcnt(0)'); a('s_barrier'); w_dma(st + 3)
    if EARLY: stage(3); stage(4)
    vm.wait('XFS')
    a.branch('s_branch K34_JOIN')
    a.label('K34_AUX')
    vm.ops = list(base_ops)
    if RAWW: w_raw(7)
    w_reads(0); a('s_waitcnt lgkmcnt(0)'); vm.wait('W1'); a('s_barrier')
    w_dma(3); w_reads(1); a('s_waitcnt lgkmcnt(0)'); vm.wait('W2'); a('s_barrier')
    w_dma(4); w_reads(2)
    if RAWW: w_raw(8)
    a('s_waitcnt lgkmcnt(0)'); a('s_barrier')
    w_dma(5)
    if EARLY: stage(3); stage(4)
    if RAWW: vm.wait('W4')
    a.label('K34_JOIN')
    vm.ops = (['W5'] * 8 + ['W6'] * 8 + ['W7'] * 8) if EARLY else (['W3'] * 8 + ['W4'] * 8 + ['W5'] * 8)
    if RAWW: vm.ops = ['R8'] * 8 + ['W5'] * 8
    a('s_barrier')
    stamp(a, 2, 'k4')
    a('s_lshl_b32 s63, s37, 7')
    a('s_cmp_lg_u32 s39, 0'); a.branch('s_cbranch_scc1 K34_NS')
    a('s_mov_b64 exec, 1'); a('v_mov_b32 v11, 1')
    a(f'buffer_atomic_add v11, off, s[68:71], s{72 if SPEC else 63} sc1')
    a('s_mov_b64 exec, -1')
    a.label('K34_NS')
    a('s_cmp_ge_u32 s3, 252'); a.branch('s_cbranch_scc1 K34_HEND')
    if RAWW: w_reads(3, 1); w_reads(4, 2)
    if SPEC: run(x_dma_list(0))
    def nonloop():
        def tile(i):
            mf = [];
            fill = epilogue_list(i - 1) if i else []
            dma = x_dma_list(i + 3) if 0 < i <= 6 else []
            if K4W2 and 1 <= i <= 6:
                dma = dma + [f'v_add_u32 v13, {(i-1)*4096}, v14', lambda: vm.issue('PW', 'buffer_load_dwordx4 v[172:175], v13, s[24:27], 0 offen')]
            X = os.environ.get('K4X', '')
            if 'noepi' in X: fill = [f for f in fill if callable(f) or f.startswith('s_')]
            if 'nost' in X: fill = [f for f in fill if not callable(f)]
            if 'notrans' in X: fill = [f for f in fill if callable(f) or not ('exp' in f or 'rcp' in f)]
            for k in range(36):
                pre = []
                if k == 32 and i + 1 <= 9:
                    pre.append(lambda: vm.wait(f'X{i+1}'))
                    if 'nobar' not in X: pre.append('s_barrier')
                pre.append(xread(i, k + 4) if k + 4 < 36 else xread(i + 1, k + 4 - 36))
                pre.append('s_waitcnt lgkmcnt(4)')
                pre.append(mfma(i, k, 0))
                mf.append(pre); mf.append([mfma(i, k, 1)])
            interleave(a, mf[:64], fill)
            interleave(a, mf[64:], dma)
        stamp(a, 4, 'k4')
        for i in range(0, 9):
            tile(i)
            if i in (1, 4):
                stamp(a, {1:5,4:6}[i], 'k4')
                if 'k4' in STAMPS: a('s_waitcnt lgkmcnt(0)')
        a('s_cmp_eq_u32 s37, 0'); a.branch('s_cbranch_scc1 K4_T9')
        saved = list(vm.ops)
        run(epilogue_list(8))
        stamp(a, 7, 'k4')
        a('v_mov_b32 v0, v15')
        dump_stamps(a, 8, 'k4', 101)
        a('s_endpgm')
        vm.ops = saved
        a.label('K4_T9')
        tile(9)
        run(epilogue_list(9))
        a.label('K4_END')
        a('s_endpgm')

    def poll(first_issued):
        a('s_cmp_lg_u32 s39, 0'); a.branch('s_cbranch_scc1 K34_PD')
        a('s_cmp_eq_u32 s37, 0'); a('s_cselect_b32 s56, 40, 36')
        a('s_mov_b32 s57, 0')
        if first_issued is not None:
            a(f's_waitcnt vmcnt({first_issued})'); a.branch('s_branch K34_PC')
        a.label('K34_PL')
        a('buffer_load_dword v11, off, s[68:71], s63 sc1')
        a('s_waitcnt vmcnt(0)')
        if first_issued is not None: a.label('K34_PC')
        a('v_readfirstlane_b32 s58, v11')
        a('s_cmp_ge_u32 s58, s56'); a.branch('s_cbranch_scc1 K34_PD')
        a('s_sleep 2')
        a('s_add_u32 s57, s57, 1'); a('s_cmp_lt_u32 s57, 0x10000'); a.branch('s_cbranch_scc1 K34_PL')
        a.label('K34_PD')
    def x_validate_own():
        a('s_mul_i32 s59, s39, 9216'); a('v_add_u32 v11, s59, v5')
        for i in range(9): a(f'ds_read_b128 v[{TMP+4*i}:{TMP+4*i+3}], v11 offset:{i*1024}')
        for i in range(9):
            a(f's_waitcnt lgkmcnt({8-i})')
            if i == 0: a(f'v_max3_u32 v12, v{TMP}, v{TMP+1}, v{TMP+2}'); a(f'v_max_u32 v12, v12, v{TMP+3}')
            else: a(f'v_max3_u32 v12, v{TMP+4*i}, v{TMP+4*i+1}, v12'); a(f'v_max3_u32 v12, v{TMP+4*i+2}, v{TMP+4*i+3}, v12')
        a('v_cmp_eq_u32 vcc, -1, v12')
        a('s_cmp_lg_u64 vcc, 0'); a('s_cselect_b32 s59, 1, 0')
        a('v_mov_b32 v12, s59'); a('s_lshl_b32 s59, s39, 2'); a(f's_add_u32 s59, s59, {4*SLOT}'); a('v_mov_b32 v11, s59')
        a('ds_write_b32 v11, v12')
    def x12_dma(i):
        return x_dma_list(i) + ['v_mov_b32 v13, 0x7ffffff0',
                                lambda: vm.issue('PW', 'buffer_load_dwordx4 v[172:175], v13, s[24:27], 0 offen')]
    if RAWW:
        a('s_waitcnt lgkmcnt(0)'); a('s_barrier')
        w_put(6, 1); w_put(7, 2)
        a('s_waitcnt lgkmcnt(0)'); a('s_barrier')
        a('s_cmp_lg_u32 s39, 0'); a.branch('s_cbranch_scc1 K34_P0')
        a('buffer_load_dword v173, off, s[68:71], s63 sc1')
        a.label('K34_P0')
        w_reads(6, 1); w_reads(7, 2)
        vm.wait('W5', ' lgkmcnt(0)'); a('s_barrier')
        a('s_cmp_lg_u32 s39, 0'); a.branch('s_cbranch_scc1 K34_P1')
        a('buffer_load_dword v174, off, s[68:71], s63 sc1')
        a.label('K34_P1')
        w_put(8, 1); w_reads(5, 3)
        a('s_cmp_lg_u32 s39, 0'); a.branch('s_cbranch_scc1 K34_P2')
        a('s_waitcnt vmcnt(2)'); a.branch('s_branch K34_P3')
        a.label('K34_P2'); a('s_waitcnt vmcnt(0)')
        a.label('K34_P3')
        x_validate_own()
        a('s_waitcnt lgkmcnt(0)'); a('s_barrier')
        stamp(a, 3, 'k4')
        a(f'v_mov_b32 v11, {4*SLOT}'); a(f'ds_read_b128 v[{TMP}:{TMP+3}], v11')
        w_reads(8, 1)
        a('s_cmp_lg_u32 s39, 0'); a.branch('s_cbranch_scc1 K34_PD')
        a('s_cmp_eq_u32 s37, 0'); a('s_cselect_b32 s56, 40, 36')
        a('s_mov_b32 s57, 0')
        a('s_waitcnt vmcnt(1)'); a('v_readfirstlane_b32 s58, v173')
        a('s_cmp_ge_u32 s58, s56'); a.branch('s_cbranch_scc1 K34_PD')
        a('s_waitcnt vmcnt(0)'); a.branch('s_branch K34_PC')
        a.label('K34_PL')
        a('buffer_load_dword v174, off, s[68:71], s63 sc1')
        a('s_waitcnt vmcnt(0)')
        a.label('K34_PC')
        a('v_readfirstlane_b32 s58, v174')
        a('s_cmp_ge_u32 s58, s56'); a.branch('s_cbranch_scc1 K34_PD')
        a('s_add_u32 s57, s57, 1'); a('s_cmp_lt_u32 s57, 0x10000'); a.branch('s_cbranch_scc1 K34_PL')
        a.label('K34_PD')
        a('s_waitcnt lgkmcnt(0)')
        a(f'v_or3_b32 v12, v{TMP}, v{TMP+1}, v{TMP+2}'); a(f'v_or_b32 v12, v12, v{TMP+3}')
        a('v_readfirstlane_b32 s59, v12')
        a('s_barrier')
        a('s_cmp_eq_u32 s59, 0'); a.branch('s_cbranch_scc1 K34_XOK')
        for q in range(3):
            a(f's_add_u32 m0, s44, {q*4096}'); a(f's_add_u32 s49, s43, {q*4096}')
            for r in range(4 if q < 2 else 1): a(f'buffer_load_dwordx4 v5, s[16:19], s49 offen offset:{r*1024} sc0 sc1 lds')
        a('s_waitcnt vmcnt(0)'); a('s_barrier')
        a.label('K34_XOK')
        if 'k4' in STAMPS: a('s_mul_i32 s96, s59, 100'); a('s_add_u32 s96, s96, s90'); a('s_mov_b32 s95, s90')
        vm.ops = []
        if not T0B: run(x12_dma(1)); run(x12_dma(2))
    for st in range(5 if EARLY else 3, 9 if not RAWW else 0):
        vm.wait(f'W{st}')
        a('s_barrier')
        w_reads(st)
        a('s_waitcnt lgkmcnt(0)')
        if st == 5 and not SPEC and not POLLW: poll(None)
        if st == 6 and SPEC: poll(8)
        a('s_barrier')
        if st == 5 and (SPEC or POLLW):
            a('s_cmp_lg_u32 s39, 0'); a.branch('s_cbranch_scc1 K34_P0')
            a('buffer_load_dword v11, off, s[68:71], s63 sc1')
            a.label('K34_P0')
        if st < 6: w_dma(st + 3)
        if st == 5:
            if not SPEC and POLLW: poll(8); a('s_barrier')
            stamp(a, 3, 'k4')
            if not SPEC: run(x_dma_list(0))
        if LOOP:
            if st in (6, 7):
                run(x_dma_list(st - 5))
                a('v_mov_b32 v13, 0x7ffffff0')
                for _ in range(2 if W2P else 1): vm.issue('PW', 'buffer_load_dwordx4 v[172:175], v13, s[24:27], 0 offen')
        elif st >= 6: run(x_dma_list(st - 5))
    if LOOP:
        BIG = 0x40000000
        a('v_mov_b32 v2, v5'); a(f'v_add_u32 v3, {SLOT}, v5'); a('v_mov_b32 v1, 0x7ffffff0')
        a('s_mov_b32 s55, 0')
        a('s_cmp_eq_u32 s37, 0'); a('s_cselect_b32 s56, 6, 5'); a('s_cselect_b32 s61, 99, 8')
        a(f's_mov_b32 s57, {3*SLOT}'); a('s_mov_b32 s58, 0'); a('s_mov_b32 s60, 0')
        a(f's_add_u32 s43, s43, {3*SLOT}'); a('s_sub_u32 s45, s45, 2048')
        if W2P:
            copy_srd(a, 32, 12, SZ_W2P, WS_W2P)
            a('s_mov_b32 s28, 0x38e38e39'); a('s_mov_b32 s29, 8928'); a('s_mov_b32 s30, 288'); a('s_mov_b32 s31, 27648')
    if not RAWW: vm.wait('X0'); a('s_barrier')
    if SPEC and not RAWW:
        a('s_mul_i32 s59, s39, 9216'); a('v_add_u32 v11, s59, v5')
        for i in range(9): a(f'ds_read_b128 v[{TMP+4*i}:{TMP+4*i+3}], v11 offset:{i*1024}')
        for i in range(9):
            a(f's_waitcnt lgkmcnt({8-i})')
            if i == 0: a(f'v_max3_u32 v12, v{TMP}, v{TMP+1}, v{TMP+2}'); a(f'v_max_u32 v12, v12, v{TMP+3}')
            else: a(f'v_max3_u32 v12, v{TMP+4*i}, v{TMP+4*i+1}, v12'); a(f'v_max3_u32 v12, v{TMP+4*i+2}, v{TMP+4*i+3}, v12')
        a('v_cmp_eq_u32 vcc, -1, v12')
        a('s_cmp_lg_u64 vcc, 0'); a('s_cselect_b32 s59, 1, 0')
        a('v_mov_b32 v12, s59'); a('s_lshl_b32 s59, s39, 2'); a(f's_add_u32 s59, s59, {4*SLOT}'); a('v_mov_b32 v11, s59')
        a('ds_write_b32 v11, v12'); a('s_waitcnt lgkmcnt(0)'); a('s_barrier')
        a(f'v_mov_b32 v11, {4*SLOT}'); a(f'ds_read_b128 v[{TMP}:{TMP+3}], v11'); a('s_waitcnt lgkmcnt(0)')
        a(f'v_or3_b32 v12, v{TMP}, v{TMP+1}, v{TMP+2}'); a(f'v_or_b32 v12, v12, v{TMP+3}')
        a('v_readfirstlane_b32 s59, v12')
        a('s_cmp_eq_u32 s59, 0'); a.branch('s_cbranch_scc1 K34_XOK')
        for q in range(3):
            a(f's_add_u32 m0, s44, {q*4096}'); a(f's_sub_u32 s49, s43, {3*SLOT - q*4096}')
            for r in range(4 if q < 2 else 1): a(f'buffer_load_dwordx4 v5, s[16:19], s49 offen offset:{r*1024} sc0 sc1 lds')
        a('s_waitcnt vmcnt(0)'); a('s_barrier')
        a.label('K34_XOK')
        if 'k4' in STAMPS: a('s_mul_i32 s96, s59, 100'); a('s_add_u32 s96, s96, s90'); a('s_mov_b32 s95, s90')
    for k in range(4): a(xread(0, k))
    if LOOP:
        def lxread(par, k, nxt):
            b = XB + 4 * (k % 6); r = 2 + (par ^ nxt)
            return f'ds_read_b128 v[{b}:{b+3}], v{r} offset:{k*1024}'
        def lepi(par):
            L = []
            for f in epilogue_list(par):
                if callable(f): continue
                L.append(f)
            return L
        def lepi_full(par, vo):
            g = ACC + 32 * par; u = g + 16; L = []
            G = TMP; E = TMP + 8; U = TMP + 16; PK = TMP + 24
            for p in range(2):
                P = TMP + 28 + 4 * p
                o = 8 * p
                for j in range(4): L.append(f'v_cvt_pk_bf16_f32 v{PK+j}, v{g+o+2*j}, v{g+o+2*j+1}')
                for j in range(4):
                    L.append(f'v_lshlrev_b32 v{G+2*j}, 16, v{PK+j}'); L.append(f'v_and_b32 v{G+2*j+1}, s47, v{PK+j}')
                for j in range(8): L.append(f'v_mul_f32 v{E+j}, s48, v{G+j}')
                for j in range(8): L.append(f'v_exp_f32 v{E+j}, v{E+j}')
                for j in range(4): L.append(f'v_cvt_pk_bf16_f32 v{PK+j}, v{u+o+2*j}, v{u+o+2*j+1}')
                for j in range(8): L.append(f'v_add_f32 v{E+j}, 1.0, v{E+j}')
                for j in range(8): L.append(f'v_rcp_f32 v{E+j}, v{E+j}')
                for j in range(4):
                    L.append(f'v_lshlrev_b32 v{U+2*j}, 16, v{PK+j}'); L.append(f'v_and_b32 v{U+2*j+1}, s47, v{PK+j}')
                for j in range(8): L.append(f'v_mul_f32 v{G+j}, v{G+j}, v{E+j}')
                for j in range(4): L.append(f'v_cvt_pk_bf16_f32 v{PK+j}, v{G+2*j}, v{G+2*j+1}')
                for j in range(4):
                    L.append(f'v_lshlrev_b32 v{G+2*j}, 16, v{PK+j}'); L.append(f'v_and_b32 v{G+2*j+1}, s47, v{PK+j}')
                for j in range(8): L.append(f'v_mul_f32 v{G+j}, v{G+j}, v{U+j}')
                for j in range(4): L.append(f'v_cvt_pk_bf16_f32 v{P+j}, v{G+2*j}, v{G+2*j+1}')
                L.append(f'buffer_store_dwordx4 v[{P}:{P+3}], v{vo}, s[20:23], s45 offen offset:{p*512}' + os.environ.get('STMOD', ' sc1'))
            return L
        uid = [0]
        T0K1 = int(os.environ.get('T0K1', '1')); T0K2 = int(os.environ.get('T0K2', '7'))
        def ltile(par):
            fill = lepi_full(par ^ 1, 1 if par == 0 else 10) + ['s_add_u32 s45, s45, 2048']
            if par == 1: fill.append('v_mov_b32 v1, v10')
            Q = 172 if (par == 0 or not W2P) else 6
            if W2P:
                ad = ['s_sub_u32 s62, s60, 8192', 'v_add_u32 v11, s62, v14', 'v_lshrrev_b32 v12, 7, v11', 'v_mul_hi_u32 v12, v12, s28',
                      'v_lshrrev_b32 v12, 1, v12', 'v_lshrrev_b32 v11, 4, v11', 'v_mul_u32_u24 v0, 72, v12', 'v_sub_u32 v11, v11, v0',
                      'v_mul_u32_u24 v0, 3641, v11', 'v_lshrrev_b32 v0, 16, v0', 'v_lshlrev_b32 v11, 4, v11',
                      'v_mad_u32_u24 v11, v0, s29, v11', 'v_mad_u32_u24 v11, v12, s30, v11', 'v_lshrrev_b32 v12, 5, v12', 'v_mad_u32_u24 v11, v12, s31, v11',
                      lambda: (a('s_sub_u32 s62, s55, 2'), a('s_cmp_lt_u32 s62, 6'), a('s_cselect_b64 vcc, -1, 0'), a('v_mov_b32 v13, 0x7ffffff0'), a('v_cndmask_b32 v11, v13, v11, vcc'))]
                step = max(1, len(fill) // (len(ad) + 1)); nf = []
                for n_, f_ in enumerate(fill):
                    nf.append(f_)
                    if n_ % step == step - 1 and ad: nf.append(ad.pop(0))
                fill = nf + ad
            ss = 57 + par
            dma = [f'v_xor_b32 v{2+par}, 0x12000, v{2+par}',
                   's_cmp_le_u32 s55, s56', f's_cselect_b32 s59, 0, {BIG}', 'v_add_u32 v4, s59, v5', f's_add_u32 s52, s44, s{ss}']
            for q in range(3):
                dma.append(f's_add_u32 m0, s52, {q*4096}'); dma.append(f's_add_u32 s49, s43, {q*4096}')
                for r in range(4 if q < 2 else 1):
                    dma.append(f'buffer_load_dwordx4 v4, s[16:19], s49 offen offset:{r*1024} sc1 lds')
            if W2P: dma.append(f'buffer_store_dwordx4 v[{Q}:{Q+3}], v11, s[32:35], 0 offen sc1')
            dma += ['s_cmp_le_u32 s55, 5', f's_cselect_b32 s59, s60, {BIG}', 'v_add_u32 v13, s59, v14',
                    f'buffer_load_dwordx4 v[{Q}:{Q+3}], v13, s[24:27], 0 offen',
                    's_add_u32 s60, s60, 4096', f's_xor_b32 s{ss}, s{ss}, 0x12000', f's_add_u32 s43, s43, {SLOT}']
            def t0blk(i):
                a('s_cmp_lg_u32 s55, 0'); a(f's_cbranch_scc1 K34_B{i}_{uid[0]}')
                h = list(a.hist)
                for q in range(3):
                    a(f's_add_u32 m0, s44, {i*SLOT + q*4096}'); a(f's_sub_u32 s49, s43, {(3-i)*SLOT - q*4096}')
                    for r in range(4 if q < 2 else 1):
                        a(f'buffer_load_dwordx4 v5, s[16:19], s49 offen offset:{r*1024} sc1 lds')
                a('v_mov_b32 v13, 0x7ffffff0'); a('buffer_load_dwordx4 v[172:175], v13, s[24:27], 0 offen')
                a.label_nf(f'K34_B{i}_{uid[0]}'); a.hist = h
            mf = []
            for k in range(36):
                pre = []
                if par == 0 and RAWW and T0B and k in (T0K1, T0K2): pre.append(lambda k=k: t0blk(1 if k == T0K1 else 2))
                if k == 32: pre += [f's_waitcnt vmcnt({15 if W2P else 13})', 's_barrier']
                pre.append(lxread(par, k + 4, 0) if k + 4 < 36 else lxread(par, k + 4 - 36, 1))
                pre.append('s_waitcnt lgkmcnt(4)')
                pre.append(mfma(par, k, 0))
                mf.append(pre); mf.append([mfma(par, k, 1)])
            interleave(a, mf[:64], fill)
            interleave(a, mf[64:], dma)
        stamp(a, 4, 'k4')
        main = a
        def body():
            ltile(0)
            a('s_cmp_eq_u32 s55, s61'); a('s_cbranch_scc1 K34_F0')
            a('s_add_u32 s55, s55, 1')
            ltile(1)
            a('s_add_u32 s55, s55, 1')
            a('s_cmp_lt_u32 s55, 10'); a('s_cbranch_scc1 K34_LOOP')
        sv = (a.lines, a.hist, a.nops, a.count); a.lines = []; a.hist = []
        body(); h = list(a.hist)
        a.lines, a.hist, a.nops, a.count = sv
        a.label_h('K34_LOOP', h)
        body()
        run(lepi_full(1, 10))
        if F345: a.branch('s_branch K345_J')
        else:
            a('s_waitcnt vmcnt(0)')
            a('s_endpgm')
        a.label('K34_F0')
        a('s_nop 11')
        run(lepi_full(0, 10))
        if F345:
            a.label('K345_J')
            copy_srd(a, 76, 12, 4096, WS_CNT + CNT_OFF['k2'])
            a('s_mul_i32 s59, s36, 7282'); a('s_lshr_b32 s59, s59, 16'); a('s_lshl_b32 s59, s59, 3'); a('s_add_u32 s59, s59, s37'); a('s_lshl_b32 s59, s59, 7')
            a('s_waitcnt vmcnt(0)'); a('s_barrier')
            a('s_cmp_lg_u32 s39, 0'); a.branch('s_cbranch_scc1 K345_K5')
            a('s_mov_b64 exec, 1'); a('v_mov_b32 v11, 1')
            a('buffer_atomic_add v11, off, s[76:79], s59 sc1')
            a('s_mov_b64 exec, -1')
            a.branch('s_branch K345_K5')
            a.label('K4_END')
            a('s_endpgm')
        else:
            stamp(a, 7, 'k4')
            a('v_mov_b32 v0, v15')
            dump_stamps(a, 8, 'k4', 101)
            a('s_waitcnt vmcnt(0)')
            a.label('K4_END')
            a('s_endpgm')
    else:
        nonloop()
    a.label('K34_HEND')
    a('s_waitcnt vmcnt(0)')
    if F345:
        a('s_barrier')
        a.label('K345_K5')
        a('v_mov_b32 v0, v15')
        from gen_k56 import k5a_body
        k5a_body(a, True)
        return kernel_desc('k34_kernel', 176 + 256, accum=176)
    a('s_endpgm')
    return kernel_desc('k34_kernel', 176 + 256, accum=176)
```

```python
from gen_common import *
from gen_k4 import VM, interleave
import os

ST5 = 17408; NS5 = 9
K5L = int(os.environ.get('K5L', '0'))
K5_LDS = ST5 * NS5 + 16
K5A = int(os.environ.get('K5A', '1'))
def gen_k5(a):
    if K5A: return gen_k5a(a)
    a.raw(kernel_header('k5_kernel'))
    dbgt(a, 4, 4, 'DBGT_5')
    vm = VM(a)
    a('s_cmp_ge_u32 s2, 256'); a.branch('s_cbranch_scc1 K5_END')
    stamp(a, 0, 'k5')
    if TK: ticket_begin(a)
    load_ptr(a, 4, 'w2'); load_ptr(a, 12, 'ws')
    a('v_mov_b32 v15, v0')
    a('v_readfirstlane_b32 s35, v0'); a('s_lshr_b32 s35, s35, 6')
    a('s_and_b32 s39, s35, 3')
    a('v_and_b32 v0, 63, v0')
    a('v_lshlrev_b32 v1, 4, v0')
    a('s_mul_i32 s40, s39, 144')
    for q in range(3):
        a(f's_add_u32 s41, s40, {48*q}')
        a('v_add_u32 v10, s41, v0')
        a('v_mul_u32_u24 v11, 3641, v10'); a('v_lshrrev_b32 v11, 16, v11')
        a('v_mul_u32_u24 v12, 18, v11'); a('v_sub_u32 v12, v10, v12')
        a(f'v_mul_u32_u24 v{2+q}, 1152, v11'); a(f'v_lshl_add_u32 v{2+q}, v12, 4, v{2+q}')
    a('v_lshrrev_b32 v10, 5, v0'); a('v_lshlrev_b32 v10, 4, v10')
    a('v_bfe_u32 v11, v0, 4, 1'); a('v_lshl_add_u32 v10, v11, 2, v10')
    a('v_bfe_u32 v11, v0, 2, 2'); a('v_add_u32 v10, v10, v11'); a('v_mul_u32_u24 v5, 288, v10')
    a('v_and_b32 v11, 3, v0'); a('v_lshl_add_u32 v5, v11, 3, v5'); a('v_add_u32 v5, 8192, v5')
    a('s_lshl_b32 s40, s39, 11'); a('v_add_u32 v6, s40, v1')
    if TK:
        ticket(a, 'k5', 4, 3, K5_LDS - 16, wave_s=35)
        a('s_lshr_b32 s36, s3, 5'); a('s_and_b32 s37, s3, 31')
    else:
        a('s_and_b32 s36, s2, 7'); a('s_lshr_b32 s37, s2, 3')
    a('s_and_b32 s38, s36, 3')
    a('s_lshr_b32 s36, s36, 2'); a('s_lshl_b32 s36, s36, 3'); a('s_lshr_b32 s43, s37, 2'); a('s_add_u32 s36, s36, s43')
    a('s_and_b32 s37, s37, 3')
    a(f's_mul_i32 s41, s38, {36*131072}'); a('s_lshl_b32 s42, s36, 13'); a('s_add_u32 s41, s41, s42'); a('s_add_u32 s41, s41, s40')
    a(f's_mul_i32 s42, s38, {36*36864}'); a('s_mul_i32 s43, s37, 288'); a('s_add_u32 s42, s42, s43')
    a('s_mul_i32 s43, s39, 2304')
    a('s_mov_b32 s44, -1'); a('s_mov_b32 s45, 0xffff')
    a('s_waitcnt lgkmcnt(0)')
    make_srd(a, 4, 4608 * 1152)
    copy_srd(a, 16, 12, SZ_HH, WS_HH); copy_srd(a, 20, 12, SZ_PART, WS_PART)
    def dma_list(k):
        so = (k % NS5) * ST5; L = []
        L.append(f's_add_u32 m0, s40, {so}')
        L.append(f's_add_u32 s46, s41, {k*131072}')
        L.append(lambda: vm.issue(f'D{k}', 'buffer_load_dwordx4 v1, s[16:19], s46 offen lds'))
        L.append(lambda: vm.issue(f'D{k}', 'buffer_load_dwordx4 v1, s[16:19], s46 offen offset:1024 lds'))
        L.append(f's_add_u32 s46, s42, {k*36864}')
        def masked():
            a('s_mov_b64 exec, s[44:45]')
            for q in range(3):
                a(f's_add_u32 m0, s43, {so + 8192 + q*768}')
                vm.issue(f'D{k}', f'buffer_load_dwordx4 v{2+q}, s[4:7], s46 offen lds')
            a('s_mov_b64 exec, -1')
        L.append(masked)
        return L
    def dma(k):
        for f in dma_list(k): f() if callable(f) else a(f)
    def run(L):
        for f in L: f() if callable(f) else a(f)
    if K5L: a('s_cmp_ge_u32 s35, 4'); a.branch('s_cbranch_scc1 K5_LOAD')
    else:
        for k in range(8): dma(k)
        if int(os.environ.get('K5LOOP', '1')):
            for i in range(72): a(f'v_mov_b32 v{16+i}, 0')
        vm.wait('D0')
    ACC = 16; WF = 88; HF = 160
    def read_list(k):
        so = (k % NS5) * ST5; b = k % 2; L = []
        va = 7 + 2 * b; vb = 8 + 2 * b
        L.append(f'v_add_u32 v{va}, {so}, v5'); L.append(f'v_add_u32 v{vb}, {so}, v6')
        h = HF + 8 * b
        L.append(f'ds_read_b128 v[{h}:{h+3}], v{vb}'); L.append(f'ds_read_b128 v[{h+4}:{h+7}], v{vb} offset:1024')
        for dt in range(9):
            wv = WF + 36 * b + 4 * dt
            L.append(f'ds_read_b64_tr_b16 v[{wv}:{wv+1}], v{va} offset:{dt*32}')
            L.append(f'ds_read_b64_tr_b16 v[{wv+2}:{wv+3}], v{va} offset:{dt*32+2304}')
        return L
    LOOP5 = int(os.environ.get('K5LOOP', '1')) and not K5L
    a('s_barrier')
    stamp(a, 1, 'k5')
    run(read_list(0))
    if LOOP5:
        def lread(b):
            sr = 47 + (b ^ 1); L = []
            va = 7 + 2 * b; vb = 8 + 2 * b
            L.append(f'v_add_u32 v{va}, s{sr}, v5'); L.append(f'v_add_u32 v{vb}, s{sr}, v6')
            h = HF + 8 * b
            L.append(f'ds_read_b128 v[{h}:{h+3}], v{vb}'); L.append(f'ds_read_b128 v[{h+4}:{h+7}], v{vb} offset:1024')
            for dt in range(9):
                wv = WF + 36 * b + 4 * dt
                L.append(f'ds_read_b64_tr_b16 v[{wv}:{wv+1}], v{va} offset:{dt*32}')
                L.append(f'ds_read_b64_tr_b16 v[{wv+2}:{wv+3}], v{va} offset:{dt*32+2304}')
            return L
        def ldma():
            L = ['s_add_u32 m0, s40, s51',
                 'buffer_load_dwordx4 v1, s[16:19], s41 offen lds',
                 'buffer_load_dwordx4 v1, s[16:19], s41 offen offset:1024 lds',
                 's_add_u32 s49, s43, s51']
            def masked():
                a('s_mov_b64 exec, s[44:45]')
                for q in range(3):
                    a(f's_add_u32 m0, s49, {8192 + q*768}')
                    a(f'buffer_load_dwordx4 v{2+q}, s[4:7], s42 offen lds')
                a('s_mov_b64 exec, -1')
            L += [masked, 's_add_u32 s41, s41, 131072', 's_add_u32 s42, s42, 36864']
            return L
        def mfl(b):
            mf = []
            for dt in range(9):
                for tt in range(2):
                    acc = ACC + 4 * (9 * tt + dt); wv = WF + 36 * b + 4 * dt; h = HF + 8 * b + 4 * tt
                    mf.append([f'v_mfma_f32_16x16x32_bf16 v[{acc}:{acc+3}], v[{wv}:{wv+3}], v[{h}:{h+3}], v[{acc}:{acc+3}]'])
            return mf
        def it(b):
            me = 47 + b; ot = 47 + (b ^ 1); n = 'AB'[b]
            a(f's_mov_b32 s51, s{me}')
            a(f's_add_u32 s{me}, s{ot}, {ST5}'); a(f's_cmp_lt_u32 s{me}, {NS5*ST5}'); a(f's_cselect_b32 s{me}, s{me}, 0')
            a('s_cmp_ge_u32 s50, 14')
            if b == 0:
                a(f's_cbranch_scc1 K5_TW')
                a('s_waitcnt vmcnt(30) lgkmcnt(0)')
                a.label_nf('K5_WA')
            else:
                a(f's_cbranch_scc1 K5_WB')
                a('s_waitcnt vmcnt(30)')
                a.label_nf('K5_WB')
                a('s_waitcnt lgkmcnt(0)')
            a('s_barrier')
            mf = mfl(b)
            sr = me; bb = b ^ 1; L = []
            va = 7 + 2 * bb; vb = 8 + 2 * bb
            L.append(f'v_add_u32 v{va}, s{sr}, v5'); L.append(f'v_add_u32 v{vb}, s{sr}, v6')
            h = HF + 8 * bb
            L.append(f'ds_read_b128 v[{h}:{h+3}], v{vb}'); L.append(f'ds_read_b128 v[{h+4}:{h+7}], v{vb} offset:1024')
            for dt in range(9):
                wv = WF + 36 * bb + 4 * dt
                L.append(f'ds_read_b64_tr_b16 v[{wv}:{wv+1}], v{va} offset:{dt*32}')
                L.append(f'ds_read_b64_tr_b16 v[{wv+2}:{wv+3}], v{va} offset:{dt*32+2304}')
            interleave(a, mf[:14], L)
            a('s_cmp_ge_u32 s50, 14'); a(f's_cbranch_scc1 K5_ND{n}')
            interleave(a, mf[14:], ldma())
            a.label_nf(f'K5_J{n}')
        a(f's_mov_b32 s47, {8*ST5}'); a('s_mov_b32 s48, 0'); a('s_mov_b32 s50, 0')
        a(f's_add_u32 s41, s41, {8*131072}'); a(f's_add_u32 s42, s42, {8*36864}')
        a.label('K5_LOOP')
        it(0); it(1)
        a('s_add_u32 s50, s50, 1'); a('s_cmp_lt_u32 s50, 18'); a('s_cbranch_scc1 K5_LOOP')
        a.branch('s_branch K5_EPI')
        a.label('K5_TW')
        for t, nn in ((14, 25), (15, 15), (16, 5)):
            a(f's_cmp_lg_u32 s50, {t}'); a(f's_cbranch_scc1 K5_TW{t}')
            a(f's_waitcnt vmcnt({nn}) lgkmcnt(0)'); a('s_branch K5_WA')
            a.label_nf(f'K5_TW{t}')
        a('s_waitcnt vmcnt(0) lgkmcnt(0)'); a('s_branch K5_WA')
        for b in range(2):
            a.label(f'K5_ND{"AB"[b]}')
            for g_ in mfl(b)[14:]: a(g_[0])
            a(f's_branch K5_J{"AB"[b]}')
        a.label('K5_EPI')
        a('s_waitcnt lgkmcnt(0)'); a('s_nop 7')
    for k in range(36 if not LOOP5 else 0):
        b = k % 2
        if K5L or k + 1 >= 36: a('s_waitcnt lgkmcnt(0)')
        else: vm.wait(f'D{k+1}', ' lgkmcnt(0)')
        if k + 1 < 36: a('s_barrier')
        fill = read_list(k + 1) if k + 1 < 36 else []
        mf = []
        for dt in range(9):
            for tt in range(2):
                acc = ACC + 4 * (9 * tt + dt); wv = WF + 36 * b + 4 * dt; h = HF + 8 * b + 4 * tt
                c = '0' if k == 0 else f'v[{acc}:{acc+3}]'
                mf.append([f'v_mfma_f32_16x16x32_bf16 v[{acc}:{acc+3}], v[{wv}:{wv+3}], v[{h}:{h+3}], {c}'])
        interleave(a, mf[:14], fill)
        interleave(a, mf[14:], dma_list(k + 8) if (not K5L and k + 8 < 36) else [])
        if k in (11, 23): stamp(a, 2 if k == 11 else 3, 'k5')
    stamp(a, 4, 'k5')
    k5_epilogue(a, ACC)
    stamp(a, 5, 'k5')
    if 'k5' in STAMPS:
        a('v_mov_b32 v0, v15'); dump_stamps(a, 6, 'k5', 101)
    a('s_endpgm')
    if K5L:
        a.label('K5_LOAD')
        for k in range(NS5): dma(k)
        vm.wait('D0'); a('s_barrier')
        for k in range(35):
            vm.wait(f'D{k+1}'); a('s_barrier')
            if k + NS5 < 36: dma(k + NS5)
    a.label('K5_END')
    a('s_endpgm')
    return kernel_desc('k5_kernel', 176)


F56 = int(os.environ.get('F56', '1'))
def gen_k5a(a):
    a.raw(kernel_header('k5_kernel'))
    a('s_cmp_ge_u32 s2, 256'); a.branch('s_cbranch_scc1 K5_END')
    k5a_body(a, False)
    return kernel_desc('k5_kernel', 176 + 8 * 12, accum=176)
def k5a_body(a, fused):
    stamp(a, 0, 'k5')
    load_ptr(a, 4, 'w2'); load_ptr(a, 12, 'ws')
    if F56: load_ptr(a, 8, 'out')
    a('v_mov_b32 v15, v0')
    a('v_readfirstlane_b32 s39, v0'); a('s_lshr_b32 s39, s39, 6')
    a('v_and_b32 v0, 63, v0')
    a('v_lshlrev_b32 v1, 4, v0')
    a('s_mul_i32 s40, s39, 144')
    for q in range(3):
        a(f's_add_u32 s41, s40, {48*q}')
        a('v_add_u32 v10, s41, v0')
        if W2P: a(f'v_lshlrev_b32 v{2+q}, 4, v10'); continue
        a('v_mul_u32_u24 v11, 3641, v10'); a('v_lshrrev_b32 v11, 16, v11')
        a('v_mul_u32_u24 v12, 18, v11'); a('v_sub_u32 v12, v10, v12')
        a(f'v_mul_u32_u24 v{2+q}, 1152, v11'); a(f'v_lshl_add_u32 v{2+q}, v12, 4, v{2+q}')
    D = int(os.environ.get('K5D', '6')); STW = 9216; NSW = D + 1
    a('v_lshrrev_b32 v10, 5, v0'); a('v_lshlrev_b32 v10, 4, v10')
    a('v_bfe_u32 v11, v0, 4, 1'); a('v_lshl_add_u32 v10, v11, 2, v10')
    a('v_bfe_u32 v11, v0, 2, 2'); a('v_add_u32 v10, v10, v11'); a('v_mul_u32_u24 v5, 288, v10')
    a('v_and_b32 v11, 3, v0'); a('v_lshl_add_u32 v5, v11, 3, v5')
    a('s_lshl_b32 s40, s39, 11')
    a('s_and_b32 s36, s2, 7'); a('s_lshr_b32 s37, s2, 3')
    a('s_and_b32 s38, s36, 3')
    a('s_lshr_b32 s36, s36, 2'); a('s_lshl_b32 s36, s36, 3'); a('s_lshr_b32 s43, s37, 2'); a('s_add_u32 s36, s36, s43')
    a('s_and_b32 s37, s37, 3')
    a(f's_mul_i32 s41, s38, {36*131072}'); a('s_lshl_b32 s42, s36, 13'); a('s_add_u32 s41, s41, s42'); a('s_add_u32 s41, s41, s40')
    a(f's_mul_i32 s42, s38, {36*36864}'); a(f's_mul_i32 s43, s37, {9216 if W2P else 288}'); a('s_add_u32 s42, s42, s43')
    a('s_mul_i32 s43, s39, 2304')
    a('s_mov_b32 s44, -1'); a('s_mov_b32 s45, 0xffff')
    a('s_waitcnt lgkmcnt(0)')
    if W2P: copy_srd(a, 4, 12, SZ_W2P, WS_W2P)
    else: make_srd(a, 4, 4608 * 1152)
    copy_srd(a, 16, 12, SZ_HH, WS_HH); copy_srd(a, 20, 12, SZ_PART, WS_PART)
    if F56:
        make_srd(a, 8, 2048 * 1152); copy_srd(a, 24, 12, SZ_MOD, WS_MOD); copy_srd(a, 28, 12, SZ_X1, WS_X1)
        copy_srd(a, 52, 12, 8192, WS_CNT + CNT_OFF['k5'])
    if fused:
        copy_srd(a, 56, 12, 4096, WS_CNT + CNT_OFF['k2'])
        a('s_cmp_lg_u32 s39, 0'); a.branch('s_cbranch_scc1 K5_QD')
        a('s_lshl_b32 s60, s36, 2'); a('s_add_u32 s61, s60, 2')
        a('s_max_u32 s60, s60, 1'); a('s_sub_u32 s60, s60, 1')
        for r in (60, 61):
            a(f's_mul_i32 s{r}, s{r}, 7282'); a(f's_lshr_b32 s{r}, s{r}, 16')
            a(f's_lshl_b32 s62, s38, 3'); a(f's_add_u32 s{r}, s{r}, s62'); a(f's_lshl_b32 s{r}, s{r}, 7')
        a('s_mov_b32 s63, 0')
        a.label('K5_QL')
        a('buffer_load_dword v11, off, s[56:59], s60 sc1'); a('buffer_load_dword v12, off, s[56:59], s61 sc1')
        a('s_waitcnt vmcnt(0)')
        a('v_min_u32 v11, v11, v12'); a('v_readfirstlane_b32 s62, v11')
        a('s_cmp_ge_u32 s62, 9'); a.branch('s_cbranch_scc1 K5_QD')
        a('s_sleep 2')
        a('s_add_u32 s63, s63, 1'); a('s_cmp_lt_u32 s63, 0x10000'); a.branch('s_cbranch_scc1 K5_QL')
        a.label('K5_QD')
        a('s_barrier')
    ACC = 16; WF = 88; NR = 12
    def hh_loads(slot):
        h = 8 * slot
        return [f'buffer_load_dwordx4 a[{h}:{h+3}], v1, s[16:19], s41 offen',
                f'buffer_load_dwordx4 a[{h+4}:{h+7}], v1, s[16:19], s41 offen offset:1024']
    def w_dma(base_s):
        def masked():
            a('s_mov_b64 exec, s[44:45]')
            for q in range(3):
                a(f's_add_u32 m0, s{base_s}, {q*768}')
                a(f'buffer_load_dwordx4 v{2+q}, s[4:7], s42 offen lds')
            a('s_mov_b64 exec, -1')
        return masked
    def run(L):
        for f in L: f() if callable(f) else a(f)
    for k in range(D):
        a(f's_add_u32 s49, s43, {k*STW}')
        run(hh_loads(k)); w_dma(49)()
        a('s_add_u32 s41, s41, 131072'); a('s_add_u32 s42, s42, 36864')
    for i in range(72): a(f'v_mov_b32 v{16+i}, 0')
    a(f's_mov_b32 s47, {D*STW}'); a('s_mov_b32 s48, 0'); a('s_mov_b32 s50, 0')
    a(f's_waitcnt vmcnt({5*(D-1)})'); a('s_barrier')
    stamp(a, 1, 'k5')
    def reads(bb, areg):
        L = []
        for dt in range(9):
            wv = WF + 36 * bb + 4 * dt
            L.append(f'ds_read_b64_tr_b16 v[{wv}:{wv+1}], v{areg} offset:{dt*32}')
            L.append(f'ds_read_b64_tr_b16 v[{wv+2}:{wv+3}], v{areg} offset:{dt*32+2304}')
        return L
    run(reads(0, 5))
    def mfl(j):
        b = j % 2; mf = []
        for dt in range(9):
            for tt in range(2):
                acc = ACC + 4 * (9 * tt + dt); wv = WF + 36 * b + 4 * dt; h = 8 * j + 4 * tt
                mf.append([f'v_mfma_f32_16x16x32_bf16 v[{acc}:{acc+3}], v[{wv}:{wv+3}], a[{h}:{h+3}], v[{acc}:{acc+3}]'])
        return mf
    tailw = {j: 5 * (10 - j) for j in range(13 - D, 11)}
    WM = 5 * (D - 2); JN = 12 - D
    def it(j):
        b = j % 2; me = 47 + b; ot = 47 + (b ^ 1)
        a(f's_mov_b32 s51, s{me}')
        a(f's_add_u32 s{me}, s{ot}, {STW}'); a(f's_cmp_lt_u32 s{me}, {NSW*STW}'); a(f's_cselect_b32 s{me}, s{me}, 0')
        if j in tailw:
            a('s_cmp_eq_u32 s50, 2'); a(f's_cbranch_scc1 K5_TW{j}')
            a(f's_waitcnt vmcnt({WM}) lgkmcnt(0)')
            a.label_nf(f'K5_WB{j}')
        else:
            a(f's_waitcnt vmcnt({WM}) lgkmcnt(0)')
        a('s_barrier')
        mf = mfl(j)
        va = 7 + (b ^ 1)
        L = [f'v_add_u32 v{va}, s{me}, v5', 's_add_u32 s49, s43, s51'] + reads(b ^ 1, va)
        interleave(a, mf[:14], L)
        dma = hh_loads((j + D) % NR) + [w_dma(49), 's_add_u32 s41, s41, 131072', 's_add_u32 s42, s42, 36864']
        if j >= JN:
            a('s_cmp_eq_u32 s50, 2'); a(f's_cbranch_scc1 K5_ND{j}')
        interleave(a, mf[14:], dma)
        if j >= JN: a.label_nf(f'K5_J{j}')
    a.label('K5_LOOP')
    for j in range(12): it(j)
    a('s_add_u32 s50, s50, 1'); a('s_cmp_lt_u32 s50, 3'); a('s_cbranch_scc1 K5_LOOP')
    a.branch('s_branch K5_EPI')
    for j, nn in tailw.items():
        a.label(f'K5_TW{j}')
        a(f's_waitcnt vmcnt({nn}) lgkmcnt(0)'); a(f's_branch K5_WB{j}')
    for j in range(JN, 12):
        a.label(f'K5_ND{j}')
        for g_ in mfl(j)[14:]: a(g_[0])
        a(f's_branch K5_J{j}')
    a.label('K5_EPI')
    a('s_waitcnt lgkmcnt(0)'); a('s_nop 7')
    stamp(a, 4, 'k5')
    if F56: k56_pre(a)
    k5_epilogue(a, ACC)
    stamp(a, 5, 'k5')
    if 'k5' in STAMPS and not F56:
        a('v_mov_b32 v0, v15'); dump_stamps(a, 6, 'k5', 101)
    if F56: k56_tail(a)
    a.label('K5_END')
    a('s_endpgm')

def k56_pre(a):
    a('s_lshr_b32 s56, s39, 1'); a('s_and_b32 s57, s39, 1')
    a('s_lshl_b32 s58, s36, 2'); a('s_add_u32 s58, s58, s37')
    a(f"s_lshl_b32 s65, s58, {os.environ.get('F56S', '7')}")
    a('s_lshl_b32 s59, s58, 2'); a('s_add_u32 s59, s59, s38'); a('s_lshl_b32 s59, s59, 1'); a('s_add_u32 s59, s59, s56'); a('s_mul_i32 s59, s59, 5120')
    a('s_lshl_b32 s60, s36, 7'); a('s_lshl_b32 s61, s38, 5'); a('s_add_u32 s60, s60, s61'); a('s_lshl_b32 s61, s56, 4'); a('s_add_u32 s60, s60, s61')
    a('s_mul_i32 s61, s37, 144'); a('s_lshl_b32 s62, s57, 6'); a('s_add_u32 s61, s61, s62')
    a('s_mul_i32 s62, s60, 1152'); a('s_lshl_b32 s63, s61, 1'); a('s_add_u32 s62, s62, s63')
    a('s_lshl_b32 s63, s61, 2'); a(f's_add_u32 s63, s63, {5*2304}')
    a('v_and_b32 v2, 15, v0'); a('v_mul_u32_u24 v2, 1152, v2'); a('v_lshrrev_b32 v3, 4, v0'); a('v_lshl_add_u32 v2, v3, 3, v2')
    a('v_lshlrev_b32 v3, 4, v3')
    a('s_lshl_b32 s64, s57, 11'); a('s_add_u32 s64, s64, s59')
    X = 136; G = 148
    if 'k5' in STAMPS: a('v_mov_b32 v170, v15')
    for j in range(5): a(f'buffer_load_dwordx2 v[{X+2*j}:{X+2*j+1}], v2, s[28:31], s62 offen offset:{j*32}')
    for j in range(5): a(f'buffer_load_dwordx4 v[{G+4*j}:{G+4*j+3}], v3, s[24:27], s63 offen offset:{j*64}')

def k56_tail(a):
    a('s_waitcnt vmcnt(0)'); a('s_barrier')
    stamp(a, 6, 'k5')
    a('s_cmp_lg_u32 s39, 0'); a.branch('s_cbranch_scc1 K5_PD')
    a('s_mov_b64 exec, 1'); a('v_mov_b32 v11, 1')
    a('buffer_atomic_add v11, off, s[52:55], s65 sc0 sc1')
    a('s_mov_b64 exec, -1')
    a('s_mov_b32 s67, 0')
    a('s_waitcnt vmcnt(0)'); a('v_readfirstlane_b32 s66, v11')
    a('s_cmp_ge_u32 s66, 3'); a.branch('s_cbranch_scc1 K5_PD')
    a.label('K5_PL')
    a('buffer_load_dword v11, off, s[52:55], s65 sc1')
    a('s_waitcnt vmcnt(0)'); a('v_readfirstlane_b32 s66, v11')
    a('s_cmp_ge_u32 s66, 4'); a.branch('s_cbranch_scc1 K5_PD')
    a('s_add_u32 s67, s67, 1'); a('s_cmp_lt_u32 s67, 0x10000'); a.branch('s_cbranch_scc1 K5_PL')
    a.label('K5_PD')
    a('s_barrier')
    stamp(a, 7, 'k5')
    SS = 64 * 4 * 10240
    a('s_cmp_eq_u32 s57, 1'); a.branch('s_cbranch_scc1 K5_HB')
    for half in range(2):
        nf = 4 + half
        if half: a.label('K5_HB')
        P = 8
        for s_ in range(4):
            if s_: a(f's_add_u32 s64, s64, {SS}'); a(f's_add_u32 s59, s59, {SS}')
            b = P + 12 * s_
            a(f'buffer_load_dwordx4 v[{b}:{b+3}], v1, s[20:23], s64 offen sc1')
            a(f'buffer_load_dwordx4 v[{b+4}:{b+7}], v1, s[20:23], s64 offen offset:1024 sc1')
            if half: a(f'buffer_load_dwordx4 v[{b+8}:{b+11}], v1, s[20:23], s64 offen offset:2048 sc1')
            else:
                a(f's_add_u32 s60, s59, 4096')
                a(f'buffer_load_dword v{b+10}, v1, s[20:23], s60 offen offset:8 sc1')
        X = 136; G = 148; R = 88; T = 108
        n = 4 * nf
        for s_ in range(4):
            a(f's_waitcnt vmcnt({3*(3-s_)})')
            if s_ == 3: stamp(a, 2, 'k5')
            b = P + 12 * s_
            for i in range(n):
                src = b + i // 2
                sel = f'op_sel:[{i%2},0,0] op_sel_hi:[1,0,0]'
                if s_ == 0: a(f'v_fma_mix_f32 v{R+i}, v{src}, v{b+10}, 0 {sel}')
                else: a(f'v_fma_mix_f32 v{R+i}, v{src}, v{b+10}, v{R+i} {sel}')
        for i in range(n // 2): a(f'v_cvt_pk_bf16_f32 v{T+i}, v{R+2*i}, v{R+2*i+1}')
        for i in range(n // 2): unpack_lo(a, R + 2 * i, T + i); unpack_hi(a, R + 2 * i + 1, T + i)
        for i in range(n): a(f'v_mul_f32 v{R+i}, v{R+i}, v{G+i}')
        for i in range(n // 2): a(f'v_cvt_pk_bf16_f32 v{T+i}, v{R+2*i}, v{R+2*i+1}')
        for i in range(n // 2): unpack_lo(a, R + 2 * i, T + i); unpack_hi(a, R + 2 * i + 1, T + i)
        for i in range(n // 2): unpack_lo(a, P + 2 * i, X + i); unpack_hi(a, P + 2 * i + 1, X + i)
        for i in range(n): a(f'v_add_f32 v{R+i}, v{R+i}, v{P+i}')
        for i in range(n // 2): a(f'v_cvt_pk_bf16_f32 v{T+i}, v{R+2*i}, v{R+2*i+1}')
        for j in range(nf): a(f'buffer_store_dwordx2 v[{T+2*j}:{T+2*j+1}], v2, s[8:11], s62 offen offset:{j*32}' + os.environ.get('OUTMOD', ''))
        if 'k5' in STAMPS:
            a('s_waitcnt vmcnt(0)'); stamp(a, 3, 'k5')
            a('v_mov_b32 v0, v170'); dump_stamps(a, 8, 'k5', 101, sfx=str(half))
        if half == 0: a('s_endpgm')

def k5_epilogue(a, ACC):
    a('s_lshl_b32 s41, s38, 6'); a('s_lshl_b32 s42, s36, 2'); a('s_add_u32 s41, s41, s42'); a('s_add_u32 s41, s41, s37')
    a('s_lshl_b32 s41, s41, 2'); a('s_add_u32 s41, s41, s39'); a(f's_mul_i32 s41, s41, {10*1024}')
    MX = 88
    for tt in range(2):
        A0 = ACC + 36 * tt; m = MX + 24 * tt
        for c in range(4):
            a(f'v_max3_f32 v{m+c}, |v{A0+9*c}|, |v{A0+9*c+1}|, |v{A0+9*c+2}|')
        for j in range(3, 9, 2):
            for c in range(4): a(f'v_max3_f32 v{m+c}, |v{A0+9*c+j}|, |v{A0+9*c+j+1}|, v{m+c}')
        a(f'v_max3_f32 v{m}, v{m}, v{m+1}, v{m+2}'); a(f'v_max_f32 v{m}, v{m}, v{m+3}')
        a(f'v_frexp_exp_i32_f32 v{m+1}, v{m}')
        a(f'v_sub_u32 v{m+2}, 15, v{m+1}')
        a(f'v_max_i32 v{m+2}, -100, v{m+2}'); a(f'v_min_i32 v{m+2}, 100, v{m+2}')
        a(f'v_ldexp_f32 v{m+3}, 1.0, v{m+2}')
        a(f'v_sub_u32 v{m+2}, 0, v{m+2}'); a(f'v_ldexp_f32 v{m+22}, 1.0, v{m+2}')
        for i in range(36): a(f'v_mul_f32 v{A0+i}, v{A0+i}, v{m+3}')
        for i in range(18): a(f'v_cvt_pk_f16_f32 v{m+4+i}, v{A0+2*i}, v{A0+2*i+1}')
        a(f'v_mov_b32 v{m+23}, 0')
        for p in range(5):
            i = 5 * tt + p
            if i % 4 == 0 and i: a(f's_add_u32 s41, s41, 4096')
            a(f'buffer_store_dwordx4 v[{m+4+4*p}:{m+7+4*p}], v1, s[20:23], s41 offen offset:{(i%4)*1024}' + os.environ.get('STMOD5', ' sc1'))

def gen_k6(a):
    a.raw(kernel_header('k6_kernel'))
    dbgt(a, 5, 5, 'DBGT_6')
    a('s_cmp_ge_u32 s2, 256'); a.branch('s_cbranch_scc1 K6_END')
    load_ptr(a, 4, 'ws'); load_ptr(a, 8, 'out')
    a('v_readfirstlane_b32 s3, v0'); a('s_lshr_b32 s3, s3, 6')
    a('v_and_b32 v0, 63, v0')
    a('v_lshlrev_b32 v1, 4, v0')
    a('s_lshr_b32 s21, s3, 1'); a('s_and_b32 s22, s3, 1')
    a('s_lshl_b32 s20, s2, 1'); a('s_add_u32 s20, s20, s21'); a('s_mul_i32 s20, s20, 5120')
    a('s_and_b32 s23, s2, 3')
    a('s_lshr_b32 s24, s2, 2'); a('s_and_b32 s25, s24, 3'); a('s_lshr_b32 s24, s24, 2')
    a('s_lshl_b32 s26, s24, 7'); a('s_lshl_b32 s27, s23, 5'); a('s_add_u32 s26, s26, s27'); a('s_lshl_b32 s27, s21, 4'); a('s_add_u32 s26, s26, s27')
    a('s_mul_i32 s27, s25, 144'); a('s_lshl_b32 s28, s22, 6'); a('s_add_u32 s27, s27, s28')
    a('s_mul_i32 s29, s26, 1152'); a('s_lshl_b32 s28, s27, 1'); a('s_add_u32 s29, s29, s28')
    a('s_lshl_b32 s30, s27, 2'); a(f's_add_u32 s30, s30, {5*2304}')
    a('v_and_b32 v2, 15, v0'); a('v_mul_u32_u24 v2, 1152, v2'); a('v_lshrrev_b32 v3, 4, v0'); a('v_lshl_add_u32 v2, v3, 3, v2')
    a('v_lshlrev_b32 v3, 4, v3')
    a('s_lshl_b32 s31, s22, 11'); a('s_add_u32 s31, s31, s20')
    a('s_waitcnt lgkmcnt(0)')
    copy_srd(a, 12, 4, SZ_PART, WS_PART); copy_srd(a, 16, 4, SZ_X1, WS_X1); copy_srd(a, 32, 4, SZ_MOD, WS_MOD)
    make_srd(a, 8, 2048 * 1152)
    SS = 64 * 4 * 10240
    a('s_cmp_eq_u32 s22, 1'); a.branch('s_cbranch_scc1 K6_B')
    for half in range(2):
        nf = 4 + half
        if half: a.label('K6_B')
        P = 8
        for s_ in range(4):
            if s_: a(f's_add_u32 s31, s31, {SS}'); a(f's_add_u32 s20, s20, {SS}')
            b = P + 12 * s_
            a(f'buffer_load_dwordx4 v[{b}:{b+3}], v1, s[12:15], s31 offen')
            a(f'buffer_load_dwordx4 v[{b+4}:{b+7}], v1, s[12:15], s31 offen offset:1024')
            if half: a(f'buffer_load_dwordx4 v[{b+8}:{b+11}], v1, s[12:15], s31 offen offset:2048')
            else:
                a(f's_add_u32 s36, s20, 4096')
                a(f'buffer_load_dword v{b+10}, v1, s[12:15], s36 offen offset:8')
        X = 56; G = 68; R = 88; T = 108
        for j in range(nf): a(f'buffer_load_dwordx2 v[{X+2*j}:{X+2*j+1}], v2, s[16:19], s29 offen offset:{j*32}')
        for j in range(nf): a(f'buffer_load_dwordx4 v[{G+4*j}:{G+4*j+3}], v3, s[32:35], s30 offen offset:{j*64}')
        n = 4 * nf
        for s_ in range(4):
            a(f's_waitcnt vmcnt({2*nf + 3*(3-s_)})')
            b = P + 12 * s_
            for i in range(n):
                src = b + i // 2
                sel = f'op_sel:[{i%2},0,0] op_sel_hi:[1,0,0]'
                if s_ == 0: a(f'v_fma_mix_f32 v{R+i}, v{src}, v{b+10}, 0 {sel}')
                else: a(f'v_fma_mix_f32 v{R+i}, v{src}, v{b+10}, v{R+i} {sel}')
        for i in range(n // 2): a(f'v_cvt_pk_bf16_f32 v{T+i}, v{R+2*i}, v{R+2*i+1}')
        for i in range(n // 2): unpack_lo(a, R + 2 * i, T + i); unpack_hi(a, R + 2 * i + 1, T + i)
        a('s_waitcnt vmcnt(0)')
        for i in range(n): a(f'v_mul_f32 v{R+i}, v{R+i}, v{G+i}')
        for i in range(n // 2): a(f'v_cvt_pk_bf16_f32 v{T+i}, v{R+2*i}, v{R+2*i+1}')
        for i in range(n // 2): unpack_lo(a, R + 2 * i, T + i); unpack_hi(a, R + 2 * i + 1, T + i)
        for i in range(n // 2): unpack_lo(a, P + 2 * i, X + i); unpack_hi(a, P + 2 * i + 1, X + i)
        for i in range(n): a(f'v_add_f32 v{R+i}, v{R+i}, v{P+i}')
        for i in range(n // 2): a(f'v_cvt_pk_bf16_f32 v{T+i}, v{R+2*i}, v{R+2*i+1}')
        for j in range(nf): a(f'buffer_store_dwordx2 v[{T+2*j}:{T+2*j+1}], v2, s[8:11], s29 offen offset:{j*32}')
        if half == 0:
            a('s_waitcnt vmcnt(0)'); dbgt(a, 5, 6, 'DBGT_6E'); a('s_endpgm')
    a.label('K6_END')
    a('s_endpgm')
    return kernel_desc('k6_kernel', 120)
```

```python
import sys
from gen_common import *
from gen_k1 import *
from gen_k23 import *
def build(path, upto=3):
    a = Asm()
    hdr = open('cdna_kernels/' + NAME + '.s.ref').read().split('; Override launch')[0]
    launches = [('k1_kernel', K1_GRID, 256, K1_LDS), ('k2_kernel', K2_GRID, 256, K2_LDS), ('k3_kernel', K3_GRID, 576, K3_LDS)]
    gens = [gen_k1, gen_k2, gen_k3]
    try:
        import gen_k456
        launches += gen_k456.launches; gens += gen_k456.gens
    except ImportError: pass
    import os
    if os.environ.get('F34', '1') != '0':
        import gen_k34
        launches = launches[:2] + [('k34_kernel', 256, 256, gen_k34.K4_LDS)] + launches[4:]
        gens = gens[:2] + [gen_k34.gen_k34] + gens[4:]
    if os.environ.get('F34', '1') != '0' and gen_k34.F345:
        launches = launches[:3]; gens = gens[:3]
    if F12:
        launches = [('k1_kernel', K1_GRID, 256, K2_LDS)] + launches[2:]; gens = [gen_k1] + gens[2:]
    launches = launches[:upto]; gens = gens[:upto]
    import os
    ef = int(os.environ.get('EF', '0')); eb = int(os.environ.get('EB', '0'))
    if ef or eb:
        def gen_k0(a):
            a.raw(kernel_header('k0_kernel')); a('s_endpgm'); return kernel_desc('k0_kernel', 8)
        launches = [('k0_kernel', 64, 64, 0)] * ef + launches + [('k0_kernel', 64, 64, 0)] * eb
        gens = gens + [gen_k0]
    for k, g, b, l in launches:
        hdr += f'; @launch kernel={k} grid=({g},1,1) block=({b},1,1) lds={l}\n'
    a.raw(hdr + '.amdgcn_target "amdgcn-amd-amdhsa--gfx950"')
    descs = ''
    for g in gens: descs += g(a)
    open(path, 'w').write(a.text() + descs)
    print('instrs', a.count, 'nops', a.nops, 'bytes', len(a.text()))
if __name__ == '__main__':
    build(sys.argv[1] if len(sys.argv) > 1 else 'cur.s', int(sys.argv[2]) if len(sys.argv) > 2 else 99)
```

```python
from gen_common import *
import os
from gen_k4 import VM, interleave, SLOT, K4_LDS
from gen_k1 import ln_core

LOOP = int(os.environ.get('K34L', '1'))
EARLY = int(os.environ.get('EARLY', '0'))
POLLW = int(os.environ.get('POLLW', '1'))
SPEC = int(os.environ.get('SPEC', '1')) and LOOP
RAWW = int(os.environ.get('RAWW', '0')) and SPEC
GH = int(os.environ.get('GH', '1'))
T0B = int(os.environ.get('T0B', '1'))
F345 = int(os.environ.get('F345', '1'))
PWL2 = int(os.environ.get('PWL2', '0')) and F345; PWN = int(os.environ.get('PWN', '8'))
def gen_k34(a):
    a.raw(kernel_header('k34_kernel'))

    vm = VM(a)
    a('s_cmp_ge_u32 s2, 256'); a.branch('s_cbranch_scc1 K4_END')
    if not TK:
        a('s_and_b32 s36, s2, 7'); a('s_lshl_b32 s36, s36, 5'); a('s_lshr_b32 s37, s2, 3'); a('s_add_u32 s3, s36, s37')
    stamp(a, 0, 'k4')
    if TK: ticket_begin(a)
    load_ptr(a, 4, 'w1'); load_ptr(a, 8, 'w3'); load_ptr(a, 12, 'ws')
    K4W2 = int(os.environ.get('K4W2', '1'))
    if K4W2: load_ptr(a, 24, 'w2')
    a('v_mov_b32 v15, v0')
    a('v_readfirstlane_b32 s39, v0'); a('s_lshr_b32 s39, s39, 6')
    a('v_and_b32 v0, 63, v0')
    a('v_lshrrev_b32 v11, 4, v0'); a('v_mul_u32_u24 v1, 9216, v11')
    a('v_bfe_u32 v12, v0, 2, 2'); a('v_xor_b32 v12, v12, v11'); a('v_lshl_add_u32 v1, v12, 6, v1')
    a('v_and_b32 v12, 3, v0'); a('v_lshl_add_u32 v1, v12, 4, v1')
    a('v_bfe_u32 v12, v0, 2, 2')
    a('v_lshrrev_b32 v13, 5, v0')
    a('v_lshl_add_u32 v13, v13, 3, v12'); a('v_lshlrev_b32 v2, 8, v13')
    a('v_xor_b32 v12, s39, v12'); a('v_lshl_add_u32 v2, v12, 6, v2')
    a('v_bfe_u32 v12, v0, 4, 1'); a('v_lshl_add_u32 v2, v12, 5, v2')
    a('v_and_b32 v12, 3, v0'); a('v_lshl_add_u32 v2, v12, 3, v2')
    a(f'v_add_u32 v4, {3*SLOT}, v2'); a(f'v_add_u32 v3, {2*SLOT}, v2'); a(f'v_add_u32 v2, {SLOT}, v2')
    a('v_lshlrev_b32 v5, 4, v0')
    for s in range(1, 4): a(f'v_add_u32 v{5+s}, {s*SLOT}, v5')
    a('v_bfe_u32 v12, v0, 4, 1'); a('v_lshlrev_b32 v10, 10, v12')
    a('v_lshrrev_b32 v12, 5, v0'); a('v_lshl_add_u32 v10, v12, 8, v10')
    a('v_and_b32 v12, 15, v0'); a('v_lshl_add_u32 v10, v12, 4, v10')
    a('s_mul_i32 s36, s3, 9363'); a('s_lshr_b32 s36, s36, 16')
    a('s_mul_i32 s37, s36, 7'); a('s_sub_u32 s37, s3, s37')
    a('s_mul_i32 s38, s37, 9'); a('s_cmp_gt_u32 s37, 0'); a('s_addc_u32 s38, s38, 0')
    if SPEC:
        a('s_and_b32 s54, s2, 7'); a('s_lshr_b32 s56, s2, 3'); a('s_lshr_b32 s55, s56, 2')
        a('s_cmp_eq_u32 s55, 7'); a('s_cselect_b32 s57, 0, s55'); a('s_cselect_b32 s72, 9, 8')
        a('s_cmp_eq_u32 s54, 7'); a('s_cselect_b32 s54, s57, s54'); a('s_cselect_b32 s55, s72, s55')
        a('s_mul_i32 s57, s54, 9'); a('s_cmp_gt_u32 s54, 0'); a('s_addc_u32 s57, s57, s55')
        a('s_lshl_b32 s55, s57, 2'); a('s_and_b32 s56, s56, 3'); a('s_add_u32 s55, s55, s56')
        a('s_lshl_b32 s72, s54, 7')
        a('s_cmp_ge_u32 s3, 252')
        a('s_cselect_b32 s36, 0, s36'); a('s_cselect_b32 s37, 0, s37'); a('s_cselect_b32 s38, 0, s38')
    else:
        a('s_lshl_b32 s55, s38, 2'); a('s_add_u32 s55, s55, s36')
        a('s_sub_u32 s56, s3, 216')
        a('s_cmp_ge_u32 s3, 252')
        a('s_cselect_b32 s55, s56, s55'); a('s_cselect_b32 s36, 0, s36'); a('s_cselect_b32 s37, 0, s37'); a('s_cselect_b32 s38, 0, s38')
    a('s_lshl_b32 s40, s36, 8')
    a(f's_mul_i32 s41, s39, {16*9216}'); a('s_add_u32 s40, s40, s41')
    a('s_lshl_b32 s42, s39, 12')
    a(f's_mul_i32 s43, s38, {SLOT}'); a('s_mul_i32 s44, s39, 9216'); a('s_add_u32 s43, s43, s44')
    a('s_lshl_b32 s45, s36, 2'); a('s_add_u32 s45, s45, s39'); a('s_lshl_b32 s45, s45, 7'); a('s_lshl_b32 s46, s38, 1'); a('s_add_u32 s45, s45, s46'); a('s_lshl_b32 s45, s45, 10')
    a('s_mov_b32 s47, 0xffff0000'); a(f's_mov_b32 s48, {f32bits(-LOG2E)}')
    a('s_waitcnt lgkmcnt(0)')
    make_srd(a, 4, 576 * 9216); make_srd(a, 8, 576 * 9216)
    copy_srd(a, 16, 12, SZ_XF, WS_XF); copy_srd(a, 20, 12, SZ_HH, WS_HH)
    if K4W2:
        make_srd(a, 24, 4608 * 1152)
        if PWL2:
            a('s_and_b32 s53, s2, 3'); a(f's_mul_i32 s53, s53, {1152*1152}'); a('s_lshr_b32 s54, s2, 3'); a('s_mul_i32 s54, s54, 41472'); a('s_add_u32 s53, s53, s54')
            a('s_lshl_b32 s54, s39, 10'); a('s_add_u32 s53, s53, s54')
        else:
            a('s_mul_i32 s53, s3, 21504'); a('s_lshl_b32 s54, s39, 10'); a('s_add_u32 s53, s53, s54')
        a('v_lshlrev_b32 v14, 4, v0'); a('v_add_u32 v14, s53, v14')
    def w_dma(st):
        slot = 1 + st % 3
        for mat in range(2):
            for q in range(4):
                a(f's_add_u32 m0, s42, {slot*SLOT + mat*16384 + q*1024}')
                a(f's_add_u32 s49, s40, {(64*st + 4*q)*9216}')
                vm.issue(f'W{st}', f'buffer_load_dwordx4 v1, s[{4+4*mat}:{7+4*mat}], s49 offen lds')
    def x_dma_list(i):
        slot = i % 4; L = []
        for q in range(3):
            L.append(f's_add_u32 m0, s44, {slot*SLOT + q*4096}')
            L.append(f's_add_u32 s49, s43, {i*SLOT + q*4096}')
            for r in range(4 if q < 2 else 1):
                L.append(lambda r=r: vm.issue(f'X{i}', f'buffer_load_dwordx4 v5, s[16:19], s49 offen offset:{r*1024} sc1 lds'))
        return L
    def run(L):
        for f in L: f() if callable(f) else a(f)
    XB = 16; WV = 40; ACC = 72; TMP = 136
    def wreg(k, mat):
        if k < 32: b = 8 * k + 4 * mat; return 'a', b
        b = WV + 8 * (k - 32) + 4 * mat; return 'v', b
    def xread(i, k):
        n = 36 * i + k; b = XB + 4 * (n % 6)
        return f'ds_read_b128 v[{b}:{b+3}], v{5 + i % 4} offset:{k*1024}'
    def mfma(i, k, mat):
        n = 36 * i + k; b = XB + 4 * (n % 6)
        t, wb = wreg(k, mat); acc = ACC + 32 * (i % 2) + 16 * mat
        c = '0' if k == 0 else f'v[{acc}:{acc+15}]'
        return f'v_mfma_f32_32x32x16_bf16 v[{acc}:{acc+15}], {t}[{wb}:{wb+3}], v[{b}:{b+3}], {c}'
    def epilogue_list(i):
        g = ACC + 32 * (i % 2); u = g + 16; L = []
        G = TMP; E = TMP + 8; U = TMP + 16; PK = TMP + 24;
        for p in range(2):
            P = TMP + 28 + 4 * p
            o = 8 * p
            for j in range(4): L.append(f'v_cvt_pk_bf16_f32 v{PK+j}, v{g+o+2*j}, v{g+o+2*j+1}')
            for j in range(4):
                L.append(f'v_lshlrev_b32 v{G+2*j}, 16, v{PK+j}'); L.append(f'v_and_b32 v{G+2*j+1}, s47, v{PK+j}')
            for j in range(8): L.append(f'v_mul_f32 v{E+j}, s48, v{G+j}')
            for j in range(8): L.append(f'v_exp_f32 v{E+j}, v{E+j}')
            for j in range(4): L.append(f'v_cvt_pk_bf16_f32 v{PK+j}, v{u+o+2*j}, v{u+o+2*j+1}')
            for j in range(8): L.append(f'v_add_f32 v{E+j}, 1.0, v{E+j}')
            for j in range(8): L.append(f'v_rcp_f32 v{E+j}, v{E+j}')
            for j in range(4):
                L.append(f'v_lshlrev_b32 v{U+2*j}, 16, v{PK+j}'); L.append(f'v_and_b32 v{U+2*j+1}, s47, v{PK+j}')
            for j in range(8): L.append(f'v_mul_f32 v{G+j}, v{G+j}, v{E+j}')
            for j in range(4): L.append(f'v_cvt_pk_bf16_f32 v{PK+j}, v{G+2*j}, v{G+2*j+1}')
            for j in range(4):
                L.append(f'v_lshlrev_b32 v{G+2*j}, 16, v{PK+j}'); L.append(f'v_and_b32 v{G+2*j+1}, s47, v{PK+j}')
            for j in range(8): L.append(f'v_mul_f32 v{G+j}, v{G+j}, v{U+j}')
            for j in range(4): L.append(f'v_cvt_pk_bf16_f32 v{P+j}, v{G+2*j}, v{G+2*j+1}')
            if p == 0: L.append(f's_add_u32 s50, s45, {i*2048}')
            L.append(lambda P=P, p=p: vm.issue(f'S{i}', f'buffer_store_dwordx4 v[{P}:{P+3}], v10, s[20:23], s50 offen offset:{p*512}' + os.environ.get('STMOD', ' sc1')))
        return L
    PF = os.environ.get('K4PF', '0')
    def w_pf():
        if PF == '0': return
        a('s_lshl_b32 s51, s37, 8'); a('s_lshl_b32 s52, s39, 6'); a('s_add_u32 s51, s51, s52')
        a('v_add_u32 v40, s51, v0')
        a('v_lshrrev_b32 v41, 1, v40'); a('v_mul_u32_u24 v41, 9216, v41')
        a('v_and_b32 v40, 1, v40'); a('v_lshl_add_u32 v41, v40, 7, v41')
        a('s_lshl_b32 s51, s36, 8')
        vm.issue('PF', 'buffer_load_dword v42, v41, s[4:7], s51 offen')
        vm.issue('PF', 'buffer_load_dword v43, v41, s[8:11], s51 offen')
        if PF == '2':
            vm.issue('PF', 'buffer_load_dword v44, v41, s[4:7], s51 offen offset:64')
            vm.issue('PF', 'buffer_load_dword v45, v41, s[8:11], s51 offen offset:64')
    RAWR = {6: ('a', 192), 7: ('a', 224), 8: ('v', 40)}
    def w_raw(st):
        t, base = RAWR[st]
        for mat in range(2):
            for q in range(4):
                r = base + 4 * (mat * 4 + q)
                a(f's_add_u32 s49, s40, {(64*st + 4*q)*9216}')
                vm.issue(f'R{st}', f'buffer_load_dwordx4 {t}[{r}:{r+3}], v1, s[{4+4*mat}:{7+4*mat}], s49 offen')
    def w_put(st, slot):
        t, base = RAWR[st]
        for mat in range(2):
            for q in range(4):
                r = base + 4 * (mat * 4 + q)
                a(f'ds_write_b128 v9, {t}[{r}:{r+3}] offset:{(slot-1)*SLOT + mat*16384 + q*1024}')
    def w_reads(st, slot=None):
        if slot is None: slot = 1 + st % 3
        for kk in range(4):
            k = 4 * st + kk
            for mat in range(2):
                t, wb = wreg(k, mat)
                off = mat * 16384 + kk * 4096
                a(f'ds_read_b64_tr_b16 {t}[{wb}:{wb+1}], v{1+slot} offset:{off}')
                a(f'ds_read_b64_tr_b16 {t}[{wb+2}:{wb+3}], v{1+slot} offset:{off+1024}')
    XL = 16; XP = 28; XFv = 72; LT = 96; XN = 112; CB = 124; SB = 148
    RED = 9216
    copy_srd(a, 28, 12, SZ_X1T, WS_X1T); copy_srd(a, 32, 12, SZ_MOD, WS_MOD); copy_srd(a, 64, 12, SZ_X1, WS_X1)
    copy_srd(a, 68, 12, 4096, WS_CNT + CNT_OFF['k4'])
    a('s_lshl_b32 s57, s55, 4')
    for i in range(3):
        a(f'v_add_u32 v{11+i}, {256*i}, v15'); a(f'v_mul_u32_u24 v{11+i}, {X1T_STRIDE}, v{11+i}')
    for i in range(3): vm.issue('XL', f'buffer_load_dwordx4 v[{XL+4*i}:{XL+4*i+3}], v{11+i}, s[28:31], s57 offen')
    w_pf()
    w_dma(0); w_dma(1); w_dma(2)
    if RAWW: w_raw(6); a('v_add_u32 v9, s42, v6')
    a('v_lshrrev_b32 v172, 4, v15'); a('v_lshlrev_b32 v172, 1, v172')
    a('v_bfe_u32 v11, v15, 1, 1'); a('v_add_u32 v172, v172, v11'); a('v_lshlrev_b32 v172, 3, v172')
    a('v_bfe_u32 v11, v15, 2, 2'); a('v_add_u32 v172, v172, v11'); a('v_lshlrev_b32 v172, 4, v172')
    a('v_and_b32 v11, 1, v15'); a('v_lshl_add_u32 v172, v11, 3, v172')
    a('v_and_b32 v11, 7, v15'); a('v_lshrrev_b32 v12, 3, v15')
    a('v_mul_u32_u24 v173, 1152, v11'); a('v_lshl_add_u32 v173, v12, 4, v173')
    a('v_lshrrev_b32 v174, 1, v12'); a('v_lshlrev_b32 v174, 10, v174')
    a('v_and_b32 v13, 1, v12'); a('v_lshl_add_u32 v174, v13, 9, v174'); a('v_lshl_add_u32 v174, v11, 4, v174')
    a('v_lshlrev_b32 v175, 5, v12')
    a('v_lshlrev_b32 v13, 2, v11')
    a('s_lshl_b32 s58, s39, 5'); a('v_add_u32 v12, s58, v13')
    a('v_lshlrev_b32 v11, 4, v15')
    a('s_mul_i32 s58, s55, 9216')
    a('s_lshr_b32 s59, s55, 2'); a(f's_mul_i32 s59, s59, {36*1024}'); a('s_and_b32 s60, s55, 3'); a('s_lshl_b32 s60, s60, 7'); a('s_add_u32 s59, s59, s60')
    a(f's_mov_b32 s61, {4*2304}'); a(f's_mov_b32 s62, {3*2304}')
    vm.wait('XL')
    a(f'ds_write_b128 v11, v[{XL}:{XL+3}]'); a(f'ds_write_b128 v11, v[{XL+4}:{XL+7}] offset:4096')
    a('s_cmp_lg_u32 s39, 0'); a.branch('s_cbranch_scc1 K34_NW3')
    a(f'ds_write_b128 v11, v[{XL+8}:{XL+11}] offset:8192')
    a.label('K34_NW3')
    vm.wait('W0', ' lgkmcnt(0)'); a('s_barrier')
    stamp(a, 1, 'k4')
    base_ops = list(vm.ops)
    a('s_cmp_eq_u32 s39, 3'); a.branch('s_cbranch_scc1 K34_AUX')
    for i in range(3):
        vm.issue('M', f'buffer_load_dwordx4 v[{CB+8*i}:{CB+8*i+3}], v175, s[32:35], s61 offen offset:{768*i}')
        vm.issue('M', f'buffer_load_dwordx4 v[{CB+8*i+4}:{CB+8*i+7}], v175, s[32:35], s61 offen offset:{768*i+16}')
        vm.issue('M', f'buffer_load_dwordx4 v[{SB+8*i}:{SB+8*i+3}], v175, s[32:35], s62 offen offset:{768*i}')
        vm.issue('M', f'buffer_load_dwordx4 v[{SB+8*i+4}:{SB+8*i+7}], v175, s[32:35], s62 offen offset:{768*i+16}')
    if RAWW: w_raw(7)
    for i in range(3):
        a(f'ds_read_b64_tr_b16 v[{XP+4*i}:{XP+4*i+1}], v172 offset:{3072*i}')
        a(f'ds_read_b64_tr_b16 v[{XP+4*i+2}:{XP+4*i+3}], v172 offset:{3072*i+64}')
    w_reads(0)
    a('s_waitcnt lgkmcnt(15)')
    for i in range(3): vm.issue('X1S', f'buffer_store_dwordx4 v[{XP+4*i}:{XP+4*i+3}], v173, s[64:67], s58 offen offset:{384*i}')
    def pre2(): vm.wait('W1')
    def post2(): w_dma(3); w_reads(1)
    def pre3(): vm.wait('W2')
    def post3(): w_dma(4); w_reads(2)
    ln_core(a, 3, XP, XFv, LT, 3, 12, 13, RED, XN, hooks=(pre2, post2, pre3, post3, GH))
    vm.wait('M')
    n = 24
    for i in range(12): unpack_lo(a, XFv + 2 * i, XN + i); unpack_hi(a, XFv + 2 * i + 1, XN + i)
    for i in range(n): a(f'v_add_f32 v{CB+i}, 1.0, v{CB+i}')
    for i in range(12): a(f'v_cvt_pk_bf16_f32 v{LT+i}, v{CB+2*i}, v{CB+2*i+1}')
    for i in range(12): unpack_lo(a, CB + 2 * i, LT + i); unpack_hi(a, CB + 2 * i + 1, LT + i)
    for i in range(n): a(f'v_mul_f32 v{XFv+i}, v{XFv+i}, v{CB+i}')
    for i in range(12): a(f'v_cvt_pk_bf16_f32 v{LT+i}, v{XFv+2*i}, v{XFv+2*i+1}')
    for i in range(12): unpack_lo(a, XFv + 2 * i, LT + i); unpack_hi(a, XFv + 2 * i + 1, LT + i)
    for i in range(n): a(f'v_add_f32 v{XFv+i}, v{XFv+i}, v{SB+i}')
    for i in range(12): a(f'v_cvt_pk_bf16_f32 v{LT+i}, v{XFv+2*i}, v{XFv+2*i+1}')
    for i in range(3):
        a(f's_add_u32 s60, s59, {12288*i}')
        vm.issue('XFS', f'buffer_store_dwordx4 v[{LT+4*i}:{LT+4*i+3}], v174, s[16:19], s60 offen sc1')
    if RAWW: w_raw(8)
    a('s_waitcnt lgkmcnt(0)'); a('s_barrier')
    w_dma(5)
    def stage(st):
        vm.wait(f'W{st}'); a('s_barrier'); w_reads(st); a('s_waitcnt lgkmcnt(0)'); a('s_barrier'); w_dma(st + 3)
    if EARLY: stage(3); stage(4)
    vm.wait('XFS')
    a.branch('s_branch K34_JOIN')
    a.label('K34_AUX')
    vm.ops = list(base_ops)
    if RAWW: w_raw(7)
    w_reads(0); a('s_waitcnt lgkmcnt(0)'); vm.wait('W1'); a('s_barrier')
    w_dma(3); w_reads(1); a('s_waitcnt lgkmcnt(0)'); vm.wait('W2'); a('s_barrier')
    w_dma(4); w_reads(2)
    if RAWW: w_raw(8)
    a('s_waitcnt lgkmcnt(0)'); a('s_barrier')
    w_dma(5)
    if EARLY: stage(3); stage(4)
    if RAWW: vm.wait('W4')
    a.label('K34_JOIN')
    vm.ops = (['W5'] * 8 + ['W6'] * 8 + ['W7'] * 8) if EARLY else (['W3'] * 8 + ['W4'] * 8 + ['W5'] * 8)
    if RAWW: vm.ops = ['R8'] * 8 + ['W5'] * 8
    a('s_barrier')
    stamp(a, 2, 'k4')
    a('s_lshl_b32 s63, s37, 7')
    a('s_cmp_lg_u32 s39, 0'); a.branch('s_cbranch_scc1 K34_NS')
    a('s_mov_b64 exec, 1'); a('v_mov_b32 v11, 1')
    a(f'buffer_atomic_add v11, off, s[68:71], s{72 if SPEC else 63} sc1')
    a('s_mov_b64 exec, -1')
    a.label('K34_NS')
    a('s_cmp_ge_u32 s3, 252'); a.branch('s_cbranch_scc1 K34_HEND')
    if RAWW: w_reads(3, 1); w_reads(4, 2)
    if SPEC: run(x_dma_list(0))
    def nonloop():
        def tile(i):
            mf = [];
            fill = epilogue_list(i - 1) if i else []
            dma = x_dma_list(i + 3) if 0 < i <= 6 else []
            if K4W2 and 1 <= i <= 6:
                dma = dma + [f'v_add_u32 v13, {(i-1)*4096}, v14', lambda: vm.issue('PW', 'buffer_load_dwordx4 v[172:175], v13, s[24:27], 0 offen')]
            X = os.environ.get('K4X', '')
            if 'noepi' in X: fill = [f for f in fill if callable(f) or f.startswith('s_')]
            if 'nost' in X: fill = [f for f in fill if not callable(f)]
            if 'notrans' in X: fill = [f for f in fill if callable(f) or not ('exp' in f or 'rcp' in f)]
            for k in range(36):
                pre = []
                if k == 32 and i + 1 <= 9:
                    pre.append(lambda: vm.wait(f'X{i+1}'))
                    if 'nobar' not in X: pre.append('s_barrier')
                pre.append(xread(i, k + 4) if k + 4 < 36 else xread(i + 1, k + 4 - 36))
                pre.append('s_waitcnt lgkmcnt(4)')
                pre.append(mfma(i, k, 0))
                mf.append(pre); mf.append([mfma(i, k, 1)])
            interleave(a, mf[:64], fill)
            interleave(a, mf[64:], dma)
        stamp(a, 4, 'k4')
        for i in range(0, 9):
            tile(i)
            if i in (1, 4):
                stamp(a, {1:5,4:6}[i], 'k4')
                if 'k4' in STAMPS: a('s_waitcnt lgkmcnt(0)')
        a('s_cmp_eq_u32 s37, 0'); a.branch('s_cbranch_scc1 K4_T9')
        saved = list(vm.ops)
        run(epilogue_list(8))
        stamp(a, 7, 'k4')
        a('v_mov_b32 v0, v15')
        dump_stamps(a, 8, 'k4', 101)
        a('s_endpgm')
        vm.ops = saved
        a.label('K4_T9')
        tile(9)
        run(epilogue_list(9))
        a.label('K4_END')
        a('s_endpgm')

    def poll(first_issued):
        a('s_cmp_lg_u32 s39, 0'); a.branch('s_cbranch_scc1 K34_PD')
        a('s_cmp_eq_u32 s37, 0'); a('s_cselect_b32 s56, 40, 36')
        a('s_mov_b32 s57, 0')
        if first_issued is not None:
            a(f's_waitcnt vmcnt({first_issued})'); a.branch('s_branch K34_PC')
        a.label('K34_PL')
        a('buffer_load_dword v11, off, s[68:71], s63 sc1')
        a('s_waitcnt vmcnt(0)')
        if first_issued is not None: a.label('K34_PC')
        a('v_readfirstlane_b32 s58, v11')
        a('s_cmp_ge_u32 s58, s56'); a.branch('s_cbranch_scc1 K34_PD')
        a('s_sleep 2')
        a('s_add_u32 s57, s57, 1'); a('s_cmp_lt_u32 s57, 0x10000'); a.branch('s_cbranch_scc1 K34_PL')
        a.label('K34_PD')
    def x_validate_own():
        a('s_mul_i32 s59, s39, 9216'); a('v_add_u32 v11, s59, v5')
        for i in range(9): a(f'ds_read_b128 v[{TMP+4*i}:{TMP+4*i+3}], v11 offset:{i*1024}')
        for i in range(9):
            a(f's_waitcnt lgkmcnt({8-i})')
            if i == 0: a(f'v_max3_u32 v12, v{TMP}, v{TMP+1}, v{TMP+2}'); a(f'v_max_u32 v12, v12, v{TMP+3}')
            else: a(f'v_max3_u32 v12, v{TMP+4*i}, v{TMP+4*i+1}, v12'); a(f'v_max3_u32 v12, v{TMP+4*i+2}, v{TMP+4*i+3}, v12')
        a('v_cmp_eq_u32 vcc, -1, v12')
        a('s_cmp_lg_u64 vcc, 0'); a('s_cselect_b32 s59, 1, 0')
        a('v_mov_b32 v12, s59'); a('s_lshl_b32 s59, s39, 2'); a(f's_add_u32 s59, s59, {4*SLOT}'); a('v_mov_b32 v11, s59')
        a('ds_write_b32 v11, v12')
    def x12_dma(i):
        return x_dma_list(i) + ['v_mov_b32 v13, 0x7ffffff0',
                                lambda: vm.issue('PW', 'buffer_load_dwordx4 v[172:175], v13, s[24:27], 0 offen')]
    if RAWW:
        a('s_waitcnt lgkmcnt(0)'); a('s_barrier')
        w_put(6, 1); w_put(7, 2)
        a('s_waitcnt lgkmcnt(0)'); a('s_barrier')
        a('s_cmp_lg_u32 s39, 0'); a.branch('s_cbranch_scc1 K34_P0')
        a('buffer_load_dword v173, off, s[68:71], s63 sc1')
        a.label('K34_P0')
        w_reads(6, 1); w_reads(7, 2)
        vm.wait('W5', ' lgkmcnt(0)'); a('s_barrier')
        a('s_cmp_lg_u32 s39, 0'); a.branch('s_cbranch_scc1 K34_P1')
        a('buffer_load_dword v174, off, s[68:71], s63 sc1')
        a.label('K34_P1')
        w_put(8, 1); w_reads(5, 3)
        a('s_cmp_lg_u32 s39, 0'); a.branch('s_cbranch_scc1 K34_P2')
        a('s_waitcnt vmcnt(2)'); a.branch('s_branch K34_P3')
        a.label('K34_P2'); a('s_waitcnt vmcnt(0)')
        a.label('K34_P3')
        x_validate_own()
        a('s_waitcnt lgkmcnt(0)'); a('s_barrier')
        stamp(a, 3, 'k4')
        a(f'v_mov_b32 v11, {4*SLOT}'); a(f'ds_read_b128 v[{TMP}:{TMP+3}], v11')
        w_reads(8, 1)
        a('s_cmp_lg_u32 s39, 0'); a.branch('s_cbranch_scc1 K34_PD')
        a('s_cmp_eq_u32 s37, 0'); a('s_cselect_b32 s56, 40, 36')
        a('s_mov_b32 s57, 0')
        a('s_waitcnt vmcnt(1)'); a('v_readfirstlane_b32 s58, v173')
        a('s_cmp_ge_u32 s58, s56'); a.branch('s_cbranch_scc1 K34_PD')
        a('s_waitcnt vmcnt(0)'); a.branch('s_branch K34_PC')
        a.label('K34_PL')
        a('buffer_load_dword v174, off, s[68:71], s63 sc1')
        a('s_waitcnt vmcnt(0)')
        a.label('K34_PC')
        a('v_readfirstlane_b32 s58, v174')
        a('s_cmp_ge_u32 s58, s56'); a.branch('s_cbranch_scc1 K34_PD')
        a('s_add_u32 s57, s57, 1'); a('s_cmp_lt_u32 s57, 0x10000'); a.branch('s_cbranch_scc1 K34_PL')
        a.label('K34_PD')
        a('s_waitcnt lgkmcnt(0)')
        a(f'v_or3_b32 v12, v{TMP}, v{TMP+1}, v{TMP+2}'); a(f'v_or_b32 v12, v12, v{TMP+3}')
        a('v_readfirstlane_b32 s59, v12')
        a('s_barrier')
        a('s_cmp_eq_u32 s59, 0'); a.branch('s_cbranch_scc1 K34_XOK')
        for q in range(3):
            a(f's_add_u32 m0, s44, {q*4096}'); a(f's_add_u32 s49, s43, {q*4096}')
            for r in range(4 if q < 2 else 1): a(f'buffer_load_dwordx4 v5, s[16:19], s49 offen offset:{r*1024} sc0 sc1 lds')
        a('s_waitcnt vmcnt(0)'); a('s_barrier')
        a.label('K34_XOK')
        if 'k4' in STAMPS: a('s_mul_i32 s96, s59, 100'); a('s_add_u32 s96, s96, s90'); a('s_mov_b32 s95, s90')
        vm.ops = []
        if not T0B: run(x12_dma(1)); run(x12_dma(2))
    for st in range(5 if EARLY else 3, 9 if not RAWW else 0):
        vm.wait(f'W{st}')
        a('s_barrier')
        w_reads(st)
        a('s_waitcnt lgkmcnt(0)')
        if st == 5 and not SPEC and not POLLW: poll(None)
        if st == 6 and SPEC: poll(8)
        a('s_barrier')
        if st == 5 and (SPEC or POLLW):
            a('s_cmp_lg_u32 s39, 0'); a.branch('s_cbranch_scc1 K34_P0')
            a('buffer_load_dword v11, off, s[68:71], s63 sc1')
            a.label('K34_P0')
        if st < 6: w_dma(st + 3)
        if st == 5:
            if not SPEC and POLLW: poll(8); a('s_barrier')
            stamp(a, 3, 'k4')
            if not SPEC: run(x_dma_list(0))
        if LOOP:
            if st in (6, 7):
                run(x_dma_list(st - 5))
                a('v_mov_b32 v13, 0x7ffffff0')
                for _ in range(2 if W2P else 1): vm.issue('PW', 'buffer_load_dwordx4 v[172:175], v13, s[24:27], 0 offen')
        elif st >= 6: run(x_dma_list(st - 5))
    if LOOP:
        BIG = 0x40000000
        a('v_mov_b32 v2, v5'); a(f'v_add_u32 v3, {SLOT}, v5'); a('v_mov_b32 v1, 0x7ffffff0')
        a('s_mov_b32 s55, 0')
        a('s_cmp_eq_u32 s37, 0'); a('s_cselect_b32 s56, 6, 5'); a('s_cselect_b32 s61, 99, 8')
        a(f's_mov_b32 s57, {3*SLOT}'); a('s_mov_b32 s58, 0'); a('s_mov_b32 s60, 0')
        a(f's_add_u32 s43, s43, {3*SLOT}'); a('s_sub_u32 s45, s45, 2048')
        if W2P:
            copy_srd(a, 32, 12, SZ_W2P, WS_W2P)
            a('s_mov_b32 s28, 0x38e38e39'); a('s_mov_b32 s29, 8928'); a('s_mov_b32 s30, 288'); a('s_mov_b32 s31, 27648')
    if not RAWW: vm.wait('X0'); a('s_barrier')
    if SPEC and not RAWW:
        a('s_mul_i32 s59, s39, 9216'); a('v_add_u32 v11, s59, v5')
        for i in range(9): a(f'ds_read_b128 v[{TMP+4*i}:{TMP+4*i+3}], v11 offset:{i*1024}')
        for i in range(9):
            a(f's_waitcnt lgkmcnt({8-i})')
            if i == 0: a(f'v_max3_u32 v12, v{TMP}, v{TMP+1}, v{TMP+2}'); a(f'v_max_u32 v12, v12, v{TMP+3}')
            else: a(f'v_max3_u32 v12, v{TMP+4*i}, v{TMP+4*i+1}, v12'); a(f'v_max3_u32 v12, v{TMP+4*i+2}, v{TMP+4*i+3}, v12')
        a('v_cmp_eq_u32 vcc, -1, v12')
        a('s_cmp_lg_u64 vcc, 0'); a('s_cselect_b32 s59, 1, 0')
        a('v_mov_b32 v12, s59'); a('s_lshl_b32 s59, s39, 2'); a(f's_add_u32 s59, s59, {4*SLOT}'); a('v_mov_b32 v11, s59')
        a('ds_write_b32 v11, v12'); a('s_waitcnt lgkmcnt(0)'); a('s_barrier')
        a(f'v_mov_b32 v11, {4*SLOT}'); a(f'ds_read_b128 v[{TMP}:{TMP+3}], v11'); a('s_waitcnt lgkmcnt(0)')
        a(f'v_or3_b32 v12, v{TMP}, v{TMP+1}, v{TMP+2}'); a(f'v_or_b32 v12, v12, v{TMP+3}')
        a('v_readfirstlane_b32 s59, v12')
        a('s_cmp_eq_u32 s59, 0'); a.branch('s_cbranch_scc1 K34_XOK')
        for q in range(3):
            a(f's_add_u32 m0, s44, {q*4096}'); a(f's_sub_u32 s49, s43, {3*SLOT - q*4096}')
            for r in range(4 if q < 2 else 1): a(f'buffer_load_dwordx4 v5, s[16:19], s49 offen offset:{r*1024} sc0 sc1 lds')
        a('s_waitcnt vmcnt(0)'); a('s_barrier')
        a.label('K34_XOK')
        if 'k4' in STAMPS: a('s_mul_i32 s96, s59, 100'); a('s_add_u32 s96, s96, s90'); a('s_mov_b32 s95, s90')
    for k in range(4): a(xread(0, k))
    if LOOP:
        def lxread(par, k, nxt):
            b = XB + 4 * (k % 6); r = 2 + (par ^ nxt)
            return f'ds_read_b128 v[{b}:{b+3}], v{r} offset:{k*1024}'
        def lepi(par):
            L = []
            for f in epilogue_list(par):
                if callable(f): continue
                L.append(f)
            return L
        def lepi_full(par, vo):
            g = ACC + 32 * par; u = g + 16; L = []
            G = TMP; E = TMP + 8; U = TMP + 16; PK = TMP + 24
            for p in range(2):
                P = TMP + 28 + 4 * p
                o = 8 * p
                for j in range(4): L.append(f'v_cvt_pk_bf16_f32 v{PK+j}, v{g+o+2*j}, v{g+o+2*j+1}')
                for j in range(4):
                    L.append(f'v_lshlrev_b32 v{G+2*j}, 16, v{PK+j}'); L.append(f'v_and_b32 v{G+2*j+1}, s47, v{PK+j}')
                for j in range(8): L.append(f'v_mul_f32 v{E+j}, s48, v{G+j}')
                for j in range(8): L.append(f'v_exp_f32 v{E+j}, v{E+j}')
                for j in range(4): L.append(f'v_cvt_pk_bf16_f32 v{PK+j}, v{u+o+2*j}, v{u+o+2*j+1}')
                for j in range(8): L.append(f'v_add_f32 v{E+j}, 1.0, v{E+j}')
                for j in range(8): L.append(f'v_rcp_f32 v{E+j}, v{E+j}')
                for j in range(4):
                    L.append(f'v_lshlrev_b32 v{U+2*j}, 16, v{PK+j}'); L.append(f'v_and_b32 v{U+2*j+1}, s47, v{PK+j}')
                for j in range(8): L.append(f'v_mul_f32 v{G+j}, v{G+j}, v{E+j}')
                for j in range(4): L.append(f'v_cvt_pk_bf16_f32 v{PK+j}, v{G+2*j}, v{G+2*j+1}')
                for j in range(4):
                    L.append(f'v_lshlrev_b32 v{G+2*j}, 16, v{PK+j}'); L.append(f'v_and_b32 v{G+2*j+1}, s47, v{PK+j}')
                for j in range(8): L.append(f'v_mul_f32 v{G+j}, v{G+j}, v{U+j}')
                for j in range(4): L.append(f'v_cvt_pk_bf16_f32 v{P+j}, v{G+2*j}, v{G+2*j+1}')
                L.append(f'buffer_store_dwordx4 v[{P}:{P+3}], v{vo}, s[20:23], s45 offen offset:{p*512}' + os.environ.get('STMOD', ' sc1'))
            return L
        uid = [0]
        T0K1 = int(os.environ.get('T0K1', '1')); T0K2 = int(os.environ.get('T0K2', '7'))
        def ltile(par):
            fill = lepi_full(par ^ 1, 1 if par == 0 else 10) + ['s_add_u32 s45, s45, 2048']
            if par == 1: fill.append('v_mov_b32 v1, v10')
            Q = 172 if (par == 0 or not W2P) else 6
            if W2P:
                ad = ['s_sub_u32 s62, s60, 8192', 'v_add_u32 v11, s62, v14', 'v_lshrrev_b32 v12, 7, v11', 'v_mul_hi_u32 v12, v12, s28',
                      'v_lshrrev_b32 v12, 1, v12', 'v_lshrrev_b32 v11, 4, v11', 'v_mul_u32_u24 v0, 72, v12', 'v_sub_u32 v11, v11, v0',
                      'v_mul_u32_u24 v0, 3641, v11', 'v_lshrrev_b32 v0, 16, v0', 'v_lshlrev_b32 v11, 4, v11',
                      'v_mad_u32_u24 v11, v0, s29, v11', 'v_mad_u32_u24 v11, v12, s30, v11', 'v_lshrrev_b32 v12, 5, v12', 'v_mad_u32_u24 v11, v12, s31, v11',
                      lambda: (a('s_sub_u32 s62, s55, 2'), a('s_cmp_lt_u32 s62, 6'), a('s_cselect_b64 vcc, -1, 0'), a('v_mov_b32 v13, 0x7ffffff0'), a('v_cndmask_b32 v11, v13, v11, vcc'))]
                step = max(1, len(fill) // (len(ad) + 1)); nf = []
                for n_, f_ in enumerate(fill):
                    nf.append(f_)
                    if n_ % step == step - 1 and ad: nf.append(ad.pop(0))
                fill = nf + ad
            ss = 57 + par
            dma = [f'v_xor_b32 v{2+par}, 0x12000, v{2+par}',
                   's_cmp_le_u32 s55, s56', f's_cselect_b32 s59, 0, {BIG}', 'v_add_u32 v4, s59, v5', f's_add_u32 s52, s44, s{ss}']
            for q in range(3):
                dma.append(f's_add_u32 m0, s52, {q*4096}'); dma.append(f's_add_u32 s49, s43, {q*4096}')
                for r in range(4 if q < 2 else 1):
                    dma.append(f'buffer_load_dwordx4 v4, s[16:19], s49 offen offset:{r*1024} sc1 lds')
            if W2P: dma.append(f'buffer_store_dwordx4 v[{Q}:{Q+3}], v11, s[32:35], 0 offen sc1')
            dma += [f's_cmp_le_u32 s55, {PWN if PWL2 else 5}', f's_cselect_b32 s59, s60, {BIG}', 'v_add_u32 v13, s59, v14',
                    f'buffer_load_dwordx4 v[{Q}:{Q+3}], v13, s[24:27], 0 offen',
                    's_add_u32 s60, s60, 4096', f's_xor_b32 s{ss}, s{ss}, 0x12000', f's_add_u32 s43, s43, {SLOT}']
            def t0blk(i):
                a('s_cmp_lg_u32 s55, 0'); a(f's_cbranch_scc1 K34_B{i}_{uid[0]}')
                h = list(a.hist)
                for q in range(3):
                    a(f's_add_u32 m0, s44, {i*SLOT + q*4096}'); a(f's_sub_u32 s49, s43, {(3-i)*SLOT - q*4096}')
                    for r in range(4 if q < 2 else 1):
                        a(f'buffer_load_dwordx4 v5, s[16:19], s49 offen offset:{r*1024} sc1 lds')
                a('v_mov_b32 v13, 0x7ffffff0'); a('buffer_load_dwordx4 v[172:175], v13, s[24:27], 0 offen')
                a.label_nf(f'K34_B{i}_{uid[0]}'); a.hist = h
            mf = []
            for k in range(36):
                pre = []
                if par == 0 and RAWW and T0B and k in (T0K1, T0K2): pre.append(lambda k=k: t0blk(1 if k == T0K1 else 2))
                if k == 32: pre += [f's_waitcnt vmcnt({15 if W2P else 13})', 's_barrier']
                pre.append(lxread(par, k + 4, 0) if k + 4 < 36 else lxread(par, k + 4 - 36, 1))
                pre.append('s_waitcnt lgkmcnt(4)')
                pre.append(mfma(par, k, 0))
                mf.append(pre); mf.append([mfma(par, k, 1)])
            interleave(a, mf[:64], fill)
            interleave(a, mf[64:], dma)
        stamp(a, 4, 'k4')
        main = a
        def body():
            ltile(0)
            a('s_cmp_eq_u32 s55, s61'); a('s_cbranch_scc1 K34_F0')
            a('s_add_u32 s55, s55, 1')
            ltile(1)
            a('s_add_u32 s55, s55, 1')
            a('s_cmp_lt_u32 s55, 10'); a('s_cbranch_scc1 K34_LOOP')
        sv = (a.lines, a.hist, a.nops, a.count); a.lines = []; a.hist = []
        body(); h = list(a.hist)
        a.lines, a.hist, a.nops, a.count = sv
        a.label_h('K34_LOOP', h)
        body()
        run(lepi_full(1, 10))
        if F345: a.branch('s_branch K345_J')
        else:
            a('s_waitcnt vmcnt(0)')
            a('s_endpgm')
        a.label('K34_F0')
        a('s_nop 11')
        run(lepi_full(0, 10))
        if F345:
            a.label('K345_J')
            copy_srd(a, 76, 12, 4096, WS_CNT + CNT_OFF['k2'])
            a('s_mul_i32 s59, s36, 7282'); a('s_lshr_b32 s59, s59, 16'); a('s_lshl_b32 s59, s59, 3'); a('s_add_u32 s59, s59, s37'); a('s_lshl_b32 s59, s59, 7')
            a('s_waitcnt vmcnt(0)'); a('s_barrier')
            a('s_cmp_lg_u32 s39, 0'); a.branch('s_cbranch_scc1 K345_K5')
            a('s_mov_b64 exec, 1'); a('v_mov_b32 v11, 1')
            a('buffer_atomic_add v11, off, s[76:79], s59 sc1')
            a('s_mov_b64 exec, -1')
            a.branch('s_branch K345_K5')
            a.label('K4_END')
            a('s_endpgm')
        else:
            stamp(a, 7, 'k4')
            a('v_mov_b32 v0, v15')
            dump_stamps(a, 8, 'k4', 101)
            a('s_waitcnt vmcnt(0)')
            a.label('K4_END')
            a('s_endpgm')
    else:
        nonloop()
    a.label('K34_HEND')
    a('s_waitcnt vmcnt(0)')
    if F345:
        a('s_barrier')
        a.label('K345_K5')
        a('v_mov_b32 v0, v15')
        from gen_k56 import k5a_body
        k5a_body(a, True)
        return kernel_desc('k34_kernel', 176 + 256, accum=176)
    a('s_endpgm')
    return kernel_desc('k34_kernel', 176 + 256, accum=176)
```

```python
from gen_common import *
from gen_k4 import VM, interleave
import os

ST5 = 17408; NS5 = 9
K5L = int(os.environ.get('K5L', '0'))
K5_LDS = ST5 * NS5 + 16
K5A = int(os.environ.get('K5A', '1'))
def gen_k5(a):
    if K5A: return gen_k5a(a)
    a.raw(kernel_header('k5_kernel'))
    dbgt(a, 4, 4, 'DBGT_5')
    vm = VM(a)
    a('s_cmp_ge_u32 s2, 256'); a.branch('s_cbranch_scc1 K5_END')
    stamp(a, 0, 'k5')
    if TK: ticket_begin(a)
    load_ptr(a, 4, 'w2'); load_ptr(a, 12, 'ws')
    a('v_mov_b32 v15, v0')
    a('v_readfirstlane_b32 s35, v0'); a('s_lshr_b32 s35, s35, 6')
    a('s_and_b32 s39, s35, 3')
    a('v_and_b32 v0, 63, v0')
    a('v_lshlrev_b32 v1, 4, v0')
    a('s_mul_i32 s40, s39, 144')
    for q in range(3):
        a(f's_add_u32 s41, s40, {48*q}')
        a('v_add_u32 v10, s41, v0')
        a('v_mul_u32_u24 v11, 3641, v10'); a('v_lshrrev_b32 v11, 16, v11')
        a('v_mul_u32_u24 v12, 18, v11'); a('v_sub_u32 v12, v10, v12')
        a(f'v_mul_u32_u24 v{2+q}, 1152, v11'); a(f'v_lshl_add_u32 v{2+q}, v12, 4, v{2+q}')
    a('v_lshrrev_b32 v10, 5, v0'); a('v_lshlrev_b32 v10, 4, v10')
    a('v_bfe_u32 v11, v0, 4, 1'); a('v_lshl_add_u32 v10, v11, 2, v10')
    a('v_bfe_u32 v11, v0, 2, 2'); a('v_add_u32 v10, v10, v11'); a('v_mul_u32_u24 v5, 288, v10')
    a('v_and_b32 v11, 3, v0'); a('v_lshl_add_u32 v5, v11, 3, v5'); a('v_add_u32 v5, 8192, v5')
    a('s_lshl_b32 s40, s39, 11'); a('v_add_u32 v6, s40, v1')
    if TK:
        ticket(a, 'k5', 4, 3, K5_LDS - 16, wave_s=35)
        a('s_lshr_b32 s36, s3, 5'); a('s_and_b32 s37, s3, 31')
    else:
        a('s_and_b32 s36, s2, 7'); a('s_lshr_b32 s37, s2, 3')
    a('s_and_b32 s38, s36, 3')
    a('s_lshr_b32 s36, s36, 2'); a('s_lshl_b32 s36, s36, 3'); a('s_lshr_b32 s43, s37, 2'); a('s_add_u32 s36, s36, s43')
    a('s_and_b32 s37, s37, 3')
    a(f's_mul_i32 s41, s38, {36*131072}'); a('s_lshl_b32 s42, s36, 13'); a('s_add_u32 s41, s41, s42'); a('s_add_u32 s41, s41, s40')
    a(f's_mul_i32 s42, s38, {36*36864}'); a('s_mul_i32 s43, s37, 288'); a('s_add_u32 s42, s42, s43')
    a('s_mul_i32 s43, s39, 2304')
    a('s_mov_b32 s44, -1'); a('s_mov_b32 s45, 0xffff')
    a('s_waitcnt lgkmcnt(0)')
    make_srd(a, 4, 4608 * 1152)
    copy_srd(a, 16, 12, SZ_HH, WS_HH); copy_srd(a, 20, 12, SZ_PART, WS_PART)
    def dma_list(k):
        so = (k % NS5) * ST5; L = []
        L.append(f's_add_u32 m0, s40, {so}')
        L.append(f's_add_u32 s46, s41, {k*131072}')
        L.append(lambda: vm.issue(f'D{k}', 'buffer_load_dwordx4 v1, s[16:19], s46 offen lds'))
        L.append(lambda: vm.issue(f'D{k}', 'buffer_load_dwordx4 v1, s[16:19], s46 offen offset:1024 lds'))
        L.append(f's_add_u32 s46, s42, {k*36864}')
        def masked():
            a('s_mov_b64 exec, s[44:45]')
            for q in range(3):
                a(f's_add_u32 m0, s43, {so + 8192 + q*768}')
                vm.issue(f'D{k}', f'buffer_load_dwordx4 v{2+q}, s[4:7], s46 offen lds')
            a('s_mov_b64 exec, -1')
        L.append(masked)
        return L
    def dma(k):
        for f in dma_list(k): f() if callable(f) else a(f)
    def run(L):
        for f in L: f() if callable(f) else a(f)
    if K5L: a('s_cmp_ge_u32 s35, 4'); a.branch('s_cbranch_scc1 K5_LOAD')
    else:
        for k in range(8): dma(k)
        if int(os.environ.get('K5LOOP', '1')):
            for i in range(72): a(f'v_mov_b32 v{16+i}, 0')
        vm.wait('D0')
    ACC = 16; WF = 88; HF = 160
    def read_list(k):
        so = (k % NS5) * ST5; b = k % 2; L = []
        va = 7 + 2 * b; vb = 8 + 2 * b
        L.append(f'v_add_u32 v{va}, {so}, v5'); L.append(f'v_add_u32 v{vb}, {so}, v6')
        h = HF + 8 * b
        L.append(f'ds_read_b128 v[{h}:{h+3}], v{vb}'); L.append(f'ds_read_b128 v[{h+4}:{h+7}], v{vb} offset:1024')
        for dt in range(9):
            wv = WF + 36 * b + 4 * dt
            L.append(f'ds_read_b64_tr_b16 v[{wv}:{wv+1}], v{va} offset:{dt*32}')
            L.append(f'ds_read_b64_tr_b16 v[{wv+2}:{wv+3}], v{va} offset:{dt*32+2304}')
        return L
    LOOP5 = int(os.environ.get('K5LOOP', '1')) and not K5L
    a('s_barrier')
    stamp(a, 1, 'k5')
    run(read_list(0))
    if LOOP5:
        def lread(b):
            sr = 47 + (b ^ 1); L = []
            va = 7 + 2 * b; vb = 8 + 2 * b
            L.append(f'v_add_u32 v{va}, s{sr}, v5'); L.append(f'v_add_u32 v{vb}, s{sr}, v6')
            h = HF + 8 * b
            L.append(f'ds_read_b128 v[{h}:{h+3}], v{vb}'); L.append(f'ds_read_b128 v[{h+4}:{h+7}], v{vb} offset:1024')
            for dt in range(9):
                wv = WF + 36 * b + 4 * dt
                L.append(f'ds_read_b64_tr_b16 v[{wv}:{wv+1}], v{va} offset:{dt*32}')
                L.append(f'ds_read_b64_tr_b16 v[{wv+2}:{wv+3}], v{va} offset:{dt*32+2304}')
            return L
        def ldma():
            L = ['s_add_u32 m0, s40, s51',
                 'buffer_load_dwordx4 v1, s[16:19], s41 offen lds',
                 'buffer_load_dwordx4 v1, s[16:19], s41 offen offset:1024 lds',
                 's_add_u32 s49, s43, s51']
            def masked():
                a('s_mov_b64 exec, s[44:45]')
                for q in range(3):
                    a(f's_add_u32 m0, s49, {8192 + q*768}')
                    a(f'buffer_load_dwordx4 v{2+q}, s[4:7], s42 offen lds')
                a('s_mov_b64 exec, -1')
            L += [masked, 's_add_u32 s41, s41, 131072', 's_add_u32 s42, s42, 36864']
            return L
        def mfl(b):
            mf = []
            for dt in range(9):
                for tt in range(2):
                    acc = ACC + 4 * (9 * tt + dt); wv = WF + 36 * b + 4 * dt; h = HF + 8 * b + 4 * tt
                    mf.append([f'v_mfma_f32_16x16x32_bf16 v[{acc}:{acc+3}], v[{wv}:{wv+3}], v[{h}:{h+3}], v[{acc}:{acc+3}]'])
            return mf
        def it(b):
            me = 47 + b; ot = 47 + (b ^ 1); n = 'AB'[b]
            a(f's_mov_b32 s51, s{me}')
            a(f's_add_u32 s{me}, s{ot}, {ST5}'); a(f's_cmp_lt_u32 s{me}, {NS5*ST5}'); a(f's_cselect_b32 s{me}, s{me}, 0')
            a('s_cmp_ge_u32 s50, 14')
            if b == 0:
                a(f's_cbranch_scc1 K5_TW')
                a('s_waitcnt vmcnt(30) lgkmcnt(0)')
                a.label_nf('K5_WA')
            else:
                a(f's_cbranch_scc1 K5_WB')
                a('s_waitcnt vmcnt(30)')
                a.label_nf('K5_WB')
                a('s_waitcnt lgkmcnt(0)')
            a('s_barrier')
            mf = mfl(b)
            sr = me; bb = b ^ 1; L = []
            va = 7 + 2 * bb; vb = 8 + 2 * bb
            L.append(f'v_add_u32 v{va}, s{sr}, v5'); L.append(f'v_add_u32 v{vb}, s{sr}, v6')
            h = HF + 8 * bb
            L.append(f'ds_read_b128 v[{h}:{h+3}], v{vb}'); L.append(f'ds_read_b128 v[{h+4}:{h+7}], v{vb} offset:1024')
            for dt in range(9):
                wv = WF + 36 * bb + 4 * dt
                L.append(f'ds_read_b64_tr_b16 v[{wv}:{wv+1}], v{va} offset:{dt*32}')
                L.append(f'ds_read_b64_tr_b16 v[{wv+2}:{wv+3}], v{va} offset:{dt*32+2304}')
            interleave(a, mf[:14], L)
            a('s_cmp_ge_u32 s50, 14'); a(f's_cbranch_scc1 K5_ND{n}')
            interleave(a, mf[14:], ldma())
            a.label_nf(f'K5_J{n}')
        a(f's_mov_b32 s47, {8*ST5}'); a('s_mov_b32 s48, 0'); a('s_mov_b32 s50, 0')
        a(f's_add_u32 s41, s41, {8*131072}'); a(f's_add_u32 s42, s42, {8*36864}')
        a.label('K5_LOOP')
        it(0); it(1)
        a('s_add_u32 s50, s50, 1'); a('s_cmp_lt_u32 s50, 18'); a('s_cbranch_scc1 K5_LOOP')
        a.branch('s_branch K5_EPI')
        a.label('K5_TW')
        for t, nn in ((14, 25), (15, 15), (16, 5)):
            a(f's_cmp_lg_u32 s50, {t}'); a(f's_cbranch_scc1 K5_TW{t}')
            a(f's_waitcnt vmcnt({nn}) lgkmcnt(0)'); a('s_branch K5_WA')
            a.label_nf(f'K5_TW{t}')
        a('s_waitcnt vmcnt(0) lgkmcnt(0)'); a('s_branch K5_WA')
        for b in range(2):
            a.label(f'K5_ND{"AB"[b]}')
            for g_ in mfl(b)[14:]: a(g_[0])
            a(f's_branch K5_J{"AB"[b]}')
        a.label('K5_EPI')
        a('s_waitcnt lgkmcnt(0)'); a('s_nop 7')
    for k in range(36 if not LOOP5 else 0):
        b = k % 2
        if K5L or k + 1 >= 36: a('s_waitcnt lgkmcnt(0)')
        else: vm.wait(f'D{k+1}', ' lgkmcnt(0)')
        if k + 1 < 36: a('s_barrier')
        fill = read_list(k + 1) if k + 1 < 36 else []
        mf = []
        for dt in range(9):
            for tt in range(2):
                acc = ACC + 4 * (9 * tt + dt); wv = WF + 36 * b + 4 * dt; h = HF + 8 * b + 4 * tt
                c = '0' if k == 0 else f'v[{acc}:{acc+3}]'
                mf.append([f'v_mfma_f32_16x16x32_bf16 v[{acc}:{acc+3}], v[{wv}:{wv+3}], v[{h}:{h+3}], {c}'])
        interleave(a, mf[:14], fill)
        interleave(a, mf[14:], dma_list(k + 8) if (not K5L and k + 8 < 36) else [])
        if k in (11, 23): stamp(a, 2 if k == 11 else 3, 'k5')
    stamp(a, 4, 'k5')
    k5_epilogue(a, ACC)
    stamp(a, 5, 'k5')
    if 'k5' in STAMPS:
        a('v_mov_b32 v0, v15'); dump_stamps(a, 6, 'k5', 101)
    a('s_endpgm')
    if K5L:
        a.label('K5_LOAD')
        for k in range(NS5): dma(k)
        vm.wait('D0'); a('s_barrier')
        for k in range(35):
            vm.wait(f'D{k+1}'); a('s_barrier')
            if k + NS5 < 36: dma(k + NS5)
    a.label('K5_END')
    a('s_endpgm')
    return kernel_desc('k5_kernel', 176)


F56 = int(os.environ.get('F56', '1'))
def gen_k5a(a):
    a.raw(kernel_header('k5_kernel'))
    a('s_cmp_ge_u32 s2, 256'); a.branch('s_cbranch_scc1 K5_END')
    k5a_body(a, False)
    return kernel_desc('k5_kernel', 176 + 8 * 12, accum=176)
def k5a_body(a, fused):
    stamp(a, 0, 'k5')
    load_ptr(a, 4, 'w2'); load_ptr(a, 12, 'ws')
    if F56: load_ptr(a, 8, 'out')
    a('v_mov_b32 v15, v0')
    a('v_readfirstlane_b32 s39, v0'); a('s_lshr_b32 s39, s39, 6')
    a('v_and_b32 v0, 63, v0')
    a('v_lshlrev_b32 v1, 4, v0')
    a('s_mul_i32 s40, s39, 144')
    for q in range(3):
        a(f's_add_u32 s41, s40, {48*q}')
        a('v_add_u32 v10, s41, v0')
        if W2P: a(f'v_lshlrev_b32 v{2+q}, 4, v10'); continue
        a('v_mul_u32_u24 v11, 3641, v10'); a('v_lshrrev_b32 v11, 16, v11')
        a('v_mul_u32_u24 v12, 18, v11'); a('v_sub_u32 v12, v10, v12')
        a(f'v_mul_u32_u24 v{2+q}, 1152, v11'); a(f'v_lshl_add_u32 v{2+q}, v12, 4, v{2+q}')
    D = int(os.environ.get('K5D', '4')); STW = 9216; NSW = D + 1
    a('v_lshrrev_b32 v10, 5, v0'); a('v_lshlrev_b32 v10, 4, v10')
    a('v_bfe_u32 v11, v0, 4, 1'); a('v_lshl_add_u32 v10, v11, 2, v10')
    a('v_bfe_u32 v11, v0, 2, 2'); a('v_add_u32 v10, v10, v11'); a('v_mul_u32_u24 v5, 288, v10')
    a('v_and_b32 v11, 3, v0'); a('v_lshl_add_u32 v5, v11, 3, v5')
    a('s_lshl_b32 s40, s39, 11')
    a('s_and_b32 s36, s2, 7'); a('s_lshr_b32 s37, s2, 3')
    a('s_and_b32 s38, s36, 3')
    a('s_lshr_b32 s36, s36, 2'); a('s_lshl_b32 s36, s36, 3'); a('s_lshr_b32 s43, s37, 2'); a('s_add_u32 s36, s36, s43')
    a('s_and_b32 s37, s37, 3')
    a(f's_mul_i32 s41, s38, {36*131072}'); a('s_lshl_b32 s42, s36, 13'); a('s_add_u32 s41, s41, s42'); a('s_add_u32 s41, s41, s40')
    a(f's_mul_i32 s42, s38, {36*36864}'); a(f's_mul_i32 s43, s37, {9216 if W2P else 288}'); a('s_add_u32 s42, s42, s43')
    a('s_mul_i32 s43, s39, 2304')
    a('s_mov_b32 s44, -1'); a('s_mov_b32 s45, 0xffff')
    a('s_waitcnt lgkmcnt(0)')
    if W2P: copy_srd(a, 4, 12, SZ_W2P, WS_W2P)
    else: make_srd(a, 4, 4608 * 1152)
    copy_srd(a, 16, 12, SZ_HH, WS_HH); copy_srd(a, 20, 12, SZ_PART, WS_PART)
    if F56:
        make_srd(a, 8, 2048 * 1152); copy_srd(a, 24, 12, SZ_MOD, WS_MOD); copy_srd(a, 28, 12, SZ_X1, WS_X1)
        copy_srd(a, 52, 12, 8192, WS_CNT + CNT_OFF['k5'])
    if fused:
        copy_srd(a, 56, 12, 4096, WS_CNT + CNT_OFF['k2'])
        a('s_cmp_lg_u32 s39, 0'); a.branch('s_cbranch_scc1 K5_QD')
        a('s_lshl_b32 s60, s36, 2'); a('s_add_u32 s61, s60, 2')
        a('s_max_u32 s60, s60, 1'); a('s_sub_u32 s60, s60, 1')
        for r in (60, 61):
            a(f's_mul_i32 s{r}, s{r}, 7282'); a(f's_lshr_b32 s{r}, s{r}, 16')
            a(f's_lshl_b32 s62, s38, 3'); a(f's_add_u32 s{r}, s{r}, s62'); a(f's_lshl_b32 s{r}, s{r}, 7')
        a('s_mov_b32 s63, 0')
        a.label('K5_QL')
        a('buffer_load_dword v11, off, s[56:59], s60 sc1'); a('buffer_load_dword v12, off, s[56:59], s61 sc1')
        a('s_waitcnt vmcnt(0)')
        a('v_min_u32 v11, v11, v12'); a('v_readfirstlane_b32 s62, v11')
        a('s_cmp_ge_u32 s62, 9'); a.branch('s_cbranch_scc1 K5_QD')
        a('s_sleep 2')
        a('s_add_u32 s63, s63, 1'); a('s_cmp_lt_u32 s63, 0x10000'); a.branch('s_cbranch_scc1 K5_QL')
        a.label('K5_QD')
        a('s_barrier')
    ACC = 16; WF = 88; NR = 12
    def hh_loads(slot):
        h = 8 * slot
        return [f'buffer_load_dwordx4 a[{h}:{h+3}], v1, s[16:19], s41 offen',
                f'buffer_load_dwordx4 a[{h+4}:{h+7}], v1, s[16:19], s41 offen offset:1024']
    def w_dma(base_s):
        def masked():
            a('s_mov_b64 exec, s[44:45]')
            for q in range(3):
                a(f's_add_u32 m0, s{base_s}, {q*768}')
                a(f'buffer_load_dwordx4 v{2+q}, s[4:7], s42 offen lds')
            a('s_mov_b64 exec, -1')
        return masked
    def run(L):
        for f in L: f() if callable(f) else a(f)
    for k in range(D):
        a(f's_add_u32 s49, s43, {k*STW}')
        run(hh_loads(k)); w_dma(49)()
        a('s_add_u32 s41, s41, 131072'); a('s_add_u32 s42, s42, 36864')
    for i in range(72): a(f'v_mov_b32 v{16+i}, 0')
    a(f's_mov_b32 s47, {D*STW}'); a('s_mov_b32 s48, 0'); a('s_mov_b32 s50, 0')
    a(f's_waitcnt vmcnt({5*(D-1)})'); a('s_barrier')
    stamp(a, 1, 'k5')
    def reads(bb, areg):
        L = []
        for dt in range(9):
            wv = WF + 36 * bb + 4 * dt
            L.append(f'ds_read_b64_tr_b16 v[{wv}:{wv+1}], v{areg} offset:{dt*32}')
            L.append(f'ds_read_b64_tr_b16 v[{wv+2}:{wv+3}], v{areg} offset:{dt*32+2304}')
        return L
    run(reads(0, 5))
    def mfl(j):
        b = j % 2; mf = []
        for dt in range(9):
            for tt in range(2):
                acc = ACC + 4 * (9 * tt + dt); wv = WF + 36 * b + 4 * dt; h = 8 * j + 4 * tt
                mf.append([f'v_mfma_f32_16x16x32_bf16 v[{acc}:{acc+3}], v[{wv}:{wv+3}], a[{h}:{h+3}], v[{acc}:{acc+3}]'])
        return mf
    tailw = {j: 5 * (10 - j) for j in range(13 - D, 11)}
    WM = 5 * (D - 2); JN = 12 - D
    def it(j):
        b = j % 2; me = 47 + b; ot = 47 + (b ^ 1)
        a(f's_mov_b32 s51, s{me}')
        a(f's_add_u32 s{me}, s{ot}, {STW}'); a(f's_cmp_lt_u32 s{me}, {NSW*STW}'); a(f's_cselect_b32 s{me}, s{me}, 0')
        if j in tailw:
            a('s_cmp_eq_u32 s50, 2'); a(f's_cbranch_scc1 K5_TW{j}')
            a(f's_waitcnt vmcnt({WM}) lgkmcnt(0)')
            a.label_nf(f'K5_WB{j}')
        else:
            a(f's_waitcnt vmcnt({WM}) lgkmcnt(0)')
        a('s_barrier')
        mf = mfl(j)
        va = 7 + (b ^ 1)
        L = [f'v_add_u32 v{va}, s{me}, v5', 's_add_u32 s49, s43, s51'] + reads(b ^ 1, va)
        interleave(a, mf[:14], L)
        dma = hh_loads((j + D) % NR) + [w_dma(49), 's_add_u32 s41, s41, 131072', 's_add_u32 s42, s42, 36864']
        if j >= JN:
            a('s_cmp_eq_u32 s50, 2'); a(f's_cbranch_scc1 K5_ND{j}')
        interleave(a, mf[14:], dma)
        if j >= JN: a.label_nf(f'K5_J{j}')
    a.label('K5_LOOP')
    for j in range(12): it(j)
    a('s_add_u32 s50, s50, 1'); a('s_cmp_lt_u32 s50, 3'); a('s_cbranch_scc1 K5_LOOP')
    a.branch('s_branch K5_EPI')
    for j, nn in tailw.items():
        a.label(f'K5_TW{j}')
        a(f's_waitcnt vmcnt({nn}) lgkmcnt(0)'); a(f's_branch K5_WB{j}')
    for j in range(JN, 12):
        a.label(f'K5_ND{j}')
        for g_ in mfl(j)[14:]: a(g_[0])
        a(f's_branch K5_J{j}')
    a.label('K5_EPI')
    a('s_waitcnt lgkmcnt(0)'); a('s_nop 7')
    stamp(a, 4, 'k5')
    if F56: k56_pre(a)
    k5_epilogue(a, ACC)
    stamp(a, 5, 'k5')
    if 'k5' in STAMPS and not F56:
        a('v_mov_b32 v0, v15'); dump_stamps(a, 6, 'k5', 101)
    if F56: k56_tail(a)
    a.label('K5_END')
    a('s_endpgm')

def k56_pre(a):
    a('s_lshr_b32 s56, s39, 1'); a('s_and_b32 s57, s39, 1')
    a('s_lshl_b32 s58, s36, 2'); a('s_add_u32 s58, s58, s37')
    a(f"s_lshl_b32 s65, s58, {os.environ.get('F56S', '7')}")
    a('s_lshl_b32 s59, s58, 2'); a('s_add_u32 s59, s59, s38'); a('s_lshl_b32 s59, s59, 1'); a('s_add_u32 s59, s59, s56'); a('s_mul_i32 s59, s59, 5120')
    a('s_lshl_b32 s60, s36, 7'); a('s_lshl_b32 s61, s38, 5'); a('s_add_u32 s60, s60, s61'); a('s_lshl_b32 s61, s56, 4'); a('s_add_u32 s60, s60, s61')
    a('s_mul_i32 s61, s37, 144'); a('s_lshl_b32 s62, s57, 6'); a('s_add_u32 s61, s61, s62')
    a('s_mul_i32 s62, s60, 1152'); a('s_lshl_b32 s63, s61, 1'); a('s_add_u32 s62, s62, s63')
    a('s_lshl_b32 s63, s61, 2'); a(f's_add_u32 s63, s63, {5*2304}')
    a('v_and_b32 v2, 15, v0'); a('v_mul_u32_u24 v2, 1152, v2'); a('v_lshrrev_b32 v3, 4, v0'); a('v_lshl_add_u32 v2, v3, 3, v2')
    a('v_lshlrev_b32 v3, 4, v3')
    a('s_lshl_b32 s64, s57, 11'); a('s_add_u32 s64, s64, s59')
    X = 136; G = 148
    if 'k5' in STAMPS: a('v_mov_b32 v170, v15')
    for j in range(5): a(f'buffer_load_dwordx2 v[{X+2*j}:{X+2*j+1}], v2, s[28:31], s62 offen offset:{j*32}')
    for j in range(5): a(f'buffer_load_dwordx4 v[{G+4*j}:{G+4*j+3}], v3, s[24:27], s63 offen offset:{j*64}')

def k56_tail(a):
    a('s_waitcnt vmcnt(0)'); a('s_barrier')
    stamp(a, 6, 'k5')
    a('s_cmp_lg_u32 s39, 0'); a.branch('s_cbranch_scc1 K5_PD')
    a('s_mov_b64 exec, 1'); a('v_mov_b32 v11, 1')
    a('buffer_atomic_add v11, off, s[52:55], s65 sc0 sc1')
    a('s_mov_b64 exec, -1')
    a('s_mov_b32 s67, 0')
    a('s_waitcnt vmcnt(0)'); a('v_readfirstlane_b32 s66, v11')
    a('s_cmp_ge_u32 s66, 3'); a.branch('s_cbranch_scc1 K5_PD')
    a.label('K5_PL')
    a('buffer_load_dword v11, off, s[52:55], s65 sc1')
    a('s_waitcnt vmcnt(0)'); a('v_readfirstlane_b32 s66, v11')
    a('s_cmp_ge_u32 s66, 4'); a.branch('s_cbranch_scc1 K5_PD')
    a('s_add_u32 s67, s67, 1'); a('s_cmp_lt_u32 s67, 0x10000'); a.branch('s_cbranch_scc1 K5_PL')
    a.label('K5_PD')
    a('s_barrier')
    stamp(a, 7, 'k5')
    SS = 64 * 4 * 10240
    P = 8; SC = 60; nf = 5; n = 20
    a('s_add_u32 s60, s59, 4096')
    for s_ in range(4):
        if s_: a(f's_add_u32 s64, s64, {SS}'); a(f's_add_u32 s60, s60, {SS}')
        b = P + 12 * s_
        a(f'buffer_load_dword v{SC+s_}, v1, s[20:23], s60 offen offset:8 sc1')
        a(f'buffer_load_dwordx4 v[{b}:{b+3}], v1, s[20:23], s64 offen sc1')
        a(f'buffer_load_dwordx4 v[{b+4}:{b+7}], v1, s[20:23], s64 offen offset:1024 sc1')
        a(f'buffer_load_dwordx2 v[{b+8}:{b+9}], v1, s[20:23], s64 offen offset:2048 sc1')
    X = 136; G = 148; R = 88; T = 108
    for s_ in range(4):
        a(f's_waitcnt vmcnt({4*(3-s_)})')
        if s_ == 3: stamp(a, 2, 'k5')
        b = P + 12 * s_
        for i in range(n):
            src = b + i // 2
            sel = f'op_sel:[{i%2},0,0] op_sel_hi:[1,0,0]'
            if s_ == 0: a(f'v_fma_mix_f32 v{R+i}, v{src}, v{SC+s_}, 0 {sel}')
            else: a(f'v_fma_mix_f32 v{R+i}, v{src}, v{SC+s_}, v{R+i} {sel}')
    for i in range(n // 2): a(f'v_cvt_pk_bf16_f32 v{T+i}, v{R+2*i}, v{R+2*i+1}')
    for i in range(n // 2): unpack_lo(a, R + 2 * i, T + i); unpack_hi(a, R + 2 * i + 1, T + i)
    for i in range(n): a(f'v_mul_f32 v{R+i}, v{R+i}, v{G+i}')
    for i in range(n // 2): a(f'v_cvt_pk_bf16_f32 v{T+i}, v{R+2*i}, v{R+2*i+1}')
    for i in range(n // 2): unpack_lo(a, R + 2 * i, T + i); unpack_hi(a, R + 2 * i + 1, T + i)
    for i in range(n // 2): unpack_lo(a, P + 2 * i, X + i); unpack_hi(a, P + 2 * i + 1, X + i)
    for i in range(n): a(f'v_add_f32 v{R+i}, v{R+i}, v{P+i}')
    for i in range(n // 2): a(f'v_cvt_pk_bf16_f32 v{T+i}, v{R+2*i}, v{R+2*i+1}')
    for j in range(nf): a(f'buffer_store_dwordx2 v[{T+2*j}:{T+2*j+1}], v2, s[8:11], s62 offen offset:{j*32}' + os.environ.get('OUTMOD', ''))
    if 'k5' in STAMPS:
        a('s_waitcnt vmcnt(0)'); stamp(a, 3, 'k5')
        a('v_mov_b32 v0, v170'); dump_stamps(a, 8, 'k5', 101)

def k5_epilogue(a, ACC):
    a('s_lshl_b32 s41, s38, 6'); a('s_lshl_b32 s42, s36, 2'); a('s_add_u32 s41, s41, s42'); a('s_add_u32 s41, s41, s37')
    a('s_lshl_b32 s41, s41, 2'); a('s_add_u32 s41, s41, s39'); a(f's_mul_i32 s41, s41, {10*1024}')
    MX = 88
    for tt in range(2):
        A0 = ACC + 36 * tt; m = MX + 24 * tt
        for c in range(4):
            a(f'v_max3_f32 v{m+c}, |v{A0+9*c}|, |v{A0+9*c+1}|, |v{A0+9*c+2}|')
        for j in range(3, 9, 2):
            for c in range(4): a(f'v_max3_f32 v{m+c}, |v{A0+9*c+j}|, |v{A0+9*c+j+1}|, v{m+c}')
        a(f'v_max3_f32 v{m}, v{m}, v{m+1}, v{m+2}'); a(f'v_max_f32 v{m}, v{m}, v{m+3}')
        a(f'v_frexp_exp_i32_f32 v{m+1}, v{m}')
        a(f'v_sub_u32 v{m+2}, 15, v{m+1}')
        a(f'v_max_i32 v{m+2}, -100, v{m+2}'); a(f'v_min_i32 v{m+2}, 100, v{m+2}')
        a(f'v_ldexp_f32 v{m+3}, 1.0, v{m+2}')
        a(f'v_sub_u32 v{m+2}, 0, v{m+2}'); a(f'v_ldexp_f32 v{m+22}, 1.0, v{m+2}')
        for i in range(36): a(f'v_mul_f32 v{A0+i}, v{A0+i}, v{m+3}')
        for i in range(18): a(f'v_cvt_pk_f16_f32 v{m+4+i}, v{A0+2*i}, v{A0+2*i+1}')
        a(f'v_mov_b32 v{m+23}, 0')
        for p in range(5):
            i = 5 * tt + p
            if i % 4 == 0 and i: a(f's_add_u32 s41, s41, 4096')
            a(f'buffer_store_dwordx4 v[{m+4+4*p}:{m+7+4*p}], v1, s[20:23], s41 offen offset:{(i%4)*1024}' + os.environ.get('STMOD5', ' sc1'))

def gen_k6(a):
    a.raw(kernel_header('k6_kernel'))
    dbgt(a, 5, 5, 'DBGT_6')
    a('s_cmp_ge_u32 s2, 256'); a.branch('s_cbranch_scc1 K6_END')
    load_ptr(a, 4, 'ws'); load_ptr(a, 8, 'out')
    a('v_readfirstlane_b32 s3, v0'); a('s_lshr_b32 s3, s3, 6')
    a('v_and_b32 v0, 63, v0')
    a('v_lshlrev_b32 v1, 4, v0')
    a('s_lshr_b32 s21, s3, 1'); a('s_and_b32 s22, s3, 1')
    a('s_lshl_b32 s20, s2, 1'); a('s_add_u32 s20, s20, s21'); a('s_mul_i32 s20, s20, 5120')
    a('s_and_b32 s23, s2, 3')
    a('s_lshr_b32 s24, s2, 2'); a('s_and_b32 s25, s24, 3'); a('s_lshr_b32 s24, s24, 2')
    a('s_lshl_b32 s26, s24, 7'); a('s_lshl_b32 s27, s23, 5'); a('s_add_u32 s26, s26, s27'); a('s_lshl_b32 s27, s21, 4'); a('s_add_u32 s26, s26, s27')
    a('s_mul_i32 s27, s25, 144'); a('s_lshl_b32 s28, s22, 6'); a('s_add_u32 s27, s27, s28')
    a('s_mul_i32 s29, s26, 1152'); a('s_lshl_b32 s28, s27, 1'); a('s_add_u32 s29, s29, s28')
    a('s_lshl_b32 s30, s27, 2'); a(f's_add_u32 s30, s30, {5*2304}')
    a('v_and_b32 v2, 15, v0'); a('v_mul_u32_u24 v2, 1152, v2'); a('v_lshrrev_b32 v3, 4, v0'); a('v_lshl_add_u32 v2, v3, 3, v2')
    a('v_lshlrev_b32 v3, 4, v3')
    a('s_lshl_b32 s31, s22, 11'); a('s_add_u32 s31, s31, s20')
    a('s_waitcnt lgkmcnt(0)')
    copy_srd(a, 12, 4, SZ_PART, WS_PART); copy_srd(a, 16, 4, SZ_X1, WS_X1); copy_srd(a, 32, 4, SZ_MOD, WS_MOD)
    make_srd(a, 8, 2048 * 1152)
    SS = 64 * 4 * 10240
    a('s_cmp_eq_u32 s22, 1'); a.branch('s_cbranch_scc1 K6_B')
    for half in range(2):
        nf = 4 + half
        if half: a.label('K6_B')
        P = 8
        for s_ in range(4):
            if s_: a(f's_add_u32 s31, s31, {SS}'); a(f's_add_u32 s20, s20, {SS}')
            b = P + 12 * s_
            a(f'buffer_load_dwordx4 v[{b}:{b+3}], v1, s[12:15], s31 offen')
            a(f'buffer_load_dwordx4 v[{b+4}:{b+7}], v1, s[12:15], s31 offen offset:1024')
            if half: a(f'buffer_load_dwordx4 v[{b+8}:{b+11}], v1, s[12:15], s31 offen offset:2048')
            else:
                a(f's_add_u32 s36, s20, 4096')
                a(f'buffer_load_dword v{b+10}, v1, s[12:15], s36 offen offset:8')
        X = 56; G = 68; R = 88; T = 108
        for j in range(nf): a(f'buffer_load_dwordx2 v[{X+2*j}:{X+2*j+1}], v2, s[16:19], s29 offen offset:{j*32}')
        for j in range(nf): a(f'buffer_load_dwordx4 v[{G+4*j}:{G+4*j+3}], v3, s[32:35], s30 offen offset:{j*64}')
        n = 4 * nf
        for s_ in range(4):
            a(f's_waitcnt vmcnt({2*nf + 3*(3-s_)})')
            b = P + 12 * s_
            for i in range(n):
                src = b + i // 2
                sel = f'op_sel:[{i%2},0,0] op_sel_hi:[1,0,0]'
                if s_ == 0: a(f'v_fma_mix_f32 v{R+i}, v{src}, v{b+10}, 0 {sel}')
                else: a(f'v_fma_mix_f32 v{R+i}, v{src}, v{b+10}, v{R+i} {sel}')
        for i in range(n // 2): a(f'v_cvt_pk_bf16_f32 v{T+i}, v{R+2*i}, v{R+2*i+1}')
        for i in range(n // 2): unpack_lo(a, R + 2 * i, T + i); unpack_hi(a, R + 2 * i + 1, T + i)
        a('s_waitcnt vmcnt(0)')
        for i in range(n): a(f'v_mul_f32 v{R+i}, v{R+i}, v{G+i}')
        for i in range(n // 2): a(f'v_cvt_pk_bf16_f32 v{T+i}, v{R+2*i}, v{R+2*i+1}')
        for i in range(n // 2): unpack_lo(a, R + 2 * i, T + i); unpack_hi(a, R + 2 * i + 1, T + i)
        for i in range(n // 2): unpack_lo(a, P + 2 * i, X + i); unpack_hi(a, P + 2 * i + 1, X + i)
        for i in range(n): a(f'v_add_f32 v{R+i}, v{R+i}, v{P+i}')
        for i in range(n // 2): a(f'v_cvt_pk_bf16_f32 v{T+i}, v{R+2*i}, v{R+2*i+1}')
        for j in range(nf): a(f'buffer_store_dwordx2 v[{T+2*j}:{T+2*j+1}], v2, s[8:11], s29 offen offset:{j*32}')
        if half == 0:
            a('s_waitcnt vmcnt(0)'); dbgt(a, 5, 6, 'DBGT_6E'); a('s_endpgm')
    a.label('K6_END')
    a('s_endpgm')
    return kernel_desc('k6_kernel', 120)
```

```python
from gen_common import *

def ln_core(a, nch, xp, xf, tmp, nw, v_redw, v_redr, red_off, out_xn, hooks=None):
    n = 8 * nch
    for i in range(4 * nch):
        unpack_lo(a, xf + 2 * i, xp + i); unpack_hi(a, xf + 2 * i + 1, xp + i)
    s = tmp; t1 = tmp + 1
    for k in range(4): a(f'v_add_f32 v{tmp+2+k}, v{xf+k}, v{xf+4+k}')
    for i in range(8, n):
        a(f'v_add_f32 v{tmp+2+(i%4)}, v{tmp+2+(i%4)}, v{xf+i}')
    a(f'v_add_f32 v{tmp+2}, v{tmp+2}, v{tmp+3}')
    a(f'v_add_f32 v{tmp+4}, v{tmp+4}, v{tmp+5}')
    a(f'v_add_f32 v{s}, v{tmp+2}, v{tmp+4}')
    red_l8(a, s, t1)
    a(f'ds_write_b32 v{v_redw}, v{s} offset:{red_off}')
    a('s_waitcnt lgkmcnt(0)')
    if hooks: hooks[0]()
    a('s_barrier')
    late = hooks is not None and len(hooks) > 4 and hooks[4]
    if hooks and not late: hooks[1]()
    def gather(off, mid=None):
        for w in range(nw): a(f'ds_read_b32 v{tmp+2+w}, v{v_redr} offset:{off + w*32}')
        if mid: mid(); a('s_waitcnt lgkmcnt(15)')
        else: a('s_waitcnt lgkmcnt(0)')
        for w in range(1, nw): a(f'v_add_f32 v{tmp+2}, v{tmp+2}, v{tmp+2+w}')
    gather(red_off, hooks[1] if late else None)
    mean = tmp
    a(f'v_mul_f32 v{mean}, {f32bits(1.0/576)}, v{tmp+2}')
    acc = [tmp + 2 + k for k in range(4)]
    d = tmp + 6
    for i in range(n):
        a(f'v_sub_f32 v{d + (i%4)}, v{xf+i}, v{mean}')
        if i < 4: a(f'v_mul_f32 v{acc[i]}, v{d+i}, v{d+i}')
        else: a(f'v_fmac_f32 v{acc[i%4]}, v{d+(i%4)}, v{d+(i%4)}')
    a(f'v_add_f32 v{acc[0]}, v{acc[0]}, v{acc[1]}')
    a(f'v_add_f32 v{acc[2]}, v{acc[2]}, v{acc[3]}')
    a(f'v_add_f32 v{t1}, v{acc[0]}, v{acc[2]}')
    red_l8(a, t1, tmp + 6)
    off2 = red_off + nw * 32
    a(f'ds_write_b32 v{v_redw}, v{t1} offset:{off2}')
    round_bf16_1(a, mean, mean)
    a('s_waitcnt lgkmcnt(0)')
    if hooks: hooks[2]()
    a('s_barrier')
    if hooks and not late: hooks[3]()
    gather(off2, hooks[3] if late else None)
    r = tmp + 1
    a(f'v_mul_f32 v{r}, {f32bits(1.0/576)}, v{tmp+2}')
    round_bf16_1(a, r, r)
    a(f'v_add_f32 v{r}, {f32bits(1e-5)}, v{r}')
    round_bf16_1(a, r, r)
    a(f'v_sqrt_f32 v{r}, v{r}')
    round_bf16_1(a, r, r)
    a(f'v_rcp_f32 v{r}, v{r}')
    for i in range(n): a(f'v_sub_f32 v{xf+i}, v{xf+i}, v{mean}')
    for i in range(4 * nch): a(f'v_cvt_pk_bf16_f32 v{out_xn+i}, v{xf+2*i}, v{xf+2*i+1}')
    for i in range(4 * nch):
        unpack_lo(a, xf + 2 * i, out_xn + i); unpack_hi(a, xf + 2 * i + 1, out_xn + i)
    for i in range(n): a(f'v_mul_f32 v{xf+i}, v{xf+i}, v{r}')
    for i in range(4 * nch): a(f'v_cvt_pk_bf16_f32 v{out_xn+i}, v{xf+2*i}, v{xf+2*i+1}')

N_MOD = 54; N_LN1 = 256; N_KG = 576
import os
N_PF = int(os.environ.get('NPF', '0'))
TLBW = int(os.environ.get('TLBW', '21'))
N_TW = 8 if TLBW else 0
K1_GRID = N_MOD + N_LN1 + N_KG + N_PF + N_TW
K1_LDS = 36864
F12 = int(os.environ.get('F12', '0'))
N_PROD = N_MOD + N_LN1
def arrive(a, vt=2):
    a('s_and_b32 s68, s2, 63'); a('s_lshl_b32 s68, s68, 2')
    a('s_mov_b64 exec, 1'); a(f'v_mov_b32 v{vt}, 1')
    a(f'buffer_atomic_add v{vt}, off, s[64:67], s68 sc1')
def dbg_srd(a):
    a('s_mov_b32 s66, 256'); a('s_mov_b32 s67, 0x20000')

def gen_k1(a):
    a.raw(kernel_header('k1_kernel'))
    if F12: load_ptr(a, 64, 'dbg')
    K1W = int(os.environ.get('K1W', '200'))
    stamp(a, 0, 'k1')
    if 'k1' in STAMPS: a('s_mov_b32 s91, s90'); a('s_mov_b32 s92, s90'); a('s_mov_b32 s93, s90')
    def fin(tag):
        if 'k1' not in STAMPS: return
        a('s_mov_b64 exec, -1'); stamp(a, 2, 'k1'); a('s_waitcnt vmcnt(0)'); stamp(a, 3, 'k1')
        dump_stamps(a, 4, 'k1', K1W, sfx=tag)
    dbgt(a, 0, 0, 'DBGT_1')
    ORD = int(os.environ.get('K1ORD', '1'))
    if ORD == 1:
        a(f's_add_u32 s3, s2, {N_MOD+N_LN1}'); a(f's_sub_u32 s4, s2, {N_KG}')
        a(f's_cmp_lt_u32 s2, {N_MOD+N_LN1+N_KG}'); a('s_cselect_b32 s4, s4, s2')
        a(f's_cmp_lt_u32 s2, {N_KG}'); a('s_cselect_b32 s2, s3, s4')
    elif ORD == 2:
        a(f's_add_u32 s3, s2, {N_MOD+N_LN1}'); a(f's_sub_u32 s4, s2, {N_KG - N_MOD}'); a(f's_sub_u32 s5, s2, {N_KG + N_LN1}')
        a(f's_cmp_lt_u32 s2, {N_MOD+N_LN1+N_KG}'); a('s_cselect_b32 s5, s5, s2')
        a(f's_cmp_lt_u32 s2, {N_KG+N_LN1}'); a('s_cselect_b32 s4, s4, s5')
        a(f's_cmp_lt_u32 s2, {N_KG}'); a('s_cselect_b32 s2, s3, s4')
    elif ORD == 3:
        a(f's_add_u32 s3, s2, {N_LN1}'); a(f's_sub_u32 s4, s2, {N_KG}')
        a(f's_cmp_lt_u32 s2, {N_MOD+N_LN1+N_KG}'); a('s_cselect_b32 s4, s4, s2')
        a(f's_cmp_lt_u32 s2, {N_KG+N_MOD}'); a('s_cselect_b32 s3, s3, s4')
        a(f's_cmp_lt_u32 s2, {N_MOD}'); a('s_cselect_b32 s2, s2, s3')
    a(f's_cmp_lt_u32 s2, {N_MOD}'); a.branch('s_cbranch_scc1 K1_MOD')
    a(f's_cmp_lt_u32 s2, {N_MOD+N_LN1}'); a.branch('s_cbranch_scc1 K1_LN')
    a(f's_cmp_lt_u32 s2, {N_MOD+N_LN1+N_KG}'); a.branch('s_cbranch_scc1 K1_KG')
    if N_TW:
        a(f's_cmp_ge_u32 s2, {K1_GRID}'); a.branch('s_cbranch_scc1 K1_END')
        load_ptr(a, 4, 'ws'); load_ptr(a, 8, 'w1'); load_ptr(a, 12, 'w3'); load_ptr(a, 16, 'w2'); load_ptr(a, 20, 'out')
        a(f'v_lshlrev_b32 v1, {TLBW}, v0')
        a('s_waitcnt lgkmcnt(0)')
        copy_srd(a, 24, 4, SZ_RK, WS_RK)
        make_srd(a, 4, WS_W2P + SZ_W2P); make_srd(a, 8, 576 * 9216); make_srd(a, 12, 576 * 9216); make_srd(a, 16, 4608 * 1152); make_srd(a, 20, 2048 * 1152)
        r = 8
        span = 256 << TLBW
        if F12:
            a('v_add_u32 v4, 0x8000, v1'); a('v_mov_b32 v5, 0x7ffffff0'); a('v_lshrrev_b32 v6, 1, v0'); a('v_cmp_eq_u32 vcc, 1, v6'); a('v_cndmask_b32 v4, v4, v5, vcc')
            a(f'buffer_load_dword v{r}, v4, s[4:7], 0 offen'); r += 1
        for srd, size in ((4, WS_W2P + SZ_W2P), (24, SZ_RK), (8, 576 * 9216), (12, 576 * 9216), (16, 4608 * 1152), (20, 2048 * 1152)):
            if F12 and srd in (4, 24): continue
            for i in range((size + span - 1) // span):
                if i: a(f'v_add_u32 v2, {i * span}, v1')
                a(f'buffer_load_dword v{r}, v{2 if i else 1}, s[{srd}:{srd+3}], 0 offen'); r += 1
        if int(os.environ.get('SPEC', '1')):
            a(f's_sub_u32 s30, s2, {N_MOD+N_LN1+N_KG+N_PF}')
            a('s_cmp_ge_u32 s30, 7'); a.branch('s_cbranch_scc1 K1_TW_E')
            a(f's_add_u32 s32, s4, {hex(WS_XF)}'); a('s_addc_u32 s33, s5, 0'); a(f's_mov_b32 s34, {hex(SZ_XF)}'); a('s_mov_b32 s35, 0x20000')
            a('s_mul_i32 s31, s30, 9'); a('s_cmp_gt_u32 s30, 0'); a('s_addc_u32 s31, s31, 0'); a('s_mul_i32 s31, s31, 36864')
            for i in range(4): a(f'v_mov_b32 v{40+i}, -1')
            a('v_lshlrev_b32 v3, 4, v0')
            for i in range(9):
                a(f'buffer_store_dwordx4 v[40:43], v3, s[32:35], s31 offen')
                if i < 8: a('s_add_u32 s31, s31, 4096')
            a.label('K1_TW_E')
        fin('tw')
        a('s_waitcnt vmcnt(0)')
    if N_PF:
        a(f's_cmp_ge_u32 s2, {K1_GRID}'); a.branch('s_cbranch_scc1 K1_END')
        a(f's_sub_u32 s3, s2, {N_MOD+N_LN1+N_KG}')
        a('s_mul_i32 s8, s3, 911'); a('s_lshr_b32 s8, s8, 16')
        a('s_mul_i32 s9, s8, 72'); a('s_sub_u32 s9, s3, s9')
        a('s_lshl_b32 s8, s8, 3'); a(f's_add_u32 s8, s8, {KA["w1"]}')
        a('s_load_dwordx2 s[4:5], s[0:1], s8')
        a('s_mul_i32 s9, s9, 73728')
        a('v_lshlrev_b32 v1, 4, v0')
        a('s_waitcnt lgkmcnt(0)')
        make_srd(a, 4, 576 * 9216)
        for i in range(18):
            a(f's_add_u32 s10, s9, {i*4096}')
            a(f'buffer_load_dwordx4 v[{8+4*i}:{11+4*i}], v1, s[4:7], s10 offen')
        a('s_waitcnt vmcnt(0)')
    a('s_endpgm')
    a.label('K1_MOD')
    load_ptr(a, 4, 'wmod'); load_ptr(a, 8, 'c'); load_ptr(a, 12, 'ws')
    a('v_and_b32 v1, 7, v0')
    a('v_lshrrev_b32 v2, 3, v0')
    a('v_mul_u32_u24 v3, 36, v2')
    a(f'v_mul_u32_u24 v4, {18*6912}, v2')
    a('v_lshl_add_u32 v4, v1, 4, v4')
    a('s_lshl_b32 s3, s2, 7')
    a('v_add_u32 v4, s3, v4')
    a('s_waitcnt lgkmcnt(0)')
    copy_srd(a, 40, 12, SZ_CNT, WS_CNT)
    make_srd(a, 4, 576 * 6912); make_srd(a, 8, 1152); make_srd(a, 12, SZ_MOD, WS_MOD)
    for i in range(4): a(f'v_mov_b32 v{112+i}, 0')
    a('v_lshlrev_b32 v116, 4, v0'); a('s_lshl_b32 s44, s2, 12'); a('v_add_u32 v116, s44, v116')
    a('buffer_store_dwordx4 v[112:115], v116, s[40:43], 0 offen')
    C = 8; W = 20
    a(f'buffer_load_dwordx4 v[{C}:{C+3}], v3, s[8:11], 0 offen')
    a(f'buffer_load_dwordx4 v[{C+4}:{C+7}], v3, s[8:11], 0 offen offset:16')
    a(f'buffer_load_dword v{C+8}, v3, s[8:11], 0 offen offset:32')
    for i in range(18):
        a(f's_mov_b32 s{16+i}, {i*6912}')
        a(f'buffer_load_dwordx4 v[{W+4*i}:{W+4*i+3}], v4, s[4:7], s{16+i} offen')
    S = 92
    a('s_waitcnt vmcnt(18)')
    stamp(a, 1, 'k1')
    for i in range(9):
        unpack_lo(a, S + 2 * i, C + i); unpack_hi(a, S + 2 * i + 1, C + i)
    T = 110
    for i in range(18): a(f'v_mul_f32 v{T+i}, {f32bits(-LOG2E)}, v{S+i}')
    for i in range(18): a(f'v_exp_f32 v{T+i}, v{T+i}')
    for i in range(18): a(f'v_add_f32 v{T+i}, 1.0, v{T+i}')
    for i in range(18): a(f'v_rcp_f32 v{T+i}, v{T+i}')
    for i in range(18): a(f'v_mul_f32 v{S+i}, v{S+i}, v{T+i}')
    for i in range(9): a(f'v_cvt_pk_bf16_f32 v{T+i}, v{S+2*i}, v{S+2*i+1}')
    for i in range(9):
        unpack_lo(a, S + 2 * i, T + i); unpack_hi(a, S + 2 * i + 1, T + i)
    ACC = 110; U = 118
    for i in range(18):
        a(f's_waitcnt vmcnt({17-i})')
        for j in range(4):
            unpack_lo(a, U + 2 * j, W + 4 * i + j); unpack_hi(a, U + 2 * j + 1, W + 4 * i + j)
        for j in range(8):
            if i == 0: a(f'v_mul_f32 v{ACC+j}, v{S+i}, v{U+j}')
            else: a(f'v_fmac_f32 v{ACC+j}, v{S+i}, v{U+j}')
    red_l8_multi(a, [ACC + j for j in range(8)], [U + j for j in range(8)])
    a('v_lshrrev_b32 v5, 6, v0')
    a('v_lshlrev_b32 v5, 8, v5')
    a('v_lshl_add_u32 v5, v1, 5, v5')
    a(f'ds_write_b128 v5, v[{ACC}:{ACC+3}]')
    a(f'ds_write_b128 v5, v[{ACC+4}:{ACC+7}] offset:16')
    a('s_waitcnt lgkmcnt(0)'); a('s_barrier')
    a('v_cmp_gt_u32 vcc, 64, v0')
    a('s_and_saveexec_b64 s[40:41], vcc')
    a.branch('s_cbranch_execz K1_END')
    a('v_lshlrev_b32 v6, 2, v0')
    for w in range(4): a(f'ds_read_b32 v{8+w}, v6 offset:{w*256}')
    a('s_waitcnt lgkmcnt(0)')
    a('v_add_f32 v8, v8, v9'); a('v_add_f32 v10, v10, v11'); a('v_add_f32 v8, v8, v10')
    round_bf16_1(a, 8, 8)
    a('s_lshl_b32 s3, s2, 8')
    a('v_add_u32 v6, s3, v6')
    a('buffer_store_dword v8, v6, s[12:15], 0 offen' + (' sc1' if F12 else ''))
    if F12: dbg_srd(a); a('s_waitcnt vmcnt(0)'); arrive(a)
    fin('mod')
    a('s_endpgm')
    a.label('K1_LN')
    a('v_readfirstlane_b32 s4, v0')
    a('s_cmp_ge_u32 s4, 192'); a.branch('s_cbranch_scc1 K1_END')
    load_ptr(a, 4, 'u'); load_ptr(a, 8, 'ws')
    a(f's_sub_u32 s3, s2, {N_MOD}')
    a('v_and_b32 v1, 7, v0')
    a('v_lshrrev_b32 v2, 3, v0')
    a('v_mul_u32_u24 v3, 1152, v1')
    a('v_lshl_add_u32 v3, v2, 4, v3')
    a('s_mul_i32 s12, s3, 9216')
    a('s_waitcnt lgkmcnt(0)')
    make_srd(a, 4, 2048 * 1152); make_srd(a, 8, SZ_XT, WS_XT)
    XP = 8; XF = 20; TMP = 44; XN = 60
    for i in range(3):
        a(f'buffer_load_dwordx4 v[{XP+4*i}:{XP+4*i+3}], v3, s[4:7], s12 offen offset:{i*24*16}')
    RED = 72 * 288
    a('v_lshrrev_b32 v4, 6, v0')
    a('v_lshlrev_b32 v4, 5, v4')
    a('v_lshl_add_u32 v4, v1, 2, v4')
    a('v_lshlrev_b32 v5, 2, v1')
    a('v_mul_u32_u24 v6, 288, v2')
    a('v_lshl_add_u32 v6, v1, 2, v6')
    a('s_mov_b32 s14, 0x05040100'); a('s_mov_b32 s15, 0x07060302')
    a('s_waitcnt vmcnt(0)')
    stamp(a, 1, 'k1')
    ln_core(a, 3, XP, XF, TMP, 3, 4, 5, RED, XN)
    for i in range(3):
        for j in range(4):
            r = 4 * i + j
            a(f'v_perm_b32 v{XF+2*r}, v{XP+r}, v{XN+r}, s14')
            a(f'v_perm_b32 v{XF+2*r+1}, v{XP+r}, v{XN+r}, s15')
        for e in range(8):
            a(f'ds_write_b32 v6, v{XF+8*i+e} offset:{i*24*288 + e*32}')
    a('s_waitcnt lgkmcnt(0)'); a('s_barrier')
    a('v_lshrrev_b32 v1, 4, v0')
    a('v_mul_u32_u24 v1, 288, v1')
    a('v_and_b32 v2, 15, v0')
    a('v_lshl_add_u32 v1, v2, 4, v1')
    a('v_lshlrev_b32 v2, 4, v0')
    a(f's_mul_i32 s12, s3, {XT_STRIDE}')
    for j in range(6): a(f'ds_read_b128 v[{XF+4*j}:{XF+4*j+3}], v1 offset:{j*12*288}')
    for j in range(6):
        a(f's_waitcnt lgkmcnt({5-j})')
        a(f's_add_u32 s13, s12, {j*3072}')
        a(f'buffer_store_dwordx4 v[{XF+4*j}:{XF+4*j+3}], v2, s[8:11], s13 offen' + (' sc1' if F12 else ''))
    if F12:
        dbg_srd(a); a('v_readfirstlane_b32 s4, v0')
        a('s_waitcnt vmcnt(0)'); a('s_barrier')
        a('s_cmp_lg_u32 s4, 0'); a.branch('s_cbranch_scc1 K1_END')
        arrive(a)
    fin('ln')
    a('s_endpgm')
    a.label('K1_KG')
    if F12: stamp(a, 0, 'k2')
    names = ['A_re', 'A_im', 'B_re', 'B_im', 'C_re', 'C_im']
    for i, nm in enumerate(names): load_ptr(a, 4 + 4 * i, nm)
    load_ptr(a, 28, 'log_dt'); load_ptr(a, 32, 'ws')
    a(f's_sub_u32 s3, s2, {N_MOD+N_LN1}')
    K1IN = int(os.environ.get('K1IN', '0'))
    if K1IN == 2:
        a('s_cmp_ge_u32 s3, 288'); a('s_cselect_b32 s52, 8, 0'); a('s_cselect_b32 s53, 288, 0'); a('s_sub_u32 s53, s3, s53')
        a(f's_add_u32 s52, s52, {KA["w1"]}')
        a('s_load_dwordx2 s[44:45], s[0:1], s52')
        a('s_mul_i32 s53, s53, 18432')
        a('v_lshlrev_b32 v109, 4, v0'); a('v_add_u32 v109, s53, v109')
    elif K1IN == 1:
        load_ptr(a, 44, 'w1')
        a('s_mul_i32 s53, s3, 9216')
        a('v_lshlrev_b32 v109, 4, v0'); a('v_add_u32 v109, s53, v109')
    a('s_and_b32 s36, s3, 7'); a('s_mul_i32 s36, s36, 72'); a('s_lshr_b32 s37, s3, 3'); a('s_add_u32 s3, s36, s37')
    a('v_and_b32 v1, 127, v0')
    a('v_lshlrev_b32 v2, 1, v1')
    a('s_lshl_b32 s36, s3, 8')
    a('s_and_b32 s37, s3, -2'); a('s_lshl_b32 s37, s37, 1')
    a('v_readfirstlane_b32 s38, v0')
    a('s_waitcnt lgkmcnt(0)')
    a('s_load_dword s39, s[28:29], s37')
    for i in range(6): make_srd(a, 4 + 4 * i, 576 * 256)
    make_srd(a, 32, SZ_RK, WS_RK)
    for i in range(6): a(f'buffer_load_ushort v{8+i}, v2, s[{4+4*i}:{7+4*i}], s36 offen')
    NPFI = 0
    if K1IN:
        a(f's_mov_b32 s46, {576*9216}'); a('s_mov_b32 s47, 0x20000')
        full, part = (4, 2048) if K1IN == 2 else (2, 1024)
        for i in range(full):
            a(f'buffer_load_dwordx4 v[96:99], v109, s[44:47], 0 offen offset:0' if i == 0 else f'v_add_u32 v109, 4096, v109')
            if i: a(f'buffer_load_dwordx4 v[96:99], v109, s[44:47], 0 offen')
        a('v_add_u32 v109, 4096, v109')
        a(f'v_mov_b32 v119, 0x7ffffff0'); a(f'v_cmp_gt_u32 vcc, {part//16}, v0'); a('v_cndmask_b32 v109, v119, v109, vcc')
        a(f'buffer_load_dwordx4 v[96:99], v109, s[44:47], 0 offen')
        NPFI = full + 1
    KC = 33792
    GA = 100
    a('v_lshlrev_b32 v3, 3, v0')
    a('v_sub_u32 v3, 2047, v3')
    for e in range(9):
        a(f'v_subrev_u32 v{GA+e}, {e}, v3')
    for e in range(10): a(f'v_cvt_f32_u32 v{110+e}, v{GA+min(e,8)}')
    for e in range(5): a(f'v_cvt_pk_bf16_f32 v{120+e}, v{110+2*e}, v{110+2*e+1}')
    for e in range(4):
        a(f'v_and_b32 v{110+2*e}, 0xffff, v{120+e}')
        a(f'v_lshrrev_b32 v{110+2*e+1}, 16, v{120+e}')
    a('v_and_b32 v118, 0xffff, v124')
    a('v_cmp_gt_u32 vcc, 240, v0')
    for e in range(9): a(f'v_subrev_u32 v{110+e}, 17024, v{110+e}')
    for e in range(8): a(f'v_cndmask_b32 v{GA+e}, v{GA+e}, v{110+e}, vcc')
    a('v_cmp_gt_u32 vcc, 239, v0')
    a(f'v_cndmask_b32 v{GA+8}, v{GA+8}, v118, vcc')
    a(f'v_max_i32 v{GA+8}, 0, v{GA+8}')
    for e in range(9): a(f'v_lshlrev_b32 v{GA+e}, 1, v{GA+e}')
    a('s_lshr_b32 s40, s38, 6')
    a('s_and_b32 s41, s40, 1')
    a('s_lshr_b32 s42, s40, 1')
    a('v_and_b32 v4, 15, v0')
    a('s_lshl_b32 s43, s41, 4')
    a('v_add_u32 v4, s43, v4')
    a('v_bfe_u32 v5, v0, 4, 2')
    KW = 124
    a('s_cmp_eq_u32 s42, 0'); a.branch('s_cbranch_scc0 K1_KG_RT1')
    a('v_lshlrev_b32 v124, 3, v4')
    a('v_lshl_add_u32 v124, v5, 2, v124')
    a('v_lshlrev_b32 v6, 2, v4'); a('v_add_u32 v6, 256, v6')
    a('v_cmp_eq_u32 vcc, 2, v5'); a('v_cndmask_b32 v124, v124, v6, vcc')
    a('v_lshlrev_b32 v6, 1, v4'); a('v_add_u32 v6, 384, v6')
    a('v_cmp_eq_u32 vcc, 3, v5'); a('v_cndmask_b32 v124, v124, v6, vcc')
    a('v_mov_b32 v125, 1')
    a('v_mov_b32 v6, 64'); a('v_cndmask_b32 v126, 2, v6, vcc')
    a.branch('s_branch K1_KG_A')
    a.label('K1_KG_RT1')
    a('v_add_u32 v124, 700, v4')
    a('v_add_u32 v6, 640, v4'); a('v_cmp_eq_u32 vcc, 1, v5'); a('v_cndmask_b32 v124, v124, v6, vcc')
    a('v_add_u32 v6, 512, v4'); a('v_cmp_eq_u32 vcc, 0, v5'); a('v_cndmask_b32 v124, v124, v6, vcc')
    a('v_mov_b32 v6, 32'); a('v_mov_b32 v7, 64'); a('v_cndmask_b32 v125, v7, v6, vcc')
    a('v_lshlrev_b32 v126, 1, v125')
    a.label('K1_KG_A')
    a('v_add_u32 v127, v126, v125')
    a('v_add_u32 v125, v124, v125'); a('v_add_u32 v126, v124, v126'); a('v_add_u32 v127, v124, v127')
    for i in range(4): a(f'v_lshlrev_b32 v{124+i}, 1, v{124+i}')
    a('s_waitcnt lgkmcnt(0)')
    a('s_and_b32 s43, s3, 1'); a('s_lshl_b32 s43, s43, 4'); a('s_lshr_b32 s39, s39, s43'); a('s_lshl_b32 s39, s39, 16')
    a(f'v_mov_b32 v14, s39')
    a(f'v_mul_f32 v14, {f32bits(LOG2E)}, v14')
    a('v_exp_f32 v14, v14')
    round_bf16_1(a, 14, 14)
    a(f's_waitcnt vmcnt({NPFI})')
    stamp(a, 1, 'k1')
    for i in range(6): a(f'v_lshlrev_b32 v{8+i}, 16, v{8+i}')
    a('v_mul_f32 v8, v8, v14'); a('v_mul_f32 v9, v9, v14')
    a('v_mul_f32 v10, v10, v14'); a('v_mul_f32 v11, v11, v14')
    a(f'v_mul_f32 v8, {f32bits(LOG2E)}, v8')
    a(f'v_mul_f32 v9, {f32bits(0.15915494309189535)}, v9')
    cmul(a, 16, 12, 10)
    a(f'v_mul_f32 v16, {float(2**KSCALE_LOG2)}, v16'); a(f'v_mul_f32 v17, {float(2**KSCALE_LOG2)}, v17')
    def D(dst, al):
        a(f'v_mul_f32 v4, {float(al)}, v8'); a(f'v_mul_f32 v5, {float(al)}, v9')
        a('v_exp_f32 v4, v4'); a('v_fract_f32 v5, v5')
        a('v_cos_f32 v6, v5'); a('v_sin_f32 v7, v5')
        a(f'v_mul_f32 v{dst}, v4, v6'); a(f'v_mul_f32 v{dst+1}, v4, v7')
    UB = 0; VB = 16896
    a('v_lshlrev_b32 v3, 2, v1')
    def putU(r, src):
        a(f'v_cvt_pk_f16_f32 v2, v{src}, v{src+1}')
        a(f'ds_write_b32 v3, v2 offset:{UB + r*528}')
    def putV(j, src):
        a(f'v_cvt_pk_f16_f32 v2, v{src}, -v{src+1}')
        a(f'ds_write_b32 v3, v2 offset:{VB + j*528}')
    E8, EX, EY, P0, P1 = 18, 20, 22, 24, 26
    a('s_cmp_ge_u32 s38, 128'); a.branch('s_cbranch_scc1 K1_KG_H1')
    D(E8, 8); D(EX, 1); D(EY, 256)
    a(f'v_mov_b32 v{P0}, 1.0'); a(f'v_mov_b32 v{P0+1}, 0')
    putV(0, P0); putV(1, E8)
    cur, nxt = E8, P0
    for j in range(2, 16):
        cmul(a, nxt, cur, E8); putV(j, nxt)
        cur = nxt; nxt = P1 if nxt == P0 else P0
    cur = 16
    for r in range(8):
        if r > 0:
            nxt = P0 if cur != P0 else P1
            cmul(a, nxt, cur, EX); cur = nxt
        putU(r, cur)
        if r % 2 == 0:
            cmul(a, 28, cur, EY); putU(8 + r // 2, 28)
    a.branch('s_branch K1_KG_B')
    a.label('K1_KG_H1')
    D(E8, 8); D(P0, 128); D(EX, 4)
    cmul(a, EY, P0, P0)
    cmul(a, 28, EY, EY)
    cmul(a, 30, 28, 28)
    putV(16, P0)
    cur, nxt = P0, P1
    for j in range(17, 32):
        cmul(a, nxt, cur, E8); putV(j, nxt)
        cur, nxt = nxt, cur
    cmul(a, P0, 16, 28); putU(12, P0)
    cmul(a, P1, P0, EX); putU(13, P1)
    cmul(a, P1, P0, EY); putU(14, P1)
    cmul(a, P0, P1, EX); putU(15, P0)
    cmul(a, P0, 16, 30); putU(16, P0)
    cmul(a, P1, P0, EY); putU(17, P1)
    cmul(a, P0, P1, EY); putU(18, P0)
    cmul(a, P1, P0, EY); putU(19, P1)
    cmul(a, P0, P1, EY); putU(20, P0)
    a.label('K1_KG_B')
    a('v_and_b32 v4, 15, v0'); a('v_bfe_u32 v5, v0, 4, 2')
    a('s_lshl_b32 s43, s42, 4'); a('v_add_u32 v6, s43, v4'); a('v_mul_u32_u24 v6, 528, v6'); a('v_lshl_add_u32 v6, v5, 4, v6')
    a('s_lshl_b32 s43, s41, 4'); a('v_add_u32 v7, s43, v4'); a('v_mul_u32_u24 v7, 528, v7'); a('v_lshl_add_u32 v7, v5, 4, v7')
    if F12:
        dbg_srd(a)
        a('v_and_b32 v97, 63, v0'); a('v_lshlrev_b32 v97, 2, v97')
        a('buffer_load_dword v96, v97, s[64:67], 0 offen sc1')
    a('s_waitcnt lgkmcnt(0)'); a('s_barrier')
    FA = 32; FB = 64
    for s in range(8):
        a(f'ds_read_b128 v[{FA+4*s}:{FA+4*s+3}], v6 offset:{UB + s*64}')
        a(f'ds_read_b128 v[{FB+4*s}:{FB+4*s+3}], v7 offset:{VB + s*64}')
    for s in range(8):
        a(f's_waitcnt lgkmcnt({14-2*s})')
        a(f'v_mfma_f32_16x16x32_f16 v[8:11], v[{FA+4*s}:{FA+4*s+3}], v[{FB+4*s}:{FB+4*s+3}], ' + ('0' if s == 0 else 'v[8:11]'))
    a('v_cvt_pk_f16_f32 v12, v8, v9'); a('v_cvt_pk_f16_f32 v13, v10, v11')
    a(f'ds_write_b16 v124, v12 offset:{KC}'); a(f'ds_write_b16_d16_hi v125, v12 offset:{KC}')
    a(f'ds_write_b16 v126, v13 offset:{KC}'); a(f'ds_write_b16_d16_hi v127, v13 offset:{KC}')
    a('s_waitcnt lgkmcnt(0)'); a('s_barrier')
    for e in range(9):
        a(f'ds_read_u16 v{24+e}, v{GA+e} offset:{KC}')
    a('v_lshlrev_b32 v2, 4, v0')
    a(f's_mul_i32 s36, s3, {RK_STRIDE}')
    a('s_add_u32 s37, s36, 4096')
    a('v_cmp_gt_u32 vcc, 255, v0')
    a('s_waitcnt lgkmcnt(0)')
    a('v_cndmask_b32 v32, 0, v32, vcc')
    for e in range(4): a(f'v_lshl_or_b32 v{16+e}, v{24+2*e+1}, 16, v{24+2*e}')
    for e in range(4): a(f'v_lshl_or_b32 v{20+e}, v{24+2*e+2}, 16, v{24+2*e+1}')
    if F12:
        from gen_k23 import k2_body, K2_RC
        a(f'ds_write_b128 v2, v[16:19] offset:{K2_RC}'); a(f'ds_write_b128 v2, v[20:23] offset:{K2_RC+4160}')
        k2_body(a, True)
    else:
        a('buffer_store_dwordx4 v[16:19], v2, s[32:35], s36 offen')
        a('buffer_store_dwordx4 v[20:23], v2, s[32:35], s37 offen')
        fin('kg')
    a.label('K1_END')
    a('s_endpgm')
    return kernel_desc('k1_kernel', 160 if F12 else 128)
```

```python
from gen_common import *
import os
from gen_k4 import VM, interleave, SLOT, K4_LDS
from gen_k1 import ln_core

LOOP = int(os.environ.get('K34L', '1'))
EARLY = int(os.environ.get('EARLY', '0'))
POLLW = int(os.environ.get('POLLW', '1'))
SPEC = int(os.environ.get('SPEC', '1')) and LOOP
RAWW = int(os.environ.get('RAWW', '0')) and SPEC
GH = int(os.environ.get('GH', '1'))
T0B = int(os.environ.get('T0B', '1'))
F345 = int(os.environ.get('F345', '1'))
PWL2 = int(os.environ.get('PWL2', '0')) and F345; PWN = int(os.environ.get('PWN', '8'))
def gen_k34(a):
    a.raw(kernel_header('k34_kernel'))

    vm = VM(a)
    a('s_cmp_ge_u32 s2, 256'); a.branch('s_cbranch_scc1 K4_END')
    if not TK:
        a('s_and_b32 s36, s2, 7'); a('s_lshl_b32 s36, s36, 5'); a('s_lshr_b32 s37, s2, 3'); a('s_add_u32 s3, s36, s37')
    stamp(a, 0, 'k4')
    if TK: ticket_begin(a)
    load_ptr(a, 4, 'w1'); load_ptr(a, 8, 'w3'); load_ptr(a, 12, 'ws')
    K4W2 = int(os.environ.get('K4W2', '1'))
    if K4W2: load_ptr(a, 24, 'w2')
    a('v_mov_b32 v15, v0')
    a('v_readfirstlane_b32 s39, v0'); a('s_lshr_b32 s39, s39, 6')
    a('v_and_b32 v0, 63, v0')
    a('v_lshrrev_b32 v11, 4, v0'); a('v_mul_u32_u24 v1, 9216, v11')
    a('v_bfe_u32 v12, v0, 2, 2'); a('v_xor_b32 v12, v12, v11'); a('v_lshl_add_u32 v1, v12, 6, v1')
    a('v_and_b32 v12, 3, v0'); a('v_lshl_add_u32 v1, v12, 4, v1')
    a('v_bfe_u32 v12, v0, 2, 2')
    a('v_lshrrev_b32 v13, 5, v0')
    a('v_lshl_add_u32 v13, v13, 3, v12'); a('v_lshlrev_b32 v2, 8, v13')
    a('v_xor_b32 v12, s39, v12'); a('v_lshl_add_u32 v2, v12, 6, v2')
    a('v_bfe_u32 v12, v0, 4, 1'); a('v_lshl_add_u32 v2, v12, 5, v2')
    a('v_and_b32 v12, 3, v0'); a('v_lshl_add_u32 v2, v12, 3, v2')
    a(f'v_add_u32 v4, {3*SLOT}, v2'); a(f'v_add_u32 v3, {2*SLOT}, v2'); a(f'v_add_u32 v2, {SLOT}, v2')
    a('v_lshlrev_b32 v5, 4, v0')
    for s in range(1, 4): a(f'v_add_u32 v{5+s}, {s*SLOT}, v5')
    a('v_bfe_u32 v12, v0, 4, 1'); a('v_lshlrev_b32 v10, 10, v12')
    a('v_lshrrev_b32 v12, 5, v0'); a('v_lshl_add_u32 v10, v12, 8, v10')
    a('v_and_b32 v12, 15, v0'); a('v_lshl_add_u32 v10, v12, 4, v10')
    a('s_mul_i32 s36, s3, 9363'); a('s_lshr_b32 s36, s36, 16')
    a('s_mul_i32 s37, s36, 7'); a('s_sub_u32 s37, s3, s37')
    a('s_mul_i32 s38, s37, 9'); a('s_cmp_gt_u32 s37, 0'); a('s_addc_u32 s38, s38, 0')
    if SPEC:
        a('s_and_b32 s54, s2, 7'); a('s_lshr_b32 s56, s2, 3'); a('s_lshr_b32 s55, s56, 2')
        a('s_cmp_eq_u32 s55, 7'); a('s_cselect_b32 s57, 0, s55'); a('s_cselect_b32 s72, 9, 8')
        a('s_cmp_eq_u32 s54, 7'); a('s_cselect_b32 s54, s57, s54'); a('s_cselect_b32 s55, s72, s55')
        a('s_mul_i32 s57, s54, 9'); a('s_cmp_gt_u32 s54, 0'); a('s_addc_u32 s57, s57, s55')
        a('s_lshl_b32 s55, s57, 2'); a('s_and_b32 s56, s56, 3'); a('s_add_u32 s55, s55, s56')
        a('s_lshl_b32 s72, s54, 7')
        a('s_cmp_ge_u32 s3, 252')
        a('s_cselect_b32 s36, 0, s36'); a('s_cselect_b32 s37, 0, s37'); a('s_cselect_b32 s38, 0, s38')
    else:
        a('s_lshl_b32 s55, s38, 2'); a('s_add_u32 s55, s55, s36')
        a('s_sub_u32 s56, s3, 216')
        a('s_cmp_ge_u32 s3, 252')
        a('s_cselect_b32 s55, s56, s55'); a('s_cselect_b32 s36, 0, s36'); a('s_cselect_b32 s37, 0, s37'); a('s_cselect_b32 s38, 0, s38')
    a('s_lshl_b32 s40, s36, 8')
    a(f's_mul_i32 s41, s39, {16*9216}'); a('s_add_u32 s40, s40, s41')
    a('s_lshl_b32 s42, s39, 12')
    a(f's_mul_i32 s43, s38, {SLOT}'); a('s_mul_i32 s44, s39, 9216'); a('s_add_u32 s43, s43, s44')
    a('s_lshl_b32 s45, s36, 2'); a('s_add_u32 s45, s45, s39'); a('s_lshl_b32 s45, s45, 7'); a('s_lshl_b32 s46, s38, 1'); a('s_add_u32 s45, s45, s46'); a('s_lshl_b32 s45, s45, 10')
    a('s_mov_b32 s47, 0xffff0000'); a(f's_mov_b32 s48, {f32bits(-LOG2E)}')
    a('s_waitcnt lgkmcnt(0)')
    make_srd(a, 4, 576 * 9216); make_srd(a, 8, 576 * 9216)
    copy_srd(a, 16, 12, SZ_XF, WS_XF); copy_srd(a, 20, 12, SZ_HH, WS_HH)
    if K4W2:
        make_srd(a, 24, 4608 * 1152)
        if PWL2:
            a('s_and_b32 s53, s2, 3'); a(f's_mul_i32 s53, s53, {1152*1152}'); a('s_lshr_b32 s54, s2, 3'); a('s_mul_i32 s54, s54, 41472'); a('s_add_u32 s53, s53, s54')
            a('s_lshl_b32 s54, s39, 10'); a('s_add_u32 s53, s53, s54')
        else:
            a('s_mul_i32 s53, s3, 21504'); a('s_lshl_b32 s54, s39, 10'); a('s_add_u32 s53, s53, s54')
        a('v_lshlrev_b32 v14, 4, v0'); a('v_add_u32 v14, s53, v14')
    def w_dma(st):
        slot = 1 + st % 3
        for mat in range(2):
            for q in range(4):
                a(f's_add_u32 m0, s42, {slot*SLOT + mat*16384 + q*1024}')
                a(f's_add_u32 s49, s40, {(64*st + 4*q)*9216}')
                vm.issue(f'W{st}', f'buffer_load_dwordx4 v1, s[{4+4*mat}:{7+4*mat}], s49 offen lds')
    def x_dma_list(i):
        slot = i % 4; L = []
        for q in range(3):
            L.append(f's_add_u32 m0, s44, {slot*SLOT + q*4096}')
            L.append(f's_add_u32 s49, s43, {i*SLOT + q*4096}')
            for r in range(4 if q < 2 else 1):
                L.append(lambda r=r: vm.issue(f'X{i}', f'buffer_load_dwordx4 v5, s[16:19], s49 offen offset:{r*1024} sc1 lds'))
        return L
    def run(L):
        for f in L: f() if callable(f) else a(f)
    XB = 16; WV = 40; ACC = 72; TMP = 136
    def wreg(k, mat):
        if k < 32: b = 8 * k + 4 * mat; return 'a', b
        b = WV + 8 * (k - 32) + 4 * mat; return 'v', b
    def xread(i, k):
        n = 36 * i + k; b = XB + 4 * (n % 6)
        return f'ds_read_b128 v[{b}:{b+3}], v{5 + i % 4} offset:{k*1024}'
    def mfma(i, k, mat):
        n = 36 * i + k; b = XB + 4 * (n % 6)
        t, wb = wreg(k, mat); acc = ACC + 32 * (i % 2) + 16 * mat
        c = '0' if k == 0 else f'v[{acc}:{acc+15}]'
        return f'v_mfma_f32_32x32x16_bf16 v[{acc}:{acc+15}], {t}[{wb}:{wb+3}], v[{b}:{b+3}], {c}'
    def epilogue_list(i):
        g = ACC + 32 * (i % 2); u = g + 16; L = []
        G = TMP; E = TMP + 8; U = TMP + 16; PK = TMP + 24;
        for p in range(2):
            P = TMP + 28 + 4 * p
            o = 8 * p
            for j in range(4): L.append(f'v_cvt_pk_bf16_f32 v{PK+j}, v{g+o+2*j}, v{g+o+2*j+1}')
            for j in range(4):
                L.append(f'v_lshlrev_b32 v{G+2*j}, 16, v{PK+j}'); L.append(f'v_and_b32 v{G+2*j+1}, s47, v{PK+j}')
            for j in range(8): L.append(f'v_mul_f32 v{E+j}, s48, v{G+j}')
            for j in range(8): L.append(f'v_exp_f32 v{E+j}, v{E+j}')
            for j in range(4): L.append(f'v_cvt_pk_bf16_f32 v{PK+j}, v{u+o+2*j}, v{u+o+2*j+1}')
            for j in range(8): L.append(f'v_add_f32 v{E+j}, 1.0, v{E+j}')
            for j in range(8): L.append(f'v_rcp_f32 v{E+j}, v{E+j}')
            for j in range(4):
                L.append(f'v_lshlrev_b32 v{U+2*j}, 16, v{PK+j}'); L.append(f'v_and_b32 v{U+2*j+1}, s47, v{PK+j}')
            for j in range(8): L.append(f'v_mul_f32 v{G+j}, v{G+j}, v{E+j}')
            for j in range(4): L.append(f'v_cvt_pk_bf16_f32 v{PK+j}, v{G+2*j}, v{G+2*j+1}')
            for j in range(4):
                L.append(f'v_lshlrev_b32 v{G+2*j}, 16, v{PK+j}'); L.append(f'v_and_b32 v{G+2*j+1}, s47, v{PK+j}')
            for j in range(8): L.append(f'v_mul_f32 v{G+j}, v{G+j}, v{U+j}')
            for j in range(4): L.append(f'v_cvt_pk_bf16_f32 v{P+j}, v{G+2*j}, v{G+2*j+1}')
            if p == 0: L.append(f's_add_u32 s50, s45, {i*2048}')
            L.append(lambda P=P, p=p: vm.issue(f'S{i}', f'buffer_store_dwordx4 v[{P}:{P+3}], v10, s[20:23], s50 offen offset:{p*512}' + os.environ.get('STMOD', ' sc1')))
        return L
    PF = os.environ.get('K4PF', '0')
    def w_pf():
        if PF == '0': return
        a('s_lshl_b32 s51, s37, 8'); a('s_lshl_b32 s52, s39, 6'); a('s_add_u32 s51, s51, s52')
        a('v_add_u32 v40, s51, v0')
        a('v_lshrrev_b32 v41, 1, v40'); a('v_mul_u32_u24 v41, 9216, v41')
        a('v_and_b32 v40, 1, v40'); a('v_lshl_add_u32 v41, v40, 7, v41')
        a('s_lshl_b32 s51, s36, 8')
        vm.issue('PF', 'buffer_load_dword v42, v41, s[4:7], s51 offen')
        vm.issue('PF', 'buffer_load_dword v43, v41, s[8:11], s51 offen')
        if PF == '2':
            vm.issue('PF', 'buffer_load_dword v44, v41, s[4:7], s51 offen offset:64')
            vm.issue('PF', 'buffer_load_dword v45, v41, s[8:11], s51 offen offset:64')
    RAWR = {6: ('a', 192), 7: ('a', 224), 8: ('v', 40)}
    def w_raw(st):
        t, base = RAWR[st]
        for mat in range(2):
            for q in range(4):
                r = base + 4 * (mat * 4 + q)
                a(f's_add_u32 s49, s40, {(64*st + 4*q)*9216}')
                vm.issue(f'R{st}', f'buffer_load_dwordx4 {t}[{r}:{r+3}], v1, s[{4+4*mat}:{7+4*mat}], s49 offen')
    def w_put(st, slot):
        t, base = RAWR[st]
        for mat in range(2):
            for q in range(4):
                r = base + 4 * (mat * 4 + q)
                a(f'ds_write_b128 v9, {t}[{r}:{r+3}] offset:{(slot-1)*SLOT + mat*16384 + q*1024}')
    def w_reads(st, slot=None):
        if slot is None: slot = 1 + st % 3
        for kk in range(4):
            k = 4 * st + kk
            for mat in range(2):
                t, wb = wreg(k, mat)
                off = mat * 16384 + kk * 4096
                a(f'ds_read_b64_tr_b16 {t}[{wb}:{wb+1}], v{1+slot} offset:{off}')
                a(f'ds_read_b64_tr_b16 {t}[{wb+2}:{wb+3}], v{1+slot} offset:{off+1024}')
    XL = 16; XP = 28; XFv = 72; LT = 96; XN = 112; CB = 124; SB = 148
    RED = 9216
    copy_srd(a, 28, 12, SZ_X1T, WS_X1T); copy_srd(a, 32, 12, SZ_MOD, WS_MOD); copy_srd(a, 64, 12, SZ_X1, WS_X1)
    copy_srd(a, 68, 12, 4096, WS_CNT + CNT_OFF['k4'])
    a('s_lshl_b32 s57, s55, 4')
    for i in range(3):
        a(f'v_add_u32 v{11+i}, {256*i}, v15'); a(f'v_mul_u32_u24 v{11+i}, {X1T_STRIDE}, v{11+i}')
    for i in range(3): vm.issue('XL', f'buffer_load_dwordx4 v[{XL+4*i}:{XL+4*i+3}], v{11+i}, s[28:31], s57 offen')
    w_pf()
    w_dma(0); w_dma(1); w_dma(2)
    if RAWW: w_raw(6); a('v_add_u32 v9, s42, v6')
    a('v_lshrrev_b32 v172, 4, v15'); a('v_lshlrev_b32 v172, 1, v172')
    a('v_bfe_u32 v11, v15, 1, 1'); a('v_add_u32 v172, v172, v11'); a('v_lshlrev_b32 v172, 3, v172')
    a('v_bfe_u32 v11, v15, 2, 2'); a('v_add_u32 v172, v172, v11'); a('v_lshlrev_b32 v172, 4, v172')
    a('v_and_b32 v11, 1, v15'); a('v_lshl_add_u32 v172, v11, 3, v172')
    a('v_and_b32 v11, 7, v15'); a('v_lshrrev_b32 v12, 3, v15')
    a('v_mul_u32_u24 v173, 1152, v11'); a('v_lshl_add_u32 v173, v12, 4, v173')
    a('v_lshrrev_b32 v174, 1, v12'); a('v_lshlrev_b32 v174, 10, v174')
    a('v_and_b32 v13, 1, v12'); a('v_lshl_add_u32 v174, v13, 9, v174'); a('v_lshl_add_u32 v174, v11, 4, v174')
    a('v_lshlrev_b32 v175, 5, v12')
    a('v_lshlrev_b32 v13, 2, v11')
    a('s_lshl_b32 s58, s39, 5'); a('v_add_u32 v12, s58, v13')
    a('v_lshlrev_b32 v11, 4, v15')
    a('s_mul_i32 s58, s55, 9216')
    a('s_lshr_b32 s59, s55, 2'); a(f's_mul_i32 s59, s59, {36*1024}'); a('s_and_b32 s60, s55, 3'); a('s_lshl_b32 s60, s60, 7'); a('s_add_u32 s59, s59, s60')
    a(f's_mov_b32 s61, {4*2304}'); a(f's_mov_b32 s62, {3*2304}')
    vm.wait('XL')
    a(f'ds_write_b128 v11, v[{XL}:{XL+3}]'); a(f'ds_write_b128 v11, v[{XL+4}:{XL+7}] offset:4096')
    a('s_cmp_lg_u32 s39, 0'); a.branch('s_cbranch_scc1 K34_NW3')
    a(f'ds_write_b128 v11, v[{XL+8}:{XL+11}] offset:8192')
    a.label('K34_NW3')
    vm.wait('W0', ' lgkmcnt(0)'); a('s_barrier')
    stamp(a, 1, 'k4')
    base_ops = list(vm.ops)
    a('s_cmp_eq_u32 s39, 3'); a.branch('s_cbranch_scc1 K34_AUX')
    for i in range(3):
        vm.issue('M', f'buffer_load_dwordx4 v[{CB+8*i}:{CB+8*i+3}], v175, s[32:35], s61 offen offset:{768*i}')
        vm.issue('M', f'buffer_load_dwordx4 v[{CB+8*i+4}:{CB+8*i+7}], v175, s[32:35], s61 offen offset:{768*i+16}')
        vm.issue('M', f'buffer_load_dwordx4 v[{SB+8*i}:{SB+8*i+3}], v175, s[32:35], s62 offen offset:{768*i}')
        vm.issue('M', f'buffer_load_dwordx4 v[{SB+8*i+4}:{SB+8*i+7}], v175, s[32:35], s62 offen offset:{768*i+16}')
    if RAWW: w_raw(7)
    for i in range(3):
        a(f'ds_read_b64_tr_b16 v[{XP+4*i}:{XP+4*i+1}], v172 offset:{3072*i}')
        a(f'ds_read_b64_tr_b16 v[{XP+4*i+2}:{XP+4*i+3}], v172 offset:{3072*i+64}')
    w_reads(0)
    a('s_waitcnt lgkmcnt(15)')
    for i in range(3): vm.issue('X1S', f'buffer_store_dwordx4 v[{XP+4*i}:{XP+4*i+3}], v173, s[64:67], s58 offen offset:{384*i}' + (' sc1' if F345 else ''))
    def pre2(): vm.wait('W1')
    def post2(): w_dma(3); w_reads(1)
    def pre3(): vm.wait('W2')
    def post3(): w_dma(4); w_reads(2)
    ln_core(a, 3, XP, XFv, LT, 3, 12, 13, RED, XN, hooks=(pre2, post2, pre3, post3, GH))
    vm.wait('M')
    n = 24
    for i in range(12): unpack_lo(a, XFv + 2 * i, XN + i); unpack_hi(a, XFv + 2 * i + 1, XN + i)
    for i in range(n): a(f'v_add_f32 v{CB+i}, 1.0, v{CB+i}')
    for i in range(12): a(f'v_cvt_pk_bf16_f32 v{LT+i}, v{CB+2*i}, v{CB+2*i+1}')
    for i in range(12): unpack_lo(a, CB + 2 * i, LT + i); unpack_hi(a, CB + 2 * i + 1, LT + i)
    for i in range(n): a(f'v_mul_f32 v{XFv+i}, v{XFv+i}, v{CB+i}')
    for i in range(12): a(f'v_cvt_pk_bf16_f32 v{LT+i}, v{XFv+2*i}, v{XFv+2*i+1}')
    for i in range(12): unpack_lo(a, XFv + 2 * i, LT + i); unpack_hi(a, XFv + 2 * i + 1, LT + i)
    for i in range(n): a(f'v_add_f32 v{XFv+i}, v{XFv+i}, v{SB+i}')
    for i in range(12): a(f'v_cvt_pk_bf16_f32 v{LT+i}, v{XFv+2*i}, v{XFv+2*i+1}')
    for i in range(3):
        a(f's_add_u32 s60, s59, {12288*i}')
        vm.issue('XFS', f'buffer_store_dwordx4 v[{LT+4*i}:{LT+4*i+3}], v174, s[16:19], s60 offen sc1')
    if RAWW: w_raw(8)
    a('s_waitcnt lgkmcnt(0)'); a('s_barrier')
    w_dma(5)
    def stage(st):
        vm.wait(f'W{st}'); a('s_barrier'); w_reads(st); a('s_waitcnt lgkmcnt(0)'); a('s_barrier'); w_dma(st + 3)
    if EARLY: stage(3); stage(4)
    vm.wait('XFS')
    a.branch('s_branch K34_JOIN')
    a.label('K34_AUX')
    vm.ops = list(base_ops)
    if RAWW: w_raw(7)
    w_reads(0); a('s_waitcnt lgkmcnt(0)'); vm.wait('W1'); a('s_barrier')
    w_dma(3); w_reads(1); a('s_waitcnt lgkmcnt(0)'); vm.wait('W2'); a('s_barrier')
    w_dma(4); w_reads(2)
    if RAWW: w_raw(8)
    a('s_waitcnt lgkmcnt(0)'); a('s_barrier')
    w_dma(5)
    if EARLY: stage(3); stage(4)
    if RAWW: vm.wait('W4')
    a.label('K34_JOIN')
    vm.ops = (['W5'] * 8 + ['W6'] * 8 + ['W7'] * 8) if EARLY else (['W3'] * 8 + ['W4'] * 8 + ['W5'] * 8)
    if RAWW: vm.ops = ['R8'] * 8 + ['W5'] * 8
    a('s_barrier')
    stamp(a, 2, 'k4')
    a('s_lshl_b32 s63, s37, 7')
    a('s_cmp_lg_u32 s39, 0'); a.branch('s_cbranch_scc1 K34_NS')
    a('s_mov_b64 exec, 1'); a('v_mov_b32 v11, 1')
    a(f'buffer_atomic_add v11, off, s[68:71], s{72 if SPEC else 63} sc1')
    a('s_mov_b64 exec, -1')
    a.label('K34_NS')
    a('s_cmp_ge_u32 s3, 252'); a.branch('s_cbranch_scc1 K34_HEND')
    if RAWW: w_reads(3, 1); w_reads(4, 2)
    if SPEC: run(x_dma_list(0))
    def nonloop():
        def tile(i):
            mf = [];
            fill = epilogue_list(i - 1) if i else []
            dma = x_dma_list(i + 3) if 0 < i <= 6 else []
            if K4W2 and 1 <= i <= 6:
                dma = dma + [f'v_add_u32 v13, {(i-1)*4096}, v14', lambda: vm.issue('PW', 'buffer_load_dwordx4 v[172:175], v13, s[24:27], 0 offen')]
            X = os.environ.get('K4X', '')
            if 'noepi' in X: fill = [f for f in fill if callable(f) or f.startswith('s_')]
            if 'nost' in X: fill = [f for f in fill if not callable(f)]
            if 'notrans' in X: fill = [f for f in fill if callable(f) or not ('exp' in f or 'rcp' in f)]
            for k in range(36):
                pre = []
                if k == 32 and i + 1 <= 9:
                    pre.append(lambda: vm.wait(f'X{i+1}'))
                    if 'nobar' not in X: pre.append('s_barrier')
                pre.append(xread(i, k + 4) if k + 4 < 36 else xread(i + 1, k + 4 - 36))
                pre.append('s_waitcnt lgkmcnt(4)')
                pre.append(mfma(i, k, 0))
                mf.append(pre); mf.append([mfma(i, k, 1)])
            interleave(a, mf[:64], fill)
            interleave(a, mf[64:], dma)
        stamp(a, 4, 'k4')
        for i in range(0, 9):
            tile(i)
            if i in (1, 4):
                stamp(a, {1:5,4:6}[i], 'k4')
                if 'k4' in STAMPS: a('s_waitcnt lgkmcnt(0)')
        a('s_cmp_eq_u32 s37, 0'); a.branch('s_cbranch_scc1 K4_T9')
        saved = list(vm.ops)
        run(epilogue_list(8))
        stamp(a, 7, 'k4')
        a('v_mov_b32 v0, v15')
        dump_stamps(a, 8, 'k4', 101)
        a('s_endpgm')
        vm.ops = saved
        a.label('K4_T9')
        tile(9)
        run(epilogue_list(9))
        a.label('K4_END')
        a('s_endpgm')

    def poll(first_issued):
        a('s_cmp_lg_u32 s39, 0'); a.branch('s_cbranch_scc1 K34_PD')
        a('s_cmp_eq_u32 s37, 0'); a('s_cselect_b32 s56, 40, 36')
        a('s_mov_b32 s57, 0')
        if first_issued is not None:
            a(f's_waitcnt vmcnt({first_issued})'); a.branch('s_branch K34_PC')
        a.label('K34_PL')
        a('buffer_load_dword v11, off, s[68:71], s63 sc1')
        a('s_waitcnt vmcnt(0)')
        if first_issued is not None: a.label('K34_PC')
        a('v_readfirstlane_b32 s58, v11')
        a('s_cmp_ge_u32 s58, s56'); a.branch('s_cbranch_scc1 K34_PD')
        a('s_sleep 2')
        a('s_add_u32 s57, s57, 1'); a('s_cmp_lt_u32 s57, 0x10000'); a.branch('s_cbranch_scc1 K34_PL')
        a.label('K34_PD')
    def x_validate_own():
        a('s_mul_i32 s59, s39, 9216'); a('v_add_u32 v11, s59, v5')
        for i in range(9): a(f'ds_read_b128 v[{TMP+4*i}:{TMP+4*i+3}], v11 offset:{i*1024}')
        for i in range(9):
            a(f's_waitcnt lgkmcnt({8-i})')
            if i == 0: a(f'v_max3_u32 v12, v{TMP}, v{TMP+1}, v{TMP+2}'); a(f'v_max_u32 v12, v12, v{TMP+3}')
            else: a(f'v_max3_u32 v12, v{TMP+4*i}, v{TMP+4*i+1}, v12'); a(f'v_max3_u32 v12, v{TMP+4*i+2}, v{TMP+4*i+3}, v12')
        a('v_cmp_eq_u32 vcc, -1, v12')
        a('s_cmp_lg_u64 vcc, 0'); a('s_cselect_b32 s59, 1, 0')
        a('v_mov_b32 v12, s59'); a('s_lshl_b32 s59, s39, 2'); a(f's_add_u32 s59, s59, {4*SLOT}'); a('v_mov_b32 v11, s59')
        a('ds_write_b32 v11, v12')
    def x12_dma(i):
        return x_dma_list(i) + ['v_mov_b32 v13, 0x7ffffff0',
                                lambda: vm.issue('PW', 'buffer_load_dwordx4 v[172:175], v13, s[24:27], 0 offen')]
    if RAWW:
        a('s_waitcnt lgkmcnt(0)'); a('s_barrier')
        w_put(6, 1); w_put(7, 2)
        a('s_waitcnt lgkmcnt(0)'); a('s_barrier')
        a('s_cmp_lg_u32 s39, 0'); a.branch('s_cbranch_scc1 K34_P0')
        a('buffer_load_dword v173, off, s[68:71], s63 sc1')
        a.label('K34_P0')
        w_reads(6, 1); w_reads(7, 2)
        vm.wait('W5', ' lgkmcnt(0)'); a('s_barrier')
        a('s_cmp_lg_u32 s39, 0'); a.branch('s_cbranch_scc1 K34_P1')
        a('buffer_load_dword v174, off, s[68:71], s63 sc1')
        a.label('K34_P1')
        w_put(8, 1); w_reads(5, 3)
        a('s_cmp_lg_u32 s39, 0'); a.branch('s_cbranch_scc1 K34_P2')
        a('s_waitcnt vmcnt(2)'); a.branch('s_branch K34_P3')
        a.label('K34_P2'); a('s_waitcnt vmcnt(0)')
        a.label('K34_P3')
        x_validate_own()
        a('s_waitcnt lgkmcnt(0)'); a('s_barrier')
        stamp(a, 3, 'k4')
        a(f'v_mov_b32 v11, {4*SLOT}'); a(f'ds_read_b128 v[{TMP}:{TMP+3}], v11')
        w_reads(8, 1)
        a('s_cmp_lg_u32 s39, 0'); a.branch('s_cbranch_scc1 K34_PD')
        a('s_cmp_eq_u32 s37, 0'); a('s_cselect_b32 s56, 40, 36')
        a('s_mov_b32 s57, 0')
        a('s_waitcnt vmcnt(1)'); a('v_readfirstlane_b32 s58, v173')
        a('s_cmp_ge_u32 s58, s56'); a.branch('s_cbranch_scc1 K34_PD')
        a('s_waitcnt vmcnt(0)'); a.branch('s_branch K34_PC')
        a.label('K34_PL')
        a('buffer_load_dword v174, off, s[68:71], s63 sc1')
        a('s_waitcnt vmcnt(0)')
        a.label('K34_PC')
        a('v_readfirstlane_b32 s58, v174')
        a('s_cmp_ge_u32 s58, s56'); a.branch('s_cbranch_scc1 K34_PD')
        a('s_add_u32 s57, s57, 1'); a('s_cmp_lt_u32 s57, 0x10000'); a.branch('s_cbranch_scc1 K34_PL')
        a.label('K34_PD')
        a('s_waitcnt lgkmcnt(0)')
        a(f'v_or3_b32 v12, v{TMP}, v{TMP+1}, v{TMP+2}'); a(f'v_or_b32 v12, v12, v{TMP+3}')
        a('v_readfirstlane_b32 s59, v12')
        a('s_barrier')
        a('s_cmp_eq_u32 s59, 0'); a.branch('s_cbranch_scc1 K34_XOK')
        for q in range(3):
            a(f's_add_u32 m0, s44, {q*4096}'); a(f's_add_u32 s49, s43, {q*4096}')
            for r in range(4 if q < 2 else 1): a(f'buffer_load_dwordx4 v5, s[16:19], s49 offen offset:{r*1024} sc0 sc1 lds')
        a('s_waitcnt vmcnt(0)'); a('s_barrier')
        a.label('K34_XOK')
        if 'k4' in STAMPS: a('s_mul_i32 s96, s59, 100'); a('s_add_u32 s96, s96, s90'); a('s_mov_b32 s95, s90')
        vm.ops = []
        if not T0B: run(x12_dma(1)); run(x12_dma(2))
    for st in range(5 if EARLY else 3, 9 if not RAWW else 0):
        vm.wait(f'W{st}')
        a('s_barrier')
        w_reads(st)
        a('s_waitcnt lgkmcnt(0)')
        if st == 5 and not SPEC and not POLLW: poll(None)
        if st == 6 and SPEC: poll(8)
        a('s_barrier')
        if st == 5 and (SPEC or POLLW):
            a('s_cmp_lg_u32 s39, 0'); a.branch('s_cbranch_scc1 K34_P0')
            a('buffer_load_dword v11, off, s[68:71], s63 sc1')
            a.label('K34_P0')
        if st < 6: w_dma(st + 3)
        if st == 5:
            if not SPEC and POLLW: poll(8); a('s_barrier')
            stamp(a, 3, 'k4')
            if not SPEC: run(x_dma_list(0))
        if LOOP:
            if st in (6, 7):
                run(x_dma_list(st - 5))
                a('v_mov_b32 v13, 0x7ffffff0')
                for _ in range(2 if W2P else 1): vm.issue('PW', 'buffer_load_dwordx4 v[172:175], v13, s[24:27], 0 offen')
        elif st >= 6: run(x_dma_list(st - 5))
    if LOOP:
        BIG = 0x40000000
        a('v_mov_b32 v2, v5'); a(f'v_add_u32 v3, {SLOT}, v5'); a('v_mov_b32 v1, 0x7ffffff0')
        a('s_mov_b32 s55, 0')
        a('s_cmp_eq_u32 s37, 0'); a('s_cselect_b32 s56, 6, 5'); a('s_cselect_b32 s61, 99, 8')
        a(f's_mov_b32 s57, {3*SLOT}'); a('s_mov_b32 s58, 0'); a('s_mov_b32 s60, 0')
        a(f's_add_u32 s43, s43, {3*SLOT}'); a('s_sub_u32 s45, s45, 2048')
        if W2P:
            copy_srd(a, 32, 12, SZ_W2P, WS_W2P)
            a('s_mov_b32 s28, 0x38e38e39'); a('s_mov_b32 s29, 8928'); a('s_mov_b32 s30, 288'); a('s_mov_b32 s31, 27648')
    if not RAWW: vm.wait('X0'); a('s_barrier')
    if SPEC and not RAWW:
        a('s_mul_i32 s59, s39, 9216'); a('v_add_u32 v11, s59, v5')
        for i in range(9): a(f'ds_read_b128 v[{TMP+4*i}:{TMP+4*i+3}], v11 offset:{i*1024}')
        for i in range(9):
            a(f's_waitcnt lgkmcnt({8-i})')
            if i == 0: a(f'v_max3_u32 v12, v{TMP}, v{TMP+1}, v{TMP+2}'); a(f'v_max_u32 v12, v12, v{TMP+3}')
            else: a(f'v_max3_u32 v12, v{TMP+4*i}, v{TMP+4*i+1}, v12'); a(f'v_max3_u32 v12, v{TMP+4*i+2}, v{TMP+4*i+3}, v12')
        a('v_cmp_eq_u32 vcc, -1, v12')
        a('s_cmp_lg_u64 vcc, 0'); a('s_cselect_b32 s59, 1, 0')
        a('v_mov_b32 v12, s59'); a('s_lshl_b32 s59, s39, 2'); a(f's_add_u32 s59, s59, {4*SLOT}'); a('v_mov_b32 v11, s59')
        a('ds_write_b32 v11, v12'); a('s_waitcnt lgkmcnt(0)'); a('s_barrier')
        a(f'v_mov_b32 v11, {4*SLOT}'); a(f'ds_read_b128 v[{TMP}:{TMP+3}], v11'); a('s_waitcnt lgkmcnt(0)')
        a(f'v_or3_b32 v12, v{TMP}, v{TMP+1}, v{TMP+2}'); a(f'v_or_b32 v12, v12, v{TMP+3}')
        a('v_readfirstlane_b32 s59, v12')
        a('s_cmp_eq_u32 s59, 0'); a.branch('s_cbranch_scc1 K34_XOK')
        for q in range(3):
            a(f's_add_u32 m0, s44, {q*4096}'); a(f's_sub_u32 s49, s43, {3*SLOT - q*4096}')
            for r in range(4 if q < 2 else 1): a(f'buffer_load_dwordx4 v5, s[16:19], s49 offen offset:{r*1024} sc0 sc1 lds')
        a('s_waitcnt vmcnt(0)'); a('s_barrier')
        a.label('K34_XOK')
        if 'k4' in STAMPS: a('s_mul_i32 s96, s59, 100'); a('s_add_u32 s96, s96, s90'); a('s_mov_b32 s95, s90')
    for k in range(4): a(xread(0, k))
    if LOOP:
        def lxread(par, k, nxt):
            b = XB + 4 * (k % 6); r = 2 + (par ^ nxt)
            return f'ds_read_b128 v[{b}:{b+3}], v{r} offset:{k*1024}'
        def lepi(par):
            L = []
            for f in epilogue_list(par):
                if callable(f): continue
                L.append(f)
            return L
        def lepi_full(par, vo):
            g = ACC + 32 * par; u = g + 16; L = []
            G = TMP; E = TMP + 8; U = TMP + 16; PK = TMP + 24
            for p in range(2):
                P = TMP + 28 + 4 * p
                o = 8 * p
                for j in range(4): L.append(f'v_cvt_pk_bf16_f32 v{PK+j}, v{g+o+2*j}, v{g+o+2*j+1}')
                for j in range(4):
                    L.append(f'v_lshlrev_b32 v{G+2*j}, 16, v{PK+j}'); L.append(f'v_and_b32 v{G+2*j+1}, s47, v{PK+j}')
                for j in range(8): L.append(f'v_mul_f32 v{E+j}, s48, v{G+j}')
                for j in range(8): L.append(f'v_exp_f32 v{E+j}, v{E+j}')
                for j in range(4): L.append(f'v_cvt_pk_bf16_f32 v{PK+j}, v{u+o+2*j}, v{u+o+2*j+1}')
                for j in range(8): L.append(f'v_add_f32 v{E+j}, 1.0, v{E+j}')
                for j in range(8): L.append(f'v_rcp_f32 v{E+j}, v{E+j}')
                for j in range(4):
                    L.append(f'v_lshlrev_b32 v{U+2*j}, 16, v{PK+j}'); L.append(f'v_and_b32 v{U+2*j+1}, s47, v{PK+j}')
                for j in range(8): L.append(f'v_mul_f32 v{G+j}, v{G+j}, v{E+j}')
                for j in range(4): L.append(f'v_cvt_pk_bf16_f32 v{PK+j}, v{G+2*j}, v{G+2*j+1}')
                for j in range(4):
                    L.append(f'v_lshlrev_b32 v{G+2*j}, 16, v{PK+j}'); L.append(f'v_and_b32 v{G+2*j+1}, s47, v{PK+j}')
                for j in range(8): L.append(f'v_mul_f32 v{G+j}, v{G+j}, v{U+j}')
                for j in range(4): L.append(f'v_cvt_pk_bf16_f32 v{P+j}, v{G+2*j}, v{G+2*j+1}')
                L.append(f'buffer_store_dwordx4 v[{P}:{P+3}], v{vo}, s[20:23], s45 offen offset:{p*512}' + os.environ.get('STMOD', ' sc1'))
            return L
        uid = [0]
        T0K1 = int(os.environ.get('T0K1', '1')); T0K2 = int(os.environ.get('T0K2', '7'))
        def ltile(par):
            fill = lepi_full(par ^ 1, 1 if par == 0 else 10) + ['s_add_u32 s45, s45, 2048']
            if par == 1: fill.append('v_mov_b32 v1, v10')
            Q = 172 if (par == 0 or not W2P) else 6
            if W2P:
                ad = ['s_sub_u32 s62, s60, 8192', 'v_add_u32 v11, s62, v14', 'v_lshrrev_b32 v12, 7, v11', 'v_mul_hi_u32 v12, v12, s28',
                      'v_lshrrev_b32 v12, 1, v12', 'v_lshrrev_b32 v11, 4, v11', 'v_mul_u32_u24 v0, 72, v12', 'v_sub_u32 v11, v11, v0',
                      'v_mul_u32_u24 v0, 3641, v11', 'v_lshrrev_b32 v0, 16, v0', 'v_lshlrev_b32 v11, 4, v11',
                      'v_mad_u32_u24 v11, v0, s29, v11', 'v_mad_u32_u24 v11, v12, s30, v11', 'v_lshrrev_b32 v12, 5, v12', 'v_mad_u32_u24 v11, v12, s31, v11',
                      lambda: (a('s_sub_u32 s62, s55, 2'), a('s_cmp_lt_u32 s62, 6'), a('s_cselect_b64 vcc, -1, 0'), a('v_mov_b32 v13, 0x7ffffff0'), a('v_cndmask_b32 v11, v13, v11, vcc'))]
                step = max(1, len(fill) // (len(ad) + 1)); nf = []
                for n_, f_ in enumerate(fill):
                    nf.append(f_)
                    if n_ % step == step - 1 and ad: nf.append(ad.pop(0))
                fill = nf + ad
            ss = 57 + par
            dma = [f'v_xor_b32 v{2+par}, 0x12000, v{2+par}',
                   's_cmp_le_u32 s55, s56', f's_cselect_b32 s59, 0, {BIG}', 'v_add_u32 v4, s59, v5', f's_add_u32 s52, s44, s{ss}']
            for q in range(3):
                dma.append(f's_add_u32 m0, s52, {q*4096}'); dma.append(f's_add_u32 s49, s43, {q*4096}')
                for r in range(4 if q < 2 else 1):
                    dma.append(f'buffer_load_dwordx4 v4, s[16:19], s49 offen offset:{r*1024} sc1 lds')
            if W2P: dma.append(f'buffer_store_dwordx4 v[{Q}:{Q+3}], v11, s[32:35], 0 offen sc1')
            dma += [f's_cmp_le_u32 s55, {PWN if PWL2 else 5}', f's_cselect_b32 s59, s60, {BIG}', 'v_add_u32 v13, s59, v14',
                    f'buffer_load_dwordx4 v[{Q}:{Q+3}], v13, s[24:27], 0 offen',
                    's_add_u32 s60, s60, 4096', f's_xor_b32 s{ss}, s{ss}, 0x12000', f's_add_u32 s43, s43, {SLOT}']
            def t0blk(i):
                a('s_cmp_lg_u32 s55, 0'); a(f's_cbranch_scc1 K34_B{i}_{uid[0]}')
                h = list(a.hist)
                for q in range(3):
                    a(f's_add_u32 m0, s44, {i*SLOT + q*4096}'); a(f's_sub_u32 s49, s43, {(3-i)*SLOT - q*4096}')
                    for r in range(4 if q < 2 else 1):
                        a(f'buffer_load_dwordx4 v5, s[16:19], s49 offen offset:{r*1024} sc1 lds')
                a('v_mov_b32 v13, 0x7ffffff0'); a('buffer_load_dwordx4 v[172:175], v13, s[24:27], 0 offen')
                a.label_nf(f'K34_B{i}_{uid[0]}'); a.hist = h
            mf = []
            for k in range(36):
                pre = []
                if par == 0 and RAWW and T0B and k in (T0K1, T0K2): pre.append(lambda k=k: t0blk(1 if k == T0K1 else 2))
                if k == 32: pre += [f's_waitcnt vmcnt({15 if W2P else 13})', 's_barrier']
                pre.append(lxread(par, k + 4, 0) if k + 4 < 36 else lxread(par, k + 4 - 36, 1))
                pre.append('s_waitcnt lgkmcnt(4)')
                pre.append(mfma(par, k, 0))
                mf.append(pre); mf.append([mfma(par, k, 1)])
            interleave(a, mf[:64], fill)
            interleave(a, mf[64:], dma)
        stamp(a, 4, 'k4')
        main = a
        def body():
            ltile(0)
            a('s_cmp_eq_u32 s55, s61'); a('s_cbranch_scc1 K34_F0')
            a('s_add_u32 s55, s55, 1')
            ltile(1)
            a('s_add_u32 s55, s55, 1')
            a('s_cmp_lt_u32 s55, 10'); a('s_cbranch_scc1 K34_LOOP')
        sv = (a.lines, a.hist, a.nops, a.count); a.lines = []; a.hist = []
        body(); h = list(a.hist)
        a.lines, a.hist, a.nops, a.count = sv
        a.label_h('K34_LOOP', h)
        body()
        run(lepi_full(1, 10))
        if F345: a.branch('s_branch K345_J')
        else:
            a('s_waitcnt vmcnt(0)')
            a('s_endpgm')
        a.label('K34_F0')
        a('s_nop 11')
        run(lepi_full(0, 10))
        if F345:
            a.label('K345_J')
            a('s_mul_i32 s74, s36, 7282'); a('s_lshr_b32 s74, s74, 16'); a('s_lshl_b32 s74, s74, 3'); a('s_add_u32 s74, s74, s37'); a('s_lshl_b32 s74, s74, 7')
            a.branch('s_branch K345_K5')
            a.label('K4_END')
            a('s_endpgm')
        else:
            stamp(a, 7, 'k4')
            a('v_mov_b32 v0, v15')
            dump_stamps(a, 8, 'k4', 101)
            a('s_waitcnt vmcnt(0)')
            a.label('K4_END')
            a('s_endpgm')
    else:
        nonloop()
    a.label('K34_HEND')
    if not F345: a('s_waitcnt vmcnt(0)')
    if F345:
        a('s_mov_b32 s74, 0x7ffffff0')
        a.label('K345_K5')
        a('v_mov_b32 v0, v15')
        from gen_k56 import k5a_body
        k5a_body(a, True)
        return kernel_desc('k34_kernel', 176 + 256, accum=176)
    a('s_endpgm')
    return kernel_desc('k34_kernel', 176 + 256, accum=176)
```

```python
from gen_common import *
from gen_k4 import VM, interleave
import os

ST5 = 17408; NS5 = 9
K5L = int(os.environ.get('K5L', '0'))
K5_LDS = ST5 * NS5 + 16
K5A = int(os.environ.get('K5A', '1'))
def gen_k5(a):
    if K5A: return gen_k5a(a)
    a.raw(kernel_header('k5_kernel'))
    dbgt(a, 4, 4, 'DBGT_5')
    vm = VM(a)
    a('s_cmp_ge_u32 s2, 256'); a.branch('s_cbranch_scc1 K5_END')
    stamp(a, 0, 'k5')
    if TK: ticket_begin(a)
    load_ptr(a, 4, 'w2'); load_ptr(a, 12, 'ws')
    a('v_mov_b32 v15, v0')
    a('v_readfirstlane_b32 s35, v0'); a('s_lshr_b32 s35, s35, 6')
    a('s_and_b32 s39, s35, 3')
    a('v_and_b32 v0, 63, v0')
    a('v_lshlrev_b32 v1, 4, v0')
    a('s_mul_i32 s40, s39, 144')
    for q in range(3):
        a(f's_add_u32 s41, s40, {48*q}')
        a('v_add_u32 v10, s41, v0')
        a('v_mul_u32_u24 v11, 3641, v10'); a('v_lshrrev_b32 v11, 16, v11')
        a('v_mul_u32_u24 v12, 18, v11'); a('v_sub_u32 v12, v10, v12')
        a(f'v_mul_u32_u24 v{2+q}, 1152, v11'); a(f'v_lshl_add_u32 v{2+q}, v12, 4, v{2+q}')
    a('v_lshrrev_b32 v10, 5, v0'); a('v_lshlrev_b32 v10, 4, v10')
    a('v_bfe_u32 v11, v0, 4, 1'); a('v_lshl_add_u32 v10, v11, 2, v10')
    a('v_bfe_u32 v11, v0, 2, 2'); a('v_add_u32 v10, v10, v11'); a('v_mul_u32_u24 v5, 288, v10')
    a('v_and_b32 v11, 3, v0'); a('v_lshl_add_u32 v5, v11, 3, v5'); a('v_add_u32 v5, 8192, v5')
    a('s_lshl_b32 s40, s39, 11'); a('v_add_u32 v6, s40, v1')
    if TK:
        ticket(a, 'k5', 4, 3, K5_LDS - 16, wave_s=35)
        a('s_lshr_b32 s36, s3, 5'); a('s_and_b32 s37, s3, 31')
    else:
        a('s_and_b32 s36, s2, 7'); a('s_lshr_b32 s37, s2, 3')
    a('s_and_b32 s38, s36, 3')
    a('s_lshr_b32 s36, s36, 2'); a('s_lshl_b32 s36, s36, 3'); a('s_lshr_b32 s43, s37, 2'); a('s_add_u32 s36, s36, s43')
    a('s_and_b32 s37, s37, 3')
    a(f's_mul_i32 s41, s38, {36*131072}'); a('s_lshl_b32 s42, s36, 13'); a('s_add_u32 s41, s41, s42'); a('s_add_u32 s41, s41, s40')
    a(f's_mul_i32 s42, s38, {36*36864}'); a('s_mul_i32 s43, s37, 288'); a('s_add_u32 s42, s42, s43')
    a('s_mul_i32 s43, s39, 2304')
    a('s_mov_b32 s44, -1'); a('s_mov_b32 s45, 0xffff')
    a('s_waitcnt lgkmcnt(0)')
    make_srd(a, 4, 4608 * 1152)
    copy_srd(a, 16, 12, SZ_HH, WS_HH); copy_srd(a, 20, 12, SZ_PART, WS_PART)
    def dma_list(k):
        so = (k % NS5) * ST5; L = []
        L.append(f's_add_u32 m0, s40, {so}')
        L.append(f's_add_u32 s46, s41, {k*131072}')
        L.append(lambda: vm.issue(f'D{k}', 'buffer_load_dwordx4 v1, s[16:19], s46 offen lds'))
        L.append(lambda: vm.issue(f'D{k}', 'buffer_load_dwordx4 v1, s[16:19], s46 offen offset:1024 lds'))
        L.append(f's_add_u32 s46, s42, {k*36864}')
        def masked():
            a('s_mov_b64 exec, s[44:45]')
            for q in range(3):
                a(f's_add_u32 m0, s43, {so + 8192 + q*768}')
                vm.issue(f'D{k}', f'buffer_load_dwordx4 v{2+q}, s[4:7], s46 offen lds')
            a('s_mov_b64 exec, -1')
        L.append(masked)
        return L
    def dma(k):
        for f in dma_list(k): f() if callable(f) else a(f)
    def run(L):
        for f in L: f() if callable(f) else a(f)
    if K5L: a('s_cmp_ge_u32 s35, 4'); a.branch('s_cbranch_scc1 K5_LOAD')
    else:
        for k in range(8): dma(k)
        if int(os.environ.get('K5LOOP', '1')):
            for i in range(72): a(f'v_mov_b32 v{16+i}, 0')
        vm.wait('D0')
    ACC = 16; WF = 88; HF = 160
    def read_list(k):
        so = (k % NS5) * ST5; b = k % 2; L = []
        va = 7 + 2 * b; vb = 8 + 2 * b
        L.append(f'v_add_u32 v{va}, {so}, v5'); L.append(f'v_add_u32 v{vb}, {so}, v6')
        h = HF + 8 * b
        L.append(f'ds_read_b128 v[{h}:{h+3}], v{vb}'); L.append(f'ds_read_b128 v[{h+4}:{h+7}], v{vb} offset:1024')
        for dt in range(9):
            wv = WF + 36 * b + 4 * dt
            L.append(f'ds_read_b64_tr_b16 v[{wv}:{wv+1}], v{va} offset:{dt*32}')
            L.append(f'ds_read_b64_tr_b16 v[{wv+2}:{wv+3}], v{va} offset:{dt*32+2304}')
        return L
    LOOP5 = int(os.environ.get('K5LOOP', '1')) and not K5L
    a('s_barrier')
    stamp(a, 1, 'k5')
    run(read_list(0))
    if LOOP5:
        def lread(b):
            sr = 47 + (b ^ 1); L = []
            va = 7 + 2 * b; vb = 8 + 2 * b
            L.append(f'v_add_u32 v{va}, s{sr}, v5'); L.append(f'v_add_u32 v{vb}, s{sr}, v6')
            h = HF + 8 * b
            L.append(f'ds_read_b128 v[{h}:{h+3}], v{vb}'); L.append(f'ds_read_b128 v[{h+4}:{h+7}], v{vb} offset:1024')
            for dt in range(9):
                wv = WF + 36 * b + 4 * dt
                L.append(f'ds_read_b64_tr_b16 v[{wv}:{wv+1}], v{va} offset:{dt*32}')
                L.append(f'ds_read_b64_tr_b16 v[{wv+2}:{wv+3}], v{va} offset:{dt*32+2304}')
            return L
        def ldma():
            L = ['s_add_u32 m0, s40, s51',
                 'buffer_load_dwordx4 v1, s[16:19], s41 offen lds',
                 'buffer_load_dwordx4 v1, s[16:19], s41 offen offset:1024 lds',
                 's_add_u32 s49, s43, s51']
            def masked():
                a('s_mov_b64 exec, s[44:45]')
                for q in range(3):
                    a(f's_add_u32 m0, s49, {8192 + q*768}')
                    a(f'buffer_load_dwordx4 v{2+q}, s[4:7], s42 offen lds')
                a('s_mov_b64 exec, -1')
            L += [masked, 's_add_u32 s41, s41, 131072', 's_add_u32 s42, s42, 36864']
            return L
        def mfl(b):
            mf = []
            for dt in range(9):
                for tt in range(2):
                    acc = ACC + 4 * (9 * tt + dt); wv = WF + 36 * b + 4 * dt; h = HF + 8 * b + 4 * tt
                    mf.append([f'v_mfma_f32_16x16x32_bf16 v[{acc}:{acc+3}], v[{wv}:{wv+3}], v[{h}:{h+3}], v[{acc}:{acc+3}]'])
            return mf
        def it(b):
            me = 47 + b; ot = 47 + (b ^ 1); n = 'AB'[b]
            a(f's_mov_b32 s51, s{me}')
            a(f's_add_u32 s{me}, s{ot}, {ST5}'); a(f's_cmp_lt_u32 s{me}, {NS5*ST5}'); a(f's_cselect_b32 s{me}, s{me}, 0')
            a('s_cmp_ge_u32 s50, 14')
            if b == 0:
                a(f's_cbranch_scc1 K5_TW')
                a('s_waitcnt vmcnt(30) lgkmcnt(0)')
                a.label_nf('K5_WA')
            else:
                a(f's_cbranch_scc1 K5_WB')
                a('s_waitcnt vmcnt(30)')
                a.label_nf('K5_WB')
                a('s_waitcnt lgkmcnt(0)')
            a('s_barrier')
            mf = mfl(b)
            sr = me; bb = b ^ 1; L = []
            va = 7 + 2 * bb; vb = 8 + 2 * bb
            L.append(f'v_add_u32 v{va}, s{sr}, v5'); L.append(f'v_add_u32 v{vb}, s{sr}, v6')
            h = HF + 8 * bb
            L.append(f'ds_read_b128 v[{h}:{h+3}], v{vb}'); L.append(f'ds_read_b128 v[{h+4}:{h+7}], v{vb} offset:1024')
            for dt in range(9):
                wv = WF + 36 * bb + 4 * dt
                L.append(f'ds_read_b64_tr_b16 v[{wv}:{wv+1}], v{va} offset:{dt*32}')
                L.append(f'ds_read_b64_tr_b16 v[{wv+2}:{wv+3}], v{va} offset:{dt*32+2304}')
            interleave(a, mf[:14], L)
            a('s_cmp_ge_u32 s50, 14'); a(f's_cbranch_scc1 K5_ND{n}')
            interleave(a, mf[14:], ldma())
            a.label_nf(f'K5_J{n}')
        a(f's_mov_b32 s47, {8*ST5}'); a('s_mov_b32 s48, 0'); a('s_mov_b32 s50, 0')
        a(f's_add_u32 s41, s41, {8*131072}'); a(f's_add_u32 s42, s42, {8*36864}')
        a.label('K5_LOOP')
        it(0); it(1)
        a('s_add_u32 s50, s50, 1'); a('s_cmp_lt_u32 s50, 18'); a('s_cbranch_scc1 K5_LOOP')
        a.branch('s_branch K5_EPI')
        a.label('K5_TW')
        for t, nn in ((14, 25), (15, 15), (16, 5)):
            a(f's_cmp_lg_u32 s50, {t}'); a(f's_cbranch_scc1 K5_TW{t}')
            a(f's_waitcnt vmcnt({nn}) lgkmcnt(0)'); a('s_branch K5_WA')
            a.label_nf(f'K5_TW{t}')
        a('s_waitcnt vmcnt(0) lgkmcnt(0)'); a('s_branch K5_WA')
        for b in range(2):
            a.label(f'K5_ND{"AB"[b]}')
            for g_ in mfl(b)[14:]: a(g_[0])
            a(f's_branch K5_J{"AB"[b]}')
        a.label('K5_EPI')
        a('s_waitcnt lgkmcnt(0)'); a('s_nop 7')
    for k in range(36 if not LOOP5 else 0):
        b = k % 2
        if K5L or k + 1 >= 36: a('s_waitcnt lgkmcnt(0)')
        else: vm.wait(f'D{k+1}', ' lgkmcnt(0)')
        if k + 1 < 36: a('s_barrier')
        fill = read_list(k + 1) if k + 1 < 36 else []
        mf = []
        for dt in range(9):
            for tt in range(2):
                acc = ACC + 4 * (9 * tt + dt); wv = WF + 36 * b + 4 * dt; h = HF + 8 * b + 4 * tt
                c = '0' if k == 0 else f'v[{acc}:{acc+3}]'
                mf.append([f'v_mfma_f32_16x16x32_bf16 v[{acc}:{acc+3}], v[{wv}:{wv+3}], v[{h}:{h+3}], {c}'])
        interleave(a, mf[:14], fill)
        interleave(a, mf[14:], dma_list(k + 8) if (not K5L and k + 8 < 36) else [])
        if k in (11, 23): stamp(a, 2 if k == 11 else 3, 'k5')
    stamp(a, 4, 'k5')
    k5_epilogue(a, ACC)
    stamp(a, 5, 'k5')
    if 'k5' in STAMPS:
        a('v_mov_b32 v0, v15'); dump_stamps(a, 6, 'k5', 101)
    a('s_endpgm')
    if K5L:
        a.label('K5_LOAD')
        for k in range(NS5): dma(k)
        vm.wait('D0'); a('s_barrier')
        for k in range(35):
            vm.wait(f'D{k+1}'); a('s_barrier')
            if k + NS5 < 36: dma(k + NS5)
    a.label('K5_END')
    a('s_endpgm')
    return kernel_desc('k5_kernel', 176)


F56 = int(os.environ.get('F56', '1'))
def gen_k5a(a):
    a.raw(kernel_header('k5_kernel'))
    a('s_cmp_ge_u32 s2, 256'); a.branch('s_cbranch_scc1 K5_END')
    k5a_body(a, False)
    return kernel_desc('k5_kernel', 176 + 8 * 12, accum=176)
def k5a_body(a, fused):
    stamp(a, 0, 'k5')
    load_ptr(a, 4, 'w2'); load_ptr(a, 12, 'ws')
    if F56: load_ptr(a, 8, 'out')
    a('v_mov_b32 v15, v0')
    a('v_readfirstlane_b32 s39, v0'); a('s_lshr_b32 s39, s39, 6')
    a('v_and_b32 v0, 63, v0')
    a('v_lshlrev_b32 v1, 4, v0')
    a('s_mul_i32 s40, s39, 144')
    for q in range(3):
        a(f's_add_u32 s41, s40, {48*q}')
        a('v_add_u32 v10, s41, v0')
        if W2P: a(f'v_lshlrev_b32 v{2+q}, 4, v10'); continue
        a('v_mul_u32_u24 v11, 3641, v10'); a('v_lshrrev_b32 v11, 16, v11')
        a('v_mul_u32_u24 v12, 18, v11'); a('v_sub_u32 v12, v10, v12')
        a(f'v_mul_u32_u24 v{2+q}, 1152, v11'); a(f'v_lshl_add_u32 v{2+q}, v12, 4, v{2+q}')
    D = int(os.environ.get('K5D', '4')); STW = 9216; NSW = D + 1
    a('v_lshrrev_b32 v10, 5, v0'); a('v_lshlrev_b32 v10, 4, v10')
    a('v_bfe_u32 v11, v0, 4, 1'); a('v_lshl_add_u32 v10, v11, 2, v10')
    a('v_bfe_u32 v11, v0, 2, 2'); a('v_add_u32 v10, v10, v11'); a('v_mul_u32_u24 v5, 288, v10')
    a('v_and_b32 v11, 3, v0'); a('v_lshl_add_u32 v5, v11, 3, v5')
    a('s_lshl_b32 s40, s39, 11')
    a('s_and_b32 s36, s2, 7'); a('s_lshr_b32 s37, s2, 3')
    a('s_and_b32 s38, s36, 3')
    a('s_lshr_b32 s36, s36, 2'); a('s_lshl_b32 s36, s36, 3'); a('s_lshr_b32 s43, s37, 2'); a('s_add_u32 s36, s36, s43')
    a('s_and_b32 s37, s37, 3')
    a(f's_mul_i32 s41, s38, {36*131072}'); a('s_lshl_b32 s42, s36, 13'); a('s_add_u32 s41, s41, s42'); a('s_add_u32 s41, s41, s40')
    a(f's_mul_i32 s42, s38, {36*36864}'); a(f's_mul_i32 s43, s37, {9216 if W2P else 288}'); a('s_add_u32 s42, s42, s43')
    a('s_mul_i32 s43, s39, 2304')
    a('s_mov_b32 s44, -1'); a('s_mov_b32 s45, 0xffff')
    a('s_waitcnt lgkmcnt(0)')
    if W2P: copy_srd(a, 4, 12, SZ_W2P, WS_W2P)
    else: make_srd(a, 4, 4608 * 1152)
    copy_srd(a, 16, 12, SZ_HH, WS_HH); copy_srd(a, 20, 12, SZ_PART, WS_PART)
    if F56:
        make_srd(a, 8, 2048 * 1152); copy_srd(a, 24, 12, SZ_MOD, WS_MOD); copy_srd(a, 28, 12, SZ_X1, WS_X1)
        copy_srd(a, 52, 12, 8192, WS_CNT + CNT_OFF['k5'])
    if fused:
        copy_srd(a, 56, 12, 4096, WS_CNT + CNT_OFF['k2'])
        a('s_lshl_b32 s60, s36, 2'); a('s_add_u32 s61, s60, 2')
        a('s_max_u32 s60, s60, 1'); a('s_sub_u32 s60, s60, 1')
        for r in (60, 61):
            a(f's_mul_i32 s{r}, s{r}, 7282'); a(f's_lshr_b32 s{r}, s{r}, 16')
            a(f's_lshl_b32 s62, s38, 3'); a(f's_add_u32 s{r}, s{r}, s62'); a(f's_lshl_b32 s{r}, s{r}, 7')
        a('v_mov_b32 v11, 1'); a('v_mov_b32 v12, s74')
        a('s_waitcnt vmcnt(0)'); a('s_barrier')
        a('s_cmp_lg_u32 s39, 0'); a.branch('s_cbranch_scc1 K5_QD')
        a('s_mov_b64 exec, 1')
        a('buffer_atomic_add v11, v12, s[56:59], 0 offen sc1')
        a('s_mov_b64 exec, -1')
        a('s_mov_b32 s63, 0')
        a.label('K5_QL')
        a('buffer_load_dword v11, off, s[56:59], s60 sc1'); a('buffer_load_dword v12, off, s[56:59], s61 sc1')
        a('s_waitcnt vmcnt(0)')
        a('v_min_u32 v11, v11, v12'); a('v_readfirstlane_b32 s62, v11')
        a('s_cmp_ge_u32 s62, 9'); a.branch('s_cbranch_scc1 K5_QD')
        a('s_sleep 2')
        a('s_add_u32 s63, s63, 1'); a('s_cmp_lt_u32 s63, 0x10000'); a.branch('s_cbranch_scc1 K5_QL')
        a.label('K5_QD')
        a('s_barrier')
    ACC = 16; WF = 88; NR = 12
    def hh_loads(slot):
        h = 8 * slot
        return [f'buffer_load_dwordx4 a[{h}:{h+3}], v1, s[16:19], s41 offen',
                f'buffer_load_dwordx4 a[{h+4}:{h+7}], v1, s[16:19], s41 offen offset:1024']
    def w_dma(base_s):
        def masked():
            a('s_mov_b64 exec, s[44:45]')
            for q in range(3):
                a(f's_add_u32 m0, s{base_s}, {q*768}')
                a(f'buffer_load_dwordx4 v{2+q}, s[4:7], s42 offen lds')
            a('s_mov_b64 exec, -1')
        return masked
    def run(L):
        for f in L: f() if callable(f) else a(f)
    for k in range(D):
        a(f's_add_u32 s49, s43, {k*STW}')
        run(hh_loads(k)); w_dma(49)()
        a('s_add_u32 s41, s41, 131072'); a('s_add_u32 s42, s42, 36864')
    for i in range(72): a(f'v_mov_b32 v{16+i}, 0')
    a(f's_mov_b32 s47, {D*STW}'); a('s_mov_b32 s48, 0'); a('s_mov_b32 s50, 0')
    a(f's_waitcnt vmcnt({5*(D-1)})'); a('s_barrier')
    stamp(a, 1, 'k5')
    def reads(bb, areg):
        L = []
        for dt in range(9):
            wv = WF + 36 * bb + 4 * dt
            L.append(f'ds_read_b64_tr_b16 v[{wv}:{wv+1}], v{areg} offset:{dt*32}')
            L.append(f'ds_read_b64_tr_b16 v[{wv+2}:{wv+3}], v{areg} offset:{dt*32+2304}')
        return L
    run(reads(0, 5))
    def mfl(j):
        b = j % 2; mf = []
        for dt in range(9):
            for tt in range(2):
                acc = ACC + 4 * (9 * tt + dt); wv = WF + 36 * b + 4 * dt; h = 8 * j + 4 * tt
                mf.append([f'v_mfma_f32_16x16x32_bf16 v[{acc}:{acc+3}], v[{wv}:{wv+3}], a[{h}:{h+3}], v[{acc}:{acc+3}]'])
        return mf
    tailw = {j: 5 * (10 - j) for j in range(13 - D, 11)}
    WM = 5 * (D - 2); JN = 12 - D
    def it(j):
        b = j % 2; me = 47 + b; ot = 47 + (b ^ 1)
        a(f's_mov_b32 s51, s{me}')
        a(f's_add_u32 s{me}, s{ot}, {STW}'); a(f's_cmp_lt_u32 s{me}, {NSW*STW}'); a(f's_cselect_b32 s{me}, s{me}, 0')
        if j in tailw:
            a('s_cmp_eq_u32 s50, 2'); a(f's_cbranch_scc1 K5_TW{j}')
            a(f's_waitcnt vmcnt({WM}) lgkmcnt(0)')
            a.label_nf(f'K5_WB{j}')
        else:
            a(f's_waitcnt vmcnt({WM}) lgkmcnt(0)')
        a('s_barrier')
        mf = mfl(j)
        va = 7 + (b ^ 1)
        L = [f'v_add_u32 v{va}, s{me}, v5', 's_add_u32 s49, s43, s51'] + reads(b ^ 1, va)
        interleave(a, mf[:14], L)
        dma = hh_loads((j + D) % NR) + [w_dma(49), 's_add_u32 s41, s41, 131072', 's_add_u32 s42, s42, 36864']
        if j >= JN:
            a('s_cmp_eq_u32 s50, 2'); a(f's_cbranch_scc1 K5_ND{j}')
        interleave(a, mf[14:], dma)
        if j >= JN: a.label_nf(f'K5_J{j}')
    a.label('K5_LOOP')
    for j in range(12): it(j)
    a('s_add_u32 s50, s50, 1'); a('s_cmp_lt_u32 s50, 3'); a('s_cbranch_scc1 K5_LOOP')
    a.branch('s_branch K5_EPI')
    for j, nn in tailw.items():
        a.label(f'K5_TW{j}')
        a(f's_waitcnt vmcnt({nn}) lgkmcnt(0)'); a(f's_branch K5_WB{j}')
    for j in range(JN, 12):
        a.label(f'K5_ND{j}')
        for g_ in mfl(j)[14:]: a(g_[0])
        a(f's_branch K5_J{j}')
    a.label('K5_EPI')
    a('s_waitcnt lgkmcnt(0)'); a('s_nop 7')
    stamp(a, 4, 'k5')
    if F56: k56_pre(a)
    k5_epilogue(a, ACC)
    stamp(a, 5, 'k5')
    if 'k5' in STAMPS and not F56:
        a('v_mov_b32 v0, v15'); dump_stamps(a, 6, 'k5', 101)
    if F56: k56_tail(a)
    a.label('K5_END')
    a('s_endpgm')

def k56_pre(a):
    a('s_lshr_b32 s56, s39, 1'); a('s_and_b32 s57, s39, 1')
    a('s_lshl_b32 s58, s36, 2'); a('s_add_u32 s58, s58, s37')
    a(f"s_lshl_b32 s65, s58, {os.environ.get('F56S', '7')}")
    a('s_lshl_b32 s59, s58, 2'); a('s_add_u32 s59, s59, s38'); a('s_lshl_b32 s59, s59, 1'); a('s_add_u32 s59, s59, s56'); a('s_mul_i32 s59, s59, 5120')
    a('s_lshl_b32 s60, s36, 7'); a('s_lshl_b32 s61, s38, 5'); a('s_add_u32 s60, s60, s61'); a('s_lshl_b32 s61, s56, 4'); a('s_add_u32 s60, s60, s61')
    a('s_mul_i32 s61, s37, 144'); a('s_lshl_b32 s62, s57, 6'); a('s_add_u32 s61, s61, s62')
    a('s_mul_i32 s62, s60, 1152'); a('s_lshl_b32 s63, s61, 1'); a('s_add_u32 s62, s62, s63')
    a('s_lshl_b32 s63, s61, 2'); a(f's_add_u32 s63, s63, {5*2304}')
    a('v_and_b32 v2, 15, v0'); a('v_mul_u32_u24 v2, 1152, v2'); a('v_lshrrev_b32 v3, 4, v0'); a('v_lshl_add_u32 v2, v3, 3, v2')
    a('v_lshlrev_b32 v3, 4, v3')
    a('s_lshl_b32 s64, s57, 11'); a('s_add_u32 s64, s64, s59')
    X = 136; G = 148
    if 'k5' in STAMPS: a('v_mov_b32 v170, v15')
    for j in range(5): a(f'buffer_load_dwordx2 v[{X+2*j}:{X+2*j+1}], v2, s[28:31], s62 offen offset:{j*32} sc1')
    for j in range(5): a(f'buffer_load_dwordx4 v[{G+4*j}:{G+4*j+3}], v3, s[24:27], s63 offen offset:{j*64}')

def k56_tail(a):
    a('s_waitcnt vmcnt(0)'); a('s_barrier')
    stamp(a, 6, 'k5')
    a('s_cmp_lg_u32 s39, 0'); a.branch('s_cbranch_scc1 K5_PD')
    a('s_mov_b64 exec, 1'); a('v_mov_b32 v11, 1')
    a('buffer_atomic_add v11, off, s[52:55], s65 sc0 sc1')
    a('s_mov_b64 exec, -1')
    a('s_mov_b32 s67, 0')
    a('s_waitcnt vmcnt(0)'); a('v_readfirstlane_b32 s66, v11')
    a('s_cmp_ge_u32 s66, 3'); a.branch('s_cbranch_scc1 K5_PD')
    a.label('K5_PL')
    a('buffer_load_dword v11, off, s[52:55], s65 sc1')
    a('s_waitcnt vmcnt(0)'); a('v_readfirstlane_b32 s66, v11')
    a('s_cmp_ge_u32 s66, 4'); a.branch('s_cbranch_scc1 K5_PD')
    a('s_add_u32 s67, s67, 1'); a('s_cmp_lt_u32 s67, 0x10000'); a.branch('s_cbranch_scc1 K5_PL')
    a.label('K5_PD')
    a('s_barrier')
    stamp(a, 7, 'k5')
    SS = 64 * 4 * 10240
    P = 8; SC = 60; nf = 5; n = 20
    a('s_add_u32 s60, s59, 4096')
    for s_ in range(4):
        if s_: a(f's_add_u32 s64, s64, {SS}'); a(f's_add_u32 s60, s60, {SS}')
        b = P + 12 * s_
        a(f'buffer_load_dword v{SC+s_}, v1, s[20:23], s60 offen offset:8 sc1')
        a(f'buffer_load_dwordx4 v[{b}:{b+3}], v1, s[20:23], s64 offen sc1')
        a(f'buffer_load_dwordx4 v[{b+4}:{b+7}], v1, s[20:23], s64 offen offset:1024 sc1')
        a(f'buffer_load_dwordx2 v[{b+8}:{b+9}], v1, s[20:23], s64 offen offset:2048 sc1')
    X = 136; G = 148; R = 88; T = 108
    for s_ in range(4):
        a(f's_waitcnt vmcnt({4*(3-s_)})')
        if s_ == 3: stamp(a, 2, 'k5')
        b = P + 12 * s_
        for i in range(n):
            src = b + i // 2
            sel = f'op_sel:[{i%2},0,0] op_sel_hi:[1,0,0]'
            if s_ == 0: a(f'v_fma_mix_f32 v{R+i}, v{src}, v{SC+s_}, 0 {sel}')
            else: a(f'v_fma_mix_f32 v{R+i}, v{src}, v{SC+s_}, v{R+i} {sel}')
    for i in range(n // 2): a(f'v_cvt_pk_bf16_f32 v{T+i}, v{R+2*i}, v{R+2*i+1}')
    for i in range(n // 2): unpack_lo(a, R + 2 * i, T + i); unpack_hi(a, R + 2 * i + 1, T + i)
    for i in range(n): a(f'v_mul_f32 v{R+i}, v{R+i}, v{G+i}')
    for i in range(n // 2): a(f'v_cvt_pk_bf16_f32 v{T+i}, v{R+2*i}, v{R+2*i+1}')
    for i in range(n // 2): unpack_lo(a, R + 2 * i, T + i); unpack_hi(a, R + 2 * i + 1, T + i)
    for i in range(n // 2): unpack_lo(a, P + 2 * i, X + i); unpack_hi(a, P + 2 * i + 1, X + i)
    for i in range(n): a(f'v_add_f32 v{R+i}, v{R+i}, v{P+i}')
    for i in range(n // 2): a(f'v_cvt_pk_bf16_f32 v{T+i}, v{R+2*i}, v{R+2*i+1}')
    for j in range(nf): a(f'buffer_store_dwordx2 v[{T+2*j}:{T+2*j+1}], v2, s[8:11], s62 offen offset:{j*32}' + os.environ.get('OUTMOD', ''))
    if 'k5' in STAMPS:
        a('s_waitcnt vmcnt(0)'); stamp(a, 3, 'k5')
        a('v_mov_b32 v0, v170'); dump_stamps(a, 8, 'k5', 101)

def k5_epilogue(a, ACC):
    a('s_lshl_b32 s41, s38, 6'); a('s_lshl_b32 s42, s36, 2'); a('s_add_u32 s41, s41, s42'); a('s_add_u32 s41, s41, s37')
    a('s_lshl_b32 s41, s41, 2'); a('s_add_u32 s41, s41, s39'); a(f's_mul_i32 s41, s41, {10*1024}')
    MX = 88
    for tt in range(2):
        A0 = ACC + 36 * tt; m = MX + 24 * tt
        for c in range(4):
            a(f'v_max3_f32 v{m+c}, |v{A0+9*c}|, |v{A0+9*c+1}|, |v{A0+9*c+2}|')
        for j in range(3, 9, 2):
            for c in range(4): a(f'v_max3_f32 v{m+c}, |v{A0+9*c+j}|, |v{A0+9*c+j+1}|, v{m+c}')
        a(f'v_max3_f32 v{m}, v{m}, v{m+1}, v{m+2}'); a(f'v_max_f32 v{m}, v{m}, v{m+3}')
        a(f'v_frexp_exp_i32_f32 v{m+1}, v{m}')
        a(f'v_sub_u32 v{m+2}, 15, v{m+1}')
        a(f'v_max_i32 v{m+2}, -100, v{m+2}'); a(f'v_min_i32 v{m+2}, 100, v{m+2}')
        a(f'v_ldexp_f32 v{m+3}, 1.0, v{m+2}')
        a(f'v_sub_u32 v{m+2}, 0, v{m+2}'); a(f'v_ldexp_f32 v{m+22}, 1.0, v{m+2}')
        for i in range(36): a(f'v_mul_f32 v{A0+i}, v{A0+i}, v{m+3}')
        for i in range(18): a(f'v_cvt_pk_f16_f32 v{m+4+i}, v{A0+2*i}, v{A0+2*i+1}')
        a(f'v_mov_b32 v{m+23}, 0')
        for p in range(5):
            i = 5 * tt + p
            if i % 4 == 0 and i: a(f's_add_u32 s41, s41, 4096')
            a(f'buffer_store_dwordx4 v[{m+4+4*p}:{m+7+4*p}], v1, s[20:23], s41 offen offset:{(i%4)*1024}' + os.environ.get('STMOD5', ' sc1'))

def gen_k6(a):
    a.raw(kernel_header('k6_kernel'))
    dbgt(a, 5, 5, 'DBGT_6')
    a('s_cmp_ge_u32 s2, 256'); a.branch('s_cbranch_scc1 K6_END')
    load_ptr(a, 4, 'ws'); load_ptr(a, 8, 'out')
    a('v_readfirstlane_b32 s3, v0'); a('s_lshr_b32 s3, s3, 6')
    a('v_and_b32 v0, 63, v0')
    a('v_lshlrev_b32 v1, 4, v0')
    a('s_lshr_b32 s21, s3, 1'); a('s_and_b32 s22, s3, 1')
    a('s_lshl_b32 s20, s2, 1'); a('s_add_u32 s20, s20, s21'); a('s_mul_i32 s20, s20, 5120')
    a('s_and_b32 s23, s2, 3')
    a('s_lshr_b32 s24, s2, 2'); a('s_and_b32 s25, s24, 3'); a('s_lshr_b32 s24, s24, 2')
    a('s_lshl_b32 s26, s24, 7'); a('s_lshl_b32 s27, s23, 5'); a('s_add_u32 s26, s26, s27'); a('s_lshl_b32 s27, s21, 4'); a('s_add_u32 s26, s26, s27')
    a('s_mul_i32 s27, s25, 144'); a('s_lshl_b32 s28, s22, 6'); a('s_add_u32 s27, s27, s28')
    a('s_mul_i32 s29, s26, 1152'); a('s_lshl_b32 s28, s27, 1'); a('s_add_u32 s29, s29, s28')
    a('s_lshl_b32 s30, s27, 2'); a(f's_add_u32 s30, s30, {5*2304}')
    a('v_and_b32 v2, 15, v0'); a('v_mul_u32_u24 v2, 1152, v2'); a('v_lshrrev_b32 v3, 4, v0'); a('v_lshl_add_u32 v2, v3, 3, v2')
    a('v_lshlrev_b32 v3, 4, v3')
    a('s_lshl_b32 s31, s22, 11'); a('s_add_u32 s31, s31, s20')
    a('s_waitcnt lgkmcnt(0)')
    copy_srd(a, 12, 4, SZ_PART, WS_PART); copy_srd(a, 16, 4, SZ_X1, WS_X1); copy_srd(a, 32, 4, SZ_MOD, WS_MOD)
    make_srd(a, 8, 2048 * 1152)
    SS = 64 * 4 * 10240
    a('s_cmp_eq_u32 s22, 1'); a.branch('s_cbranch_scc1 K6_B')
    for half in range(2):
        nf = 4 + half
        if half: a.label('K6_B')
        P = 8
        for s_ in range(4):
            if s_: a(f's_add_u32 s31, s31, {SS}'); a(f's_add_u32 s20, s20, {SS}')
            b = P + 12 * s_
            a(f'buffer_load_dwordx4 v[{b}:{b+3}], v1, s[12:15], s31 offen')
            a(f'buffer_load_dwordx4 v[{b+4}:{b+7}], v1, s[12:15], s31 offen offset:1024')
            if half: a(f'buffer_load_dwordx4 v[{b+8}:{b+11}], v1, s[12:15], s31 offen offset:2048')
            else:
                a(f's_add_u32 s36, s20, 4096')
                a(f'buffer_load_dword v{b+10}, v1, s[12:15], s36 offen offset:8')
        X = 56; G = 68; R = 88; T = 108
        for j in range(nf): a(f'buffer_load_dwordx2 v[{X+2*j}:{X+2*j+1}], v2, s[16:19], s29 offen offset:{j*32}')
        for j in range(nf): a(f'buffer_load_dwordx4 v[{G+4*j}:{G+4*j+3}], v3, s[32:35], s30 offen offset:{j*64}')
        n = 4 * nf
        for s_ in range(4):
            a(f's_waitcnt vmcnt({2*nf + 3*(3-s_)})')
            b = P + 12 * s_
            for i in range(n):
                src = b + i // 2
                sel = f'op_sel:[{i%2},0,0] op_sel_hi:[1,0,0]'
                if s_ == 0: a(f'v_fma_mix_f32 v{R+i}, v{src}, v{b+10}, 0 {sel}')
                else: a(f'v_fma_mix_f32 v{R+i}, v{src}, v{b+10}, v{R+i} {sel}')
        for i in range(n // 2): a(f'v_cvt_pk_bf16_f32 v{T+i}, v{R+2*i}, v{R+2*i+1}')
        for i in range(n // 2): unpack_lo(a, R + 2 * i, T + i); unpack_hi(a, R + 2 * i + 1, T + i)
        a('s_waitcnt vmcnt(0)')
        for i in range(n): a(f'v_mul_f32 v{R+i}, v{R+i}, v{G+i}')
        for i in range(n // 2): a(f'v_cvt_pk_bf16_f32 v{T+i}, v{R+2*i}, v{R+2*i+1}')
        for i in range(n // 2): unpack_lo(a, R + 2 * i, T + i); unpack_hi(a, R + 2 * i + 1, T + i)
        for i in range(n // 2): unpack_lo(a, P + 2 * i, X + i); unpack_hi(a, P + 2 * i + 1, X + i)
        for i in range(n): a(f'v_add_f32 v{R+i}, v{R+i}, v{P+i}')
        for i in range(n // 2): a(f'v_cvt_pk_bf16_f32 v{T+i}, v{R+2*i}, v{R+2*i+1}')
        for j in range(nf): a(f'buffer_store_dwordx2 v[{T+2*j}:{T+2*j+1}], v2, s[8:11], s29 offen offset:{j*32}')
        if half == 0:
            a('s_waitcnt vmcnt(0)'); dbgt(a, 5, 6, 'DBGT_6E'); a('s_endpgm')
    a.label('K6_END')
    a('s_endpgm')
    return kernel_desc('k6_kernel', 120)
```

```python
from gen_common import *

def ln_core(a, nch, xp, xf, tmp, nw, v_redw, v_redr, red_off, out_xn, hooks=None):
    n = 8 * nch
    for i in range(4 * nch):
        unpack_lo(a, xf + 2 * i, xp + i); unpack_hi(a, xf + 2 * i + 1, xp + i)
    s = tmp; t1 = tmp + 1
    for k in range(4): a(f'v_add_f32 v{tmp+2+k}, v{xf+k}, v{xf+4+k}')
    for i in range(8, n):
        a(f'v_add_f32 v{tmp+2+(i%4)}, v{tmp+2+(i%4)}, v{xf+i}')
    a(f'v_add_f32 v{tmp+2}, v{tmp+2}, v{tmp+3}')
    a(f'v_add_f32 v{tmp+4}, v{tmp+4}, v{tmp+5}')
    a(f'v_add_f32 v{s}, v{tmp+2}, v{tmp+4}')
    red_l8(a, s, t1)
    a(f'ds_write_b32 v{v_redw}, v{s} offset:{red_off}')
    a('s_waitcnt lgkmcnt(0)')
    if hooks: hooks[0]()
    a('s_barrier')
    late = hooks is not None and len(hooks) > 4 and hooks[4]
    if hooks and not late: hooks[1]()
    def gather(off, mid=None):
        for w in range(nw): a(f'ds_read_b32 v{tmp+2+w}, v{v_redr} offset:{off + w*32}')
        if mid: mid(); a('s_waitcnt lgkmcnt(15)')
        else: a('s_waitcnt lgkmcnt(0)')
        for w in range(1, nw): a(f'v_add_f32 v{tmp+2}, v{tmp+2}, v{tmp+2+w}')
    gather(red_off, hooks[1] if late else None)
    mean = tmp
    a(f'v_mul_f32 v{mean}, {f32bits(1.0/576)}, v{tmp+2}')
    acc = [tmp + 2 + k for k in range(4)]
    d = tmp + 6
    for i in range(n):
        a(f'v_sub_f32 v{d + (i%4)}, v{xf+i}, v{mean}')
        if i < 4: a(f'v_mul_f32 v{acc[i]}, v{d+i}, v{d+i}')
        else: a(f'v_fmac_f32 v{acc[i%4]}, v{d+(i%4)}, v{d+(i%4)}')
    a(f'v_add_f32 v{acc[0]}, v{acc[0]}, v{acc[1]}')
    a(f'v_add_f32 v{acc[2]}, v{acc[2]}, v{acc[3]}')
    a(f'v_add_f32 v{t1}, v{acc[0]}, v{acc[2]}')
    red_l8(a, t1, tmp + 6)
    off2 = red_off + nw * 32
    a(f'ds_write_b32 v{v_redw}, v{t1} offset:{off2}')
    round_bf16_1(a, mean, mean)
    a('s_waitcnt lgkmcnt(0)')
    if hooks: hooks[2]()
    a('s_barrier')
    if hooks and not late: hooks[3]()
    gather(off2, hooks[3] if late else None)
    r = tmp + 1
    a(f'v_mul_f32 v{r}, {f32bits(1.0/576)}, v{tmp+2}')
    round_bf16_1(a, r, r)
    a(f'v_add_f32 v{r}, {f32bits(1e-5)}, v{r}')
    round_bf16_1(a, r, r)
    a(f'v_sqrt_f32 v{r}, v{r}')
    round_bf16_1(a, r, r)
    a(f'v_rcp_f32 v{r}, v{r}')
    for i in range(n): a(f'v_sub_f32 v{xf+i}, v{xf+i}, v{mean}')
    for i in range(4 * nch): a(f'v_cvt_pk_bf16_f32 v{out_xn+i}, v{xf+2*i}, v{xf+2*i+1}')
    for i in range(4 * nch):
        unpack_lo(a, xf + 2 * i, out_xn + i); unpack_hi(a, xf + 2 * i + 1, out_xn + i)
    for i in range(n): a(f'v_mul_f32 v{xf+i}, v{xf+i}, v{r}')
    for i in range(4 * nch): a(f'v_cvt_pk_bf16_f32 v{out_xn+i}, v{xf+2*i}, v{xf+2*i+1}')

N_MOD = 54; N_LN1 = 256; N_KG = 576
import os
N_PF = int(os.environ.get('NPF', '0'))
TLBW = int(os.environ.get('TLBW', '21'))
N_TW = 8 if TLBW else 0
K1_GRID = N_MOD + N_LN1 + N_KG + N_PF + N_TW
K1_LDS = 36864
F12 = int(os.environ.get('F12', '0'))
N_PROD = N_MOD + N_LN1
def arrive(a, vt=2):
    a('s_and_b32 s68, s2, 63'); a('s_lshl_b32 s68, s68, 2')
    a('s_mov_b64 exec, 1'); a(f'v_mov_b32 v{vt}, 1')
    a(f'buffer_atomic_add v{vt}, off, s[64:67], s68 sc1')
def dbg_srd(a):
    a('s_mov_b32 s66, 256'); a('s_mov_b32 s67, 0x20000')

def gen_k1(a):
    a.raw(kernel_header('k1_kernel'))
    if F12: load_ptr(a, 64, 'dbg')
    K1W = int(os.environ.get('K1W', '200'))
    stamp(a, 0, 'k1')
    if 'k1' in STAMPS: a('s_mov_b32 s91, s90'); a('s_mov_b32 s92, s90'); a('s_mov_b32 s93, s90')
    def fin(tag):
        if 'k1' not in STAMPS: return
        a('s_mov_b64 exec, -1'); stamp(a, 2, 'k1'); a('s_waitcnt vmcnt(0)'); stamp(a, 3, 'k1')
        dump_stamps(a, 4, 'k1', K1W, sfx=tag)
    dbgt(a, 0, 0, 'DBGT_1')
    ORD = int(os.environ.get('K1ORD', '2'))
    if ORD == 1:
        a(f's_add_u32 s3, s2, {N_MOD+N_LN1}'); a(f's_sub_u32 s4, s2, {N_KG}')
        a(f's_cmp_lt_u32 s2, {N_MOD+N_LN1+N_KG}'); a('s_cselect_b32 s4, s4, s2')
        a(f's_cmp_lt_u32 s2, {N_KG}'); a('s_cselect_b32 s2, s3, s4')
    elif ORD == 2:
        a(f's_add_u32 s3, s2, {N_MOD+N_LN1}'); a(f's_sub_u32 s4, s2, {N_KG - N_MOD}'); a(f's_sub_u32 s5, s2, {N_KG + N_LN1}')
        a(f's_cmp_lt_u32 s2, {N_MOD+N_LN1+N_KG}'); a('s_cselect_b32 s5, s5, s2')
        a(f's_cmp_lt_u32 s2, {N_KG+N_LN1}'); a('s_cselect_b32 s4, s4, s5')
        a(f's_cmp_lt_u32 s2, {N_KG}'); a('s_cselect_b32 s2, s3, s4')
    elif ORD == 3:
        a(f's_add_u32 s3, s2, {N_LN1}'); a(f's_sub_u32 s4, s2, {N_KG}')
        a(f's_cmp_lt_u32 s2, {N_MOD+N_LN1+N_KG}'); a('s_cselect_b32 s4, s4, s2')
        a(f's_cmp_lt_u32 s2, {N_KG+N_MOD}'); a('s_cselect_b32 s3, s3, s4')
        a(f's_cmp_lt_u32 s2, {N_MOD}'); a('s_cselect_b32 s2, s2, s3')
    if ORD >= 4:
        assert N_PF == 0
        seg = {'M': (0, N_MOD), 'L': (N_MOD, N_LN1), 'K': (N_MOD+N_LN1, N_KG), 'T': (N_MOD+N_LN1+N_KG, N_TW)}
        order = {4: 'TKLM', 5: 'TKML', 6: 'KTLM', 7: 'KLTM'}[ORD]
        d = 0; lst = []
        for c in order:
            st, n = seg[c]; lst.append((st - d, d + n)); d += n
        assert d == K1_GRID
        a('s_mov_b32 s3, s2')
        for off, lim in reversed(lst):
            if off >= 0: a(f's_add_u32 s4, s2, {off}')
            else: a(f's_sub_u32 s4, s2, {-off}')
            a(f's_cmp_lt_u32 s2, {lim}'); a('s_cselect_b32 s3, s4, s3')
        a('s_mov_b32 s2, s3')
    a(f's_cmp_lt_u32 s2, {N_MOD}'); a.branch('s_cbranch_scc1 K1_MOD')
    a(f's_cmp_lt_u32 s2, {N_MOD+N_LN1}'); a.branch('s_cbranch_scc1 K1_LN')
    a(f's_cmp_lt_u32 s2, {N_MOD+N_LN1+N_KG}'); a.branch('s_cbranch_scc1 K1_KG')
    if N_TW:
        a(f's_cmp_ge_u32 s2, {K1_GRID}'); a.branch('s_cbranch_scc1 K1_END')
        load_ptr(a, 4, 'ws'); load_ptr(a, 8, 'w1'); load_ptr(a, 12, 'w3'); load_ptr(a, 16, 'w2'); load_ptr(a, 20, 'out')
        a(f'v_lshlrev_b32 v1, {TLBW}, v0')
        a('s_waitcnt lgkmcnt(0)')
        copy_srd(a, 24, 4, SZ_RK, WS_RK)
        make_srd(a, 4, WS_W2P + SZ_W2P); make_srd(a, 8, 576 * 9216); make_srd(a, 12, 576 * 9216); make_srd(a, 16, 4608 * 1152); make_srd(a, 20, 2048 * 1152)
        r = 8
        span = 256 << TLBW
        if F12:
            a('v_add_u32 v4, 0x8000, v1'); a('v_mov_b32 v5, 0x7ffffff0'); a('v_lshrrev_b32 v6, 1, v0'); a('v_cmp_eq_u32 vcc, 1, v6'); a('v_cndmask_b32 v4, v4, v5, vcc')
            a(f'buffer_load_dword v{r}, v4, s[4:7], 0 offen'); r += 1
        for srd, size in ((4, WS_W2P + SZ_W2P), (24, SZ_RK), (8, 576 * 9216), (12, 576 * 9216), (16, 4608 * 1152), (20, 2048 * 1152)):
            if F12 and srd in (4, 24): continue
            for i in range((size + span - 1) // span):
                if i: a(f'v_add_u32 v2, {i * span}, v1')
                a(f'buffer_load_dword v{r}, v{2 if i else 1}, s[{srd}:{srd+3}], 0 offen'); r += 1
        if int(os.environ.get('SPEC', '1')):
            a(f's_sub_u32 s30, s2, {N_MOD+N_LN1+N_KG+N_PF}')
            a('s_cmp_ge_u32 s30, 7'); a.branch('s_cbranch_scc1 K1_TW_E')
            a(f's_add_u32 s32, s4, {hex(WS_XF)}'); a('s_addc_u32 s33, s5, 0'); a(f's_mov_b32 s34, {hex(SZ_XF)}'); a('s_mov_b32 s35, 0x20000')
            a('s_mul_i32 s31, s30, 9'); a('s_cmp_gt_u32 s30, 0'); a('s_addc_u32 s31, s31, 0'); a('s_mul_i32 s31, s31, 36864')
            for i in range(4): a(f'v_mov_b32 v{40+i}, -1')
            a('v_lshlrev_b32 v3, 4, v0')
            for i in range(9):
                a(f'buffer_store_dwordx4 v[40:43], v3, s[32:35], s31 offen')
                if i < 8: a('s_add_u32 s31, s31, 4096')
            a.label('K1_TW_E')
        fin('tw')
        a('s_waitcnt vmcnt(0)')
    if N_PF:
        a(f's_cmp_ge_u32 s2, {K1_GRID}'); a.branch('s_cbranch_scc1 K1_END')
        a(f's_sub_u32 s3, s2, {N_MOD+N_LN1+N_KG}')
        a('s_mul_i32 s8, s3, 911'); a('s_lshr_b32 s8, s8, 16')
        a('s_mul_i32 s9, s8, 72'); a('s_sub_u32 s9, s3, s9')
        a('s_lshl_b32 s8, s8, 3'); a(f's_add_u32 s8, s8, {KA["w1"]}')
        a('s_load_dwordx2 s[4:5], s[0:1], s8')
        a('s_mul_i32 s9, s9, 73728')
        a('v_lshlrev_b32 v1, 4, v0')
        a('s_waitcnt lgkmcnt(0)')
        make_srd(a, 4, 576 * 9216)
        for i in range(18):
            a(f's_add_u32 s10, s9, {i*4096}')
            a(f'buffer_load_dwordx4 v[{8+4*i}:{11+4*i}], v1, s[4:7], s10 offen')
        a('s_waitcnt vmcnt(0)')
    a('s_endpgm')
    a.label('K1_MOD')
    load_ptr(a, 4, 'wmod'); load_ptr(a, 8, 'c'); load_ptr(a, 12, 'ws')
    a('v_and_b32 v1, 7, v0')
    a('v_lshrrev_b32 v2, 3, v0')
    a('v_mul_u32_u24 v3, 36, v2')
    a(f'v_mul_u32_u24 v4, {18*6912}, v2')
    a('v_lshl_add_u32 v4, v1, 4, v4')
    a('s_lshl_b32 s3, s2, 7')
    a('v_add_u32 v4, s3, v4')
    a('s_waitcnt lgkmcnt(0)')
    copy_srd(a, 40, 12, SZ_CNT, WS_CNT)
    make_srd(a, 4, 576 * 6912); make_srd(a, 8, 1152); make_srd(a, 12, SZ_MOD, WS_MOD)
    for i in range(4): a(f'v_mov_b32 v{112+i}, 0')
    a('v_lshlrev_b32 v116, 4, v0'); a('s_lshl_b32 s44, s2, 12'); a('v_add_u32 v116, s44, v116')
    a('buffer_store_dwordx4 v[112:115], v116, s[40:43], 0 offen')
    C = 8; W = 20
    a(f'buffer_load_dwordx4 v[{C}:{C+3}], v3, s[8:11], 0 offen')
    a(f'buffer_load_dwordx4 v[{C+4}:{C+7}], v3, s[8:11], 0 offen offset:16')
    a(f'buffer_load_dword v{C+8}, v3, s[8:11], 0 offen offset:32')
    for i in range(18):
        a(f's_mov_b32 s{16+i}, {i*6912}')
        a(f'buffer_load_dwordx4 v[{W+4*i}:{W+4*i+3}], v4, s[4:7], s{16+i} offen')
    S = 92
    a('s_waitcnt vmcnt(18)')
    stamp(a, 1, 'k1')
    for i in range(9):
        unpack_lo(a, S + 2 * i, C + i); unpack_hi(a, S + 2 * i + 1, C + i)
    T = 110
    for i in range(18): a(f'v_mul_f32 v{T+i}, {f32bits(-LOG2E)}, v{S+i}')
    for i in range(18): a(f'v_exp_f32 v{T+i}, v{T+i}')
    for i in range(18): a(f'v_add_f32 v{T+i}, 1.0, v{T+i}')
    for i in range(18): a(f'v_rcp_f32 v{T+i}, v{T+i}')
    for i in range(18): a(f'v_mul_f32 v{S+i}, v{S+i}, v{T+i}')
    for i in range(9): a(f'v_cvt_pk_bf16_f32 v{T+i}, v{S+2*i}, v{S+2*i+1}')
    for i in range(9):
        unpack_lo(a, S + 2 * i, T + i); unpack_hi(a, S + 2 * i + 1, T + i)
    ACC = 110; U = 118
    for i in range(18):
        a(f's_waitcnt vmcnt({17-i})')
        for j in range(4):
            unpack_lo(a, U + 2 * j, W + 4 * i + j); unpack_hi(a, U + 2 * j + 1, W + 4 * i + j)
        for j in range(8):
            if i == 0: a(f'v_mul_f32 v{ACC+j}, v{S+i}, v{U+j}')
            else: a(f'v_fmac_f32 v{ACC+j}, v{S+i}, v{U+j}')
    red_l8_multi(a, [ACC + j for j in range(8)], [U + j for j in range(8)])
    a('v_lshrrev_b32 v5, 6, v0')
    a('v_lshlrev_b32 v5, 8, v5')
    a('v_lshl_add_u32 v5, v1, 5, v5')
    a(f'ds_write_b128 v5, v[{ACC}:{ACC+3}]')
    a(f'ds_write_b128 v5, v[{ACC+4}:{ACC+7}] offset:16')
    a('s_waitcnt lgkmcnt(0)'); a('s_barrier')
    a('v_cmp_gt_u32 vcc, 64, v0')
    a('s_and_saveexec_b64 s[40:41], vcc')
    a.branch('s_cbranch_execz K1_END')
    a('v_lshlrev_b32 v6, 2, v0')
    for w in range(4): a(f'ds_read_b32 v{8+w}, v6 offset:{w*256}')
    a('s_waitcnt lgkmcnt(0)')
    a('v_add_f32 v8, v8, v9'); a('v_add_f32 v10, v10, v11'); a('v_add_f32 v8, v8, v10')
    round_bf16_1(a, 8, 8)
    a('s_lshl_b32 s3, s2, 8')
    a('v_add_u32 v6, s3, v6')
    a('buffer_store_dword v8, v6, s[12:15], 0 offen' + (' sc1' if F12 else ''))
    if F12: dbg_srd(a); a('s_waitcnt vmcnt(0)'); arrive(a)
    fin('mod')
    a('s_endpgm')
    a.label('K1_LN')
    a('v_readfirstlane_b32 s4, v0')
    a('s_cmp_ge_u32 s4, 192'); a.branch('s_cbranch_scc1 K1_END')
    load_ptr(a, 4, 'u'); load_ptr(a, 8, 'ws')
    a(f's_sub_u32 s3, s2, {N_MOD}')
    a('v_and_b32 v1, 7, v0')
    a('v_lshrrev_b32 v2, 3, v0')
    a('v_mul_u32_u24 v3, 1152, v1')
    a('v_lshl_add_u32 v3, v2, 4, v3')
    a('s_mul_i32 s12, s3, 9216')
    a('s_waitcnt lgkmcnt(0)')
    make_srd(a, 4, 2048 * 1152); make_srd(a, 8, SZ_XT, WS_XT)
    XP = 8; XF = 20; TMP = 44; XN = 60
    for i in range(3):
        a(f'buffer_load_dwordx4 v[{XP+4*i}:{XP+4*i+3}], v3, s[4:7], s12 offen offset:{i*24*16}')
    RED = 72 * 288
    a('v_lshrrev_b32 v4, 6, v0')
    a('v_lshlrev_b32 v4, 5, v4')
    a('v_lshl_add_u32 v4, v1, 2, v4')
    a('v_lshlrev_b32 v5, 2, v1')
    a('v_mul_u32_u24 v6, 288, v2')
    a('v_lshl_add_u32 v6, v1, 2, v6')
    a('s_mov_b32 s14, 0x05040100'); a('s_mov_b32 s15, 0x07060302')
    a('s_waitcnt vmcnt(0)')
    stamp(a, 1, 'k1')
    ln_core(a, 3, XP, XF, TMP, 3, 4, 5, RED, XN)
    for i in range(3):
        for j in range(4):
            r = 4 * i + j
            a(f'v_perm_b32 v{XF+2*r}, v{XP+r}, v{XN+r}, s14')
            a(f'v_perm_b32 v{XF+2*r+1}, v{XP+r}, v{XN+r}, s15')
        for e in range(8):
            a(f'ds_write_b32 v6, v{XF+8*i+e} offset:{i*24*288 + e*32}')
    a('s_waitcnt lgkmcnt(0)'); a('s_barrier')
    a('v_lshrrev_b32 v1, 4, v0')
    a('v_mul_u32_u24 v1, 288, v1')
    a('v_and_b32 v2, 15, v0')
    a('v_lshl_add_u32 v1, v2, 4, v1')
    a('v_lshlrev_b32 v2, 4, v0')
    a(f's_mul_i32 s12, s3, {XT_STRIDE}')
    for j in range(6): a(f'ds_read_b128 v[{XF+4*j}:{XF+4*j+3}], v1 offset:{j*12*288}')
    for j in range(6):
        a(f's_waitcnt lgkmcnt({5-j})')
        a(f's_add_u32 s13, s12, {j*3072}')
        a(f'buffer_store_dwordx4 v[{XF+4*j}:{XF+4*j+3}], v2, s[8:11], s13 offen' + (' sc1' if F12 else ''))
    if F12:
        dbg_srd(a); a('v_readfirstlane_b32 s4, v0')
        a('s_waitcnt vmcnt(0)'); a('s_barrier')
        a('s_cmp_lg_u32 s4, 0'); a.branch('s_cbranch_scc1 K1_END')
        arrive(a)
    fin('ln')
    a('s_endpgm')
    a.label('K1_KG')
    if F12: stamp(a, 0, 'k2')
    names = ['A_re', 'A_im', 'B_re', 'B_im', 'C_re', 'C_im']
    for i, nm in enumerate(names): load_ptr(a, 4 + 4 * i, nm)
    load_ptr(a, 28, 'log_dt'); load_ptr(a, 32, 'ws')
    a(f's_sub_u32 s3, s2, {N_MOD+N_LN1}')
    K1IN = int(os.environ.get('K1IN', '0'))
    if K1IN == 2:
        a('s_cmp_ge_u32 s3, 288'); a('s_cselect_b32 s52, 8, 0'); a('s_cselect_b32 s53, 288, 0'); a('s_sub_u32 s53, s3, s53')
        a(f's_add_u32 s52, s52, {KA["w1"]}')
        a('s_load_dwordx2 s[44:45], s[0:1], s52')
        a('s_mul_i32 s53, s53, 18432')
        a('v_lshlrev_b32 v109, 4, v0'); a('v_add_u32 v109, s53, v109')
    elif K1IN == 1:
        load_ptr(a, 44, 'w1')
        a('s_mul_i32 s53, s3, 9216')
        a('v_lshlrev_b32 v109, 4, v0'); a('v_add_u32 v109, s53, v109')
    a('s_and_b32 s36, s3, 7'); a('s_mul_i32 s36, s36, 72'); a('s_lshr_b32 s37, s3, 3'); a('s_add_u32 s3, s36, s37')
    a('v_and_b32 v1, 127, v0')
    a('v_lshlrev_b32 v2, 1, v1')
    a('s_lshl_b32 s36, s3, 8')
    a('s_and_b32 s37, s3, -2'); a('s_lshl_b32 s37, s37, 1')
    a('v_readfirstlane_b32 s38, v0')
    a('s_waitcnt lgkmcnt(0)')
    a('s_load_dword s39, s[28:29], s37')
    for i in range(6): make_srd(a, 4 + 4 * i, 576 * 256)
    make_srd(a, 32, SZ_RK, WS_RK)
    for i in range(6): a(f'buffer_load_ushort v{8+i}, v2, s[{4+4*i}:{7+4*i}], s36 offen')
    NPFI = 0
    if K1IN:
        a(f's_mov_b32 s46, {576*9216}'); a('s_mov_b32 s47, 0x20000')
        full, part = (4, 2048) if K1IN == 2 else (2, 1024)
        for i in range(full):
            a(f'buffer_load_dwordx4 v[96:99], v109, s[44:47], 0 offen offset:0' if i == 0 else f'v_add_u32 v109, 4096, v109')
            if i: a(f'buffer_load_dwordx4 v[96:99], v109, s[44:47], 0 offen')
        a('v_add_u32 v109, 4096, v109')
        a(f'v_mov_b32 v119, 0x7ffffff0'); a(f'v_cmp_gt_u32 vcc, {part//16}, v0'); a('v_cndmask_b32 v109, v119, v109, vcc')
        a(f'buffer_load_dwordx4 v[96:99], v109, s[44:47], 0 offen')
        NPFI = full + 1
    KC = 33792
    GA = 100
    a('v_lshlrev_b32 v3, 3, v0')
    a('v_sub_u32 v3, 2047, v3')
    for e in range(9):
        a(f'v_subrev_u32 v{GA+e}, {e}, v3')
    for e in range(10): a(f'v_cvt_f32_u32 v{110+e}, v{GA+min(e,8)}')
    for e in range(5): a(f'v_cvt_pk_bf16_f32 v{120+e}, v{110+2*e}, v{110+2*e+1}')
    for e in range(4):
        a(f'v_and_b32 v{110+2*e}, 0xffff, v{120+e}')
        a(f'v_lshrrev_b32 v{110+2*e+1}, 16, v{120+e}')
    a('v_and_b32 v118, 0xffff, v124')
    a('v_cmp_gt_u32 vcc, 240, v0')
    for e in range(9): a(f'v_subrev_u32 v{110+e}, 17024, v{110+e}')
    for e in range(8): a(f'v_cndmask_b32 v{GA+e}, v{GA+e}, v{110+e}, vcc')
    a('v_cmp_gt_u32 vcc, 239, v0')
    a(f'v_cndmask_b32 v{GA+8}, v{GA+8}, v118, vcc')
    a(f'v_max_i32 v{GA+8}, 0, v{GA+8}')
    for e in range(9): a(f'v_lshlrev_b32 v{GA+e}, 1, v{GA+e}')
    a('s_lshr_b32 s40, s38, 6')
    a('s_and_b32 s41, s40, 1')
    a('s_lshr_b32 s42, s40, 1')
    a('v_and_b32 v4, 15, v0')
    a('s_lshl_b32 s43, s41, 4')
    a('v_add_u32 v4, s43, v4')
    a('v_bfe_u32 v5, v0, 4, 2')
    KW = 124
    a('s_cmp_eq_u32 s42, 0'); a.branch('s_cbranch_scc0 K1_KG_RT1')
    a('v_lshlrev_b32 v124, 3, v4')
    a('v_lshl_add_u32 v124, v5, 2, v124')
    a('v_lshlrev_b32 v6, 2, v4'); a('v_add_u32 v6, 256, v6')
    a('v_cmp_eq_u32 vcc, 2, v5'); a('v_cndmask_b32 v124, v124, v6, vcc')
    a('v_lshlrev_b32 v6, 1, v4'); a('v_add_u32 v6, 384, v6')
    a('v_cmp_eq_u32 vcc, 3, v5'); a('v_cndmask_b32 v124, v124, v6, vcc')
    a('v_mov_b32 v125, 1')
    a('v_mov_b32 v6, 64'); a('v_cndmask_b32 v126, 2, v6, vcc')
    a.branch('s_branch K1_KG_A')
    a.label('K1_KG_RT1')
    a('v_add_u32 v124, 700, v4')
    a('v_add_u32 v6, 640, v4'); a('v_cmp_eq_u32 vcc, 1, v5'); a('v_cndmask_b32 v124, v124, v6, vcc')
    a('v_add_u32 v6, 512, v4'); a('v_cmp_eq_u32 vcc, 0, v5'); a('v_cndmask_b32 v124, v124, v6, vcc')
    a('v_mov_b32 v6, 32'); a('v_mov_b32 v7, 64'); a('v_cndmask_b32 v125, v7, v6, vcc')
    a('v_lshlrev_b32 v126, 1, v125')
    a.label('K1_KG_A')
    a('v_add_u32 v127, v126, v125')
    a('v_add_u32 v125, v124, v125'); a('v_add_u32 v126, v124, v126'); a('v_add_u32 v127, v124, v127')
    for i in range(4): a(f'v_lshlrev_b32 v{124+i}, 1, v{124+i}')
    a('s_waitcnt lgkmcnt(0)')
    a('s_and_b32 s43, s3, 1'); a('s_lshl_b32 s43, s43, 4'); a('s_lshr_b32 s39, s39, s43'); a('s_lshl_b32 s39, s39, 16')
    a(f'v_mov_b32 v14, s39')
    a(f'v_mul_f32 v14, {f32bits(LOG2E)}, v14')
    a('v_exp_f32 v14, v14')
    round_bf16_1(a, 14, 14)
    a(f's_waitcnt vmcnt({NPFI})')
    stamp(a, 1, 'k1')
    for i in range(6): a(f'v_lshlrev_b32 v{8+i}, 16, v{8+i}')
    a('v_mul_f32 v8, v8, v14'); a('v_mul_f32 v9, v9, v14')
    a('v_mul_f32 v10, v10, v14'); a('v_mul_f32 v11, v11, v14')
    a(f'v_mul_f32 v8, {f32bits(LOG2E)}, v8')
    a(f'v_mul_f32 v9, {f32bits(0.15915494309189535)}, v9')
    cmul(a, 16, 12, 10)
    a(f'v_mul_f32 v16, {float(2**KSCALE_LOG2)}, v16'); a(f'v_mul_f32 v17, {float(2**KSCALE_LOG2)}, v17')
    def D(dst, al):
        a(f'v_mul_f32 v4, {float(al)}, v8'); a(f'v_mul_f32 v5, {float(al)}, v9')
        a('v_exp_f32 v4, v4'); a('v_fract_f32 v5, v5')
        a('v_cos_f32 v6, v5'); a('v_sin_f32 v7, v5')
        a(f'v_mul_f32 v{dst}, v4, v6'); a(f'v_mul_f32 v{dst+1}, v4, v7')
    UB = 0; VB = 16896
    a('v_lshlrev_b32 v3, 2, v1')
    def putU(r, src):
        a(f'v_cvt_pk_f16_f32 v2, v{src}, v{src+1}')
        a(f'ds_write_b32 v3, v2 offset:{UB + r*528}')
    def putV(j, src):
        a(f'v_cvt_pk_f16_f32 v2, v{src}, -v{src+1}')
        a(f'ds_write_b32 v3, v2 offset:{VB + j*528}')
    E8, EX, EY, P0, P1 = 18, 20, 22, 24, 26
    a('s_cmp_ge_u32 s38, 128'); a.branch('s_cbranch_scc1 K1_KG_H1')
    D(E8, 8); D(EX, 1); D(EY, 256)
    a(f'v_mov_b32 v{P0}, 1.0'); a(f'v_mov_b32 v{P0+1}, 0')
    putV(0, P0); putV(1, E8)
    cur, nxt = E8, P0
    for j in range(2, 16):
        cmul(a, nxt, cur, E8); putV(j, nxt)
        cur = nxt; nxt = P1 if nxt == P0 else P0
    cur = 16
    for r in range(8):
        if r > 0:
            nxt = P0 if cur != P0 else P1
            cmul(a, nxt, cur, EX); cur = nxt
        putU(r, cur)
        if r % 2 == 0:
            cmul(a, 28, cur, EY); putU(8 + r // 2, 28)
    a.branch('s_branch K1_KG_B')
    a.label('K1_KG_H1')
    D(E8, 8); D(P0, 128); D(EX, 4)
    cmul(a, EY, P0, P0)
    cmul(a, 28, EY, EY)
    cmul(a, 30, 28, 28)
    putV(16, P0)
    cur, nxt = P0, P1
    for j in range(17, 32):
        cmul(a, nxt, cur, E8); putV(j, nxt)
        cur, nxt = nxt, cur
    cmul(a, P0, 16, 28); putU(12, P0)
    cmul(a, P1, P0, EX); putU(13, P1)
    cmul(a, P1, P0, EY); putU(14, P1)
    cmul(a, P0, P1, EX); putU(15, P0)
    cmul(a, P0, 16, 30); putU(16, P0)
    cmul(a, P1, P0, EY); putU(17, P1)
    cmul(a, P0, P1, EY); putU(18, P0)
    cmul(a, P1, P0, EY); putU(19, P1)
    cmul(a, P0, P1, EY); putU(20, P0)
    a.label('K1_KG_B')
    a('v_and_b32 v4, 15, v0'); a('v_bfe_u32 v5, v0, 4, 2')
    a('s_lshl_b32 s43, s42, 4'); a('v_add_u32 v6, s43, v4'); a('v_mul_u32_u24 v6, 528, v6'); a('v_lshl_add_u32 v6, v5, 4, v6')
    a('s_lshl_b32 s43, s41, 4'); a('v_add_u32 v7, s43, v4'); a('v_mul_u32_u24 v7, 528, v7'); a('v_lshl_add_u32 v7, v5, 4, v7')
    if F12:
        dbg_srd(a)
        a('v_and_b32 v97, 63, v0'); a('v_lshlrev_b32 v97, 2, v97')
        a('buffer_load_dword v96, v97, s[64:67], 0 offen sc1')
    a('s_waitcnt lgkmcnt(0)'); a('s_barrier')
    FA = 32; FB = 64
    for s in range(8):
        a(f'ds_read_b128 v[{FA+4*s}:{FA+4*s+3}], v6 offset:{UB + s*64}')
        a(f'ds_read_b128 v[{FB+4*s}:{FB+4*s+3}], v7 offset:{VB + s*64}')
    for s in range(8):
        a(f's_waitcnt lgkmcnt({14-2*s})')
        a(f'v_mfma_f32_16x16x32_f16 v[8:11], v[{FA+4*s}:{FA+4*s+3}], v[{FB+4*s}:{FB+4*s+3}], ' + ('0' if s == 0 else 'v[8:11]'))
    a('v_cvt_pk_f16_f32 v12, v8, v9'); a('v_cvt_pk_f16_f32 v13, v10, v11')
    a(f'ds_write_b16 v124, v12 offset:{KC}'); a(f'ds_write_b16_d16_hi v125, v12 offset:{KC}')
    a(f'ds_write_b16 v126, v13 offset:{KC}'); a(f'ds_write_b16_d16_hi v127, v13 offset:{KC}')
    a('s_waitcnt lgkmcnt(0)'); a('s_barrier')
    for e in range(9):
        a(f'ds_read_u16 v{24+e}, v{GA+e} offset:{KC}')
    a('v_lshlrev_b32 v2, 4, v0')
    a(f's_mul_i32 s36, s3, {RK_STRIDE}')
    a('s_add_u32 s37, s36, 4096')
    a('v_cmp_gt_u32 vcc, 255, v0')
    a('s_waitcnt lgkmcnt(0)')
    a('v_cndmask_b32 v32, 0, v32, vcc')
    for e in range(4): a(f'v_lshl_or_b32 v{16+e}, v{24+2*e+1}, 16, v{24+2*e}')
    for e in range(4): a(f'v_lshl_or_b32 v{20+e}, v{24+2*e+2}, 16, v{24+2*e+1}')
    if F12:
        from gen_k23 import k2_body, K2_RC
        a(f'ds_write_b128 v2, v[16:19] offset:{K2_RC}'); a(f'ds_write_b128 v2, v[20:23] offset:{K2_RC+4160}')
        k2_body(a, True)
    else:
        a('buffer_store_dwordx4 v[16:19], v2, s[32:35], s36 offen')
        a('buffer_store_dwordx4 v[20:23], v2, s[32:35], s37 offen')
        fin('kg')
    a.label('K1_END')
    a('s_endpgm')
    return kernel_desc('k1_kernel', 160 if F12 else 128)
```
